```python
import torch

def _softmax(x, axis=-1):
    return torch.softmax(x, dim=axis)
def _gelu(x):
    return torch.nn.functional.gelu(x, approximate="tanh")
def _silu(x):
    return torch.nn.functional.silu(x)
def _sigmoid(x):
    return torch.sigmoid(x)
def _layernorm(x, axis=-1, eps=1e-5):
    m = x.mean(dim=axis, keepdim=True)
    v = x.var(dim=axis, keepdim=True, unbiased=False)
    return (x - m) / torch.sqrt(v + eps)
def _scatter_add(tgt, idx, src, axis=0):
    return tgt.clone().index_add_(axis, idx, src)
def _segment_sum(src, seg, n):
    out = torch.zeros((n,) + src.shape[1:], dtype=src.dtype)
    return out.index_add_(0, seg, src)
def _pad(x, pw):
    flat = tuple(v for pair in reversed(pw) for v in pair)
    return torch.nn.functional.pad(x, flat)

kernel_name = 'gated_mix__linear_attn_block__linear_kernel_hedgehog__prompt'

def setup_inputs():

    _w = (lambda a: (lambda t: t.to(torch.bfloat16) if t.is_floating_point() else t)(torch.as_tensor(a)))
    def _A_setup():
        B, S, D = 1, 2048, 512
        return {
            "x": _w((lambda *s: torch.randn(*s, dtype=torch.bfloat16) * 0.05)(B, S, D)),
            "wqkv": _w((lambda *s: torch.randn(*s, dtype=torch.bfloat16) * 0.4)(D, 3 * D)),
            "wo": _w((lambda *s: torch.randn(*s, dtype=torch.bfloat16) * 0.1)(D, D)),
        }
    _A_in = _A_setup()

    def _B_setup():
        B, S, D, H = 1, 2048, 512, 32
        Dh = D // H
        return {
            "x": _w((lambda *s: torch.randn(*s, dtype=torch.bfloat16) * 0.05)(B, S, D)),
            "wqkv": _w((lambda *s: torch.randn(*s, dtype=torch.bfloat16) * 0.8)(D, 3 * D)),
            "w_phi": _w((lambda *s: torch.randn(*s, dtype=torch.bfloat16) * 0.8)(H, Dh, Dh) * (Dh ** -0.5)),
            "wo": _w((lambda *s: torch.randn(*s, dtype=torch.bfloat16) * 0.05)(D, D)),
        }
    _B_in = _B_setup()

    return {
        "A_x": _A_in["x"],
        "A_wqkv": _A_in["wqkv"],
        "A_wo": _A_in["wo"],
        "B_x": _B_in["x"],
        "B_wqkv": _B_in["wqkv"],
        "B_w_phi": _B_in["w_phi"],
        "B_wo": _B_in["wo"],
        "gate_w": _w((lambda *s: torch.randn(*s, dtype=torch.bfloat16) * 0.05)(512) * 16.0),
    }

def reference(A_x, A_wqkv, A_wo, B_x, B_wqkv, B_w_phi, B_wo, gate_w):
    def _A_ref(x, wqkv, wo):
        B, S, D = x.shape
        H = 32; Dh = D // H
        qkv = (lambda x, *d: x.permute(*d))((x @ wqkv).reshape(B, S, 3, H, Dh), 2, 0, 3, 1, 4)
        q, k, v = qkv[0], qkv[1], qkv[2]
        phi = lambda t: torch.where(t > 0, t + 1, torch.exp(t)) + 1e-6
        pq, pk = phi(q), phi(k)
        kv = torch.einsum("bhsd,bhse->bhde", pk, v)
        z = torch.einsum("bhsd->bhd", pk)
        num = torch.einsum("bhqd,bhde->bhqe", pq, kv)
        den = torch.einsum("bhqd,bhd->bhq", pq, z)[..., None] + 1e-6
        o = num / den
        return (lambda x, *d: x.permute(*d))(o, 0, 2, 1, 3).reshape(B, S, D) @ wo

    def _B_ref(x, wqkv, w_phi, wo):
        B, S, D = x.shape
        H = 32; Dh = D // H
        qkv = (lambda x, *d: x.permute(*d))((x @ wqkv).reshape(B, S, 3, H, Dh), 2, 0, 3, 1, 4)
        q, k, v = qkv[0], qkv[1], qkv[2]
        pq = torch.einsum("bhsd,hdf->bhsf", q, w_phi)
        pk = torch.einsum("bhsd,hdf->bhsf", k, w_phi)
        phi_q = torch.concatenate([_softmax(pq, axis=-1), _softmax(-pq, axis=-1)], axis=-1)
        phi_k = torch.concatenate([_softmax(pk, axis=-1), _softmax(-pk, axis=-1)], axis=-1)
        kv = torch.einsum("bhsf,bhsd->bhfd", phi_k, v)
        z  = torch.einsum("bhsf->bhf", phi_k)
        num = torch.einsum("bhqf,bhfd->bhqd", phi_q, kv)
        den = torch.einsum("bhqf,bhf->bhq", phi_q, z)[..., None] + 1e-6
        o = num / den
        return (lambda x, *d: x.permute(*d))(o, 0, 2, 1, 3).reshape(B, S, D) @ wo

    x = A_x
    g = _sigmoid((x * gate_w).sum(-1, keepdims=True))
    a = _A_ref(x, A_wqkv, A_wo)
    b = _B_ref(x, B_wqkv, B_w_phi, B_wo)
    return g * a + (1 - g) * b
```

```python
import re

REG_RE = re.compile(r'^(-|\|)?(abs\()?([vas])(\d+|\[\d+:\d+\])\)?\|?$')

def regs_of(tok):
    t = tok.strip()
    if t in ('vcc',): return [('s', 'vcc')]
    if t in ('exec',): return [('s', 'exec')]
    if t == 'm0': return [('s', 'm0')]
    if t == 'scc': return [('s', 'scc')]
    t2 = t.lstrip('-')
    t2 = t2.replace('abs(', '').replace(')', '').replace('|', '')
    m = re.match(r'^([vas])(\d+)$', t2)
    if m: return [(m.group(1), int(m.group(2)))]
    m = re.match(r'^([vas])\[(\d+):(\d+)\]$', t2)
    if m: return [(m.group(1), i) for i in range(int(m.group(2)), int(m.group(3)) + 1)]
    return []

TRANS = ('v_exp_f32', 'v_log_f32', 'v_rcp_f32', 'v_rsq_f32', 'v_sqrt_f32', 'v_sin_f32', 'v_cos_f32')

class Ins:
    __slots__ = ('text', 'op', 'ops', 'mods', 'defs', 'uses', 'kind', 'raw', 'tag', 'lds')
    def __init__(self, text, tag=None):
        self.text = text
        self.tag = tag
        s = text.split(';')[0].strip()
        self.raw = s
        if s.endswith(':') or s.startswith('.') or s == '':
            self.op = None; self.kind = 'label' if s.endswith(':') else 'dir'
            self.defs = []; self.uses = []; self.ops = []; self.mods = ''; self.lds = False
            return
        parts = s.split(None, 1)
        self.op = parts[0]
        rest = parts[1] if len(parts) > 1 else ''
        toks = [x.strip() for x in re.split(r',(?![^\[]*\])', rest)] if rest else []
        mods = ''
        if toks:
            last = toks[-1].split(None, 1)
            if len(last) > 1:
                toks[-1] = last[0]; mods = last[1]
        self.ops = toks; self.mods = mods
        self.lds = False
        self.classify()

    def classify(self):
        op = self.op; o = self.ops
        R = lambda t: regs_of(t)
        d = []; u = []
        if op.startswith('v_mfma'):
            self.kind = 'mfma'; d = R(o[0]); u = R(o[1]) + R(o[2]) + R(o[3])
        elif op.startswith('ds_'):
            self.kind = 'ds'
            if op.startswith('ds_read') or op.startswith('ds_bpermute') or op.startswith('ds_swizzle') or op.startswith('ds_permute'):
                d = R(o[0]); u = sum((R(x) for x in o[1:]), [])
            else:
                u = sum((R(x) for x in o), [])
        elif op.startswith('buffer_') or op.startswith('global_'):
            self.kind = 'vmem'
            allm = (self.mods + ' ' + ' '.join(o)).split()
            self.lds = 'lds' in allm
            if op.startswith('buffer_load'):
                if self.lds: u = sum((R(x) for x in o), []) + [('s', 'm0')]
                else: d = R(o[0]); u = sum((R(x) for x in o[1:]), [])
            elif op.startswith('global_load'):
                d = R(o[0]); u = sum((R(x) for x in o[1:]), [])
            elif op.startswith('buffer_inv') or op.startswith('buffer_wbl2'):
                pass
            else:
                u = sum((R(x) for x in o), [])
        elif op.startswith('s_'):
            self.kind = 'salu'
            if op in ('s_waitcnt', 's_barrier', 's_nop', 's_endpgm', 's_branch', 's_setprio', 's_sleep'):
                self.kind = 'ctl'
            elif op.startswith('s_cbranch'):
                self.kind = 'ctl'
                if 'vcc' in op: u = [('s', 'vcc')]
                if 'exec' in op: u = [('s', 'exec')]
                if 'scc' in op: u = [('s', 'scc')]
            elif op.startswith('s_load') or op.startswith('s_memtime') or op.startswith('s_memrealtime'):
                self.kind = 'smem'; d = R(o[0]); u = sum((R(x) for x in o[1:]), [])
            elif op.startswith('s_cmp') or op.startswith('s_bitcmp'):
                d = [('s', 'scc')]; u = sum((R(x) for x in o), [])
            else:
                d = R(o[0]); u = sum((R(x) for x in o[1:]), [])
                if 'saveexec' in op: d = d + [('s', 'exec')]; u = u + [('s', 'exec')]
                if op.startswith('s_cselect') or op.startswith('s_addc') or op.startswith('s_subb'): u = u + [('s', 'scc')]
                if op.startswith(('s_addk', 's_mulk')): u = u + R(o[0])
        elif op.startswith('v_'):
            self.kind = 'valu'
            if op.startswith('v_cmp'):
                d = R(o[0]); u = R(o[1]) + R(o[2])
            elif op.startswith('v_permlane') and 'swap' in op:
                d = R(o[0]) + R(o[1]); u = list(d)
            elif op.startswith(('v_fmac', 'v_pk_fmac', 'v_dot2c')):
                d = R(o[0]); u = sum((R(x) for x in o), [])
            elif op.startswith('v_readfirstlane') or op.startswith('v_readlane'):
                d = R(o[0]); u = sum((R(x) for x in o[1:]), [])
            elif op.startswith(('v_add_co', 'v_sub_co', 'v_addc_co')):
                d = R(o[0]) + R(o[1]); u = sum((R(x) for x in o[2:]), [])
            elif op.startswith('v_cndmask'):
                d = R(o[0]); u = sum((R(x) for x in o[1:]), [])
                if len(o) == 3: u = u + [('s', 'vcc')]
            else:
                d = R(o[0]); u = sum((R(x) for x in o[1:]), [])
                if 'dpp' in op or 'row_' in self.mods or 'quad_perm' in self.mods:
                    u = u + R(o[0])
        else:
            raise ValueError('unknown op ' + op)
        self.defs = d; self.uses = u

    def is_dpp(self):
        return self.kind == 'valu' and ('_dpp' in self.op or 'row_' in self.mods or 'quad_perm' in self.mods)
    def is_trans(self):
        return self.kind == 'valu' and any(self.op.startswith(t) for t in TRANS)
    def nstates(self):
        if self.op == 's_nop': return int(self.ops[0], 0) + 1
        if self.op is None: return 0
        return 1

def mfma_passes(op):
    if '32x32x16' in op or '32x32x8' in op: return 8
    if '16x16x32' in op or '16x16x16' in op: return 4
    raise ValueError(op)

def required_gap(p, c):
    need = 0
    pd = set(p.defs); cu = set(c.uses); cd = set(c.defs)
    vp = lambda s: set(x for x in s if x[0] in 'va')
    sp = lambda s: set(x for x in s if x[0] == 's')
    if p.kind == 'valu':
        if c.kind == 'mfma' and vp(pd) & vp(cu): need = max(need, 2)
        if c.kind == 'valu':
            if c.op.startswith('v_permlane') and vp(pd) & vp(cu): need = max(need, 2)
            if c.is_dpp() and vp(pd) & vp(cu): need = max(need, 2)
            if (c.op.startswith('v_readfirstlane') or c.op.startswith('v_readlane')) and vp(pd) & vp(cu): need = max(need, 1)
            if p.is_trans() and not c.is_trans() and vp(pd) & vp(cu): need = max(need, 1)
            if sp(pd) & sp(cu): need = max(need, 2)
            if ('s', 'exec') in pd: need = max(need, 5 if c.is_dpp() else 0)
            if 'op_sel' in p.mods and p.op.startswith('v_cvt') and vp(pd) & (vp(cu) | vp(cd)): need = max(need, 1)
        if c.kind == 'vmem' and sp(pd) & sp(cu): need = max(need, 5)
        if c.kind == 'ctl' and c.op.startswith('s_cbranch') and sp(pd) & sp(cu): need = max(need, 5)
        if c.kind == 'salu' and sp(pd) & sp(cu): need = max(need, 1)
        if c.kind == 'mfma' and ('s', 'exec') in pd: need = max(need, 4)
    if p.kind == 'mfma':
        n = mfma_passes(p.op)
        tab_ab = {4: 8, 8: 12}[n]; tab_c_ov = {4: 6, 8: 10}[n]; tab_war = {4: 3, 8: 7}[n]
        D = vp(pd)
        if c.kind == 'mfma':
            srcC = set(regs_of(c.ops[3])); srcAB = set(regs_of(c.ops[1]) + regs_of(c.ops[2]))
            if D & srcAB: need = max(need, tab_ab)
            if D & srcC:
                if not (regs_of(c.ops[3]) == regs_of(p.ops[0]) and mfma_passes(c.op) == n): need = max(need, tab_c_ov)
            elif D & vp(cd):
                need = max(need, tab_c_ov)
        elif c.kind in ('valu', 'vmem', 'ds'):
            if D & (vp(cu) | vp(cd)): need = max(need, tab_ab)
        if c.kind == 'valu':
            srcC = set(regs_of(p.ops[3]))
            if srcC & vp(cd): need = max(need, tab_war)
    if p.kind == 'vmem' and ('store' in p.op) and ('x3' in p.op or 'x4' in p.op):
        data = set(regs_of(p.ops[0])) if p.op.startswith('buffer_') else set(regs_of(p.ops[1]))
        if c.kind == 'valu' and data & vp(cd): need = max(need, 2)
        elif c.kind in ('ds', 'vmem', 'mfma') and data & vp(cd): need = max(need, 1)
    if p.kind == 'salu':
        if ('s', 'm0') in pd and c.kind == 'vmem' and c.lds: need = max(need, 1)
    return need

MAXLOOK = 14

class Prog:
    def __init__(self):
        self.ins = []
    def e(self, text, tag=None):
        for line in text.split('\n'):
            line = line.strip()
            if line: self.ins.append(Ins(line, tag))
        return self
    __call__ = e
    def label(self, name): self.e(name + ':')
    def extend(self, other): self.ins.extend(other.ins)

    def fix_hazards(self, verbose=False):
        out = []; added = 0
        for c in self.ins:
            if c.op is not None and c.kind != 'ctl' or (c.op is not None and c.op.startswith('s_cbranch')):
                dist = 0; need_total = 0
                for p in reversed(out):
                    if p.op is None: continue
                    if dist >= MAXLOOK: break
                    g = required_gap(p, c)
                    if g > dist: need_total = max(need_total, g - dist)
                    dist += p.nstates()
                while need_total > 0:
                    n = min(need_total, 16)
                    out.append(Ins('s_nop %d' % (n - 1), 'hz')); added += n; need_total -= n
            out.append(c)
        self.ins = out
        return added

    def check_waits(self):
        vm = []; lg = []
        errs = []
        for idx, c in enumerate(self.ins):
            if c.op is None: continue
            if c.op == 's_waitcnt':
                txt = c.raw
                m = re.search(r'vmcnt\((\d+)\)', txt)
                if m:
                    n = int(m.group(1))
                    while len(vm) > n: vm.pop(0)
                m = re.search(r'lgkmcnt\((\d+)\)', txt)
                if m:
                    n = int(m.group(1))
                    if any(x.kind == 'smem' for x in lg):
                        if n == 0: lg = []
                    else:
                        while len(lg) > n: lg.pop(0)
                continue
            touched = set(c.uses) | set(c.defs)
            for p in vm + lg:
                pd = set(p.defs)
                if pd & touched:
                    errs.append((idx, c.raw, p.raw))
            if c.kind == 'vmem': vm.append(c)
            elif c.kind in ('ds', 'smem'): lg.append(c)
            if len(vm) > 63: errs.append((idx, 'vmcnt overflow', c.raw))
        return errs

    def text(self):
        out = []
        for i in self.ins:
            if i.op is None: out.append(i.text if i.kind != 'label' else i.text)
            else: out.append('    ' + i.text)
        return '\n'.join(out) + '\n'

def vr(a, n=1): return 'v%d' % a if n == 1 else 'v[%d:%d]' % (a, a + n - 1)
def ar(a, n=1): return 'a%d' % a if n == 1 else 'a[%d:%d]' % (a, a + n - 1)
def sr(a, n=1): return 's%d' % a if n == 1 else 's[%d:%d]' % (a, a + n - 1)
```

```python
import sys, os
sys.path.insert(0, os.path.dirname(os.path.abspath(__file__)))
from asmdsl import *

KNAME = "gated_mix__linear_attn_block__linear_kernel_hedgehog__prompt_kernel"

class Cfg:
    debug = 0
    rot = 1
    maprow = 0
    spin = 1 << 20
    stamps = 0
cfg = Cfg()

WS_EPOCH = 0x0
WS_G     = 0x1000
WS_FLAG  = 0x20000
WS_OUTB  = 0x100000
WS_O     = 0x200000
WS_INB   = 0x800000
WS_SIZE  = 0x1000000
WS_DBG   = 0x1000000
WS_STAMP = 0x7000000

sX, sW, sWOA, sWOB, sWS, sOUT, sMISC, sDBG = 8, 12, 16, 20, 24, 28, 32, 36
s_w, s_th, s_hp, s_i, s_jj, s_rot, s_T = 40, 41, 42, 43, 44, 45, 46
s_xbase, s_wbase, s_m0x, s_m0w, s_ox, s_ow, s_t0, s_t1, s_t2, s_t3 = 47, 48, 49, 50, 51, 52, 53, 54, 55, 56
s_tb, s_cb, s_head, s_qbase, s_m0q = 57, 58, 59, 60, 61
s_mask16 = 62
s_log2e = 84
s_eps = 86
s_spin = 88
s_ht = 89
s_stamp = 90
s_b = 92
s_exec = 94
s_wobase, s_m0o = 96, 97
KA = 64

v_lane = 1
vXA = 2
vWA = 14
vDX = 17
vDQ = 21
vONES = 25
vT = 26
vtmp = 27
vK = [32, 48]; vV = [64, 80]; vQ = [96, 112]
vWF = 128
vWP = 152
vSEL = 160
vTMP = 168

SLOT = 32768
def slot_set(s): return s // 2
def slot_imm(s): return (s % 2) * SLOT

class VM:
    def __init__(self, p): self.p = p; self.n = 0; self.marks = {}
    def op(self, text, mark=None):
        self.p(text); self.n += 1
        if mark: self.marks[mark] = self.n
    def mark(self, name): self.marks[name] = self.n
    def wait(self, name, extra=''):
        k = self.n - self.marks[name]
        assert 0 <= k <= 63, (name, k)
        self.p('s_waitcnt vmcnt(%d)%s' % (k, extra))
    def wait_all(self): self.p('s_waitcnt vmcnt(0)')

def stamp(p, idx):
    if not cfg.stamps: return
    p('s_memtime s[%d:%d]' % (s_stamp, s_stamp + 1))
    p('s_waitcnt lgkmcnt(0)')
    p('v_writelane_b32 v255, s%d, %d' % (s_stamp, idx))

def prologue_common(p, br):
    p('v_lshrrev_b32 v27, 6, v0')
    p('v_and_b32 v%d, 63, v0' % v_lane)
    p('v_readfirstlane_b32 s%d, v27' % s_w)
    p('s_waitcnt lgkmcnt(0)')
    def srd(d, ptr, size):
        p('s_mov_b32 s%d, s%d' % (d, ptr)); p('s_and_b32 s%d, s%d, 0xffff' % (d + 1, ptr + 1))
        p('s_mov_b32 s%d, 0x%x' % (d + 2, size)); p('s_mov_b32 s%d, 0x00020000' % (d + 3))
    srd(sX, KA + 0, 2048 * 1024)
    srd(sW, KA + (2 if br == 0 else 8), 512 * 3072)
    srd(sWS, KA + 18, WS_SIZE)
    srd(sWOA, KA + 4, 512 * 1024)
    srd(sWOB, KA + 12, 512 * 1024)
    srd(sOUT, KA + 16, 2048 * 1024)
    if br == 0: srd(sMISC, KA + 14, 1024)
    else: srd(sMISC, KA + 10, 32 * 512)
    if cfg.debug or cfg.stamps: srd(sDBG, KA + 18, 0x8000000)
    p('s_and_b32 s%d, s%d, 1' % (s_th, s_w))
    p('s_lshr_b32 s%d, s%d, 1' % (s_hp, s_w))

def gen_path(br):
    p = Prog(); vm = VM(p)
    L = 'A' if br == 0 else 'B'
    p.label('L_path' + L)
    if cfg.stamps: p('v_mov_b32 v255, 0')
    stamp(p, 0)
    prologue_common(p, br)
    p('v_mov_b32 v28, 0')
    vm.op('buffer_load_dword v%d, v28, s[%d:%d], 0 offen sc1' % (vT, sWS, sWS + 3), 'epoch')
    if br == 0: gate(p, vm)
    p('v_lshrrev_b32 v27, 3, v%d' % v_lane)
    p('v_and_b32 v28, 7, v%d' % v_lane)
    p('v_lshrrev_b32 v29, 4, v%d' % v_lane)
    for q in range(4):
        p('v_add_u32 v30, %d, v29' % (4 * (q & 1)))
        p('v_xor_b32 v30, v28, v30')
        p('v_lshlrev_b32 v30, 4, v30')
        p('v_add_u32 v31, %d, v27' % (7 * q))
        p('v_lshl_add_u32 v%d, v31, 10, v30' % (vDX + q))
    p('v_and_b32 v30, 1, v29'); p('v_lshlrev_b32 v30, 2, v30'); p('v_xor_b32 v30, v28, v30'); p('v_lshlrev_b32 v30, 4, v30')
    p('v_mul_u32_u24 v31, 3072, v27')
    p('v_add_u32 v30, v30, v31')
    for q in range(4):
        p('v_add_u32 v%d, %d, v30' % (vDQ + q, 8 * q * 3072 - 1024 * q))
    p('s_lshl_b32 s%d, s%d, 17' % (s_xbase, s_i))
    p('s_lshl_b32 s%d, s%d, 15' % (s_t0, s_w))
    p('s_add_u32 s%d, s%d, s%d' % (s_xbase, s_xbase, s_t0))
    p('s_lshl_b32 s%d, s%d, 7' % (s_qbase, s_jj))
    p('s_mul_i32 s%d, s%d, 98304' % (s_t0, s_th))
    p('s_add_u32 s%d, s%d, s%d' % (s_wbase, s_qbase, s_t0))
    p('s_add_u32 s%d, s%d, 1' % (s_t0, s_hp))
    p('s_lshl_b32 s%d, s%d, 10' % (s_t0, s_t0))
    p('s_add_u32 s%d, s%d, s%d' % (s_wbase, s_wbase, s_t0))
    p('s_lshl_b32 s%d, s%d, 12' % (s_m0x, s_w))
    p('s_lshl_b32 s%d, s%d, 13' % (s_m0w, s_hp))
    p('s_lshl_b32 s%d, s%d, 12' % (s_t0, s_th))
    p('s_add_u32 s%d, s%d, s%d' % (s_m0w, s_m0w, s_t0))
    p('s_add_u32 s%d, s%d, 16384' % (s_m0w, s_m0w))
    p('s_lshl_b32 s%d, s%d, 13' % (s_m0q, s_w))

    def chunk_offsets(n):
        p('s_add_u32 s%d, s%d, %d' % (s_t0, s_rot, n)); p('s_and_b32 s%d, s%d, 7' % (s_t0, s_t0))
        p('s_lshl_b32 s%d, s%d, 7' % (s_t1, s_t0)); p('s_add_u32 s%d, s%d, s%d' % (s_ox, s_xbase, s_t1))
        p('s_mul_i32 s%d, s%d, 196608' % (s_t1, s_t0)); p('s_add_u32 s%d, s%d, s%d' % (s_ow, s_wbase, s_t1))
    def dma_chunk_ops(n):
        slot = (n % 5) * SLOT
        ops = []
        ops.append(lambda: chunk_offsets(n))
        ops.append(lambda: p('s_add_u32 m0, s%d, %d' % (s_m0x, slot)))
        for q in range(4):
            ops.append(lambda q=q: vm.op('buffer_load_dwordx4 v%d, s[%d:%d], s%d offen offset:%d lds' % (vDX + q, sX, sX + 3, s_ox, q * 1024)))
        ops.append(lambda: p('s_add_u32 m0, s%d, %d' % (s_m0w, slot)))
        for q in range(4):
            ops.append(lambda q=q: vm.op('buffer_load_dwordx4 v%d, s[%d:%d], s%d offen offset:%d lds' % (vDQ + q, sW, sW + 3, s_ow, q * 1024), 'c%d' % n if q == 3 else None))
        return ops
    def dma_wq_ops(hf):
        slot = (3 + hf) * SLOT
        ops = []
        def offs():
            p('s_add_u32 s%d, s%d, s%d' % (s_t0, s_rot, s_w)); p('s_add_u32 s%d, s%d, %d' % (s_t0, s_t0, 4 * hf)); p('s_and_b32 s%d, s%d, 7' % (s_t0, s_t0))
            p('s_mul_i32 s%d, s%d, 196608' % (s_t1, s_t0)); p('s_add_u32 s%d, s%d, s%d' % (s_ow, s_qbase, s_t1))
        ops.append(offs)
        for grp in range(2):
            def m(grp=grp):
                if grp == 1: p('s_add_u32 s%d, s%d, 98304' % (s_ow, s_ow))
                p('s_add_u32 m0, s%d, %d' % (s_m0q, slot + grp * 4096))
            ops.append(m)
            for q in range(4):
                ops.append(lambda q=q, grp=grp: vm.op('buffer_load_dwordx4 v%d, s[%d:%d], s%d offen offset:%d lds' % (vDQ + q, sW, sW + 3, s_ow, q * 1024), 'wq%d' % hf if (q == 3 and grp == 1) else None))
        return ops

    if br == 1:
        p('s_lshl_b32 s%d, s%d, 11' % (s_t0, s_jj)); p('s_lshl_b32 s%d, s%d, 10' % (s_t1, s_hp)); p('s_add_u32 s%d, s%d, s%d' % (s_t0, s_t0, s_t1))
        p('s_lshl_b32 s%d, s%d, 10' % (s_t1, s_w)); p('s_add_u32 m0, s%d, %d' % (s_t1, 4 * SLOT))
        p('v_lshlrev_b32 v27, 4, v%d' % v_lane)
        vm.op('buffer_load_dwordx4 v27, s[%d:%d], s%d offen lds' % (sMISC, sMISC + 3, s_t0), 'wphi')
    for n in range(3):
        for f in dma_chunk_ops(n): f()
    p('v_and_b32 v27, 31, v%d' % v_lane)
    p('v_lshrrev_b32 v28, 5, v%d' % v_lane)
    p('v_lshrrev_b32 v29, 1, v27'); p('v_and_b32 v29, 7, v29'); p('v_xor_b32 v29, v28, v29')
    p('s_lshl_b32 s%d, s%d, 13' % (s_t0, s_th))
    p('v_lshlrev_b32 v30, 7, v27'); p('v_add_u32 v30, s%d, v30' % s_t0)
    for ks in range(4):
        p('v_xor_b32 v31, %d, v29' % (2 * ks)); p('v_lshl_add_u32 v%d, v31, 4, v30' % (vXA + ks))
        p('v_add_u32 v%d, 0x10000, v%d' % (vXA + 4 + ks, vXA + ks)); p('v_add_u32 v%d, 0x20000, v%d' % (vXA + 8 + ks, vXA + ks))
    p('v_lshrrev_b32 v27, 2, v%d' % v_lane); p('v_and_b32 v27, 3, v27')
    p('v_lshl_add_u32 v29, v28, 3, v27')
    p('v_lshlrev_b32 v29, 7, v29')
    p('v_lshrrev_b32 v30, 1, v27'); p('v_xor_b32 v30, s%d, v30' % s_hp); p('v_lshl_add_u32 v29, v30, 6, v29')
    p('v_lshrrev_b32 v30, 4, v%d' % v_lane); p('v_and_b32 v30, 1, v30'); p('v_lshl_add_u32 v29, v30, 5, v29')
    p('v_and_b32 v30, 3, v%d' % v_lane); p('v_lshl_add_u32 v%d, v30, 3, v29' % vWA)
    p('v_add_u32 v%d, 0x10000, v%d' % (vWA + 1, vWA)); p('v_add_u32 v%d, 0x20000, v%d' % (vWA + 2, vWA))
    p('v_mov_b32 v%d, 0x3f803f80' % vONES)
    p('s_mov_b32 s%d, 0xffff0000' % s_mask16); p('s_mov_b32 s%d, 0xffff0000' % (s_mask16 + 1))
    p('s_mov_b32 s%d, 0x3fb8aa3b' % s_log2e); p('s_mov_b32 s%d, 0x3fb8aa3b' % (s_log2e + 1))
    p('s_mov_b32 s%d, 0x358637bd' % s_eps); p('s_mov_b32 s%d, 0x358637bd' % (s_eps + 1))
    vm.wait('epoch')
    p('v_readfirstlane_b32 s%d, v%d' % (s_T, vT))
    p('s_mul_i32 s%d, s%d, 0x9e3779b1' % (s_T, s_T)); p('s_add_u32 s%d, s%d, 0x7f4a7c15' % (s_T, s_T))
    p('v_mov_b32 v%d, s%d' % (vT, s_T))

    if br == 1:
        p('v_and_b32 v27, 31, v%d' % v_lane)
        p('v_lshrrev_b32 v28, 5, v%d' % v_lane)
        p('v_bfe_u32 v29, v27, 2, 1')
        p('v_cmp_eq_u32 vcc, v28, v29')
        p('v_bfe_u32 v29, v27, 3, 1'); p('v_and_b32 v30, 3, v27'); p('v_lshl_add_u32 v29, v29, 2, v30')
        p('v_and_b32 v30, 1, v29'); p('v_lshlrev_b32 v30, 4, v30'); p('v_mov_b32 v31, 0x3f80'); p('v_lshlrev_b32 v30, v30, v31')
        p('v_cndmask_b32 v30, 0, v30, vcc')
        p('v_lshrrev_b32 v29, 1, v29')
        p('v_bfe_u32 v28, v27, 4, 1')
        p('v_lshl_add_u32 v29, v28, 2, v29')
        for q in range(8):
            p('v_cmp_eq_u32 vcc, %d, v29' % q)
            p('v_cndmask_b32 v%d, 0, v30, vcc' % (vSEL + q))
        p('v_lshrrev_b32 v27, 5, v%d' % v_lane); p('v_lshlrev_b32 v27, 2, v27')
        p('v_bfe_u32 v28, v%d, 2, 2' % v_lane); p('v_add_u32 v27, v27, v28'); p('v_lshlrev_b32 v27, 5, v27')
        p('v_bfe_u32 v28, v%d, 1, 1' % v_lane); p('v_lshl_add_u32 v27, v28, 3, v27')
        p('v_bfe_u32 v28, v%d, 4, 1' % v_lane); p('v_lshl_add_u32 v27, v28, 4, v27')
        p('s_lshl_b32 s%d, s%d, 10' % (s_t0, s_w)); p('s_add_u32 s%d, s%d, %d' % (s_t0, s_t0, 4 * SLOT)); p('v_add_u32 v27, s%d, v27' % s_t0)
        vm.wait('wphi')
        for u in range(2):
            for rd in range(2):
                p('ds_read_b64_tr_b16 v[%d:%d], v27 offset:%d' % (vWP + 4 * u + 2 * rd, vWP + 4 * u + 2 * rd + 1, u * 512 + rd * 8 * 32))
        p('v_bfe_u32 v28, v%d, 2, 1' % v_lane); p('v_lshlrev_b32 v28, 31, v28'); p('v_lshrrev_b32 v29, 16, v28'); p('v_or_b32 v28, v28, v29')
        p('s_waitcnt lgkmcnt(0)')
        for q in range(8): p('v_xor_b32 v%d, v%d, v28' % (vWP + q, vWP + q))
    return p, vm, dma_chunk_ops, dma_wq_ops

def xf(s, blk): return ar((s * 2 + blk) * 4, 4)

def pass1(p, vm, br, dma_chunk_ops, dma_wq_ops, extra_ops):
    def reads(s):
        c, ks = s >> 2, s & 3; slot = c % 5; st = slot_set(slot); im = slot_imm(slot); buf = s % 3
        ops = []
        wf = vWF + 8 * buf
        for part in range(2):
            for rd in range(2):
                ops.append('ds_read_b64_tr_b16 v[%d:%d], v%d offset:%d' % (wf + 4 * part + 2 * rd, wf + 4 * part + 2 * rd + 1, vWA + st, im + 16384 + part * 8192 + (16 * ks + 4 * rd) * 128))
        for blk in range(2):
            ops.append('ds_read_b128 %s, v%d offset:%d' % (xf(s, blk), vXA + st * 4 + ks, im + blk * 4096))
        return ops
    def mfmas(s):
        wf = vWF + 8 * (s % 3); ops = []
        for blk in range(2):
            c = '0' if s == 0 else vr(vK[blk], 16)
            if br == 1: ops.append('v_mfma_f32_32x32x16_bf16 %s, %s, %s, %s' % (vr(vK[blk], 16), vr(wf, 4), xf(s, blk), c))
            else:       ops.append('v_mfma_f32_32x32x16_bf16 %s, %s, %s, %s' % (vr(vK[blk], 16), xf(s, blk), vr(wf, 4), c))
            c = '0' if s == 0 else vr(vV[blk], 16)
            ops.append('v_mfma_f32_32x32x16_bf16 %s, %s, %s, %s' % (vr(vV[blk], 16), xf(s, blk), vr(wf + 4, 4), c))
        return ops
    pend = []
    vm.wait('c0'); p('s_barrier')
    stamp(p, 1)
    pend += extra_ops[0]
    for o in reads(0): p(o)
    for o in reads(1): p(o)
    for s in range(32):
        nxt = s + 2
        p('s_waitcnt lgkmcnt(%d)' % (6 if s < 31 else 0))
        M = mfmas(s)
        R = reads(nxt) if nxt < 32 else []
        p(M[0])
        if nxt < 32 and nxt % 4 == 0:
            m = nxt // 4
            vm.wait('c%d' % m); p('s_barrier')
            pend += extra_ops[m]
        def take(n):
            for _ in range(n):
                if pend: pend.pop(0)()
        for k in range(4):
            if k > 0: p(M[k])
            for o in R[(k * 6) // 4:((k + 1) * 6) // 4]: p(o)
            take(1)
    while pend: pend.pop(0)()

def pass2(p, vm, extra_first, extra_second, mid_hook=None):
    RA = 3
    def reads(s):
        c, ks = s >> 2, s & 3; slot = 3 + (c >> 2); st = slot_set(slot); im = slot_imm(slot); wf = vWF + 4 * (s % 4)
        return ['ds_read_b64_tr_b16 v[%d:%d], v%d offset:%d' % (wf + 2 * rd, wf + 2 * rd + 1, vWA + st, im + (c & 3) * 8192 + (16 * ks + 4 * rd) * 128) for rd in range(2)]
    for s in range(RA):
        for o in reads(s): p(o)
    pend = list(extra_first)
    for s in range(32):
        out = min(RA - 1, 31 - s)
        p('s_waitcnt lgkmcnt(%d)' % (2 * out))
        wf = vWF + 4 * (s % 4)
        if s == 16:
            p('s_barrier')
            pend += extra_second
        for blk in range(2):
            c = '0' if s == 0 else vr(vQ[blk], 16)
            p('v_mfma_f32_32x32x16_bf16 %s, %s, %s, %s' % (vr(vQ[blk], 16), vr(wf, 4), xf(s, blk), c))
            if blk == 0 and s + RA < 32:
                for o in reads(s + RA): p(o)
            if pend: pend.pop(0)()
    while pend: pend.pop(0)()

def dump_regs(p, vm, base_reg, n, slot_index):
    p('s_lshl_b32 s%d, s%d, 2' % (s_t0, s_b)); p('s_add_u32 s%d, s%d, s%d' % (s_t0, s_t0, s_w))
    p('s_mul_i32 s%d, s%d, %d' % (s_t0, s_t0, n * 256)); p('s_add_u32 s%d, s%d, %d' % (s_t0, s_t0, WS_DBG + slot_index * 0x1000000))
    p('v_lshlrev_b32 v27, 4, v%d' % v_lane)
    for r in range(0, n, 4):
        vm.op('buffer_store_dwordx4 %s, v27, s[%d:%d], s%d offen' % (vr(base_reg + r, 4), sDBG, sDBG + 3, s_t0))
        p('s_add_u32 s%d, s%d, 1024' % (s_t0, s_t0))
    vm.wait_all()

def build():
    top = Prog()
    top('s_cmp_ge_u32 s2, 256')
    top('s_cbranch_scc1 L_end')
    top('s_load_dwordx16 s[64:79], s[0:1], 0')
    top('s_load_dwordx2 s[80:81], s[0:1], 64')
    top('s_load_dwordx2 s[82:83], s[0:1], 80')
    top('s_mov_b32 s%d, s2' % s_b)
    top('s_and_b32 s%d, s2, 7' % s_t0)
    top('s_lshr_b32 s%d, s2, 3' % s_t1)
    if cfg.maprow == 0:
        top('s_mov_b32 s%d, s%d' % (s_jj, s_t0))
        top('s_lshr_b32 s%d, s%d, 1' % (s_i, s_t1))
        top('s_and_b32 s%d, s%d, 1' % (s_t2, s_t1))
        top('s_and_b32 s%d, s%d, 7' % (s_rot, s_i))
    else:
        top('s_and_b32 s%d, s%d, 1' % (s_i, s_t0)); top('s_lshl_b32 s%d, s%d, 3' % (s_i, s_i)); top('s_and_b32 s%d, s%d, 7' % (s_t2, s_t1)); top('s_add_u32 s%d, s%d, s%d' % (s_i, s_i, s_t2))
        top('s_lshr_b32 s%d, s%d, 1' % (s_t3, s_t0)); top('s_lshl_b32 s%d, s%d, 2' % (s_t3, s_t3)); top('s_lshr_b32 s%d, s%d, 3' % (s_t2, s_t1)); top('s_add_u32 s%d, s%d, s%d' % (s_t3, s_t3, s_t2))
        top('s_lshr_b32 s%d, s%d, 1' % (s_jj, s_t3))
        top('s_lshl_b32 s%d, s%d, 1' % (s_rot, s_t3)); top('s_add_u32 s%d, s%d, s%d' % (s_rot, s_rot, s_i)); top('s_and_b32 s%d, s%d, 7' % (s_rot, s_rot))
        top('s_and_b32 s%d, s%d, 1' % (s_t2, s_t3))
    if not cfg.rot: top('s_mov_b32 s%d, 0' % s_rot)
    top('s_lshl_b32 s%d, s%d, 2' % (s_tb, s_t0)); top('s_and_b32 s%d, s%d, 3' % (s_t3, s_t1)); top('s_add_u32 s%d, s%d, s%d' % (s_tb, s_tb, s_t3))
    top('s_lshr_b32 s%d, s%d, 2' % (s_cb, s_t1))
    top('s_cmp_eq_u32 s%d, 0' % s_t2)
    top('s_cbranch_scc0 L_pathB')
    paths = []
    for br in range(2):
        p, vm, dco, dwq = gen_path(br)
        body(p, vm, br, dco, dwq)
        added = p.fix_hazards()
        errs = p.check_waits()
        if errs:
            for e in errs[:20]: print('WAITERR', e, file=sys.stderr)
            raise SystemExit('wait check failed')
        print('path', 'AB'[br], 'instructions:', sum(1 for i in p.ins if i.op), 'nop states added:', added, file=sys.stderr)
        paths.append(p)
    top.fix_hazards()
    hdr = open(os.path.join(os.path.dirname(os.path.abspath(__file__)), 'header.txt')).read()
    s = hdr
    s += '; @launch grid=(256,1,1) block=(256,1,1) lds=163840\n'
    s += '.amdgcn_target "amdgcn-amd-amdhsa--gfx950"\n.text\n.globl %s\n.p2align 8\n.type %s,@function\n%s:\n' % (KNAME, KNAME, KNAME)
    s += top.text()
    for p in paths: s += p.text()
    s += 'L_end:\n    s_endpgm\n'
    s += '.section .rodata,"a"\n.p2align 6\n.amdhsa_kernel %s\n  .amdhsa_next_free_vgpr 512\n  .amdhsa_next_free_sgpr 102\n  .amdhsa_accum_offset 256\n  .amdhsa_group_segment_fixed_size 0\n  .amdhsa_kernarg_size 88\n  .amdhsa_user_sgpr_count 2\n  .amdhsa_user_sgpr_kernarg_segment_ptr 1\n  .amdhsa_system_sgpr_workgroup_id_x 1\n.end_amdhsa_kernel\n' % KNAME
    return s


MF = 'v_mfma_f32_32x32x16_bf16'
vDO = 10
vOA = 2
vEW = 4
vER = 8

def cvt(p, d, a, b): p('v_cvt_pk_bf16_f32 v%d, v%d, v%d' % (d, a, b))

def wo_setup_ops(p):
    def f():
        p('v_lshrrev_b32 v27, 3, v%d' % v_lane); p('v_and_b32 v28, 7, v%d' % v_lane)
        p('v_bfe_u32 v29, v%d, 4, 1' % v_lane); p('v_lshlrev_b32 v29, 2, v29'); p('v_xor_b32 v28, v28, v29'); p('v_lshlrev_b32 v28, 4, v28')
        p('s_lshl_b32 s%d, s%d, 7' % (s_t0, s_cb)); p('v_add_u32 v28, s%d, v28' % s_t0)
        p('v_lshl_add_u32 v%d, v27, 10, v28' % vDO)
        for q in range(1, 4): p('v_add_u32 v%d, %d, v%d' % (vDO + q, 7 * q * 1024, vDO))
        p('s_lshl_b32 s%d, s%d, 16' % (s_wobase, s_w)); p('s_lshl_b32 s%d, s%d, 13' % (s_m0o, s_w))
    return [f]

def dma_wo_ops(p, vm, part):
    srd = sWOA if part < 2 else sWOB
    ops = []
    for grp in range(2):
        def m(grp=grp):
            p('s_add_u32 s%d, s%d, %d' % (s_ow, s_wobase, (part & 1) * 262144 + grp * 32768))
            p('s_add_u32 m0, s%d, %d' % (s_m0o, part * SLOT + grp * 4096))
        ops.append(m)
        for q in range(4):
            ops.append(lambda q=q, grp=grp: vm.op('buffer_load_dwordx4 v%d, s[%d:%d], s%d offen offset:%d lds' % (vDO + q, srd, srd + 3, s_ow, q * 1024), 'wo%d' % part if (q == 3 and grp == 1) else None))
    return ops

def softmax16(p, P, F, tmp):
    m, S = tmp, tmp + 2
    p('v_max3_f32 v%d, v%d, v%d, v%d' % (m, P, P + 1, P + 2))
    p('v_max3_f32 v%d, v%d, v%d, v%d' % (m + 1, P + 3, P + 4, P + 5))
    p('v_max3_f32 v%d, v%d, v%d, v%d' % (m, m, P + 6, P + 7))
    p('v_max3_f32 v%d, v%d, v%d, v%d' % (m + 1, m + 1, P + 8, P + 9))
    p('v_max3_f32 v%d, v%d, v%d, v%d' % (m, m, P + 10, P + 11))
    p('v_max3_f32 v%d, v%d, v%d, v%d' % (m + 1, m + 1, P + 12, P + 13))
    p('v_max3_f32 v%d, v%d, v%d, v%d' % (m, m, P + 14, P + 15))
    p('v_max_f32 v%d, v%d, v%d' % (m, m, m + 1))
    p('v_mul_f32 v%d, s%d, v%d' % (m, s_log2e, m))
    for i in range(8):
        p('v_pk_fma_f32 v[%d:%d], v[%d:%d], s[%d:%d], v[%d:%d] op_sel_hi:[1,1,0] neg_lo:[0,0,1] neg_hi:[0,0,1]' % (P + 2 * i, P + 2 * i + 1, P + 2 * i, P + 2 * i + 1, s_log2e, s_log2e + 1, m, m + 1))
    for i in range(16):
        p('v_exp_f32 v%d, v%d' % (P + i, P + i))
        if i >= 3 and i % 2 == 1:
            k = i - 1
            if k == 2: pass
    p('v_pk_add_f32 v[%d:%d], v[%d:%d], v[%d:%d]' % (S, S + 1, P, P + 1, P + 2, P + 3))
    p('v_pk_add_f32 v[%d:%d], v[%d:%d], v[%d:%d]' % (m, m + 1, P + 4, P + 5, P + 6, P + 7))
    p('v_pk_add_f32 v[%d:%d], v[%d:%d], v[%d:%d]' % (S, S + 1, S, S + 1, P + 8, P + 9))
    p('v_pk_add_f32 v[%d:%d], v[%d:%d], v[%d:%d]' % (m, m + 1, m, m + 1, P + 10, P + 11))
    p('v_pk_add_f32 v[%d:%d], v[%d:%d], v[%d:%d]' % (S, S + 1, S, S + 1, P + 12, P + 13))
    p('v_pk_add_f32 v[%d:%d], v[%d:%d], v[%d:%d]' % (m, m + 1, m, m + 1, P + 14, P + 15))
    p('v_pk_add_f32 v[%d:%d], v[%d:%d], v[%d:%d]' % (S, S + 1, S, S + 1, m, m + 1))
    p('v_add_f32 v%d, v%d, v%d' % (S, S, S + 1))
    p('v_rcp_f32 v%d, v%d' % (S, S))
    p('s_nop 0')
    for i in range(8):
        p('v_pk_mul_f32 v[%d:%d], v[%d:%d], v[%d:%d] op_sel_hi:[1,0]' % (P + 2 * i, P + 2 * i + 1, P + 2 * i, P + 2 * i + 1, S, S + 1))
    for i in range(8): cvt(p, F + i, P + 2 * i, P + 2 * i + 1)

def phi_elu(p, T, n, F, tmp):
    for base in range(0, n // 2, 4):
        prs = range(base, min(base + 4, n // 2))
        for k, i in enumerate(prs):
            p('v_pk_mul_f32 v[%d:%d], v[%d:%d], s[%d:%d]' % (tmp + 2 * k, tmp + 2 * k + 1, T + 2 * i, T + 2 * i + 1, s_log2e, s_log2e + 1))
        for k, i in enumerate(prs):
            p('v_exp_f32 v%d, v%d clamp' % (tmp + 2 * k, tmp + 2 * k)); p('v_exp_f32 v%d, v%d clamp' % (tmp + 2 * k + 1, tmp + 2 * k + 1))
        for k, i in enumerate(prs):
            p('v_max_f32 v%d, 0, v%d' % (T + 2 * i, T + 2 * i)); p('v_max_f32 v%d, 0, v%d' % (T + 2 * i + 1, T + 2 * i + 1))
        for k, i in enumerate(prs):
            p('v_pk_add_f32 v[%d:%d], v[%d:%d], v[%d:%d]' % (T + 2 * i, T + 2 * i + 1, T + 2 * i, T + 2 * i + 1, tmp + 2 * k, tmp + 2 * k + 1))
        for k, i in enumerate(prs):
            p('v_pk_add_f32 v[%d:%d], v[%d:%d], s[%d:%d]' % (T + 2 * i, T + 2 * i + 1, T + 2 * i, T + 2 * i + 1, s_eps, s_eps + 1))
        for k, i in enumerate(prs): cvt(p, F + i, T + 2 * i, T + 2 * i + 1)

ACC = [96, 112]
def vprep(p, VB0, VB1):
    for blk in range(2):
        for i in range(8): cvt(p, VB0 + 8 * blk + i, vV[blk] + 2 * i, vV[blk] + 2 * i + 1)
    for blk in range(2):
        for i in range(8): p('v_cndmask_b32_e64 v%d, v%d, v%d, s[%d:%d]' % (VB1 + 8 * blk + i, vONES, VB0 + 8 * blk + i, s_mask16, s_mask16 + 1))
    for blk in range(2):
        for i in range(8): p('v_cndmask_b32_e64 v%d, v%d, v%d, s[%d:%d]' % (VB0 + 8 * blk + i, VB0 + 8 * blk + i, vONES, s_mask16, s_mask16 + 1))

def feat_k_B(p):
    KB, PB, G = 168, 184, 128
    VB0, VB1 = 32, 48
    TB = [64, 80]
    units = [(0, 0), (0, 1), (1, 0), (1, 1)]
    for un, (blk, u) in enumerate(units):
        for i in range(4): cvt(p, KB + 4 * un + i, vK[blk] + 8 * u + 2 * i, vK[blk] + 8 * u + 2 * i + 1)
    for un, (blk, u) in enumerate(units):
        p('%s %s, %s, %s, 0' % (MF, vr(PB + 16 * un, 16), vr(vWP + 4 * u, 4), vr(KB + 4 * un, 4)))
    vprep(p, VB0, VB1)
    VB = [VB0, VB1]
    def tail(un):
        blk, u = units[un]
        T = TB[un % 2]
        for i in range(8): cvt(p, G + i, T + 2 * i, T + 2 * i + 1)
        c = '0' if blk == 0 else vr(ACC[u], 16)
        p('%s %s, %s, %s, %s' % (MF, vr(ACC[u], 16), vr(G, 4), vr(VB[u] + 8 * blk, 4), c))
        p('%s %s, %s, %s, %s' % (MF, vr(ACC[u], 16), vr(G + 4, 4), vr(VB[u] + 8 * blk + 4, 4), vr(ACC[u], 16)))
    for un in range(4):
        F = KB + 8 * (un % 2)
        softmax16(p, PB + 16 * un, F, 136)
        if un > 0: tail(un - 1)
        T = TB[un % 2]
        p('%s %s, %s, %s, 0' % (MF, vr(T, 16), vr(F, 4), vr(vSEL, 4)))
        p('%s %s, %s, %s, %s' % (MF, vr(T, 16), vr(F + 4, 4), vr(vSEL + 4, 4), vr(T, 16)))
    tail(3)

def feat_k_A(p):
    PK, VB0, VB1 = 168, 200, 216
    for blk in range(2): phi_elu(p, vK[blk], 16, PK + 8 * blk, 184)
    vprep(p, VB0, VB1)
    VB = [VB0, VB1]
    for blk in range(2):
        for u in range(2):
            c = '0' if blk == 0 else vr(ACC[u], 16)
            p('%s %s, %s, %s, %s' % (MF, vr(ACC[u], 16), vr(PK + 8 * blk, 4), vr(VB[u] + 8 * blk, 4), c))
            p('%s %s, %s, %s, %s' % (MF, vr(ACC[u], 16), vr(PK + 8 * blk + 4, 4), vr(VB[u] + 8 * blk + 4, 4), vr(ACC[u], 16)))

FQ = 32
def feat_q_B(p):
    KB, PB = 168, 184
    units = [(0, 0), (0, 1), (1, 0), (1, 1)]
    for un, (blk, u) in enumerate(units):
        for i in range(4): cvt(p, KB + 4 * un + i, vQ[blk] + 8 * u + 2 * i, vQ[blk] + 8 * u + 2 * i + 1)
    for un, (blk, u) in enumerate(units):
        p('%s %s, %s, %s, 0' % (MF, vr(PB + 16 * un, 16), vr(vWP + 4 * u, 4), vr(KB + 4 * un, 4)))
    for un in range(4): softmax16(p, PB + 16 * un, FQ + 8 * un, 136)

def feat_q_A(p):
    for blk in range(2):
        for u in range(2): phi_elu(p, vQ[blk] + 8 * u, 8, FQ + 4 * (2 * blk + u), 184)

ST = 184
def exchange(p, vm, br):
    nq = 4 if br == 1 else 2
    RC = 216
    L = 'AB'[br]
    p('v_lshlrev_b32 v27, 4, v%d' % v_lane)
    p('s_lshl_b32 s%d, s%d, 12' % (s_t0, s_w)); p('s_add_u32 s%d, s%d, %d' % (s_t0, s_t0, 2 * SLOT))
    p('v_add_u32 v28, s%d, v27' % s_t0)
    p('s_xor_b32 s%d, s%d, 1' % (s_t1, s_w)); p('s_lshl_b32 s%d, s%d, 12' % (s_t1, s_t1)); p('s_add_u32 s%d, s%d, %d' % (s_t1, s_t1, 2 * SLOT))
    p('v_add_u32 v29, s%d, v27' % s_t1)
    for k in range(2 * nq):
        p('v_mov_b32 v%d, v%d' % (ST + 4 * k + 1, vT)); p('v_mov_b32 v%d, v%d' % (ST + 4 * k + 3, vT))
    def src(u): return ACC[u] + (0 if br == 1 else 8 * u)
    p('s_cmp_eq_u32 s%d, 0' % s_th)
    p('s_cbranch_scc0 L_ex1%s' % L)
    p('s_nop 15')
    for q in range(nq): p('ds_write_b128 v28, %s offset:%d' % (vr(src(1) + 4 * q, 4), q * 1024))
    p('s_branch L_ex2%s' % L)
    p.label('L_ex1%s' % L)
    p('s_nop 15')
    for q in range(nq): p('ds_write_b128 v28, %s offset:%d' % (vr(src(0) + 4 * q, 4), q * 1024))
    p.label('L_ex2%s' % L)
    p('s_waitcnt lgkmcnt(0)')
    vm.wait('wq1')
    p('s_barrier')
    for q in range(nq): p('ds_read_b128 %s, v29 offset:%d' % (vr(RC + 4 * q, 4), q * 1024))
    p('s_waitcnt lgkmcnt(0)')
    p('s_cmp_eq_u32 s%d, 0' % s_th)
    p('s_cbranch_scc0 L_ex3%s' % L)
    for r in range(4 * nq): p('v_add_f32 v%d, v%d, v%d' % (ST + 4 * (r >> 1) + 2 * (r & 1), src(0) + r, RC + r))
    p('s_branch L_ex4%s' % L)
    p.label('L_ex3%s' % L)
    for r in range(4 * nq): p('v_add_f32 v%d, v%d, v%d' % (ST + 4 * (r >> 1) + 2 * (r & 1), src(1) + r, RC + r))
    p.label('L_ex4%s' % L)

def hop1_store(p, vm, br):
    nrp = 8 if br == 1 else 4
    p('s_lshl_b32 s%d, s%d, 2' % (s_head, s_jj)); p('s_add_u32 s%d, s%d, s%d' % (s_head, s_head, s_w)); p('s_add_u32 s%d, s%d, %d' % (s_head, s_head, 32 * br))
    p('s_lshl_b32 s%d, s%d, 17' % (s_t0, s_head)); p('s_lshl_b32 s%d, s%d, 9' % (s_t1, s_i)); p('s_add_u32 s%d, s%d, s%d' % (s_t0, s_t0, s_t1)); p('s_add_u32 s%d, s%d, %d' % (s_t0, s_t0, WS_INB))
    p('v_lshrrev_b32 v27, 5, v%d' % v_lane); p('v_lshlrev_b32 v27, 13, v27'); p('v_and_b32 v28, 31, v%d' % v_lane); p('v_lshl_add_u32 v27, v28, 4, v27')
    for rp in range(nrp):
        vm.op('buffer_store_dwordx4 %s, v27, s[%d:%d], s%d offen sc1' % (vr(ST + 4 * rp, 4), sWS, sWS + 3, s_t0))
        if rp < nrp - 1: p('s_add_u32 s%d, s%d, 16384' % (s_t0, s_t0))

def spin_tail(p, name):
    p('s_cbranch_vccz L_%s_ok' % name)
    p('s_sub_u32 s%d, s%d, 1' % (s_spin, s_spin))
    p('s_cmp_gt_i32 s%d, 0' % s_spin)
    p('s_cbranch_scc1 L_%s' % name)
    p.label('L_%s_ok' % name)

def tagcheck(p, regs, t0, t1):
    regs = list(regs)
    p('v_min_u32 v%d, v%d, v%d' % (t0, regs[0], regs[1])); p('v_max_u32 v%d, v%d, v%d' % (t1, regs[0], regs[1]))
    k = 2
    while k + 1 < len(regs):
        p('v_min3_u32 v%d, v%d, v%d, v%d' % (t0, t0, regs[k], regs[k + 1])); p('v_max3_u32 v%d, v%d, v%d, v%d' % (t1, t1, regs[k], regs[k + 1])); k += 2
    if k < len(regs):
        p('v_min_u32 v%d, v%d, v%d' % (t0, t0, regs[k])); p('v_max_u32 v%d, v%d, v%d' % (t1, t1, regs[k]))
    p('v_xor_b32 v%d, v%d, v%d' % (t0, vT, t0)); p('v_xor_b32 v%d, v%d, v%d' % (t1, vT, t1)); p('v_or_b32 v%d, v%d, v%d' % (t0, t0, t1))
    p('v_cmp_ne_u32 vcc, 0, v%d' % t0)

def hop1_reduce(p, vm, br):
    L = 'AB'[br]; LD = 184
    if br == 0:
        p('s_cmp_ge_u32 s%d, 8' % s_i); p('s_cbranch_scc1 L_h1skip')
    p('s_lshl_b32 s%d, s%d, 17' % (s_t0, s_head)); p('s_lshl_b32 s%d, s%d, 13' % (s_t1, s_i)); p('s_add_u32 s%d, s%d, s%d' % (s_t0, s_t0, s_t1)); p('s_add_u32 s%d, s%d, %d' % (s_t0, s_t0, WS_INB))
    p('s_add_u32 s%d, s%d, 4096' % (s_t1, s_t0))
    p('v_lshlrev_b32 v27, 4, v%d' % v_lane)
    p('s_mov_b32 s%d, %d' % (s_spin, cfg.spin))
    p.label('L_h1%s' % L)
    for n in range(8):
        vm.op('buffer_load_dwordx4 %s, v27, s[%d:%d], s%d offen offset:%d sc1' % (vr(LD + 4 * n, 4), sWS, sWS + 3, s_t0 if n < 4 else s_t1, (n & 3) * 1024))
    vm.wait_all()
    tagcheck(p, [LD + 4 * n + k for n in range(8) for k in (1, 3)], 28, 29)
    spin_tail(p, 'h1%s' % L)
    a, b = 216, 217
    p('v_add_f32 v%d, v%d, v%d' % (a, LD, LD + 4)); p('v_add_f32 v%d, v%d, v%d' % (b, LD + 2, LD + 6))
    for n in range(2, 8):
        p('v_add_f32 v%d, v%d, v%d' % (a, a, LD + 4 * n)); p('v_add_f32 v%d, v%d, v%d' % (b, b, LD + 4 * n + 2))
    p('v_permlane32_swap_b32 v%d, v%d' % (a, b))
    p('v_add_f32 v%d, v%d, v%d' % (a, a, b))
    p('v_mov_b32 v%d, v%d' % (b, a))
    p('v_permlane32_swap_b32 v%d, v%d' % (a, b))
    cvt(p, 218, a, b)
    p('v_mov_b32 v219, v%d' % vT)
    p('s_lshl_b32 s%d, s%d, 12' % (s_t0, s_head)); p('s_lshl_b32 s%d, s%d, 8' % (s_t1, s_i)); p('s_add_u32 s%d, s%d, s%d' % (s_t0, s_t0, s_t1)); p('s_add_u32 s%d, s%d, %d' % (s_t0, s_t0, WS_OUTB))
    p('v_lshlrev_b32 v27, 3, v%d' % v_lane)
    p('s_mov_b32 exec_hi, 0')
    vm.op('buffer_store_dwordx2 v[218:219], v27, s[%d:%d], s%d offen sc1' % (sWS, sWS + 3, s_t0))
    p('s_mov_b64 exec, -1')
    if br == 0: p.label('L_h1skip')

KVA = 216
def hop2_gather(p, vm, br):
    L = 'AB'[br]; M = 184; nrp = 8 if br == 1 else 4
    p('s_lshl_b32 s%d, s%d, 2' % (s_ht, s_jj)); p('s_lshl_b32 s%d, s%d, 1' % (s_t0, s_hp)); p('s_add_u32 s%d, s%d, s%d' % (s_ht, s_ht, s_t0)); p('s_add_u32 s%d, s%d, %d' % (s_ht, s_ht, 32 * br))
    p('s_lshl_b32 s%d, s%d, 12' % (s_t0, s_ht)); p('s_add_u32 s%d, s%d, %d' % (s_t0, s_t0, WS_OUTB)); p('s_add_u32 s%d, s%d, 4096' % (s_t1, s_t0))
    p('v_lshlrev_b32 v27, 3, v%d' % v_lane)
    p('s_mov_b32 s%d, %d' % (s_spin, cfg.spin))
    p.label('L_h2%s' % L)
    for u in range(2):
        for rp in range(nrp):
            r = M + 2 * (u * 8 + rp)
            vm.op('buffer_load_dwordx2 v[%d:%d], v27, s[%d:%d], s%d offen offset:%d sc1' % (r, r + 1, sWS, sWS + 3, s_t0 if u == 0 else s_t1, rp * 512))
    vm.wait_all()
    tagcheck(p, [M + 2 * (u * 8 + rp) + 1 for u in range(2) for rp in range(nrp)], 28, 29)
    spin_tail(p, 'h2%s' % L)
    for u in range(2):
        for rp in range(nrp): p('v_mov_b32 v%d, v%d' % (KVA + 8 * u + rp, M + 2 * (u * 8 + rp)))

OF = 232
def o_phase(p, vm, br):
    NB = [64, 80, 96, 112]
    units = [(0, 0), (0, 1), (1, 0), (1, 1)]
    for un, (blk, u) in enumerate(units):
        if br == 1:
            p('%s %s, %s, %s, 0' % (MF, vr(NB[un], 16), vr(KVA + 8 * u, 4), vr(FQ + 8 * un, 4)))
            p('%s %s, %s, %s, %s' % (MF, vr(NB[un], 16), vr(KVA + 8 * u + 4, 4), vr(FQ + 8 * un + 4, 4), vr(NB[un], 16)))
        else:
            p('%s %s, %s, %s, 0' % (MF, vr(NB[un], 16), vr(KVA + 8 * u, 4), vr(FQ + 4 * un, 4)))
    p('s_lshl_b32 s%d, s%d, 2' % (s_t0, s_i)); p('s_lshl_b32 s%d, s%d, 1' % (s_t1, s_th)); p('s_add_u32 s%d, s%d, s%d' % (s_t0, s_t0, s_t1))
    p('s_lshl_b32 s%d, s%d, 16' % (s_t0, s_t0)); p('s_lshl_b32 s%d, s%d, 10' % (s_t1, s_ht)); p('s_add_u32 s%d, s%d, s%d' % (s_t0, s_t0, s_t1)); p('s_add_u32 s%d, s%d, %d' % (s_t0, s_t0, WS_O))
    p('s_add_u32 s%d, s%d, 65536' % (s_t1, s_t0))
    p('v_lshlrev_b32 v27, 4, v%d' % v_lane)
    for un, (blk, u) in enumerate(units):
        N = NB[un]; num = N + 8 * u; den = N + 8 * (1 - u)
        p('v_add_f32 v%d, s%d, v%d' % (den, s_eps, den))
        p('v_rcp_f32 v%d, v%d' % (den, den))
        p('s_nop 0')
        for i in range(4):
            p('v_pk_mul_f32 v[%d:%d], v[%d:%d], v[%d:%d] op_sel_hi:[1,0]' % (num + 2 * i, num + 2 * i + 1, num + 2 * i, num + 2 * i + 1, den, den + 1))
        for i in range(4): cvt(p, OF + 4 * un + i, num + 2 * i, num + 2 * i + 1)
        vm.op('buffer_store_dwordx4 %s, v27, s[%d:%d], s%d offen offset:%d sc1' % (vr(OF + 4 * un, 4), sWS, sWS + 3, s_t0 if blk == 0 else s_t1, u * 1024))
    p('s_lshl_b32 s%d, s%d, 1' % (s_t0, s_i)); p('s_add_u32 s%d, s%d, s%d' % (s_t0, s_t0, s_th)); p('s_lshl_b32 s%d, s%d, 5' % (s_t0, s_t0))
    p('s_lshl_b32 s%d, s%d, 1' % (s_t1, s_jj)); p('s_add_u32 s%d, s%d, s%d' % (s_t0, s_t0, s_t1)); p('s_add_u32 s%d, s%d, s%d' % (s_t0, s_t0, s_hp))
    p('s_add_u32 s%d, s%d, %d' % (s_t0, s_t0, 16 * br)); p('s_lshl_b32 s%d, s%d, 7' % (s_t0, s_t0)); p('s_add_u32 s%d, s%d, %d' % (s_t0, s_t0, WS_FLAG))
    p('v_mov_b32 v27, 0')
    vm.wait_all()
    p('s_mov_b64 exec, 1')
    vm.op('buffer_store_dword v%d, v27, s[%d:%d], s%d offen sc1' % (vT, sWS, sWS + 3, s_t0))
    p('s_mov_b64 exec, -1')

def gate(p, vm):
    X, Gw = 168, 184
    p('s_lshl_b32 s%d, s%d, 7' % (s_t0, s_i)); p('s_lshl_b32 s%d, s%d, 4' % (s_t1, s_jj)); p('s_add_u32 s%d, s%d, s%d' % (s_t0, s_t0, s_t1))
    p('s_lshl_b32 s%d, s%d, 2' % (s_t1, s_w)); p('s_add_u32 s%d, s%d, s%d' % (s_t0, s_t0, s_t1))
    p('s_lshl_b32 s%d, s%d, 10' % (s_t2, s_t0))
    p('v_and_b32 v27, 15, v%d' % v_lane); p('v_lshlrev_b32 v27, 4, v27')
    p('v_lshrrev_b32 v28, 4, v%d' % v_lane); p('v_lshl_add_u32 v28, v28, 10, v27')
    for q in range(4):
        vm.op('buffer_load_dwordx4 %s, v28, s[%d:%d], s%d offen offset:%d' % (vr(X + 4 * q, 4), sX, sX + 3, s_t2, q * 256))
    for q in range(4):
        vm.op('buffer_load_dwordx4 %s, v27, s[%d:%d], 0 offen offset:%d' % (vr(Gw + 4 * q, 4), sMISC, sMISC + 3, q * 256), 'gate' if q == 3 else None)
    p('s_lshr_b32 s%d, s%d, 2' % (s_t3, s_t0)); p('s_lshl_b32 s%d, s%d, 7' % (s_t3, s_t3)); p('s_add_u32 s%d, s%d, %d' % (s_b + 1, s_t3, WS_G))

def gate_finish(p, vm):
    X, Gw = 168, 184
    vm.wait('gate')
    acc = 200
    p('v_mov_b32 v%d, 0' % acc); p('v_mov_b32 v%d, 0' % (acc + 1))
    for k in range(16):
        p('v_lshlrev_b32 v202, 16, v%d' % (X + k)); p('v_lshlrev_b32 v203, 16, v%d' % (Gw + k))
        p('v_and_b32 v204, 0xffff0000, v%d' % (X + k)); p('v_and_b32 v205, 0xffff0000, v%d' % (Gw + k))
        p('v_fmac_f32 v%d, v202, v203' % acc); p('v_fmac_f32 v%d, v204, v205' % (acc + 1))
    p('v_add_f32 v%d, v%d, v%d' % (acc, acc, acc + 1))
    for sh in (8, 4, 2, 1):
        p('v_add_f32_dpp v%d, v%d, v%d row_ror:%d row_mask:0xf bank_mask:0xf' % (acc, acc, acc, sh))
    p('v_mul_f32 v%d, s%d, v%d' % (acc, s_log2e, acc))
    p('v_exp_f32_e64 v%d, -v%d' % (acc, acc))
    p('s_nop 0')
    p('v_add_f32 v%d, 1.0, v%d' % (acc, acc))
    p('v_rcp_f32 v%d, v%d' % (acc, acc))
    p('v_mov_b32 v%d, v%d' % (acc + 1, vT))
    p('v_lshrrev_b32 v27, 4, v%d' % v_lane); p('v_lshlrev_b32 v27, 3, v27')
    p('s_mov_b32 exec_lo, 0x00010001'); p('s_mov_b32 exec_hi, 0x00010001')
    vm.op('buffer_store_dwordx2 v[%d:%d], v27, s[%d:%d], s%d offen sc1' % (acc, acc + 1, sWS, sWS + 3, s_b + 1))
    p('s_mov_b64 exec, -1')

def p3(p, vm, br):
    L = 'AB'[br]
    OACC = [64, 80]
    GV = 96
    p('v_lshrrev_b32 v27, 5, v%d' % v_lane); p('v_lshlrev_b32 v27, 2, v27')
    p('v_bfe_u32 v28, v%d, 2, 2' % v_lane); p('v_add_u32 v27, v27, v28'); p('v_lshlrev_b32 v27, 7, v27')
    p('v_bfe_u32 v29, v%d, 4, 1' % v_lane); p('v_lshl_add_u32 v27, v29, 5, v27')
    p('v_and_b32 v29, 3, v%d' % v_lane); p('v_lshl_add_u32 v27, v29, 3, v27')
    p('s_lshl_b32 s%d, s%d, 16' % (s_t0, s_hp)); p('v_add_u32 v27, s%d, v27' % s_t0)
    p('v_lshrrev_b32 v28, 1, v28')
    p('v_lshl_add_u32 v%d, v28, 6, v27' % vOA)
    p('v_xor_b32 v28, 1, v28'); p('v_lshl_add_u32 v%d, v28, 6, v27' % (vOA + 1))
    vm.wait_all()
    p('s_barrier')
    p('s_lshl_b32 s%d, s%d, 1' % (s_t0, s_tb)); p('s_add_u32 s%d, s%d, s%d' % (s_t0, s_t0, s_hp)); p('s_lshl_b32 s%d, s%d, 11' % (s_t0, s_t0)); p('s_add_u32 s%d, s%d, %d' % (s_t0, s_t0, WS_FLAG))
    p('v_and_b32 v27, 15, v%d' % v_lane); p('v_lshlrev_b32 v27, 7, v27')
    p('s_mov_b32 s%d, %d' % (s_spin, cfg.spin))
    p.label('L_fl%s' % L)
    vm.op('buffer_load_dword v28, v27, s[%d:%d], s%d offen sc1' % (sWS, sWS + 3, s_t0))
    vm.wait_all()
    p('v_cmp_ne_u32 vcc, v28, v%d' % vT)
    spin_tail(p, 'fl%s' % L)
    p('s_lshl_b32 s%d, s%d, 1' % (s_t0, s_tb)); p('s_add_u32 s%d, s%d, s%d' % (s_t0, s_t0, s_th)); p('s_lshl_b32 s%d, s%d, 16' % (s_t0, s_t0))
    p('s_lshl_b32 s%d, s%d, 15' % (s_t1, s_hp)); p('s_add_u32 s%d, s%d, s%d' % (s_t0, s_t0, s_t1)); p('s_add_u32 s%d, s%d, %d' % (s_t0, s_t0, WS_O))
    p('v_lshlrev_b32 v27, 4, v%d' % v_lane)
    for h in range(32):
        vm.op('buffer_load_dwordx4 %s, v27, s[%d:%d], s%d offen offset:%d sc1' % (ar(4 * h, 4), sWS, sWS + 3, s_t0, (h & 3) * 1024), 'o%d' % h)
        if h & 3 == 3: p('s_add_u32 s%d, s%d, 4096' % (s_t0, s_t0))
    p('s_lshl_b32 s%d, s%d, 1' % (s_t0, s_tb)); p('s_add_u32 s%d, s%d, s%d' % (s_t0, s_t0, s_th)); p('s_lshl_b32 s%d, s%d, 10' % (s_t0, s_t0)); p('s_add_u32 s%d, s%d, %d' % (s_t2, s_t0, WS_G))
    p('v_and_b32 v28, 31, v%d' % v_lane); p('v_lshrrev_b32 v29, 2, v28'); p('v_lshlrev_b32 v29, 7, v29'); p('v_and_b32 v28, 3, v28'); p('v_lshl_add_u32 v30, v28, 3, v29')
    vm.op('buffer_load_dwordx2 v[%d:%d], v30, s[%d:%d], s%d offen sc1' % (GV, GV + 1, sWS, sWS + 3, s_t2), 'g')
    def reads(h):
        wf = vWF + 8 * (h % 3)
        return ['ds_read_b64_tr_b16 v[%d:%d], v%d offset:%d' % (wf + 4 * ct + 2 * rd, wf + 4 * ct + 2 * rd + 1, vOA + ct, h * 2048 + rd * 1024) for ct in range(2) for rd in range(2)]
    for h in range(2):
        for o in reads(h): p(o)
    for h in range(32):
        wf = vWF + 8 * (h % 3)
        vm.wait('o%d' % h, ' lgkmcnt(%d)' % (4 if h < 31 else 0))
        R = reads(h + 2) if h + 2 < 32 else []
        for ct in range(2):
            c = '0' if h == 0 else vr(OACC[ct], 16)
            p('%s %s, %s, %s, %s' % (MF, vr(OACC[ct], 16), vr(wf + 4 * ct, 4), ar(4 * h, 4), c))
            for o in R[2 * ct:2 * ct + 2]: p(o)
    p('s_mov_b32 s%d, %d' % (s_spin, cfg.spin))
    vm.wait_all()
    p('v_cmp_ne_u32 vcc, v%d, v%d' % (GV + 1, vT))
    p('s_cbranch_vccz L_g%s_ok' % L)
    p.label('L_g%s' % L)
    vm.op('buffer_load_dwordx2 v[%d:%d], v30, s[%d:%d], s%d offen sc1' % (GV, GV + 1, sWS, sWS + 3, s_t2))
    vm.wait_all()
    p('v_cmp_ne_u32 vcc, v%d, v%d' % (GV + 1, vT))
    spin_tail(p, 'g%s' % L)
    p('v_sub_f32 v%d, 1.0, v%d' % (GV + 1, GV))
    p('s_cmp_eq_u32 s%d, 0' % s_hp); p('s_cbranch_scc1 L_gs%s' % L)
    p('v_mov_b32 v%d, v%d' % (GV, GV + 1))
    p.label('L_gs%s' % L)
    p('v_and_b32 v27, 31, v%d' % v_lane)
    p('s_lshl_b32 s%d, s%d, 14' % (s_t0, s_hp)); p('s_lshl_b32 s%d, s%d, 13' % (s_t1, s_th)); p('s_add_u32 s%d, s%d, s%d' % (s_t0, s_t0, s_t1)); p('s_add_u32 s%d, s%d, %d' % (s_t0, s_t0, 4 * SLOT))
    p('v_lshlrev_b32 v28, 8, v27'); p('v_add_u32 v28, s%d, v28' % s_t0)
    p('v_and_b32 v29, 7, v27'); p('v_lshrrev_b32 v27, 5, v%d' % v_lane); p('v_xor_b32 v29, v29, v27')
    for q in range(4):
        p('v_xor_b32 v27, %d, v29' % (2 * q)); p('v_lshl_add_u32 v%d, v27, 4, v28' % (vEW + q))
    p('s_nop 7')
    for ct in range(2):
        for i in range(8):
            p('v_pk_mul_f32 v[%d:%d], v[%d:%d], v[%d:%d] op_sel_hi:[1,0]' % (OACC[ct] + 2 * i, OACC[ct] + 2 * i + 1, OACC[ct] + 2 * i, OACC[ct] + 2 * i + 1, GV, GV + 1))
    for ct in range(2):
        for q in range(4): p('ds_write_b128 v%d, %s offset:%d' % (vEW + q, vr(OACC[ct] + 4 * q, 4), 128 * ct))
    p('v_lshrrev_b32 v27, 3, v%d' % v_lane); p('v_and_b32 v28, 7, v%d' % v_lane); p('v_lshlrev_b32 v28, 1, v28')
    p('s_lshl_b32 s%d, s%d, 12' % (s_t0, s_w)); p('s_add_u32 s%d, s%d, %d' % (s_t0, s_t0, 4 * SLOT))
    p('v_lshlrev_b32 v29, 8, v27'); p('v_add_u32 v29, s%d, v29' % s_t0)
    for x in range(2):
        p('v_or_b32 v30, %d, v28' % x); p('v_xor_b32 v30, v30, v27'); p('v_lshl_add_u32 v%d, v30, 4, v29' % (vER + x))
    p('v_and_b32 v28, 7, v%d' % v_lane); p('v_lshlrev_b32 v28, 4, v28'); p('v_lshl_add_u32 v27, v27, 10, v28')
    p('s_lshl_b32 s%d, s%d, 6' % (s_t0, s_tb)); p('s_lshl_b32 s%d, s%d, 4' % (s_t1, s_w)); p('s_add_u32 s%d, s%d, s%d' % (s_t0, s_t0, s_t1)); p('s_lshl_b32 s%d, s%d, 10' % (s_t0, s_t0))
    p('s_lshl_b32 s%d, s%d, 7' % (s_t1, s_cb)); p('s_add_u32 s%d, s%d, s%d' % (s_t0, s_t0, s_t1)); p('s_add_u32 s%d, s%d, 8192' % (s_t1, s_t0))
    p('s_waitcnt lgkmcnt(0)')
    p('s_barrier')
    RD = 168
    for a in range(2):
        for brr in range(2):
            for x in range(2):
                p('ds_read_b128 %s, v%d offset:%d' % (vr(RD + 16 * a + 8 * brr + 4 * x, 4), vER + x, a * 2048 + brr * 16384))
    for a in range(2):
        p('s_waitcnt lgkmcnt(%d)' % (4 if a == 0 else 0))
        r = RD + 16 * a
        for i in range(4): p('v_pk_add_f32 v[%d:%d], v[%d:%d], v[%d:%d]' % (r + 2 * i, r + 2 * i + 1, r + 2 * i, r + 2 * i + 1, r + 8 + 2 * i, r + 8 + 2 * i + 1))
        for i in range(4): cvt(p, r + 8 + i, r + 2 * i, r + 2 * i + 1)
        vm.op('buffer_store_dwordx4 %s, v27, s[%d:%d], s%d offen' % (vr(r + 8, 4), sOUT, sOUT + 3, s_t0 if a == 0 else s_t1))
    p('s_cmp_eq_u32 s%d, 0' % s_b); p('s_cbranch_scc0 L_noep%s' % L)
    p('s_cmp_eq_u32 s%d, 0' % s_w); p('s_cbranch_scc0 L_noep%s' % L)
    p('v_mov_b32 v27, 0'); p('s_mov_b64 exec, 1')
    vm.op('buffer_store_dword v%d, v27, s[%d:%d], 0 offen sc1' % (vT, sWS, sWS + 3))
    p('s_mov_b64 exec, -1')
    p.label('L_noep%s' % L)

def write_stamps(p, vm):
    if not cfg.stamps: return
    p('s_lshl_b32 s%d, s%d, 2' % (s_t0, s_b)); p('s_add_u32 s%d, s%d, s%d' % (s_t0, s_t0, s_w)); p('s_lshl_b32 s%d, s%d, 8' % (s_t0, s_t0)); p('s_add_u32 s%d, s%d, %d' % (s_t0, s_t0, WS_STAMP))
    p('v_lshlrev_b32 v27, 2, v%d' % v_lane)
    vm.op('buffer_store_dword v255, v27, s[%d:%d], s%d offen' % (sDBG, sDBG + 3, s_t0))

def body(p, vm, br, dco, dwq):
    extra = {m: [] for m in range(8)}
    for m in range(5): extra[m] = dco(m + 3)
    extra[5] = dwq(0); extra[6] = dwq(1)
    extra[7] = wo_setup_ops(p) + dma_wo_ops(p, vm, 0)
    if br == 0: gate_finish(p, vm)
    pass1(p, vm, br, dco, dwq, extra)
    p('s_barrier')
    stamp(p, 2)
    if cfg.debug == 1: dump_regs(p, vm, vK[0], 64, 0)
    if br == 1: feat_k_B(p)
    else: feat_k_A(p)
    stamp(p, 3)
    exchange(p, vm, br)
    if cfg.debug == 2: dump_regs(p, vm, ST, 32, 0)
    hop1_store(p, vm, br)
    stamp(p, 4)
    pass2(p, vm, dma_wo_ops(p, vm, 1), dma_wo_ops(p, vm, 2) + dma_wo_ops(p, vm, 3))
    stamp(p, 5)
    if cfg.debug == 1:
        p('s_nop 15'); dump_regs(p, vm, vQ[0], 32, 1)
    hop1_reduce(p, vm, br)
    stamp(p, 6)
    if br == 1: feat_q_B(p)
    else: feat_q_A(p)
    stamp(p, 7)
    hop2_gather(p, vm, br)
    stamp(p, 8)
    if cfg.debug == 2: dump_regs(p, vm, KVA, 16, 1)
    o_phase(p, vm, br)
    stamp(p, 9)
    p3(p, vm, br)
    stamp(p, 10)
    write_stamps(p, vm)
    p('s_endpgm')

if __name__ == '__main__':
    import argparse
    ap = argparse.ArgumentParser()
    ap.add_argument('-o', default='k.s'); ap.add_argument('--debug', type=int, default=0); ap.add_argument('--rot', type=int, default=1)
    ap.add_argument('--maprow', type=int, default=0); ap.add_argument('--stamps', type=int, default=0)
    a = ap.parse_args()
    cfg.debug = a.debug; cfg.rot = a.rot; cfg.maprow = a.maprow; cfg.stamps = a.stamps
    open(a.o, 'w').write(build())
```

```python
import sys, os
sys.path.insert(0, os.path.dirname(os.path.abspath(__file__)))
from asmdsl import *

KNAME = "gated_mix__linear_attn_block__linear_kernel_hedgehog__prompt_kernel"

class Cfg:
    debug = 0
    rot = 1
    maprow = 0
    spin = 1 << 20
    stamps = 0
cfg = Cfg()

WS_EPOCH = 0x0
WS_G     = 0x1000
WS_FLAG  = 0x20000
WS_OUTB  = 0x100000
WS_O     = 0x200000
WS_INB   = 0x800000
WS_SIZE  = 0x1000000
WS_DBG   = 0x1000000
WS_STAMP = 0x7000000

sX, sW, sWOA, sWOB, sWS, sOUT, sMISC, sDBG = 8, 12, 16, 20, 24, 28, 32, 36
s_w, s_th, s_hp, s_i, s_jj, s_rot, s_T = 40, 41, 42, 43, 44, 45, 46
s_xbase, s_wbase, s_m0x, s_m0w, s_ox, s_ow, s_t0, s_t1, s_t2, s_t3 = 47, 48, 49, 50, 51, 52, 53, 54, 55, 56
s_tb, s_cb, s_head, s_qbase, s_m0q = 57, 58, 59, 60, 61
s_mask16 = 62
s_log2e = 84
s_eps = 86
s_spin = 88
s_ht = 89
s_stamp = 90
s_b = 92
s_exec = 94
s_wobase, s_m0o = 96, 97
KA = 64

v_lane = 1
vXA = 2
vWA = 14
vDX = 17
vDQ = 21
vONES = 25
vT = 26
vtmp = 27
vK = [32, 48]; vV = [64, 80]; vQ = [96, 112]
vWF = 128
vWP = 152
vSEL = 160
vTMP = 168

SLOT = 32768
def slot_set(s): return s // 2
def slot_imm(s): return (s % 2) * SLOT

class VM:
    def __init__(self, p): self.p = p; self.n = 0; self.marks = {}
    def op(self, text, mark=None):
        self.p(text); self.n += 1
        if mark: self.marks[mark] = self.n
    def mark(self, name): self.marks[name] = self.n
    def wait(self, name, extra=''):
        k = self.n - self.marks[name]
        assert 0 <= k <= 63, (name, k)
        self.p('s_waitcnt vmcnt(%d)%s' % (k, extra))
    def wait_all(self): self.p('s_waitcnt vmcnt(0)')

def stamp(p, idx):
    if not cfg.stamps: return
    p('s_memtime s[%d:%d]' % (s_stamp, s_stamp + 1))
    p('s_waitcnt lgkmcnt(0)')
    p('v_writelane_b32 v255, s%d, %d' % (s_stamp, idx))

def prologue_common(p, br):
    p('v_lshrrev_b32 v27, 6, v0')
    p('v_and_b32 v%d, 63, v0' % v_lane)
    p('v_readfirstlane_b32 s%d, v27' % s_w)
    p('s_waitcnt lgkmcnt(0)')
    def srd(d, ptr, size):
        p('s_mov_b32 s%d, s%d' % (d, ptr)); p('s_and_b32 s%d, s%d, 0xffff' % (d + 1, ptr + 1))
        p('s_mov_b32 s%d, 0x%x' % (d + 2, size)); p('s_mov_b32 s%d, 0x00020000' % (d + 3))
    srd(sX, KA + 0, 2048 * 1024)
    srd(sW, KA + (2 if br == 0 else 8), 512 * 3072)
    srd(sWS, KA + 18, WS_SIZE)
    srd(sWOA, KA + 4, 512 * 1024)
    srd(sWOB, KA + 12, 512 * 1024)
    srd(sOUT, KA + 16, 2048 * 1024)
    if br == 0: srd(sMISC, KA + 14, 1024)
    else: srd(sMISC, KA + 10, 32 * 512)
    if cfg.debug or cfg.stamps: srd(sDBG, KA + 18, 0x8000000)
    p('s_and_b32 s%d, s%d, 1' % (s_th, s_w))
    p('s_lshr_b32 s%d, s%d, 1' % (s_hp, s_w))

def gen_path(br):
    p = Prog(); vm = VM(p)
    L = 'A' if br == 0 else 'B'
    p.label('L_path' + L)
    if cfg.stamps: p('v_mov_b32 v255, 0')
    stamp(p, 0)
    rstamp(p, 11)
    prologue_common(p, br)
    p('v_mov_b32 v28, 0')
    vm.op('buffer_load_dword v%d, v28, s[%d:%d], 0 offen sc1' % (vT, sWS, sWS + 3), 'epoch')
    if br == 0: gate(p, vm)
    p('v_lshrrev_b32 v27, 3, v%d' % v_lane)
    p('v_and_b32 v28, 7, v%d' % v_lane)
    p('v_lshrrev_b32 v29, 4, v%d' % v_lane)
    for q in range(4):
        p('v_add_u32 v30, %d, v29' % (4 * (q & 1)))
        p('v_xor_b32 v30, v28, v30')
        p('v_lshlrev_b32 v30, 4, v30')
        p('v_add_u32 v31, %d, v27' % (7 * q))
        p('v_lshl_add_u32 v%d, v31, 10, v30' % (vDX + q))
    p('v_and_b32 v30, 1, v29'); p('v_lshlrev_b32 v30, 2, v30'); p('v_xor_b32 v30, v28, v30'); p('v_lshlrev_b32 v30, 4, v30')
    p('v_mul_u32_u24 v31, 3072, v27')
    p('v_add_u32 v30, v30, v31')
    for q in range(4):
        p('v_add_u32 v%d, %d, v30' % (vDQ + q, 8 * q * 3072 - 1024 * q))
    p('s_lshl_b32 s%d, s%d, 17' % (s_xbase, s_i))
    p('s_lshl_b32 s%d, s%d, 15' % (s_t0, s_w))
    p('s_add_u32 s%d, s%d, s%d' % (s_xbase, s_xbase, s_t0))
    p('s_lshl_b32 s%d, s%d, 7' % (s_qbase, s_jj))
    p('s_mul_i32 s%d, s%d, 98304' % (s_t0, s_th))
    p('s_add_u32 s%d, s%d, s%d' % (s_wbase, s_qbase, s_t0))
    p('s_add_u32 s%d, s%d, 1' % (s_t0, s_hp))
    p('s_lshl_b32 s%d, s%d, 10' % (s_t0, s_t0))
    p('s_add_u32 s%d, s%d, s%d' % (s_wbase, s_wbase, s_t0))
    p('s_lshl_b32 s%d, s%d, 12' % (s_m0x, s_w))
    p('s_lshl_b32 s%d, s%d, 13' % (s_m0w, s_hp))
    p('s_lshl_b32 s%d, s%d, 12' % (s_t0, s_th))
    p('s_add_u32 s%d, s%d, s%d' % (s_m0w, s_m0w, s_t0))
    p('s_add_u32 s%d, s%d, 16384' % (s_m0w, s_m0w))
    p('s_lshl_b32 s%d, s%d, 13' % (s_m0q, s_w))

    def chunk_offsets(n):
        p('s_add_u32 s%d, s%d, %d' % (s_t0, s_rot, n)); p('s_and_b32 s%d, s%d, 7' % (s_t0, s_t0))
        p('s_lshl_b32 s%d, s%d, 7' % (s_t1, s_t0)); p('s_add_u32 s%d, s%d, s%d' % (s_ox, s_xbase, s_t1))
        p('s_mul_i32 s%d, s%d, 196608' % (s_t1, s_t0)); p('s_add_u32 s%d, s%d, s%d' % (s_ow, s_wbase, s_t1))
    def dma_chunk_ops(n):
        slot = (n % 5) * SLOT
        ops = []
        ops.append(lambda: chunk_offsets(n))
        ops.append(lambda: p('s_add_u32 m0, s%d, %d' % (s_m0x, slot)))
        for q in range(4):
            ops.append(lambda q=q: vm.op('buffer_load_dwordx4 v%d, s[%d:%d], s%d offen offset:%d lds' % (vDX + q, sX, sX + 3, s_ox, q * 1024)))
        ops.append(lambda: p('s_add_u32 m0, s%d, %d' % (s_m0w, slot)))
        for q in range(4):
            ops.append(lambda q=q: vm.op('buffer_load_dwordx4 v%d, s[%d:%d], s%d offen offset:%d lds' % (vDQ + q, sW, sW + 3, s_ow, q * 1024), 'c%d' % n if q == 3 else None))
        return ops
    def dma_wq_ops(hf):
        slot = (3 + hf) * SLOT
        ops = []
        def offs():
            p('s_add_u32 s%d, s%d, s%d' % (s_t0, s_rot, s_w)); p('s_add_u32 s%d, s%d, %d' % (s_t0, s_t0, 4 * hf)); p('s_and_b32 s%d, s%d, 7' % (s_t0, s_t0))
            p('s_mul_i32 s%d, s%d, 196608' % (s_t1, s_t0)); p('s_add_u32 s%d, s%d, s%d' % (s_ow, s_qbase, s_t1))
        ops.append(offs)
        for grp in range(2):
            def m(grp=grp):
                if grp == 1: p('s_add_u32 s%d, s%d, 98304' % (s_ow, s_ow))
                p('s_add_u32 m0, s%d, %d' % (s_m0q, slot + grp * 4096))
            ops.append(m)
            for q in range(4):
                ops.append(lambda q=q, grp=grp: vm.op('buffer_load_dwordx4 v%d, s[%d:%d], s%d offen offset:%d lds' % (vDQ + q, sW, sW + 3, s_ow, q * 1024), 'wq%d' % hf if (q == 3 and grp == 1) else None))
        return ops

    if br == 1:
        p('s_lshl_b32 s%d, s%d, 11' % (s_t0, s_jj)); p('s_lshl_b32 s%d, s%d, 10' % (s_t1, s_hp)); p('s_add_u32 s%d, s%d, s%d' % (s_t0, s_t0, s_t1))
        p('s_lshl_b32 s%d, s%d, 10' % (s_t1, s_w)); p('s_add_u32 m0, s%d, %d' % (s_t1, 4 * SLOT))
        p('v_lshlrev_b32 v27, 4, v%d' % v_lane)
        vm.op('buffer_load_dwordx4 v27, s[%d:%d], s%d offen lds' % (sMISC, sMISC + 3, s_t0), 'wphi')
    for n in range(3):
        for f in dma_chunk_ops(n): f()
    p('v_and_b32 v27, 31, v%d' % v_lane)
    p('v_lshrrev_b32 v28, 5, v%d' % v_lane)
    p('v_lshrrev_b32 v29, 1, v27'); p('v_and_b32 v29, 7, v29'); p('v_xor_b32 v29, v28, v29')
    p('s_lshl_b32 s%d, s%d, 13' % (s_t0, s_th))
    p('v_lshlrev_b32 v30, 7, v27'); p('v_add_u32 v30, s%d, v30' % s_t0)
    for ks in range(4):
        p('v_xor_b32 v31, %d, v29' % (2 * ks)); p('v_lshl_add_u32 v%d, v31, 4, v30' % (vXA + ks))
        p('v_add_u32 v%d, 0x10000, v%d' % (vXA + 4 + ks, vXA + ks)); p('v_add_u32 v%d, 0x20000, v%d' % (vXA + 8 + ks, vXA + ks))
    p('v_lshrrev_b32 v27, 2, v%d' % v_lane); p('v_and_b32 v27, 3, v27')
    p('v_lshl_add_u32 v29, v28, 3, v27')
    p('v_lshlrev_b32 v29, 7, v29')
    p('v_lshrrev_b32 v30, 1, v27'); p('v_xor_b32 v30, s%d, v30' % s_hp); p('v_lshl_add_u32 v29, v30, 6, v29')
    p('v_lshrrev_b32 v30, 4, v%d' % v_lane); p('v_and_b32 v30, 1, v30'); p('v_lshl_add_u32 v29, v30, 5, v29')
    p('v_and_b32 v30, 3, v%d' % v_lane); p('v_lshl_add_u32 v%d, v30, 3, v29' % vWA)
    p('v_add_u32 v%d, 0x10000, v%d' % (vWA + 1, vWA)); p('v_add_u32 v%d, 0x20000, v%d' % (vWA + 2, vWA))
    p('v_mov_b32 v%d, 0x3f803f80' % vONES)
    p('s_mov_b32 s%d, 0xffff0000' % s_mask16); p('s_mov_b32 s%d, 0xffff0000' % (s_mask16 + 1))
    p('s_mov_b32 s%d, 0x3fb8aa3b' % s_log2e); p('s_mov_b32 s%d, 0x3fb8aa3b' % (s_log2e + 1))
    p('s_mov_b32 s%d, 0x358637bd' % s_eps); p('s_mov_b32 s%d, 0x358637bd' % (s_eps + 1))
    vm.wait('epoch')
    p('v_readfirstlane_b32 s%d, v%d' % (s_T, vT))
    p('s_mul_i32 s%d, s%d, 0x9e3779b1' % (s_T, s_T)); p('s_add_u32 s%d, s%d, 0x7f4a7c15' % (s_T, s_T))
    p('v_mov_b32 v%d, s%d' % (vT, s_T))

    if br == 1:
        p('v_and_b32 v27, 31, v%d' % v_lane)
        p('v_lshrrev_b32 v28, 5, v%d' % v_lane)
        p('v_bfe_u32 v29, v27, 2, 1')
        p('v_cmp_eq_u32 vcc, v28, v29')
        p('v_bfe_u32 v29, v27, 3, 1'); p('v_and_b32 v30, 3, v27'); p('v_lshl_add_u32 v29, v29, 2, v30')
        p('v_and_b32 v30, 1, v29'); p('v_lshlrev_b32 v30, 4, v30'); p('v_mov_b32 v31, 0x3f80'); p('v_lshlrev_b32 v30, v30, v31')
        p('v_cndmask_b32 v30, 0, v30, vcc')
        p('v_lshrrev_b32 v29, 1, v29')
        p('v_bfe_u32 v28, v27, 4, 1')
        p('v_lshl_add_u32 v29, v28, 2, v29')
        for q in range(8):
            p('v_cmp_eq_u32 vcc, %d, v29' % q)
            p('v_cndmask_b32 v%d, 0, v30, vcc' % (vSEL + q))
        p('v_lshrrev_b32 v27, 5, v%d' % v_lane); p('v_lshlrev_b32 v27, 2, v27')
        p('v_bfe_u32 v28, v%d, 2, 2' % v_lane); p('v_add_u32 v27, v27, v28'); p('v_lshlrev_b32 v27, 5, v27')
        p('v_bfe_u32 v28, v%d, 1, 1' % v_lane); p('v_lshl_add_u32 v27, v28, 3, v27')
        p('v_bfe_u32 v28, v%d, 4, 1' % v_lane); p('v_lshl_add_u32 v27, v28, 4, v27')
        p('s_lshl_b32 s%d, s%d, 10' % (s_t0, s_w)); p('s_add_u32 s%d, s%d, %d' % (s_t0, s_t0, 4 * SLOT)); p('v_add_u32 v27, s%d, v27' % s_t0)
        vm.wait('wphi')
        for u in range(2):
            for rd in range(2):
                p('ds_read_b64_tr_b16 v[%d:%d], v27 offset:%d' % (vWP + 4 * u + 2 * rd, vWP + 4 * u + 2 * rd + 1, u * 512 + rd * 8 * 32))
        p('v_bfe_u32 v28, v%d, 2, 1' % v_lane); p('v_lshlrev_b32 v28, 31, v28'); p('v_lshrrev_b32 v29, 16, v28'); p('v_or_b32 v28, v28, v29')
        p('s_waitcnt lgkmcnt(0)')
        for q in range(8): p('v_xor_b32 v%d, v%d, v28' % (vWP + q, vWP + q))
    return p, vm, dma_chunk_ops, dma_wq_ops

def xf(s, blk): return ar((s * 2 + blk) * 4, 4)

def pass1(p, vm, br, dma_chunk_ops, dma_wq_ops, extra_ops):
    def reads(s):
        c, ks = s >> 2, s & 3; slot = c % 5; st = slot_set(slot); im = slot_imm(slot); buf = s % 3
        ops = []
        wf = vWF + 8 * buf
        for part in range(2):
            for rd in range(2):
                ops.append('ds_read_b64_tr_b16 v[%d:%d], v%d offset:%d' % (wf + 4 * part + 2 * rd, wf + 4 * part + 2 * rd + 1, vWA + st, im + 16384 + part * 8192 + (16 * ks + 4 * rd) * 128))
        for blk in range(2):
            ops.append('ds_read_b128 %s, v%d offset:%d' % (xf(s, blk), vXA + st * 4 + ks, im + blk * 4096))
        return ops
    def mfmas(s):
        wf = vWF + 8 * (s % 3); ops = []
        for blk in range(2):
            c = '0' if s == 0 else vr(vK[blk], 16)
            if br == 1: ops.append('v_mfma_f32_32x32x16_bf16 %s, %s, %s, %s' % (vr(vK[blk], 16), vr(wf, 4), xf(s, blk), c))
            else:       ops.append('v_mfma_f32_32x32x16_bf16 %s, %s, %s, %s' % (vr(vK[blk], 16), xf(s, blk), vr(wf, 4), c))
            c = '0' if s == 0 else vr(vV[blk], 16)
            ops.append('v_mfma_f32_32x32x16_bf16 %s, %s, %s, %s' % (vr(vV[blk], 16), xf(s, blk), vr(wf + 4, 4), c))
        return ops
    pend = []
    vm.wait('c0'); p('s_barrier')
    stamp(p, 1)
    pend += extra_ops[0]
    for o in reads(0): p(o)
    for o in reads(1): p(o)
    for s in range(32):
        nxt = s + 2
        p('s_waitcnt lgkmcnt(%d)' % (6 if s < 31 else 0))
        M = mfmas(s)
        R = reads(nxt) if nxt < 32 else []
        p(M[0])
        if nxt < 32 and nxt % 4 == 0:
            m = nxt // 4
            vm.wait('c%d' % m); p('s_barrier')
            pend += extra_ops[m]
        def take(n):
            for _ in range(n):
                if pend: pend.pop(0)()
        for k in range(4):
            if k > 0: p(M[k])
            for o in R[(k * 6) // 4:((k + 1) * 6) // 4]: p(o)
            take(1)
    while pend: pend.pop(0)()

def pass2(p, vm, extra_first, extra_second, mid_hook=None):
    RA = 3
    def reads(s):
        c, ks = s >> 2, s & 3; slot = 3 + (c >> 2); st = slot_set(slot); im = slot_imm(slot); wf = vWF + 4 * (s % 4)
        return ['ds_read_b64_tr_b16 v[%d:%d], v%d offset:%d' % (wf + 2 * rd, wf + 2 * rd + 1, vWA + st, im + (c & 3) * 8192 + (16 * ks + 4 * rd) * 128) for rd in range(2)]
    for s in range(RA):
        for o in reads(s): p(o)
    pend = list(extra_first)
    for s in range(32):
        out = min(RA - 1, 31 - s)
        p('s_waitcnt lgkmcnt(%d)' % (2 * out))
        wf = vWF + 4 * (s % 4)
        if s == 16:
            p('s_barrier')
            pend += extra_second
        for blk in range(2):
            c = '0' if s == 0 else vr(vQ[blk], 16)
            p('v_mfma_f32_32x32x16_bf16 %s, %s, %s, %s' % (vr(vQ[blk], 16), vr(wf, 4), xf(s, blk), c))
            if blk == 0 and s + RA < 32:
                for o in reads(s + RA): p(o)
            if pend: pend.pop(0)()
    while pend: pend.pop(0)()

def dump_regs(p, vm, base_reg, n, slot_index):
    p('s_lshl_b32 s%d, s%d, 2' % (s_t0, s_b)); p('s_add_u32 s%d, s%d, s%d' % (s_t0, s_t0, s_w))
    p('s_mul_i32 s%d, s%d, %d' % (s_t0, s_t0, n * 256)); p('s_add_u32 s%d, s%d, %d' % (s_t0, s_t0, WS_DBG + slot_index * 0x1000000))
    p('v_lshlrev_b32 v27, 4, v%d' % v_lane)
    for r in range(0, n, 4):
        vm.op('buffer_store_dwordx4 %s, v27, s[%d:%d], s%d offen' % (vr(base_reg + r, 4), sDBG, sDBG + 3, s_t0))
        p('s_add_u32 s%d, s%d, 1024' % (s_t0, s_t0))
    vm.wait_all()

def build():
    top = Prog()
    top('s_cmp_ge_u32 s2, 256')
    top('s_cbranch_scc1 L_end')
    top('s_load_dwordx16 s[64:79], s[0:1], 0')
    top('s_load_dwordx2 s[80:81], s[0:1], 64')
    top('s_load_dwordx2 s[82:83], s[0:1], 80')
    top('s_mov_b32 s%d, s2' % s_b)
    top('s_and_b32 s%d, s2, 7' % s_t0)
    top('s_lshr_b32 s%d, s2, 3' % s_t1)
    if cfg.maprow == 0:
        top('s_mov_b32 s%d, s%d' % (s_jj, s_t0))
        top('s_lshr_b32 s%d, s%d, 1' % (s_i, s_t1))
        top('s_and_b32 s%d, s%d, 1' % (s_t2, s_t1))
        top('s_and_b32 s%d, s%d, 7' % (s_rot, s_i))
    else:
        top('s_and_b32 s%d, s%d, 1' % (s_i, s_t0)); top('s_lshl_b32 s%d, s%d, 3' % (s_i, s_i)); top('s_and_b32 s%d, s%d, 7' % (s_t2, s_t1)); top('s_add_u32 s%d, s%d, s%d' % (s_i, s_i, s_t2))
        top('s_lshr_b32 s%d, s%d, 1' % (s_t3, s_t0)); top('s_lshl_b32 s%d, s%d, 2' % (s_t3, s_t3)); top('s_lshr_b32 s%d, s%d, 3' % (s_t2, s_t1)); top('s_add_u32 s%d, s%d, s%d' % (s_t3, s_t3, s_t2))
        top('s_lshr_b32 s%d, s%d, 1' % (s_jj, s_t3))
        top('s_lshl_b32 s%d, s%d, 1' % (s_rot, s_t3)); top('s_add_u32 s%d, s%d, s%d' % (s_rot, s_rot, s_i)); top('s_and_b32 s%d, s%d, 7' % (s_rot, s_rot))
        top('s_and_b32 s%d, s%d, 1' % (s_t2, s_t3))
    if not cfg.rot: top('s_mov_b32 s%d, 0' % s_rot)
    top('s_lshl_b32 s%d, s%d, 2' % (s_tb, s_t0)); top('s_and_b32 s%d, s%d, 3' % (s_t3, s_t1)); top('s_add_u32 s%d, s%d, s%d' % (s_tb, s_tb, s_t3))
    top('s_lshr_b32 s%d, s%d, 2' % (s_cb, s_t1))
    top('s_cmp_eq_u32 s%d, 0' % s_t2)
    top('s_cbranch_scc0 L_pathB')
    paths = []
    for br in range(2):
        p, vm, dco, dwq = gen_path(br)
        body(p, vm, br, dco, dwq)
        added = p.fix_hazards()
        errs = p.check_waits()
        if errs:
            for e in errs[:20]: print('WAITERR', e, file=sys.stderr)
            raise SystemExit('wait check failed')
        print('path', 'AB'[br], 'instructions:', sum(1 for i in p.ins if i.op), 'nop states added:', added, file=sys.stderr)
        paths.append(p)
    top.fix_hazards()
    hdr = open(os.path.join(os.path.dirname(os.path.abspath(__file__)), 'header.txt')).read()
    s = hdr
    s += '; @launch grid=(256,1,1) block=(256,1,1) lds=163840\n'
    s += '.amdgcn_target "amdgcn-amd-amdhsa--gfx950"\n.text\n.globl %s\n.p2align 8\n.type %s,@function\n%s:\n' % (KNAME, KNAME, KNAME)
    s += top.text()
    for p in paths: s += p.text()
    s += 'L_end:\n    s_endpgm\n'
    s += '.section .rodata,"a"\n.p2align 6\n.amdhsa_kernel %s\n  .amdhsa_next_free_vgpr 512\n  .amdhsa_next_free_sgpr 102\n  .amdhsa_accum_offset 256\n  .amdhsa_group_segment_fixed_size 0\n  .amdhsa_kernarg_size 88\n  .amdhsa_user_sgpr_count 2\n  .amdhsa_user_sgpr_kernarg_segment_ptr 1\n  .amdhsa_system_sgpr_workgroup_id_x 1\n.end_amdhsa_kernel\n' % KNAME
    return s


MF = 'v_mfma_f32_32x32x16_bf16'
vDO = 10
vOA = 2
vEW = 4
vER = 8

def cvt(p, d, a, b): p('v_cvt_pk_bf16_f32 v%d, v%d, v%d' % (d, a, b))

def wo_setup_ops(p):
    def f():
        p('v_lshrrev_b32 v27, 3, v%d' % v_lane); p('v_and_b32 v28, 7, v%d' % v_lane)
        p('v_bfe_u32 v29, v%d, 4, 1' % v_lane); p('v_lshlrev_b32 v29, 2, v29'); p('v_xor_b32 v28, v28, v29'); p('v_lshlrev_b32 v28, 4, v28')
        p('s_lshl_b32 s%d, s%d, 7' % (s_t0, s_cb)); p('v_add_u32 v28, s%d, v28' % s_t0)
        p('v_lshl_add_u32 v%d, v27, 10, v28' % vDO)
        for q in range(1, 4): p('v_add_u32 v%d, %d, v%d' % (vDO + q, 7 * q * 1024, vDO))
        p('s_lshl_b32 s%d, s%d, 16' % (s_wobase, s_w)); p('s_lshl_b32 s%d, s%d, 13' % (s_m0o, s_w))
    return [f]

def dma_wo_ops(p, vm, part):
    srd = sWOA if part < 2 else sWOB
    ops = []
    for grp in range(2):
        def m(grp=grp):
            p('s_add_u32 s%d, s%d, %d' % (s_ow, s_wobase, (part & 1) * 262144 + grp * 32768))
            p('s_add_u32 m0, s%d, %d' % (s_m0o, part * SLOT + grp * 4096))
        ops.append(m)
        for q in range(4):
            ops.append(lambda q=q, grp=grp: vm.op('buffer_load_dwordx4 v%d, s[%d:%d], s%d offen offset:%d lds' % (vDO + q, srd, srd + 3, s_ow, q * 1024), 'wo%d' % part if (q == 3 and grp == 1) else None))
    return ops

def softmax16(p, P, F, tmp):
    m, S = tmp, tmp + 2
    p('v_max3_f32 v%d, v%d, v%d, v%d' % (m, P, P + 1, P + 2))
    p('v_max3_f32 v%d, v%d, v%d, v%d' % (m + 1, P + 3, P + 4, P + 5))
    p('v_max3_f32 v%d, v%d, v%d, v%d' % (m, m, P + 6, P + 7))
    p('v_max3_f32 v%d, v%d, v%d, v%d' % (m + 1, m + 1, P + 8, P + 9))
    p('v_max3_f32 v%d, v%d, v%d, v%d' % (m, m, P + 10, P + 11))
    p('v_max3_f32 v%d, v%d, v%d, v%d' % (m + 1, m + 1, P + 12, P + 13))
    p('v_max3_f32 v%d, v%d, v%d, v%d' % (m, m, P + 14, P + 15))
    p('v_max_f32 v%d, v%d, v%d' % (m, m, m + 1))
    p('v_mul_f32 v%d, s%d, v%d' % (m, s_log2e, m))
    for i in range(8):
        p('v_pk_fma_f32 v[%d:%d], v[%d:%d], s[%d:%d], v[%d:%d] op_sel_hi:[1,1,0] neg_lo:[0,0,1] neg_hi:[0,0,1]' % (P + 2 * i, P + 2 * i + 1, P + 2 * i, P + 2 * i + 1, s_log2e, s_log2e + 1, m, m + 1))
    for i in range(16):
        p('v_exp_f32 v%d, v%d' % (P + i, P + i))
        if i >= 3 and i % 2 == 1:
            k = i - 1
            if k == 2: pass
    p('v_pk_add_f32 v[%d:%d], v[%d:%d], v[%d:%d]' % (S, S + 1, P, P + 1, P + 2, P + 3))
    p('v_pk_add_f32 v[%d:%d], v[%d:%d], v[%d:%d]' % (m, m + 1, P + 4, P + 5, P + 6, P + 7))
    p('v_pk_add_f32 v[%d:%d], v[%d:%d], v[%d:%d]' % (S, S + 1, S, S + 1, P + 8, P + 9))
    p('v_pk_add_f32 v[%d:%d], v[%d:%d], v[%d:%d]' % (m, m + 1, m, m + 1, P + 10, P + 11))
    p('v_pk_add_f32 v[%d:%d], v[%d:%d], v[%d:%d]' % (S, S + 1, S, S + 1, P + 12, P + 13))
    p('v_pk_add_f32 v[%d:%d], v[%d:%d], v[%d:%d]' % (m, m + 1, m, m + 1, P + 14, P + 15))
    p('v_pk_add_f32 v[%d:%d], v[%d:%d], v[%d:%d]' % (S, S + 1, S, S + 1, m, m + 1))
    p('v_add_f32 v%d, v%d, v%d' % (S, S, S + 1))
    p('v_rcp_f32 v%d, v%d' % (S, S))
    p('s_nop 0')
    for i in range(8):
        p('v_pk_mul_f32 v[%d:%d], v[%d:%d], v[%d:%d] op_sel_hi:[1,0]' % (P + 2 * i, P + 2 * i + 1, P + 2 * i, P + 2 * i + 1, S, S + 1))
    for i in range(8): cvt(p, F + i, P + 2 * i, P + 2 * i + 1)

def phi_elu(p, T, n, F, tmp):
    for base in range(0, n // 2, 4):
        prs = range(base, min(base + 4, n // 2))
        for k, i in enumerate(prs):
            p('v_pk_mul_f32 v[%d:%d], v[%d:%d], s[%d:%d]' % (tmp + 2 * k, tmp + 2 * k + 1, T + 2 * i, T + 2 * i + 1, s_log2e, s_log2e + 1))
        for k, i in enumerate(prs):
            p('v_exp_f32 v%d, v%d clamp' % (tmp + 2 * k, tmp + 2 * k)); p('v_exp_f32 v%d, v%d clamp' % (tmp + 2 * k + 1, tmp + 2 * k + 1))
        for k, i in enumerate(prs):
            p('v_max_f32 v%d, 0, v%d' % (T + 2 * i, T + 2 * i)); p('v_max_f32 v%d, 0, v%d' % (T + 2 * i + 1, T + 2 * i + 1))
        for k, i in enumerate(prs):
            p('v_pk_add_f32 v[%d:%d], v[%d:%d], v[%d:%d]' % (T + 2 * i, T + 2 * i + 1, T + 2 * i, T + 2 * i + 1, tmp + 2 * k, tmp + 2 * k + 1))
        for k, i in enumerate(prs):
            p('v_pk_add_f32 v[%d:%d], v[%d:%d], s[%d:%d]' % (T + 2 * i, T + 2 * i + 1, T + 2 * i, T + 2 * i + 1, s_eps, s_eps + 1))
        for k, i in enumerate(prs): cvt(p, F + i, T + 2 * i, T + 2 * i + 1)

ACC = [96, 112]
def vprep(p, VB0, VB1):
    for blk in range(2):
        for i in range(8): cvt(p, VB0 + 8 * blk + i, vV[blk] + 2 * i, vV[blk] + 2 * i + 1)
    for blk in range(2):
        for i in range(8): p('v_cndmask_b32_e64 v%d, v%d, v%d, s[%d:%d]' % (VB1 + 8 * blk + i, vONES, VB0 + 8 * blk + i, s_mask16, s_mask16 + 1))
    for blk in range(2):
        for i in range(8): p('v_cndmask_b32_e64 v%d, v%d, v%d, s[%d:%d]' % (VB0 + 8 * blk + i, VB0 + 8 * blk + i, vONES, s_mask16, s_mask16 + 1))

def feat_k_B(p):
    KB, PB, G = 168, 184, 128
    VB0, VB1 = 32, 48
    TB = [64, 80]
    units = [(0, 0), (0, 1), (1, 0), (1, 1)]
    for un, (blk, u) in enumerate(units):
        for i in range(4): cvt(p, KB + 4 * un + i, vK[blk] + 8 * u + 2 * i, vK[blk] + 8 * u + 2 * i + 1)
    for un, (blk, u) in enumerate(units):
        p('%s %s, %s, %s, 0' % (MF, vr(PB + 16 * un, 16), vr(vWP + 4 * u, 4), vr(KB + 4 * un, 4)))
    vprep(p, VB0, VB1)
    VB = [VB0, VB1]
    def tail(un):
        blk, u = units[un]
        T = TB[un % 2]
        for i in range(8): cvt(p, G + i, T + 2 * i, T + 2 * i + 1)
        c = '0' if blk == 0 else vr(ACC[u], 16)
        p('%s %s, %s, %s, %s' % (MF, vr(ACC[u], 16), vr(G, 4), vr(VB[u] + 8 * blk, 4), c))
        p('%s %s, %s, %s, %s' % (MF, vr(ACC[u], 16), vr(G + 4, 4), vr(VB[u] + 8 * blk + 4, 4), vr(ACC[u], 16)))
    for un in range(4):
        F = KB + 8 * (un % 2)
        softmax16(p, PB + 16 * un, F, 136)
        if un > 0: tail(un - 1)
        T = TB[un % 2]
        p('%s %s, %s, %s, 0' % (MF, vr(T, 16), vr(F, 4), vr(vSEL, 4)))
        p('%s %s, %s, %s, %s' % (MF, vr(T, 16), vr(F + 4, 4), vr(vSEL + 4, 4), vr(T, 16)))
    tail(3)

def feat_k_A(p):
    PK, VB0, VB1 = 168, 200, 216
    for blk in range(2): phi_elu(p, vK[blk], 16, PK + 8 * blk, 184)
    vprep(p, VB0, VB1)
    VB = [VB0, VB1]
    for blk in range(2):
        for u in range(2):
            c = '0' if blk == 0 else vr(ACC[u], 16)
            p('%s %s, %s, %s, %s' % (MF, vr(ACC[u], 16), vr(PK + 8 * blk, 4), vr(VB[u] + 8 * blk, 4), c))
            p('%s %s, %s, %s, %s' % (MF, vr(ACC[u], 16), vr(PK + 8 * blk + 4, 4), vr(VB[u] + 8 * blk + 4, 4), vr(ACC[u], 16)))

FQ = 32
def feat_q_B(p):
    KB, PB = 168, 184
    units = [(0, 0), (0, 1), (1, 0), (1, 1)]
    for un, (blk, u) in enumerate(units):
        for i in range(4): cvt(p, KB + 4 * un + i, vQ[blk] + 8 * u + 2 * i, vQ[blk] + 8 * u + 2 * i + 1)
    for un, (blk, u) in enumerate(units):
        p('%s %s, %s, %s, 0' % (MF, vr(PB + 16 * un, 16), vr(vWP + 4 * u, 4), vr(KB + 4 * un, 4)))
    for un in range(4): softmax16(p, PB + 16 * un, FQ + 8 * un, 136)

def feat_q_A(p):
    for blk in range(2):
        for u in range(2): phi_elu(p, vQ[blk] + 8 * u, 8, FQ + 4 * (2 * blk + u), 184)

ST = 184
def exchange(p, vm, br):
    nq = 4 if br == 1 else 2
    RC = 216
    L = 'AB'[br]
    p('v_lshlrev_b32 v27, 4, v%d' % v_lane)
    p('s_lshl_b32 s%d, s%d, 12' % (s_t0, s_w)); p('s_add_u32 s%d, s%d, %d' % (s_t0, s_t0, 2 * SLOT))
    p('v_add_u32 v28, s%d, v27' % s_t0)
    p('s_xor_b32 s%d, s%d, 1' % (s_t1, s_w)); p('s_lshl_b32 s%d, s%d, 12' % (s_t1, s_t1)); p('s_add_u32 s%d, s%d, %d' % (s_t1, s_t1, 2 * SLOT))
    p('v_add_u32 v29, s%d, v27' % s_t1)
    for k in range(2 * nq):
        p('v_mov_b32 v%d, v%d' % (ST + 4 * k + 1, vT)); p('v_mov_b32 v%d, v%d' % (ST + 4 * k + 3, vT))
    def src(u): return ACC[u] + (0 if br == 1 else 8 * u)
    p('s_cmp_eq_u32 s%d, 0' % s_th)
    p('s_cbranch_scc0 L_ex1%s' % L)
    p('s_nop 15')
    for q in range(nq): p('ds_write_b128 v28, %s offset:%d' % (vr(src(1) + 4 * q, 4), q * 1024))
    p('s_branch L_ex2%s' % L)
    p.label('L_ex1%s' % L)
    p('s_nop 15')
    for q in range(nq): p('ds_write_b128 v28, %s offset:%d' % (vr(src(0) + 4 * q, 4), q * 1024))
    p.label('L_ex2%s' % L)
    p('s_waitcnt lgkmcnt(0)')
    vm.wait('wq1')
    p('s_barrier')
    for q in range(nq): p('ds_read_b128 %s, v29 offset:%d' % (vr(RC + 4 * q, 4), q * 1024))
    p('s_waitcnt lgkmcnt(0)')
    p('s_cmp_eq_u32 s%d, 0' % s_th)
    p('s_cbranch_scc0 L_ex3%s' % L)
    for r in range(4 * nq): p('v_add_f32 v%d, v%d, v%d' % (ST + 4 * (r >> 1) + 2 * (r & 1), src(0) + r, RC + r))
    p('s_branch L_ex4%s' % L)
    p.label('L_ex3%s' % L)
    for r in range(4 * nq): p('v_add_f32 v%d, v%d, v%d' % (ST + 4 * (r >> 1) + 2 * (r & 1), src(1) + r, RC + r))
    p.label('L_ex4%s' % L)

def hop1_store(p, vm, br):
    nrp = 8 if br == 1 else 4
    p('s_lshl_b32 s%d, s%d, 2' % (s_head, s_jj)); p('s_add_u32 s%d, s%d, s%d' % (s_head, s_head, s_w)); p('s_add_u32 s%d, s%d, %d' % (s_head, s_head, 32 * br))
    p('s_lshl_b32 s%d, s%d, 17' % (s_t0, s_head)); p('s_lshl_b32 s%d, s%d, 9' % (s_t1, s_i)); p('s_add_u32 s%d, s%d, s%d' % (s_t0, s_t0, s_t1)); p('s_add_u32 s%d, s%d, %d' % (s_t0, s_t0, WS_INB))
    p('v_lshrrev_b32 v27, 5, v%d' % v_lane); p('v_lshlrev_b32 v27, 13, v27'); p('v_and_b32 v28, 31, v%d' % v_lane); p('v_lshl_add_u32 v27, v28, 4, v27')
    for rp in range(nrp):
        vm.op('buffer_store_dwordx4 %s, v27, s[%d:%d], s%d offen sc1' % (vr(ST + 4 * rp, 4), sWS, sWS + 3, s_t0))
        if rp < nrp - 1: p('s_add_u32 s%d, s%d, 16384' % (s_t0, s_t0))

def spin_tail(p, name):
    p('s_cbranch_vccz L_%s_ok' % name)
    p('s_sub_u32 s%d, s%d, 1' % (s_spin, s_spin))
    p('s_cmp_gt_i32 s%d, 0' % s_spin)
    p('s_cbranch_scc1 L_%s' % name)
    p.label('L_%s_ok' % name)

def tagcheck(p, regs, t0, t1):
    regs = list(regs)
    p('v_min_u32 v%d, v%d, v%d' % (t0, regs[0], regs[1])); p('v_max_u32 v%d, v%d, v%d' % (t1, regs[0], regs[1]))
    k = 2
    while k + 1 < len(regs):
        p('v_min3_u32 v%d, v%d, v%d, v%d' % (t0, t0, regs[k], regs[k + 1])); p('v_max3_u32 v%d, v%d, v%d, v%d' % (t1, t1, regs[k], regs[k + 1])); k += 2
    if k < len(regs):
        p('v_min_u32 v%d, v%d, v%d' % (t0, t0, regs[k])); p('v_max_u32 v%d, v%d, v%d' % (t1, t1, regs[k]))
    p('v_xor_b32 v%d, v%d, v%d' % (t0, vT, t0)); p('v_xor_b32 v%d, v%d, v%d' % (t1, vT, t1)); p('v_or_b32 v%d, v%d, v%d' % (t0, t0, t1))
    p('v_cmp_ne_u32 vcc, 0, v%d' % t0)

def hop1_reduce(p, vm, br):
    L = 'AB'[br]; LD = 184
    if br == 0:
        p('s_cmp_ge_u32 s%d, 8' % s_i); p('s_cbranch_scc1 L_h1skip')
    p('s_lshl_b32 s%d, s%d, 17' % (s_t0, s_head)); p('s_lshl_b32 s%d, s%d, 13' % (s_t1, s_i)); p('s_add_u32 s%d, s%d, s%d' % (s_t0, s_t0, s_t1)); p('s_add_u32 s%d, s%d, %d' % (s_t0, s_t0, WS_INB))
    p('s_add_u32 s%d, s%d, 4096' % (s_t1, s_t0))
    p('v_lshlrev_b32 v27, 4, v%d' % v_lane)
    p('s_mov_b32 s%d, %d' % (s_spin, cfg.spin))
    p.label('L_h1%s' % L)
    for n in range(8):
        vm.op('buffer_load_dwordx4 %s, v27, s[%d:%d], s%d offen offset:%d sc1' % (vr(LD + 4 * n, 4), sWS, sWS + 3, s_t0 if n < 4 else s_t1, (n & 3) * 1024))
    vm.wait_all()
    tagcheck(p, [LD + 4 * n + k for n in range(8) for k in (1, 3)], 28, 29)
    spin_tail(p, 'h1%s' % L)
    a, b = 216, 217
    p('v_add_f32 v%d, v%d, v%d' % (a, LD, LD + 4)); p('v_add_f32 v%d, v%d, v%d' % (b, LD + 2, LD + 6))
    for n in range(2, 8):
        p('v_add_f32 v%d, v%d, v%d' % (a, a, LD + 4 * n)); p('v_add_f32 v%d, v%d, v%d' % (b, b, LD + 4 * n + 2))
    p('v_permlane32_swap_b32 v%d, v%d' % (a, b))
    p('v_add_f32 v%d, v%d, v%d' % (a, a, b))
    p('v_mov_b32 v%d, v%d' % (b, a))
    p('v_permlane32_swap_b32 v%d, v%d' % (a, b))
    cvt(p, 218, a, b)
    p('v_mov_b32 v219, v%d' % vT)
    p('s_lshl_b32 s%d, s%d, 12' % (s_t0, s_head)); p('s_lshl_b32 s%d, s%d, 8' % (s_t1, s_i)); p('s_add_u32 s%d, s%d, s%d' % (s_t0, s_t0, s_t1)); p('s_add_u32 s%d, s%d, %d' % (s_t0, s_t0, WS_OUTB))
    p('v_lshlrev_b32 v27, 3, v%d' % v_lane)
    p('s_mov_b32 exec_hi, 0')
    vm.op('buffer_store_dwordx2 v[218:219], v27, s[%d:%d], s%d offen sc1' % (sWS, sWS + 3, s_t0))
    p('s_mov_b64 exec, -1')
    if br == 0: p.label('L_h1skip')

KVA = 216
def hop2_gather(p, vm, br):
    L = 'AB'[br]; M = 184; nrp = 8 if br == 1 else 4
    p('s_lshl_b32 s%d, s%d, 2' % (s_ht, s_jj)); p('s_lshl_b32 s%d, s%d, 1' % (s_t0, s_hp)); p('s_add_u32 s%d, s%d, s%d' % (s_ht, s_ht, s_t0)); p('s_add_u32 s%d, s%d, %d' % (s_ht, s_ht, 32 * br))
    p('s_lshl_b32 s%d, s%d, 12' % (s_t0, s_ht)); p('s_add_u32 s%d, s%d, %d' % (s_t0, s_t0, WS_OUTB)); p('s_add_u32 s%d, s%d, 4096' % (s_t1, s_t0))
    p('v_lshlrev_b32 v27, 3, v%d' % v_lane)
    p('s_mov_b32 s%d, %d' % (s_spin, cfg.spin))
    p.label('L_h2%s' % L)
    for u in range(2):
        for rp in range(nrp):
            r = M + 2 * (u * 8 + rp)
            vm.op('buffer_load_dwordx2 v[%d:%d], v27, s[%d:%d], s%d offen offset:%d sc1' % (r, r + 1, sWS, sWS + 3, s_t0 if u == 0 else s_t1, rp * 512))
    vm.wait_all()
    tagcheck(p, [M + 2 * (u * 8 + rp) + 1 for u in range(2) for rp in range(nrp)], 28, 29)
    spin_tail(p, 'h2%s' % L)
    for u in range(2):
        for rp in range(nrp): p('v_mov_b32 v%d, v%d' % (KVA + 8 * u + rp, M + 2 * (u * 8 + rp)))

OF = 232
def o_phase(p, vm, br):
    NB = [64, 80, 96, 112]
    units = [(0, 0), (0, 1), (1, 0), (1, 1)]
    for un, (blk, u) in enumerate(units):
        if br == 1:
            p('%s %s, %s, %s, 0' % (MF, vr(NB[un], 16), vr(KVA + 8 * u, 4), vr(FQ + 8 * un, 4)))
            p('%s %s, %s, %s, %s' % (MF, vr(NB[un], 16), vr(KVA + 8 * u + 4, 4), vr(FQ + 8 * un + 4, 4), vr(NB[un], 16)))
        else:
            p('%s %s, %s, %s, 0' % (MF, vr(NB[un], 16), vr(KVA + 8 * u, 4), vr(FQ + 4 * un, 4)))
    p('s_lshl_b32 s%d, s%d, 2' % (s_t0, s_i)); p('s_lshl_b32 s%d, s%d, 1' % (s_t1, s_th)); p('s_add_u32 s%d, s%d, s%d' % (s_t0, s_t0, s_t1))
    p('s_lshl_b32 s%d, s%d, 16' % (s_t0, s_t0)); p('s_lshl_b32 s%d, s%d, 10' % (s_t1, s_ht)); p('s_add_u32 s%d, s%d, s%d' % (s_t0, s_t0, s_t1)); p('s_add_u32 s%d, s%d, %d' % (s_t0, s_t0, WS_O))
    p('s_add_u32 s%d, s%d, 65536' % (s_t1, s_t0))
    p('v_lshlrev_b32 v27, 4, v%d' % v_lane)
    for un, (blk, u) in enumerate(units):
        N = NB[un]; num = N + 8 * u; den = N + 8 * (1 - u)
        p('v_add_f32 v%d, s%d, v%d' % (den, s_eps, den))
        p('v_rcp_f32 v%d, v%d' % (den, den))
        p('s_nop 0')
        for i in range(4):
            p('v_pk_mul_f32 v[%d:%d], v[%d:%d], v[%d:%d] op_sel_hi:[1,0]' % (num + 2 * i, num + 2 * i + 1, num + 2 * i, num + 2 * i + 1, den, den + 1))
        for i in range(4): cvt(p, OF + 4 * un + i, num + 2 * i, num + 2 * i + 1)
        vm.op('buffer_store_dwordx4 %s, v27, s[%d:%d], s%d offen offset:%d sc1' % (vr(OF + 4 * un, 4), sWS, sWS + 3, s_t0 if blk == 0 else s_t1, u * 1024))
    p('s_lshl_b32 s%d, s%d, 1' % (s_t0, s_i)); p('s_add_u32 s%d, s%d, s%d' % (s_t0, s_t0, s_th)); p('s_lshl_b32 s%d, s%d, 5' % (s_t0, s_t0))
    p('s_lshl_b32 s%d, s%d, 1' % (s_t1, s_jj)); p('s_add_u32 s%d, s%d, s%d' % (s_t0, s_t0, s_t1)); p('s_add_u32 s%d, s%d, s%d' % (s_t0, s_t0, s_hp))
    p('s_add_u32 s%d, s%d, %d' % (s_t0, s_t0, 16 * br)); p('s_lshl_b32 s%d, s%d, 7' % (s_t0, s_t0)); p('s_add_u32 s%d, s%d, %d' % (s_t0, s_t0, WS_FLAG))
    p('v_mov_b32 v27, 0')
    vm.wait_all()
    p('s_mov_b64 exec, 1')
    vm.op('buffer_store_dword v%d, v27, s[%d:%d], s%d offen sc1' % (vT, sWS, sWS + 3, s_t0))
    p('s_mov_b64 exec, -1')

def gate(p, vm):
    X, Gw = 168, 184
    p('s_lshl_b32 s%d, s%d, 7' % (s_t0, s_i)); p('s_lshl_b32 s%d, s%d, 4' % (s_t1, s_jj)); p('s_add_u32 s%d, s%d, s%d' % (s_t0, s_t0, s_t1))
    p('s_lshl_b32 s%d, s%d, 2' % (s_t1, s_w)); p('s_add_u32 s%d, s%d, s%d' % (s_t0, s_t0, s_t1))
    p('s_lshl_b32 s%d, s%d, 10' % (s_t2, s_t0))
    p('v_and_b32 v27, 15, v%d' % v_lane); p('v_lshlrev_b32 v27, 4, v27')
    p('v_lshrrev_b32 v28, 4, v%d' % v_lane); p('v_lshl_add_u32 v28, v28, 10, v27')
    for q in range(4):
        vm.op('buffer_load_dwordx4 %s, v28, s[%d:%d], s%d offen offset:%d' % (vr(X + 4 * q, 4), sX, sX + 3, s_t2, q * 256))
    for q in range(4):
        vm.op('buffer_load_dwordx4 %s, v27, s[%d:%d], 0 offen offset:%d' % (vr(Gw + 4 * q, 4), sMISC, sMISC + 3, q * 256), 'gate' if q == 3 else None)
    p('s_lshr_b32 s%d, s%d, 2' % (s_t3, s_t0)); p('s_lshl_b32 s%d, s%d, 7' % (s_t3, s_t3)); p('s_add_u32 s%d, s%d, %d' % (s_b + 1, s_t3, WS_G))

def gate_finish(p, vm):
    X, Gw = 168, 184
    vm.wait('gate')
    acc = 200
    p('v_mov_b32 v%d, 0' % acc); p('v_mov_b32 v%d, 0' % (acc + 1))
    for k in range(16):
        p('v_lshlrev_b32 v202, 16, v%d' % (X + k)); p('v_lshlrev_b32 v203, 16, v%d' % (Gw + k))
        p('v_and_b32 v204, 0xffff0000, v%d' % (X + k)); p('v_and_b32 v205, 0xffff0000, v%d' % (Gw + k))
        p('v_fmac_f32 v%d, v202, v203' % acc); p('v_fmac_f32 v%d, v204, v205' % (acc + 1))
    p('v_add_f32 v%d, v%d, v%d' % (acc, acc, acc + 1))
    for sh in (8, 4, 2, 1):
        p('v_add_f32_dpp v%d, v%d, v%d row_ror:%d row_mask:0xf bank_mask:0xf' % (acc, acc, acc, sh))
    p('v_mul_f32 v%d, s%d, v%d' % (acc, s_log2e, acc))
    p('v_exp_f32_e64 v%d, -v%d' % (acc, acc))
    p('s_nop 0')
    p('v_add_f32 v%d, 1.0, v%d' % (acc, acc))
    p('v_rcp_f32 v%d, v%d' % (acc, acc))
    p('v_mov_b32 v%d, v%d' % (acc + 1, vT))
    p('v_lshrrev_b32 v27, 4, v%d' % v_lane); p('v_lshlrev_b32 v27, 3, v27')
    p('s_mov_b32 exec_lo, 0x00010001'); p('s_mov_b32 exec_hi, 0x00010001')
    vm.op('buffer_store_dwordx2 v[%d:%d], v27, s[%d:%d], s%d offen sc1' % (acc, acc + 1, sWS, sWS + 3, s_b + 1))
    p('s_mov_b64 exec, -1')

def p3(p, vm, br):
    L = 'AB'[br]
    OACC = [64, 80]
    GV = 96
    p('v_lshrrev_b32 v27, 5, v%d' % v_lane); p('v_lshlrev_b32 v27, 2, v27')
    p('v_bfe_u32 v28, v%d, 2, 2' % v_lane); p('v_add_u32 v27, v27, v28'); p('v_lshlrev_b32 v27, 7, v27')
    p('v_bfe_u32 v29, v%d, 4, 1' % v_lane); p('v_lshl_add_u32 v27, v29, 5, v27')
    p('v_and_b32 v29, 3, v%d' % v_lane); p('v_lshl_add_u32 v27, v29, 3, v27')
    p('s_lshl_b32 s%d, s%d, 16' % (s_t0, s_hp)); p('v_add_u32 v27, s%d, v27' % s_t0)
    p('v_lshrrev_b32 v28, 1, v28')
    p('v_lshl_add_u32 v%d, v28, 6, v27' % vOA)
    p('v_xor_b32 v28, 1, v28'); p('v_lshl_add_u32 v%d, v28, 6, v27' % (vOA + 1))
    vm.wait_all()
    p('s_barrier')
    p('s_lshl_b32 s%d, s%d, 1' % (s_t0, s_tb)); p('s_add_u32 s%d, s%d, s%d' % (s_t0, s_t0, s_hp)); p('s_lshl_b32 s%d, s%d, 11' % (s_t0, s_t0)); p('s_add_u32 s%d, s%d, %d' % (s_t0, s_t0, WS_FLAG))
    p('v_and_b32 v27, 15, v%d' % v_lane); p('v_lshlrev_b32 v27, 7, v27')
    p('s_mov_b32 s%d, %d' % (s_spin, cfg.spin))
    p.label('L_fl%s' % L)
    vm.op('buffer_load_dword v28, v27, s[%d:%d], s%d offen sc1' % (sWS, sWS + 3, s_t0))
    vm.wait_all()
    p('v_cmp_ne_u32 vcc, v28, v%d' % vT)
    spin_tail(p, 'fl%s' % L)
    p('s_lshl_b32 s%d, s%d, 1' % (s_t0, s_tb)); p('s_add_u32 s%d, s%d, s%d' % (s_t0, s_t0, s_th)); p('s_lshl_b32 s%d, s%d, 16' % (s_t0, s_t0))
    p('s_lshl_b32 s%d, s%d, 15' % (s_t1, s_hp)); p('s_add_u32 s%d, s%d, s%d' % (s_t0, s_t0, s_t1)); p('s_add_u32 s%d, s%d, %d' % (s_t0, s_t0, WS_O))
    p('v_lshlrev_b32 v27, 4, v%d' % v_lane)
    for h in range(32):
        vm.op('buffer_load_dwordx4 %s, v27, s[%d:%d], s%d offen offset:%d sc1' % (ar(4 * h, 4), sWS, sWS + 3, s_t0, (h & 3) * 1024), 'o%d' % h)
        if h & 3 == 3: p('s_add_u32 s%d, s%d, 4096' % (s_t0, s_t0))
    p('s_lshl_b32 s%d, s%d, 1' % (s_t0, s_tb)); p('s_add_u32 s%d, s%d, s%d' % (s_t0, s_t0, s_th)); p('s_lshl_b32 s%d, s%d, 10' % (s_t0, s_t0)); p('s_add_u32 s%d, s%d, %d' % (s_t2, s_t0, WS_G))
    p('v_and_b32 v28, 31, v%d' % v_lane); p('v_lshrrev_b32 v29, 2, v28'); p('v_lshlrev_b32 v29, 7, v29'); p('v_and_b32 v28, 3, v28'); p('v_lshl_add_u32 v30, v28, 3, v29')
    vm.op('buffer_load_dwordx2 v[%d:%d], v30, s[%d:%d], s%d offen sc1' % (GV, GV + 1, sWS, sWS + 3, s_t2), 'g')
    def reads(h):
        wf = vWF + 8 * (h % 3)
        return ['ds_read_b64_tr_b16 v[%d:%d], v%d offset:%d' % (wf + 4 * ct + 2 * rd, wf + 4 * ct + 2 * rd + 1, vOA + ct, h * 2048 + rd * 1024) for ct in range(2) for rd in range(2)]
    for h in range(2):
        for o in reads(h): p(o)
    for h in range(32):
        wf = vWF + 8 * (h % 3)
        vm.wait('o%d' % h, ' lgkmcnt(%d)' % (4 if h < 31 else 0))
        R = reads(h + 2) if h + 2 < 32 else []
        for ct in range(2):
            c = '0' if h == 0 else vr(OACC[ct], 16)
            p('%s %s, %s, %s, %s' % (MF, vr(OACC[ct], 16), vr(wf + 4 * ct, 4), ar(4 * h, 4), c))
            for o in R[2 * ct:2 * ct + 2]: p(o)
    p('s_mov_b32 s%d, %d' % (s_spin, cfg.spin))
    vm.wait_all()
    p('v_cmp_ne_u32 vcc, v%d, v%d' % (GV + 1, vT))
    p('s_cbranch_vccz L_g%s_ok' % L)
    p.label('L_g%s' % L)
    vm.op('buffer_load_dwordx2 v[%d:%d], v30, s[%d:%d], s%d offen sc1' % (GV, GV + 1, sWS, sWS + 3, s_t2))
    vm.wait_all()
    p('v_cmp_ne_u32 vcc, v%d, v%d' % (GV + 1, vT))
    spin_tail(p, 'g%s' % L)
    p('v_sub_f32 v%d, 1.0, v%d' % (GV + 1, GV))
    p('s_cmp_eq_u32 s%d, 0' % s_hp); p('s_cbranch_scc1 L_gs%s' % L)
    p('v_mov_b32 v%d, v%d' % (GV, GV + 1))
    p.label('L_gs%s' % L)
    p('v_and_b32 v27, 31, v%d' % v_lane)
    p('s_lshl_b32 s%d, s%d, 14' % (s_t0, s_hp)); p('s_lshl_b32 s%d, s%d, 13' % (s_t1, s_th)); p('s_add_u32 s%d, s%d, s%d' % (s_t0, s_t0, s_t1)); p('s_add_u32 s%d, s%d, %d' % (s_t0, s_t0, 4 * SLOT))
    p('v_lshlrev_b32 v28, 8, v27'); p('v_add_u32 v28, s%d, v28' % s_t0)
    p('v_and_b32 v29, 7, v27'); p('v_lshrrev_b32 v27, 5, v%d' % v_lane); p('v_xor_b32 v29, v29, v27')
    for q in range(4):
        p('v_xor_b32 v27, %d, v29' % (2 * q)); p('v_lshl_add_u32 v%d, v27, 4, v28' % (vEW + q))
    p('s_nop 7')
    for ct in range(2):
        for i in range(8):
            p('v_pk_mul_f32 v[%d:%d], v[%d:%d], v[%d:%d] op_sel_hi:[1,0]' % (OACC[ct] + 2 * i, OACC[ct] + 2 * i + 1, OACC[ct] + 2 * i, OACC[ct] + 2 * i + 1, GV, GV + 1))
    for ct in range(2):
        for q in range(4): p('ds_write_b128 v%d, %s offset:%d' % (vEW + q, vr(OACC[ct] + 4 * q, 4), 128 * ct))
    p('v_lshrrev_b32 v27, 3, v%d' % v_lane); p('v_and_b32 v28, 7, v%d' % v_lane); p('v_lshlrev_b32 v28, 1, v28')
    p('s_lshl_b32 s%d, s%d, 12' % (s_t0, s_w)); p('s_add_u32 s%d, s%d, %d' % (s_t0, s_t0, 4 * SLOT))
    p('v_lshlrev_b32 v29, 8, v27'); p('v_add_u32 v29, s%d, v29' % s_t0)
    for x in range(2):
        p('v_or_b32 v30, %d, v28' % x); p('v_xor_b32 v30, v30, v27'); p('v_lshl_add_u32 v%d, v30, 4, v29' % (vER + x))
    p('v_and_b32 v28, 7, v%d' % v_lane); p('v_lshlrev_b32 v28, 4, v28'); p('v_lshl_add_u32 v27, v27, 10, v28')
    p('s_lshl_b32 s%d, s%d, 6' % (s_t0, s_tb)); p('s_lshl_b32 s%d, s%d, 4' % (s_t1, s_w)); p('s_add_u32 s%d, s%d, s%d' % (s_t0, s_t0, s_t1)); p('s_lshl_b32 s%d, s%d, 10' % (s_t0, s_t0))
    p('s_lshl_b32 s%d, s%d, 7' % (s_t1, s_cb)); p('s_add_u32 s%d, s%d, s%d' % (s_t0, s_t0, s_t1)); p('s_add_u32 s%d, s%d, 8192' % (s_t1, s_t0))
    p('s_waitcnt lgkmcnt(0)')
    p('s_barrier')
    RD = 168
    for a in range(2):
        for brr in range(2):
            for x in range(2):
                p('ds_read_b128 %s, v%d offset:%d' % (vr(RD + 16 * a + 8 * brr + 4 * x, 4), vER + x, a * 2048 + brr * 16384))
    for a in range(2):
        p('s_waitcnt lgkmcnt(%d)' % (4 if a == 0 else 0))
        r = RD + 16 * a
        for i in range(4): p('v_pk_add_f32 v[%d:%d], v[%d:%d], v[%d:%d]' % (r + 2 * i, r + 2 * i + 1, r + 2 * i, r + 2 * i + 1, r + 8 + 2 * i, r + 8 + 2 * i + 1))
        for i in range(4): cvt(p, r + 8 + i, r + 2 * i, r + 2 * i + 1)
        vm.op('buffer_store_dwordx4 %s, v27, s[%d:%d], s%d offen' % (vr(r + 8, 4), sOUT, sOUT + 3, s_t0 if a == 0 else s_t1))
    p('s_cmp_eq_u32 s%d, 0' % s_b); p('s_cbranch_scc0 L_noep%s' % L)
    p('s_cmp_eq_u32 s%d, 0' % s_w); p('s_cbranch_scc0 L_noep%s' % L)
    p('v_mov_b32 v27, 0'); p('s_mov_b64 exec, 1')
    vm.op('buffer_store_dword v%d, v27, s[%d:%d], 0 offen sc1' % (vT, sWS, sWS + 3))
    p('s_mov_b64 exec, -1')
    p.label('L_noep%s' % L)

def rstamp(p, idx):
    if cfg.stamps != 2: return
    p('s_memrealtime s[%d:%d]' % (s_stamp, s_stamp + 1))
    p('s_waitcnt lgkmcnt(0)')
    p('v_writelane_b32 v255, s%d, %d' % (s_stamp, idx))

def write_stamps(p, vm):
    if not cfg.stamps: return
    if cfg.stamps == 2:
        rstamp(p, 12)
        L = 'x%d' % len(p.ins)
        p('s_load_dwordx2 s[4:5], s[0:1], 72'); p('s_waitcnt lgkmcnt(0)')
        p('s_mov_b32 s%d, s4' % sDBG); p('s_and_b32 s%d, s5, 0xffff' % (sDBG + 1)); p('s_mov_b32 s%d, 256' % (sDBG + 2)); p('s_mov_b32 s%d, 0x00020000' % (sDBG + 3))
        p('s_cmp_eq_u32 s%d, 0' % s_w); p('s_cbranch_scc0 L_ds2' + L)
        p('v_lshlrev_b32 v27, 2, v%d' % v_lane)
        p('s_cmp_eq_u32 s%d, 8' % s_b); p('s_cbranch_scc0 L_ds1' + L)
        p('s_mov_b64 exec, 0x1fff')
        vm.op('buffer_store_dword v255, v27, s[%d:%d], 0 offen' % (sDBG, sDBG + 3))
        p('s_mov_b64 exec, -1')
        p.label('L_ds1' + L)
        p('s_cmp_eq_u32 s%d, 255' % s_b); p('s_cbranch_scc0 L_ds2' + L)
        p('s_mov_b64 exec, 0x1800')
        vm.op('buffer_store_dword v255, v27, s[%d:%d], 0 offen offset:8' % (sDBG, sDBG + 3))
        p('s_mov_b64 exec, -1')
        p.label('L_ds2' + L)
        return
    p('s_lshl_b32 s%d, s%d, 2' % (s_t0, s_b)); p('s_add_u32 s%d, s%d, s%d' % (s_t0, s_t0, s_w)); p('s_lshl_b32 s%d, s%d, 8' % (s_t0, s_t0)); p('s_add_u32 s%d, s%d, %d' % (s_t0, s_t0, WS_STAMP))
    p('v_lshlrev_b32 v27, 2, v%d' % v_lane)
    vm.op('buffer_store_dword v255, v27, s[%d:%d], s%d offen' % (sDBG, sDBG + 3, s_t0))

def body(p, vm, br, dco, dwq):
    extra = {m: [] for m in range(8)}
    for m in range(5): extra[m] = dco(m + 3)
    extra[5] = dwq(0); extra[6] = dwq(1)
    extra[7] = wo_setup_ops(p) + dma_wo_ops(p, vm, 0)
    if br == 0: gate_finish(p, vm)
    pass1(p, vm, br, dco, dwq, extra)
    p('s_barrier')
    stamp(p, 2)
    if cfg.debug == 1: dump_regs(p, vm, vK[0], 64, 0)
    if br == 1: feat_k_B(p)
    else: feat_k_A(p)
    stamp(p, 3)
    exchange(p, vm, br)
    if cfg.debug == 2: dump_regs(p, vm, ST, 32, 0)
    hop1_store(p, vm, br)
    stamp(p, 4)
    pass2(p, vm, dma_wo_ops(p, vm, 1), dma_wo_ops(p, vm, 2) + dma_wo_ops(p, vm, 3))
    stamp(p, 5)
    if cfg.debug == 1:
        p('s_nop 15'); dump_regs(p, vm, vQ[0], 32, 1)
    hop1_reduce(p, vm, br)
    stamp(p, 6)
    if br == 1: feat_q_B(p)
    else: feat_q_A(p)
    stamp(p, 7)
    hop2_gather(p, vm, br)
    stamp(p, 8)
    if cfg.debug == 2: dump_regs(p, vm, KVA, 16, 1)
    o_phase(p, vm, br)
    stamp(p, 9)
    p3(p, vm, br)
    stamp(p, 10)
    write_stamps(p, vm)
    p('s_endpgm')

if __name__ == '__main__':
    import argparse
    ap = argparse.ArgumentParser()
    ap.add_argument('-o', default='k.s'); ap.add_argument('--debug', type=int, default=0); ap.add_argument('--rot', type=int, default=1)
    ap.add_argument('--maprow', type=int, default=0); ap.add_argument('--stamps', type=int, default=0)
    a = ap.parse_args()
    cfg.debug = a.debug; cfg.rot = a.rot; cfg.maprow = a.maprow; cfg.stamps = a.stamps
    open(a.o, 'w').write(build())
```

```python
import sys, os
sys.path.insert(0, os.path.dirname(os.path.abspath(__file__)))
from asmdsl import *

KNAME = "gated_mix__linear_attn_block__linear_kernel_hedgehog__prompt_kernel"

class Cfg:
    debug = 0
    rot = 1
    maprow = 1
    spin = 1 << 20
    fine = 0
    ola = 8
    wo1step = 6
    korder = 1
    pro3 = 0
    worot = 1
    orot = 1
    pretouch = 1
    h1step = 22
    h2lead = 70
    stamps = 0
cfg = Cfg()

WS_EPOCH = 0x0
WS_G     = 0x1000
WS_FLAG  = 0x20000
WS_OUTK  = 0x100000
WS_OUTZ  = 0x140000
WS_O     = 0x200000
WS_INB   = 0x800000
WS_SIZE  = 0x1000000
WS_DBG   = 0x1000000
WS_STAMP = 0x7000000

sX, sW, sWOA, sWOB, sWS, sOUT, sMISC, sDBG = 8, 12, 16, 20, 24, 28, 32, 36
s_w, s_th, s_hp, s_i, s_jj, s_rot, s_T = 40, 41, 42, 43, 44, 45, 46
s_xbase, s_wbase, s_m0x, s_m0w, s_ox, s_ow, s_t0, s_t1, s_t2, s_t3 = 47, 48, 49, 50, 51, 52, 53, 54, 55, 56
s_tb, s_cb, s_head, s_qbase, s_m0q = 57, 58, 59, 60, 61
s_mask16 = 62
s_log2e = 84
s_eps = 86
s_spin = 88
s_ht = 89
s_stamp = 90
s_b = 92
s_exec = 94
s_wobase, s_m0o = 96, 97
s_qadj, s_q0 = 4, 5
s_t2x, s_t3x = 98, 99
s_r = 6
s_odd = 94
KA = 64

v_lane = 1
vXA = 2
vWA = 14
vDX = 17
vDQ = 21
vONES = 25
vT = 26
vtmp = 27
vK = [32, 48]; vV = [64, 80]; vQ = [96, 112]
vWF = 128
vWP = 152
vSEL = 160
vTMP = 168

SLOT = 32768
def slot_set(s): return s // 2
def slot_imm(s): return (s % 2) * SLOT

class VM:
    def __init__(self, p): self.p = p; self.n = 0; self.marks = {}; self.done = 0
    def op(self, text, mark=None):
        self.p(text); self.n += 1
        if mark: self.marks[mark] = self.n
    def mark(self, name): self.marks[name] = self.n
    def wait(self, name, extra=''):
        if self.marks[name] <= self.done:
            if extra: self.p('s_waitcnt' + extra)
            return
        k = self.n - self.marks[name]
        assert 0 <= k <= 63, (name, k)
        self.p('s_waitcnt vmcnt(%d)%s' % (k, extra))
        self.done = self.marks[name]
    def wait_all(self):
        self.p('s_waitcnt vmcnt(0)'); self.done = self.n

def stamp(p, idx):
    if not cfg.stamps: return
    p('s_memtime s[%d:%d]' % (s_stamp, s_stamp + 1))
    p('s_waitcnt lgkmcnt(0)')
    p('v_writelane_b32 v255, s%d, %d' % (s_stamp, idx))


def korder(n): return (2 * (n & 3) + (n >> 2)) if cfg.korder else n

def srd(p, d, ptr, size):
    p('s_mov_b32 s%d, s%d' % (d, ptr)); p('s_and_b32 s%d, s%d, 0xffff' % (d + 1, ptr + 1))
    p('s_mov_b32 s%d, 0x%x' % (d + 2, size)); p('s_mov_b32 s%d, 0x00020000' % (d + 3))

SOFF = 64
WPT = 168
GX, GW = 168, 184

def gen_path(br):
    p = Prog(); vm = VM(p)
    L = 'A' if br == 0 else 'B'
    p.label('L_path' + L)
    if cfg.stamps: p('v_mov_b32 v255, 0')
    stamp(p, 0)
    rstamp(p, 11)
    p('v_lshrrev_b32 v27, 6, v0')
    p('v_and_b32 v%d, 63, v0' % v_lane)
    p('v_readfirstlane_b32 s%d, v27' % s_w)
    p('v_lshrrev_b32 v27, 3, v%d' % v_lane)
    p('v_and_b32 v28, 7, v%d' % v_lane)
    p('v_lshrrev_b32 v29, 4, v%d' % v_lane)
    for q in range(2):
        p('v_add_u32 v30, %d, v29' % (4 * (q & 1)))
        p('v_xor_b32 v30, v28, v30')
        p('v_lshlrev_b32 v30, 4, v30')
        p('v_add_u32 v31, %d, v27' % (7 * q))
        p('v_lshl_add_u32 v%d, v31, 10, v30' % (vDX + q))
    p('v_add_u32 v%d, %d, v%d' % (vDX + 2, 14 * 1024, vDX)); p('v_add_u32 v%d, %d, v%d' % (vDX + 3, 14 * 1024, vDX + 1))
    p('v_and_b32 v30, 1, v29'); p('v_lshlrev_b32 v30, 2, v30'); p('v_xor_b32 v30, v28, v30'); p('v_lshlrev_b32 v30, 4, v30')
    p('v_mul_u32_u24 v31, 3072, v27')
    p('v_add_u32 v%d, v30, v31' % vDQ)
    for q in range(1, 4):
        p('v_add_u32 v%d, %d, v%d' % (vDQ + q, 8 * q * 3072 - 1024 * q, vDQ))
    p('s_and_b32 s%d, s%d, 1' % (s_th, s_w))
    p('s_lshr_b32 s%d, s%d, 1' % (s_hp, s_w))
    p('s_lshl_b32 s%d, s%d, 17' % (s_xbase, s_i))
    p('s_lshl_b32 s%d, s%d, 15' % (s_t0, s_w))
    p('s_add_u32 s%d, s%d, s%d' % (s_xbase, s_xbase, s_t0))
    p('s_lshl_b32 s%d, s%d, 7' % (s_qbase, s_jj))
    p('s_mul_i32 s%d, s%d, 98304' % (s_t0, s_th))
    p('s_add_u32 s%d, s%d, s%d' % (s_wbase, s_qbase, s_t0))
    p('s_add_u32 s%d, s%d, 1' % (s_t0, s_hp))
    p('s_lshl_b32 s%d, s%d, 10' % (s_t0, s_t0))
    p('s_add_u32 s%d, s%d, s%d' % (s_wbase, s_wbase, s_t0))
    p('s_lshl_b32 s%d, s%d, 12' % (s_m0x, s_w))
    p('s_lshl_b32 s%d, s%d, 13' % (s_m0w, s_hp))
    p('s_lshl_b32 s%d, s%d, 12' % (s_t0, s_th))
    p('s_add_u32 s%d, s%d, s%d' % (s_m0w, s_m0w, s_t0))
    p('s_add_u32 s%d, s%d, 16384' % (s_m0w, s_m0w))
    p('s_lshl_b32 s%d, s%d, 11' % (s_m0q, s_w))
    p('s_mul_i32 s%d, s%d, 49152' % (s_t0, s_w))
    p('s_add_u32 s%d, s%d, s%d' % (s_t0, s_t0, s_qbase))
    p('s_sub_u32 s%d, s%d, s%d' % (s_qadj, s_wbase, s_t0))

    def chunk_offsets(n, dx, dw):
        p('s_add_u32 s%d, s%d, %d' % (s_t0, s_rot, korder(n))); p('s_and_b32 s%d, s%d, 7' % (s_t0, s_t0))
        p('s_lshl_b32 s%d, s%d, 7' % (s_t1, s_t0)); p('s_add_u32 s%d, s%d, s%d' % (dx, s_xbase, s_t1))
        p('s_mul_i32 s%d, s%d, 196608' % (s_t1, s_t0)); p('s_add_u32 s%d, s%d, s%d' % (dw, s_wbase, s_t1))
    def dma_chunk_ops(n):
        slot = (n % 4) * SLOT
        ox = s_ox if n == 0 else SOFF + 2 * n
        ow = s_ow if n == 0 else SOFF + 2 * n + 1
        ops = []
        def x0():
            p('s_add_u32 m0, s%d, %d' % (s_m0x, slot)); p('s_nop 0')
            vm.op('buffer_load_dwordx4 v%d, s[%d:%d], s%d offen lds' % (vDX, sX, sX + 3, ox))
        ops.append(x0)
        for q in range(1, 4):
            ops.append(lambda q=q: vm.op('buffer_load_dwordx4 v%d, s[%d:%d], s%d offen offset:%d lds' % (vDX + q, sX, sX + 3, ox, q * 1024)))
        def w0():
            p('s_add_u32 m0, s%d, %d' % (s_m0w, slot)); p('s_nop 0')
            vm.op('buffer_load_dwordx4 v%d, s[%d:%d], s%d offen lds' % (vDQ, sW, sW + 3, ow))
        ops.append(w0)
        for q in range(1, 4):
            ops.append(lambda q=q: vm.op('buffer_load_dwordx4 v%d, s[%d:%d], s%d offen offset:%d lds' % (vDQ + q, sW, sW + 3, ow, q * 1024), 'c%d' % n if q == 3 else None))
        return ops
    def dma_wq_ops(hf):
        ops = []
        for c in range(4 * hf, 4 * hf + 4):
            def m(c=c):
                if c == 0: p('s_add_u32 s%d, s%d, 0' % (s_ow, s_q0))
                else: p('s_sub_u32 s%d, s%d, s%d' % (s_ow, SOFF + 2 * c + 1, s_qadj))
                p('s_add_u32 m0, s%d, %d' % (s_m0q, (4 * (c >> 2)) * SLOT + (c & 3) * 8192)); p('s_nop 0')
                vm.op('buffer_load_dwordx4 v%d, s[%d:%d], s%d offen lds' % (vDQ, sW, sW + 3, s_ow))
            ops.append(m)
            ops.append(lambda c=c: vm.op('buffer_load_dwordx4 v%d, s[%d:%d], s%d offen offset:1024 lds' % (vDQ + 1, sW, sW + 3, s_ow), 'wq%d' % hf if (c & 3) == 3 else None))
        return ops

    chunk_offsets(0, s_ox, s_ow)
    p('s_sub_u32 s%d, s%d, s%d' % (s_q0, s_ow, s_qadj))
    p('s_waitcnt lgkmcnt(0)')
    srd(p, sX, KA + 0, 2048 * 1024)
    srd(p, sW, KA + (2 if br == 0 else 8), 512 * 3072)
    stamp(p, 20)
    for f in dma_chunk_ops(0): f()
    srd(p, sWS, KA + 18, WS_SIZE)
    if br == 0: srd(p, sMISC, KA + 14, 1024)
    else:
        srd(p, sMISC, KA + 10, 32 * 512)
        p('s_lshl_b32 s%d, s%d, 11' % (s_t0, s_jj)); p('s_lshl_b32 s%d, s%d, 10' % (s_t1, s_hp)); p('s_add_u32 s%d, s%d, s%d' % (s_t0, s_t0, s_t1))
        p('s_lshl_b32 s%d, s%d, 10' % (s_t1, s_w)); p('s_add_u32 m0, s%d, %d' % (s_t1, 4 * SLOT))
        p('v_lshlrev_b32 v27, 4, v%d' % v_lane)
        vm.op('buffer_load_dwordx4 v27, s[%d:%d], s%d offen lds' % (sMISC, sMISC + 3, s_t0), 'wphi')
    p('v_mov_b32 v28, 0')
    vm.op('buffer_load_dword v%d, v28, s[%d:%d], 0 offen sc1' % (vT, sWS, sWS + 3), 'epoch')
    srd(p, sWOA, KA + 4, 512 * 1024)
    srd(p, sWOB, KA + 12, 512 * 1024)
    srd(p, sOUT, KA + 16, 2048 * 1024)
    if cfg.debug or cfg.stamps: srd(p, sDBG, KA + 18, 0x8000000)
    for n in range(1, 8): chunk_offsets(n, SOFF + 2 * n, SOFF + 2 * n + 1)
    if cfg.pretouch:
        p('s_lshl_b32 s%d, s%d, 18' % (s_t0, s_jj)); p('s_add_u32 s%d, s%d, %d' % (s_t0, s_t0, WS_INB + br * 0x200000))
        vm.op('buffer_load_dword v232, v28, s[%d:%d], s%d offen' % (sWS, sWS + 3, s_t0))
        p('s_lshl_b32 s%d, s%d, 18' % (s_t0, s_i)); p('s_add_u32 s%d, s%d, %d' % (s_t0, s_t0, WS_O))
        vm.op('buffer_load_dword v233, v28, s[%d:%d], s%d offen' % (sWS, sWS + 3, s_t0))
        p('s_lshl_b32 s%d, s%d, 17' % (s_t0, s_tb)); p('s_add_u32 s%d, s%d, %d' % (s_t0, s_t0, WS_O))
        vm.op('buffer_load_dword v234, v28, s[%d:%d], s%d offen' % (sWS, sWS + 3, s_t0))
        vm.op('buffer_load_dword v235, v28, s[%d:%d], 0 offen' % (sWOA, sWOA + 3))
        vm.op('buffer_load_dword v236, v28, s[%d:%d], 0 offen' % (sWOB, sWOB + 3))
        p('s_lshl_b32 s%d, s%d, 16' % (s_t0, s_tb))
        vm.op('buffer_load_dword v237, v28, s[%d:%d], s%d offen' % (sOUT, sOUT + 3, s_t0))
    wo_setup(p)
    p('v_and_b32 v27, 31, v%d' % v_lane)
    p('v_lshrrev_b32 v28, 5, v%d' % v_lane)
    p('v_lshrrev_b32 v29, 1, v27'); p('v_and_b32 v29, 7, v29'); p('v_xor_b32 v29, v28, v29')
    p('s_lshl_b32 s%d, s%d, 13' % (s_t0, s_th))
    p('v_lshlrev_b32 v30, 7, v27'); p('v_add_u32 v30, s%d, v30' % s_t0)
    for ks in range(4):
        p('v_xor_b32 v31, %d, v29' % (2 * ks)); p('v_lshl_add_u32 v%d, v31, 4, v30' % (vXA + ks))
        p('v_add_u32 v%d, 0x10000, v%d' % (vXA + 4 + ks, vXA + ks))
    p('v_lshrrev_b32 v27, 2, v%d' % v_lane); p('v_and_b32 v27, 3, v27')
    p('v_lshl_add_u32 v29, v28, 3, v27')
    p('v_lshlrev_b32 v29, 7, v29')
    p('v_lshrrev_b32 v30, 1, v27'); p('v_xor_b32 v30, s%d, v30' % s_hp); p('v_lshl_add_u32 v29, v30, 6, v29')
    p('v_lshrrev_b32 v30, 4, v%d' % v_lane); p('v_xor_b32 v30, s%d, v30' % s_th); p('v_and_b32 v30, 1, v30'); p('v_lshl_add_u32 v29, v30, 5, v29')
    p('v_and_b32 v30, 3, v%d' % v_lane); p('v_lshl_add_u32 v%d, v30, 3, v29' % vWA)
    p('v_add_u32 v%d, 0x10000, v%d' % (vWA + 1, vWA)); p('v_add_u32 v%d, 0x20000, v%d' % (vWA + 2, vWA))
    p('v_mov_b32 v%d, 0x3f803f80' % vONES)
    p('s_mov_b32 s%d, 0xffff0000' % s_mask16); p('s_mov_b32 s%d, 0xffff0000' % (s_mask16 + 1))
    p('s_mov_b32 s%d, 0x3fb8aa3b' % s_log2e); p('s_mov_b32 s%d, 0x3fb8aa3b' % (s_log2e + 1))
    p('s_mov_b32 s%d, 0x358637bd' % s_eps); p('s_mov_b32 s%d, 0x358637bd' % (s_eps + 1))
    if br == 1:
        p('v_and_b32 v27, 31, v%d' % v_lane)
        p('v_lshrrev_b32 v28, 5, v%d' % v_lane)
        p('v_bfe_u32 v29, v27, 2, 1')
        p('v_cmp_eq_u32 vcc, v28, v29')
        p('v_bfe_u32 v29, v27, 3, 1'); p('v_and_b32 v30, 3, v27'); p('v_lshl_add_u32 v29, v29, 2, v30')
        p('v_and_b32 v30, 1, v29'); p('v_lshlrev_b32 v30, 4, v30'); p('v_mov_b32 v31, 0x3f80'); p('v_lshlrev_b32 v30, v30, v31')
        p('v_cndmask_b32 v30, 0, v30, vcc')
        p('v_lshrrev_b32 v29, 1, v29')
        p('v_bfe_u32 v28, v27, 4, 1')
        p('v_lshl_add_u32 v29, v28, 2, v29')
        for q in range(8):
            p('v_cmp_eq_u32 vcc, %d, v29' % q)
            p('v_cndmask_b32 v%d, 0, v30, vcc' % (vSEL + q))
    p('s_mov_b32 s%d, 0xaaaaaaaa' % s_odd); p('s_mov_b32 s%d, 0xaaaaaaaa' % (s_odd + 1))
    if br == 1:
        p('v_lshrrev_b32 v27, 5, v%d' % v_lane); p('v_lshlrev_b32 v27, 2, v27')
        p('v_bfe_u32 v28, v%d, 2, 2' % v_lane); p('v_add_u32 v27, v27, v28'); p('v_lshlrev_b32 v27, 5, v27')
        p('v_bfe_u32 v28, v%d, 1, 1' % v_lane); p('v_lshl_add_u32 v27, v28, 3, v27')
        p('v_bfe_u32 v28, v%d, 4, 1' % v_lane); p('v_lshl_add_u32 v27, v28, 4, v27')
        p('s_lshl_b32 s%d, s%d, 10' % (s_t0, s_w)); p('s_add_u32 s%d, s%d, %d' % (s_t0, s_t0, 4 * SLOT))
        p('s_lshl_b32 s%d, s%d, 9' % (s_t1, s_th)); p('s_add_u32 s%d, s%d, s%d' % (s_t0, s_t0, s_t1))
        p('v_add_u32 v27, s%d, v27' % s_t0); p('v_xor_b32 v29, 512, v27')
        p('v_bfe_u32 v28, v%d, 2, 1' % v_lane); p('v_lshlrev_b32 v28, 31, v28'); p('v_lshrrev_b32 v30, 16, v28'); p('v_or_b32 v28, v28, v30')
    stamp(p, 21)
    for f in dma_chunk_ops(1): f()
    if br == 1:
        vm.wait('wphi')
        for u in range(2):
            for rd in range(2):
                p('ds_read_b64_tr_b16 v[%d:%d], v%d offset:%d' % (vWP + 4 * u + 2 * rd, vWP + 4 * u + 2 * rd + 1, 27 if u == 0 else 29, rd * 8 * 32))
        p('s_waitcnt lgkmcnt(0)')
        for q in range(8): p('v_xor_b32 v%d, v%d, v28' % (vWP + q, vWP + q))
    return p, vm, dma_chunk_ops, dma_wq_ops

def make_tag(p, vm):
    vm.wait('epoch')
    p('v_readfirstlane_b32 s%d, v%d' % (s_T, vT))
    p('s_mul_i32 s%d, s%d, 0x9e3779b1' % (s_T, s_T)); p('s_add_u32 s%d, s%d, 0x7f4a7c15' % (s_T, s_T))
    p('v_mov_b32 v%d, s%d' % (vT, s_T))

def emit(p, item):
    if callable(item): item()
    else: p(item)

def merge(p, main, side, every, start=0):
    side = list(side); k = 0
    for idx, m in enumerate(main):
        emit(p, m)
        if idx >= start and (idx - start) % every == every - 1 and side:
            emit(p, side.pop(0))
    for x in side: emit(p, x)

class Rec:
    def __init__(self): self.l = []
    def __call__(self, t, tag=None):
        for line in t.split('\n'):
            if line.strip(): self.l.append(line.strip())

def xf(s, blk): return ar((s * 2 + blk) * 4, 4)

def pass1(p, vm, br, dma_chunk_ops, dma_wq_ops, extra_ops):
    def reads(s):
        c, ks = s >> 2, s & 3; slot = c % 4; st = slot_set(slot); im = slot_imm(slot); buf = s % 3
        ops = []
        wf = vWF + 8 * buf
        for part in range(2):
            for rd in range(2):
                ops.append('ds_read_b64_tr_b16 v[%d:%d], v%d offset:%d' % (wf + 4 * part + 2 * rd, wf + 4 * part + 2 * rd + 1, vWA + st, im + 16384 + part * 8192 + (16 * ks + 4 * rd) * 128))
        for blk in range(2):
            ops.append('ds_read_b128 %s, v%d offset:%d' % (xf(s, blk), vXA + st * 4 + ks, im + blk * 4096))
        return ops
    def mfmas(s):
        wf = vWF + 8 * (s % 3); ops = []
        for blk in range(2):
            c = '0' if s == 0 else vr(vK[blk], 16)
            if br == 1: ops.append('v_mfma_f32_32x32x16_bf16 %s, %s, %s, %s' % (vr(vK[blk], 16), vr(wf, 4), xf(s, blk), c))
            else:       ops.append('v_mfma_f32_32x32x16_bf16 %s, %s, %s, %s' % (vr(vK[blk], 16), xf(s, blk), vr(wf, 4), c))
            c = '0' if s == 0 else vr(vV[blk], 16)
            ops.append('v_mfma_f32_32x32x16_bf16 %s, %s, %s, %s' % (vr(vV[blk], 16), xf(s, blk), vr(wf + 4, 4), c))
        return ops
    pend = []
    vm.wait('c0'); p('s_barrier')
    stamp(p, 1)
    pend += extra_ops[0]
    for o in reads(0): p(o)
    for o in reads(1): p(o)
    for s in range(32):
        nxt = s + 2
        p('s_waitcnt lgkmcnt(%d)' % (6 if s < 31 else 0))
        M = mfmas(s)
        R = reads(nxt) if nxt < 32 else []
        p(M[0])
        if nxt < 32 and nxt % 4 == 0:
            m = nxt // 4
            vm.wait('c%d' % m); p('s_barrier')
            if cfg.stamps == 1 and cfg.fine: stamp(p, 30 + m)
            pend += extra_ops[m]
        def take(n):
            for _ in range(n):
                if pend: pend.pop(0)()
        for k in range(4):
            if k > 0: p(M[k])
            for o in R[(k * 6) // 4:((k + 1) * 6) // 4]: p(o)
            if k % 2 == 1 or len(pend) > 8: take(1)
    while pend: pend.pop(0)()

def pass2(p, vm, sched):
    RA = 3
    def reads(s):
        c, ks = s >> 2, s & 3; slot = 4 * (c >> 2); st = slot_set(slot); im = slot_imm(slot); wf = vWF + 4 * (s % 4)
        return ['ds_read_b64_tr_b16 v[%d:%d], v%d offset:%d' % (wf + 2 * rd, wf + 2 * rd + 1, vWA + st, im + (c & 3) * 8192 + (16 * ks + 4 * rd) * 128) for rd in range(2)]
    for s in range(RA):
        for o in reads(s): p(o)
    for s in range(32):
        out = min(RA - 1, 31 - s)
        p('s_waitcnt lgkmcnt(%d)' % (2 * out))
        wf = vWF + 4 * (s % 4)
        if ('bar', s) in sched: p('s_barrier')
        if cfg.fine == 2 and s % 4 == 0 and s > 0:
            stamp(p, 40 + s // 4);
        items = list(sched.get(s, []))
        h = (len(items) + 1) // 2
        for blk in range(2):
            c = '0' if s == 0 else vr(vQ[blk], 16)
            p('v_mfma_f32_32x32x16_bf16 %s, %s, %s, %s' % (vr(vQ[blk], 16), vr(wf, 4), xf(s, blk), c))
            if blk == 0 and s + RA < 32:
                for o in reads(s + RA): p(o)
            for it in (items[:h] if blk == 0 else items[h:]): emit(p, it)

def dump_regs(p, vm, base_reg, n, slot_index):
    p('s_lshl_b32 s%d, s%d, 2' % (s_t0, s_b)); p('s_add_u32 s%d, s%d, s%d' % (s_t0, s_t0, s_w))
    p('s_mul_i32 s%d, s%d, %d' % (s_t0, s_t0, n * 256)); p('s_add_u32 s%d, s%d, %d' % (s_t0, s_t0, WS_DBG + slot_index * 0x1000000))
    p('v_lshlrev_b32 v27, 4, v%d' % v_lane)
    for r in range(0, n, 4):
        vm.op('buffer_store_dwordx4 %s, v27, s[%d:%d], s%d offen' % (vr(base_reg + r, 4), sDBG, sDBG + 3, s_t0))
        p('s_add_u32 s%d, s%d, 1024' % (s_t0, s_t0))
    vm.wait_all()

def build():
    top = Prog()
    top('s_cmp_ge_u32 s2, 256')
    top('s_cbranch_scc1 L_end')
    top('s_load_dwordx16 s[64:79], s[0:1], 0')
    top('s_load_dwordx2 s[80:81], s[0:1], 64')
    top('s_load_dwordx2 s[82:83], s[0:1], 80')
    top('s_mov_b32 s%d, s2' % s_b)
    top('s_and_b32 s%d, s2, 7' % s_t0)
    top('s_lshr_b32 s%d, s2, 3' % s_t1)
    if cfg.maprow == 0:
        top('s_mov_b32 s%d, s%d' % (s_jj, s_t0))
        top('s_lshr_b32 s%d, s%d, 1' % (s_i, s_t1))
        top('s_and_b32 s%d, s%d, 1' % (s_t2, s_t1))
        top('s_lshl_b32 s%d, s%d, 2' % (s_rot, s_t2)); top('s_add_u32 s%d, s%d, s%d' % (s_rot, s_rot, s_i)); top('s_and_b32 s%d, s%d, 7' % (s_rot, s_rot))
    else:
        top('s_and_b32 s%d, s%d, 1' % (s_i, s_t0)); top('s_lshl_b32 s%d, s%d, 3' % (s_i, s_i)); top('s_and_b32 s%d, s%d, 7' % (s_t2, s_t1)); top('s_add_u32 s%d, s%d, s%d' % (s_i, s_i, s_t2))
        top('s_lshr_b32 s%d, s%d, 1' % (s_t3, s_t0)); top('s_lshl_b32 s%d, s%d, 2' % (s_t3, s_t3)); top('s_lshr_b32 s%d, s%d, 3' % (s_t2, s_t1)); top('s_add_u32 s%d, s%d, s%d' % (s_t3, s_t3, s_t2))
        top('s_lshr_b32 s%d, s%d, 1' % (s_jj, s_t3))
        top('s_lshl_b32 s%d, s%d, 1' % (s_rot, s_t3)); top('s_add_u32 s%d, s%d, s%d' % (s_rot, s_rot, s_i)); top('s_and_b32 s%d, s%d, 7' % (s_rot, s_rot))
        top('s_and_b32 s%d, s%d, 1' % (s_t2, s_t3))
    if not cfg.rot: top('s_mov_b32 s%d, 0' % s_rot)
    top('s_lshl_b32 s%d, s%d, 2' % (s_tb, s_t0)); top('s_and_b32 s%d, s%d, 3' % (s_t3, s_t1)); top('s_add_u32 s%d, s%d, s%d' % (s_tb, s_tb, s_t3))
    top('s_lshr_b32 s%d, s%d, 2' % (s_cb, s_t1))
    top('s_cmp_eq_u32 s%d, 0' % s_t2)
    top('s_cbranch_scc0 L_pathB')
    paths = []
    for br in range(2):
        p, vm, dco, dwq = gen_path(br)
        body(p, vm, br, dco, dwq)
        added = p.fix_hazards()
        errs = p.check_waits()
        if errs:
            for e in errs[:20]: print('WAITERR', e, file=sys.stderr)
            raise SystemExit('wait check failed')
        print('path', 'AB'[br], 'instructions:', sum(1 for i in p.ins if i.op), 'nop states added:', added, file=sys.stderr)
        paths.append(p)
    top.fix_hazards()
    hdr = open(os.path.join(os.path.dirname(os.path.abspath(__file__)), 'header.txt')).read()
    s = hdr
    s += '; @launch grid=(256,1,1) block=(256,1,1) lds=163840\n'
    s += '.amdgcn_target "amdgcn-amd-amdhsa--gfx950"\n.text\n.globl %s\n.p2align 8\n.type %s,@function\n%s:\n' % (KNAME, KNAME, KNAME)
    s += top.text()
    for p in paths: s += p.text()
    s += 'L_end:\n    s_endpgm\n'
    s += '.section .rodata,"a"\n.p2align 6\n.amdhsa_kernel %s\n  .amdhsa_next_free_vgpr 512\n  .amdhsa_next_free_sgpr 102\n  .amdhsa_accum_offset 256\n  .amdhsa_group_segment_fixed_size 0\n  .amdhsa_kernarg_size 88\n  .amdhsa_user_sgpr_count 2\n  .amdhsa_user_sgpr_kernarg_segment_ptr 1\n  .amdhsa_system_sgpr_workgroup_id_x 1\n.end_amdhsa_kernel\n' % KNAME
    return s


MF = 'v_mfma_f32_32x32x16_bf16'
vDO = 10
vOA = 2
vEW = 4
vER = 8
vOG = 18
s_rc, s_r4 = 7, 3

def cvt(p, d, a, b): p('v_cvt_pk_bf16_f32 v%d, v%d, v%d' % (d, a, b))

def wo_setup(p):
    p('v_lshrrev_b32 v27, 3, v%d' % v_lane); p('v_and_b32 v28, 7, v%d' % v_lane)
    p('v_bfe_u32 v29, v%d, 4, 1' % v_lane); p('v_lshlrev_b32 v29, 2, v29'); p('v_xor_b32 v28, v28, v29'); p('v_lshlrev_b32 v28, 4, v28')
    p('s_lshl_b32 s%d, s%d, 7' % (s_t0, s_cb)); p('v_add_u32 v28, s%d, v28' % s_t0)
    p('v_lshl_add_u32 v%d, v27, 10, v28' % vDO)
    for q in range(1, 4): p('v_add_u32 v%d, %d, v%d' % (vDO + q, 7 * q * 1024, vDO))
    p('s_lshl_b32 s%d, s%d, 16' % (s_wobase, s_w)); p('s_lshl_b32 s%d, s%d, 13' % (s_m0o, s_w))
    if cfg.worot:
        p('s_and_b32 s%d, s%d, 3' % (s_r, s_tb))
        p('s_lshr_b32 s%d, s%d, 1' % (s_t0, s_r)); p('s_lshl_b32 s%d, s%d, 18' % (s_t0, s_t0)); p('s_add_u32 s%d, s%d, s%d' % (s_wobase, s_wobase, s_t0))
        p('s_bitcmp1_b32 s%d, 0' % s_r)
        p('s_cselect_b32 s%d, s%d, s%d' % (s_t0, sWOB, sWOA)); p('s_cselect_b32 s%d, s%d, s%d' % (s_t1, sWOA, sWOB))
        p('s_cselect_b32 s%d, s%d, s%d' % (s_t2x, sWOB + 1, sWOA + 1)); p('s_cselect_b32 s%d, s%d, s%d' % (s_t3x, sWOA + 1, sWOB + 1))
        p('s_mov_b32 s%d, s%d' % (sWOA, s_t0)); p('s_mov_b32 s%d, s%d' % (sWOB, s_t1)); p('s_mov_b32 s%d, s%d' % (sWOA + 1, s_t2x)); p('s_mov_b32 s%d, s%d' % (sWOB + 1, s_t3x))
    else:
        p('s_mov_b32 s%d, 0' % s_r)

def dma_wo_ops(p, vm, part):
    srd_ = sWOA if part < 2 else sWOB
    ops = []
    for grp in range(2):
        def m(grp=grp):
            if part & 1: p('s_xor_b32 s%d, s%d, 262144' % (s_ow, s_wobase))
            else: p('s_mov_b32 s%d, s%d' % (s_ow, s_wobase))
            if grp: p('s_add_u32 s%d, s%d, 32768' % (s_ow, s_ow))
            p('s_add_u32 m0, s%d, %d' % (s_m0o, (part + 1) * SLOT + grp * 4096)); p('s_nop 0')
            vm.op('buffer_load_dwordx4 v%d, s[%d:%d], s%d offen lds' % (vDO, srd_, srd_ + 3, s_ow))
        ops.append(m)
        for q in range(1, 4):
            ops.append(lambda q=q, grp=grp: vm.op('buffer_load_dwordx4 v%d, s[%d:%d], s%d offen offset:%d lds' % (vDO + q, srd_, srd_ + 3, s_ow, q * 1024), 'wo%d' % part if (q == 3 and grp == 1) else None))
    return ops

def softmax16(p, P, F, tmp):
    m, S = tmp, tmp + 2
    p('v_max3_f32 v%d, v%d, v%d, v%d' % (m, P, P + 1, P + 2))
    p('v_max3_f32 v%d, v%d, v%d, v%d' % (m + 1, P + 3, P + 4, P + 5))
    p('v_max3_f32 v%d, v%d, v%d, v%d' % (m, m, P + 6, P + 7))
    p('v_max3_f32 v%d, v%d, v%d, v%d' % (m + 1, m + 1, P + 8, P + 9))
    p('v_max3_f32 v%d, v%d, v%d, v%d' % (m, m, P + 10, P + 11))
    p('v_max3_f32 v%d, v%d, v%d, v%d' % (m + 1, m + 1, P + 12, P + 13))
    p('v_max3_f32 v%d, v%d, v%d, v%d' % (m, m, P + 14, P + 15))
    p('v_max_f32 v%d, v%d, v%d' % (m, m, m + 1))
    p('v_mul_f32 v%d, s%d, v%d' % (m, s_log2e, m))
    for i in range(8):
        p('v_pk_fma_f32 v[%d:%d], v[%d:%d], s[%d:%d], v[%d:%d] op_sel_hi:[1,1,0] neg_lo:[0,0,1] neg_hi:[0,0,1]' % (P + 2 * i, P + 2 * i + 1, P + 2 * i, P + 2 * i + 1, s_log2e, s_log2e + 1, m, m + 1))
    for i in range(16): p('v_exp_f32 v%d, v%d' % (P + i, P + i))
    p('v_pk_add_f32 v[%d:%d], v[%d:%d], v[%d:%d]' % (S, S + 1, P, P + 1, P + 2, P + 3))
    p('v_pk_add_f32 v[%d:%d], v[%d:%d], v[%d:%d]' % (m, m + 1, P + 4, P + 5, P + 6, P + 7))
    p('v_pk_add_f32 v[%d:%d], v[%d:%d], v[%d:%d]' % (S, S + 1, S, S + 1, P + 8, P + 9))
    p('v_pk_add_f32 v[%d:%d], v[%d:%d], v[%d:%d]' % (m, m + 1, m, m + 1, P + 10, P + 11))
    p('v_pk_add_f32 v[%d:%d], v[%d:%d], v[%d:%d]' % (S, S + 1, S, S + 1, P + 12, P + 13))
    p('v_pk_add_f32 v[%d:%d], v[%d:%d], v[%d:%d]' % (m, m + 1, m, m + 1, P + 14, P + 15))
    p('v_pk_add_f32 v[%d:%d], v[%d:%d], v[%d:%d]' % (S, S + 1, S, S + 1, m, m + 1))
    p('v_add_f32 v%d, v%d, v%d' % (S, S, S + 1))
    p('v_rcp_f32 v%d, v%d' % (S, S))
    for i in range(8):
        p('v_pk_mul_f32 v[%d:%d], v[%d:%d], v[%d:%d] op_sel_hi:[1,0]' % (P + 2 * i, P + 2 * i + 1, P + 2 * i, P + 2 * i + 1, S, S + 1))
    for i in range(8): cvt(p, F + i, P + 2 * i, P + 2 * i + 1)

def phi_elu(p, T, n, F, tmp):
    for base in range(0, n // 2, 4):
        prs = range(base, min(base + 4, n // 2))
        for k, i in enumerate(prs):
            p('v_pk_mul_f32 v[%d:%d], v[%d:%d], s[%d:%d]' % (tmp + 2 * k, tmp + 2 * k + 1, T + 2 * i, T + 2 * i + 1, s_log2e, s_log2e + 1))
        for k, i in enumerate(prs):
            p('v_exp_f32 v%d, v%d clamp' % (tmp + 2 * k, tmp + 2 * k)); p('v_exp_f32 v%d, v%d clamp' % (tmp + 2 * k + 1, tmp + 2 * k + 1))
        for k, i in enumerate(prs):
            p('v_max_f32 v%d, 0, v%d' % (T + 2 * i, T + 2 * i)); p('v_max_f32 v%d, 0, v%d' % (T + 2 * i + 1, T + 2 * i + 1))
        for k, i in enumerate(prs):
            p('v_pk_add_f32 v[%d:%d], v[%d:%d], v[%d:%d]' % (T + 2 * i, T + 2 * i + 1, T + 2 * i, T + 2 * i + 1, tmp + 2 * k, tmp + 2 * k + 1))
        for k, i in enumerate(prs):
            p('v_pk_add_f32 v[%d:%d], v[%d:%d], s[%d:%d]' % (T + 2 * i, T + 2 * i + 1, T + 2 * i, T + 2 * i + 1, s_eps, s_eps + 1))
        for k, i in enumerate(prs): cvt(p, F + i, T + 2 * i, T + 2 * i + 1)

ACC = [96, 112]
def vprep(p, VB0, VB1):
    for blk in range(2):
        for i in range(8): cvt(p, VB0 + 8 * blk + i, vV[blk] + 2 * i, vV[blk] + 2 * i + 1)
    for blk in range(2):
        for i in range(8): p('v_cndmask_b32_e64 v%d, v%d, v%d, s[%d:%d]' % (VB1 + 8 * blk + i, vONES, VB0 + 8 * blk + i, s_mask16, s_mask16 + 1))
    for blk in range(2):
        for i in range(8): p('v_cndmask_b32_e64 v%d, v%d, v%d, s[%d:%d]' % (VB0 + 8 * blk + i, VB0 + 8 * blk + i, vONES, s_mask16, s_mask16 + 1))

def insert_at(main, ins):
    out = []; ins = sorted(ins, key=lambda x: x[0]); k = 0
    for idx, m in enumerate(main):
        while k < len(ins) and ins[k][0] <= idx: out.append(ins[k][1]); k += 1
        out.append(m)
    out += [x[1] for x in ins[k:]]
    return out

UNITS = [(0, 0), (0, 1), (1, 0), (1, 1)]
ST = 184
def feat_k_B(p, side):
    KB, PB, G = 168, 184, 128
    VB0, VB1 = 32, 48
    TB = [64, 80]
    VB = [VB0, VB1]
    r = Rec()
    for un, (blk, u) in enumerate(UNITS):
        for i in range(4): cvt(r, KB + 4 * un + i, vK[blk] + 8 * u + 2 * i, vK[blk] + 8 * u + 2 * i + 1)
    head = list(r.l)
    r = Rec(); vprep(r, VB0, VB1); vp = list(r.l)
    PM = ['%s %s, %s, %s, 0' % (MF, vr(PB + 16 * un, 16), vr(vWP + 4 * u, 4), vr(KB + 4 * un, 4)) for un, (blk, u) in enumerate(UNITS)]
    stream = head[:6] + [PM[0]] + head[6:10] + [PM[1]] + head[10:14] + [PM[2]] + head[14:16] + vp[:4] + [PM[3]] + vp[4:]
    def TA(un): return '%s %s, %s, %s, 0' % (MF, vr(TB[un % 2], 16), vr(KB + 8 * (un % 2), 4), vr(vSEL, 4))
    def TBm(un): return '%s %s, %s, %s, %s' % (MF, vr(TB[un % 2], 16), vr(KB + 8 * (un % 2) + 4, 4), vr(vSEL + 4, 4), vr(TB[un % 2], 16))
    def CV(un):
        q = Rec()
        for i in range(8): cvt(q, G + i, TB[un % 2] + 2 * i, TB[un % 2] + 2 * i + 1)
        return q.l
    def AA(un):
        blk, u = UNITS[un]; c = '0' if blk == 0 else vr(ACC[u], 16)
        return '%s %s, %s, %s, %s' % (MF, vr(ACC[u], 16), vr(G, 4), vr(VB[u] + 8 * blk, 4), c)
    def AB(un):
        blk, u = UNITS[un]
        return '%s %s, %s, %s, %s' % (MF, vr(ACC[u], 16), vr(G + 4, 4), vr(VB[u] + 8 * blk + 4, 4), vr(ACC[u], 16))
    for un in range(4):
        q = Rec(); softmax16(q, PB + 16 * un, KB + 8 * (un % 2), 136); sm = q.l
        ins = []
        if un >= 1:
            ins += [(2, TA(un - 1)), (10, TBm(un - 1))]
            ins += [(34 + k, c) for k, c in enumerate(CV(un - 1))]
            ins += [(46, AA(un - 1)), (54, AB(un - 1))]
        stream += insert_at(sm, ins)
    tags = ['v_mov_b32 v%d, v%d' % (ST + 4 * k + 3, vT) for k in range(4)]
    q = Rec(); exchange_addr(q); ad = q.l
    stream += ['s_nop 1', TA(3)] + tags + ad[:4] + [TBm(3)] + ad[4:] + ['s_nop 3'] + CV(3) + ['s_nop 1', AA(3), AB(3)]
    merge(p, stream, side, 14, start=4)

def feat_k_A(p, side):
    PK, VB0, VB1 = 168, 200, 216
    r = Rec()
    for blk in range(2): phi_elu(r, vK[blk], 16, PK + 8 * blk, 184)
    vprep(r, VB0, VB1)
    VB = [VB0, VB1]
    for k in range(2): r('v_mov_b32 v%d, v%d' % (ST + 4 * k + 3, vT))
    exchange_addr(r)
    for blk in range(2):
        for u in range(2):
            c = '0' if blk == 0 else vr(ACC[u], 16)
            r('%s %s, %s, %s, %s' % (MF, vr(ACC[u], 16), vr(PK + 8 * blk, 4), vr(VB[u] + 8 * blk, 4), c))
            r('%s %s, %s, %s, %s' % (MF, vr(ACC[u], 16), vr(PK + 8 * blk + 4, 4), vr(VB[u] + 8 * blk + 4, 4), vr(ACC[u], 16)))
    merge(p, r.l, side, 10, start=2)

FQ = 32
def feat_q_B(p, side, late):
    KB, PB = 168, 184
    r = Rec()
    for un, (blk, u) in enumerate(UNITS):
        for i in range(4): cvt(r, KB + 4 * un + i, vQ[blk] + 8 * u + 2 * i, vQ[blk] + 8 * u + 2 * i + 1)
    head = list(r.l)
    PM = ['%s %s, %s, %s, 0' % (MF, vr(PB + 16 * un, 16), vr(vWP + 4 * u, 4), vr(KB + 4 * un, 4)) for un, (blk, u) in enumerate(UNITS)]
    stream = head[:6] + [PM[0]] + head[6:10] + [PM[1]] + head[10:14] + [PM[2]] + head[14:16] + ['s_nop 3', PM[3]]
    for un in range(4):
        q = Rec(); softmax16(q, PB + 16 * un, FQ + 8 * un, 136); stream += q.l
    n = len(stream)
    stream = insert_at(stream, [(n - cfg.h2lead + k, x) for k, x in enumerate(late)])
    merge(p, stream, side, 9, start=2)

def feat_q_A(p, side, late):
    r = Rec()
    for blk in range(2):
        for u in range(2): phi_elu(r, vQ[blk] + 8 * u, 8, FQ + 4 * (2 * blk + u), 184)
    merge(p, r.l, side, 6, start=1)
    for x in late: emit(p, x)

vEXW, vEXR, vH1S = 28, 29, 30
def exchange_addr(p):
    p('v_lshlrev_b32 v27, 4, v%d' % v_lane)
    p('s_lshl_b32 s%d, s%d, 12' % (s_t0, s_w)); p('s_add_u32 s%d, s%d, %d' % (s_t0, s_t0, 3 * SLOT))
    p('v_add_u32 v%d, s%d, v27' % (vEXW, s_t0))
    p('s_xor_b32 s%d, s%d, 4096' % (s_t0, s_t0))
    p('v_xor_b32 v27, 256, v27')
    p('v_add_u32 v%d, s%d, v27' % (vEXR, s_t0))
    p('v_lshrrev_b32 v%d, 4, v%d' % (vH1S, v_lane)); p('v_lshlrev_b32 v%d, 12, v%d' % (vH1S, vH1S)); p('v_and_b32 v27, 15, v%d' % v_lane); p('v_lshl_add_u32 v%d, v27, 4, v%d' % (vH1S, vH1S))

TZ = 200
def exchange(p, vm, br):
    nq = 4 if br == 1 else 2
    nh = 2 * nq
    RC = 216
    src1 = ACC[1] + (0 if br == 1 else 8)
    for q in range(nq): p('ds_write_b128 v%d, %s offset:%d' % (vEXW, vr(src1 + 4 * q, 4), q * 1024))
    p('s_lshl_b32 s%d, s%d, 2' % (s_head, s_jj)); p('s_add_u32 s%d, s%d, s%d' % (s_head, s_head, s_w)); p('s_add_u32 s%d, s%d, %d' % (s_head, s_head, 32 * br))
    p('s_lshl_b32 s%d, s%d, 16' % (s_t2, s_head)); p('s_lshl_b32 s%d, s%d, 8' % (s_t1, s_i)); p('s_add_u32 s%d, s%d, s%d' % (s_t2, s_t2, s_t1)); p('s_add_u32 s%d, s%d, %d' % (s_t2, s_t2, WS_INB))
    vm.wait('wq1', ' lgkmcnt(0)')
    stamp(p, 18)
    p('s_barrier')
    stamp(p, 19)
    for q in range(nq): p('ds_read_b128 %s, v%d offset:%d' % (vr(RC + 4 * q, 4), vEXR, q * 1024))
    pos = lambda r: ST + 4 * (r >> 1) + (r & 1)
    for q in range(nq):
        p('s_waitcnt lgkmcnt(%d)' % (nq - 1 - q))
        for r in range(4 * q, 4 * q + 4):
            d = pos(r) if r < nh else TZ + r - nh
            p('v_add_f32 v%d, v%d, v%d' % (d, ACC[0] + r, RC + r))
    nd = 8 if br == 1 else 4
    for r in range(nd): p('v_permlane16_swap_b32 v%d, v%d' % (pos(r), TZ + r))
    for m in range(nd // 2): p('v_cndmask_b32_e64 v%d, v%d, v%d, s[%d:%d]' % (ST + 4 * m + 2, TZ + 2 * m, TZ + 2 * m + 1, s_odd, s_odd + 1))

def hop1_store_ops(p, vm, br):
    nm = 4 if br == 1 else 2
    ops = []
    for m in range(nm):
        def f(m=m):
            vm.op('buffer_store_dwordx4 %s, v%d, s[%d:%d], s%d offen sc1' % (vr(ST + 4 * m, 4), vH1S, sWS, sWS + 3, s_t2))
            if m < nm - 1: p('s_add_u32 s%d, s%d, 16384' % (s_t2, s_t2))
        ops.append(f)
    return ops

def spin_tail(p, name):
    p('s_cbranch_vccz L_%s_ok' % name)
    p('s_sub_u32 s%d, s%d, 1' % (s_spin, s_spin))
    p('s_cmp_gt_i32 s%d, 0' % s_spin)
    p('s_cbranch_scc1 L_%s' % name)
    p.label('L_%s_ok' % name)

def tagcheck(p, regs, t0, t1):
    regs = list(regs)
    p('v_min_u32 v%d, v%d, v%d' % (t0, regs[0], regs[1])); p('v_max_u32 v%d, v%d, v%d' % (t1, regs[0], regs[1]))
    k = 2
    while k + 1 < len(regs):
        p('v_min3_u32 v%d, v%d, v%d, v%d' % (t0, t0, regs[k], regs[k + 1])); p('v_max3_u32 v%d, v%d, v%d, v%d' % (t1, t1, regs[k], regs[k + 1])); k += 2
    if k < len(regs):
        p('v_min_u32 v%d, v%d, v%d' % (t0, t0, regs[k])); p('v_max_u32 v%d, v%d, v%d' % (t1, t1, regs[k]))
    p('v_xor_b32 v%d, v%d, v%d' % (t0, vT, t0)); p('v_xor_b32 v%d, v%d, v%d' % (t1, vT, t1)); p('v_or_b32 v%d, v%d, v%d' % (t0, t0, t1))
    p('v_cmp_ne_u32 vcc, 0, v%d' % t0)

H1 = 184
s_h1a = 98
def hop1_load_ops(p, vm, br, retry=False):
    ops = []
    def addr():
        p('s_lshl_b32 s%d, s%d, 16' % (s_h1a, s_head)); p('s_lshl_b32 s%d, s%d, 12' % (s_t1, s_i)); p('s_add_u32 s%d, s%d, s%d' % (s_h1a, s_h1a, s_t1)); p('s_add_u32 s%d, s%d, %d' % (s_h1a, s_h1a, WS_INB))
        p('v_lshlrev_b32 v27, 4, v%d' % v_lane)
    if not retry: ops.append(addr)
    for n in range(4):
        ops.append(lambda n=n: vm.op('buffer_load_dwordx4 %s, v27, s[%d:%d], s%d offen offset:%d sc1' % (vr(H1 + 4 * n, 4), sWS, sWS + 3, s_h1a, n * 1024), 'h1l' if n == 3 else None))
    return ops

def hop1_reduce(p, vm, br):
    L = 'AB'[br]; LD = H1
    vm.wait('h1l')
    if br == 0:
        p('s_cmp_ge_u32 s%d, 8' % s_i); p('s_cbranch_scc1 L_h1skip')
    p('s_mov_b32 s%d, %d' % (s_spin, cfg.spin))
    tagcheck(p, [LD + 4 * n + 3 for n in range(4)], 28, 29)
    p('s_cbranch_vccz L_h1%s_ok' % L)
    p.label('L_h1%s' % L)
    for f in hop1_load_ops(p, vm, br, retry=True): f()
    vm.wait_all()
    tagcheck(p, [LD + 4 * n + 3 for n in range(4)], 28, 29)
    spin_tail(p, 'h1%s' % L)
    a, b, z, t = 216, 217, 218, 219
    p('v_add_f32 v%d, v%d, v%d' % (a, LD, LD + 4)); p('v_add_f32 v%d, v%d, v%d' % (b, LD + 1, LD + 5)); p('v_add_f32 v%d, v%d, v%d' % (z, LD + 2, LD + 6))
    for n in range(2, 4):
        p('v_add_f32 v%d, v%d, v%d' % (a, a, LD + 4 * n)); p('v_add_f32 v%d, v%d, v%d' % (b, b, LD + 4 * n + 1)); p('v_add_f32 v%d, v%d, v%d' % (z, z, LD + 4 * n + 2))
    p('v_mov_b32 v%d, v%d' % (t, z))
    p('s_lshl_b32 s%d, s%d, 11' % (s_t0, s_head)); p('s_lshl_b32 s%d, s%d, 7' % (s_t1, s_i)); p('s_add_u32 s%d, s%d, s%d' % (s_t0, s_t0, s_t1)); p('s_add_u32 s%d, s%d, %d' % (s_t0, s_t0, WS_OUTK))
    p('v_permlane32_swap_b32 v%d, v%d' % (a, b))
    p('v_permlane32_swap_b32 v%d, v%d' % (z, t))
    p('v_add_f32 v%d, v%d, v%d' % (a, a, b)); p('v_add_f32 v%d, v%d, v%d' % (z, z, t))
    p('v_lshlrev_b32 v27, 4, v%d' % v_lane)
    p('v_mov_b32 v%d, v%d' % (b, a)); p('v_mov_b32 v%d, v%d' % (t, z))
    p('v_mov_b32 v223, v%d' % vT)
    p('s_nop 0')
    p('v_permlane16_swap_b32 v%d, v%d' % (a, b))
    p('v_permlane16_swap_b32 v%d, v%d' % (z, t))
    p('v_add_f32 v%d, v%d, v%d' % (a, a, b)); p('v_add_f32 v%d, v%d, v%d' % (z, z, t))
    p('v_mov_b32 v%d, v%d' % (b, a))
    p('s_nop 0')
    p('v_mov_b32_dpp v%d, v%d quad_perm:[1,1,1,1] row_mask:0xf bank_mask:0xf' % (t, z))
    p('v_permlane32_swap_b32 v%d, v%d' % (a, b))
    p('v_mov_b32_dpp v%d, v%d quad_perm:[0,0,0,0] row_mask:0xf bank_mask:0xf' % (222, z))
    cvt(p, 220, a, b)
    cvt(p, 222, 222, t)
    p('v_mov_b32_dpp v221, v220 row_ror:8 row_mask:0xf bank_mask:0xf')
    p('s_mov_b32 exec_lo, 0xff'); p('s_mov_b32 exec_hi, 0')
    vm.op('buffer_store_dwordx4 v[220:223], v27, s[%d:%d], s%d offen sc1' % (sWS, sWS + 3, s_t0))
    p('s_mov_b64 exec, -1')
    if br == 0: p.label('L_h1skip')

KVA = 216
H2 = 64
s_h2a, s_h2b = 100, 101
s_hi8 = 98
def hop2_load_ops(p, vm, br, retry=False):
    nm = 4 if br == 1 else 2
    ops = []
    def addr():
        p('s_lshl_b32 s%d, s%d, 11' % (s_h2a, s_head)); p('s_add_u32 s%d, s%d, %d' % (s_h2a, s_h2a, WS_OUTK)); p('s_xor_b32 s%d, s%d, 2048' % (s_h2b, s_h2a))
        p('s_mov_b32 s%d, 0xff00ff00' % s_hi8); p('s_mov_b32 s%d, 0xff00ff00' % (s_hi8 + 1))
    def addr2():
        p('v_lshrrev_b32 v31, 4, v%d' % v_lane); p('v_lshlrev_b32 v31, 7, v31'); p('v_and_b32 v30, 7, v%d' % v_lane); p('v_lshl_add_u32 v31, v30, 4, v31')
    if not retry: ops += [addr, addr2]
    for u in range(2):
        for m in range(nm):
            r = H2 + 16 * u + 4 * m
            ops.append(lambda r=r, u=u, m=m: vm.op('buffer_load_dwordx4 %s, v31, s[%d:%d], s%d offen offset:%d sc1' % (vr(r, 4), sWS, sWS + 3, s_h2a if u == 0 else s_h2b, m * 512), 'h2l' if (u == 1 and m == nm - 1) else None))
    return ops

def hop2_gather(p, vm, br):
    L = 'AB'[br]; nm = 4 if br == 1 else 2
    tags = [H2 + 16 * u + 4 * m + 3 for u in range(2) for m in range(nm)]
    p('s_mov_b32 s%d, %d' % (s_spin, cfg.spin))
    vm.wait('h2l')
    tagcheck(p, tags, 28, 29)
    p('s_cbranch_vccz L_h2%s_ok' % L)
    p.label('L_h2%s' % L)
    for f in hop2_load_ops(p, vm, br, retry=True): f()
    vm.wait_all()
    tagcheck(p, tags, 28, 29)
    spin_tail(p, 'h2%s' % L)
    for u in range(2):
        for m in range(nm): p('v_cndmask_b32_e64 v%d, v%d, v%d, s[%d:%d]' % (KVA + 8 * u + m, H2 + 16 * u + 4 * m, H2 + 16 * u + 4 * m + 1, s_hi8, s_hi8 + 1))
        for m in range(nm): p('v_mov_b32 v%d, v%d' % (KVA + 8 * u + nm + m, H2 + 16 * u + 4 * m + 2))
    for u in range(2):
        for m in range(nm): p('v_permlane16_swap_b32 v%d, v%d' % (KVA + 8 * u + m, KVA + 8 * u + nm + m))

OF = 232
def o_phase(p, vm, br):
    NB = [64, 80, 96, 112]
    for un, (blk, u) in enumerate(UNITS):
        if br == 1:
            p('%s %s, %s, %s, 0' % (MF, vr(NB[un], 16), vr(KVA + 8 * u, 4), vr(FQ + 8 * un, 4)))
            p('%s %s, %s, %s, %s' % (MF, vr(NB[un], 16), vr(KVA + 8 * u + 4, 4), vr(FQ + 8 * un + 4, 4), vr(NB[un], 16)))
        else:
            p('%s %s, %s, %s, 0' % (MF, vr(NB[un], 16), vr(KVA + 8 * u, 4), vr(FQ + 4 * un, 4)))
        if un == 0:
            p('s_lshl_b32 s%d, s%d, 2' % (s_t0, s_i)); p('s_lshl_b32 s%d, s%d, 1' % (s_t1, s_th)); p('s_add_u32 s%d, s%d, s%d' % (s_t0, s_t0, s_t1))
            p('s_lshl_b32 s%d, s%d, 16' % (s_t0, s_t0)); p('s_lshl_b32 s%d, s%d, 10' % (s_t1, s_head)); p('s_add_u32 s%d, s%d, s%d' % (s_t0, s_t0, s_t1)); p('s_add_u32 s%d, s%d, %d' % (s_t0, s_t0, WS_O))
            p('s_xor_b32 s%d, s%d, 1024' % (s_t1, s_t0))
            p('s_add_u32 s%d, s%d, 65536' % (s_t2, s_t0)); p('s_add_u32 s%d, s%d, 65536' % (s_t3, s_t1))
            p('v_lshlrev_b32 v27, 4, v%d' % v_lane)
    soffs = {(0, 0): s_t0, (0, 1): s_t1, (1, 0): s_t2, (1, 1): s_t3}
    for un, (blk, u) in enumerate(UNITS):
        N = NB[un]; num = N; den = N + 8
        p('v_add_f32 v%d, s%d, v%d' % (den, s_eps, den))
        p('v_rcp_f32 v%d, v%d' % (den, den))
        for i in range(4):
            p('v_pk_mul_f32 v[%d:%d], v[%d:%d], v[%d:%d] op_sel_hi:[1,0]' % (num + 2 * i, num + 2 * i + 1, num + 2 * i, num + 2 * i + 1, den, den + 1))
        for i in range(4): cvt(p, OF + 4 * un + i, num + 2 * i, num + 2 * i + 1)
        vm.op('buffer_store_dwordx4 %s, v27, s[%d:%d], s%d offen sc1' % (vr(OF + 4 * un, 4), sWS, sWS + 3, soffs[(blk, u)]), 'ost')
    p('s_lshl_b32 s%d, s%d, 1' % (s_t0, s_i)); p('s_add_u32 s%d, s%d, s%d' % (s_t0, s_t0, s_th)); p('s_lshl_b32 s%d, s%d, 5' % (s_t0, s_t0))
    p('s_lshl_b32 s%d, s%d, 1' % (s_t1, s_jj)); p('s_add_u32 s%d, s%d, s%d' % (s_t0, s_t0, s_t1)); p('s_add_u32 s%d, s%d, s%d' % (s_t0, s_t0, s_hp))
    p('s_add_u32 s%d, s%d, %d' % (s_t0, s_t0, 16 * br)); p('s_lshl_b32 s%d, s%d, 7' % (s_t0, s_t0)); p('s_add_u32 s%d, s%d, %d' % (s_h2a, s_t0, WS_FLAG))

def o_flag(p, vm):
    p('v_mov_b32 v27, 0')
    vm.wait('ost')
    p('s_mov_b64 exec, 1')
    vm.op('buffer_store_dword v%d, v27, s[%d:%d], s%d offen sc1' % (vT, sWS, sWS + 3, s_h2a))
    p('s_mov_b64 exec, -1')

def gate_load_ops(p, vm):
    X, Gw = GX, GW
    def a0():
        p('s_lshl_b32 s%d, s%d, 7' % (s_t0, s_i)); p('s_lshl_b32 s%d, s%d, 4' % (s_t1, s_jj)); p('s_add_u32 s%d, s%d, s%d' % (s_t0, s_t0, s_t1))
        p('s_lshl_b32 s%d, s%d, 2' % (s_t1, s_w)); p('s_add_u32 s%d, s%d, s%d' % (s_t0, s_t0, s_t1))
        p('s_lshl_b32 s%d, s%d, 10' % (s_t2, s_t0))
    def a1():
        p('s_lshr_b32 s%d, s%d, 2' % (s_t3, s_t0)); p('s_lshl_b32 s%d, s%d, 7' % (s_t3, s_t3)); p('s_add_u32 s%d, s%d, %d' % (s_b + 1, s_t3, WS_G))
        p('v_and_b32 v27, 15, v%d' % v_lane); p('v_lshlrev_b32 v27, 4, v27')
    def a2():
        p('v_lshrrev_b32 v28, 4, v%d' % v_lane); p('v_lshl_add_u32 v28, v28, 10, v27')
    ops = [a0, a1, a2]
    for q in range(4):
        ops.append(lambda q=q: vm.op('buffer_load_dwordx4 %s, v28, s[%d:%d], s%d offen offset:%d' % (vr(X + 4 * q, 4), sX, sX + 3, s_t2, q * 256)))
    for q in range(4):
        ops.append(lambda q=q: vm.op('buffer_load_dwordx4 %s, v27, s[%d:%d], 0 offen offset:%d' % (vr(Gw + 4 * q, 4), sMISC, sMISC + 3, q * 256), 'gate' if q == 3 else None))
    return ops

def gate_finish(p, vm):
    X, Gw = GX, GW
    vm.wait('gate')
    acc = 200
    p('v_mov_b32 v%d, 0' % acc); p('v_mov_b32 v%d, 0' % (acc + 1))
    for k in range(16):
        p('v_lshlrev_b32 v202, 16, v%d' % (X + k)); p('v_lshlrev_b32 v203, 16, v%d' % (Gw + k))
        p('v_and_b32 v204, 0xffff0000, v%d' % (X + k)); p('v_and_b32 v205, 0xffff0000, v%d' % (Gw + k))
        p('v_fmac_f32 v%d, v202, v203' % acc); p('v_fmac_f32 v%d, v204, v205' % (acc + 1))
    p('v_add_f32 v%d, v%d, v%d' % (acc, acc, acc + 1))
    for sh in (8, 4, 2, 1):
        p('v_add_f32_dpp v%d, v%d, v%d row_ror:%d row_mask:0xf bank_mask:0xf' % (acc, acc, acc, sh))
    p('v_mul_f32 v%d, s%d, v%d' % (acc, s_log2e, acc))
    p('v_exp_f32_e64 v%d, -v%d' % (acc, acc))
    p('v_add_f32 v%d, 1.0, v%d' % (acc, acc))
    p('v_rcp_f32 v%d, v%d' % (acc, acc))
    p('v_mov_b32 v%d, v%d' % (acc + 1, vT))
    p('v_lshrrev_b32 v27, 4, v%d' % v_lane); p('v_lshlrev_b32 v27, 3, v27')
    p('s_mov_b32 exec_lo, 0x00010001'); p('s_mov_b32 exec_hi, 0x00010001')
    vm.op('buffer_store_dwordx2 v[%d:%d], v27, s[%d:%d], s%d offen sc1' % (acc, acc + 1, sWS, sWS + 3, s_b + 1))
    p('s_mov_b64 exec, -1')

def p3_setup(p):
    p('v_lshrrev_b32 v27, 5, v%d' % v_lane); p('v_lshlrev_b32 v27, 2, v27')
    p('v_bfe_u32 v28, v%d, 2, 2' % v_lane); p('v_add_u32 v27, v27, v28'); p('v_lshlrev_b32 v27, 7, v27')
    p('v_bfe_u32 v29, v%d, 4, 1' % v_lane); p('v_lshl_add_u32 v27, v29, 5, v27')
    p('v_and_b32 v29, 3, v%d' % v_lane); p('v_lshl_add_u32 v27, v29, 3, v27')
    p('s_and_b32 s%d, s%d, 1' % (s_t0, s_r)); p('s_xor_b32 s%d, s%d, s%d' % (s_t0, s_t0, s_hp))
    p('s_lshl_b32 s%d, s%d, 16' % (s_t0, s_t0)); p('s_add_u32 s%d, s%d, %d' % (s_t0, s_t0, SLOT)); p('v_add_u32 v27, s%d, v27' % s_t0)
    p('v_lshrrev_b32 v28, 1, v28')
    p('v_lshl_add_u32 v%d, v28, 6, v27' % vOA)
    p('v_xor_b32 v28, 1, v28'); p('v_lshl_add_u32 v%d, v28, 6, v27' % (vOA + 1))
    p('v_and_b32 v27, 31, v%d' % v_lane)
    p('s_lshl_b32 s%d, s%d, 14' % (s_t0, s_hp)); p('s_lshl_b32 s%d, s%d, 13' % (s_t1, s_th)); p('s_add_u32 s%d, s%d, s%d' % (s_t0, s_t0, s_t1))
    p('v_lshlrev_b32 v28, 8, v27'); p('v_add_u32 v28, s%d, v28' % s_t0)
    p('v_and_b32 v29, 7, v27'); p('v_lshrrev_b32 v27, 5, v%d' % v_lane); p('v_xor_b32 v29, v29, v27')
    for q in range(4):
        p('v_xor_b32 v27, %d, v29' % (2 * q)); p('v_lshl_add_u32 v%d, v27, 4, v28' % (vEW + q))
    p('v_lshrrev_b32 v27, 3, v%d' % v_lane); p('v_and_b32 v28, 7, v%d' % v_lane); p('v_lshlrev_b32 v28, 1, v28')
    p('s_lshl_b32 s%d, s%d, 12' % (s_t0, s_w))
    p('v_lshlrev_b32 v29, 8, v27'); p('v_add_u32 v29, s%d, v29' % s_t0)
    for x in range(2):
        p('v_or_b32 v30, %d, v28' % x); p('v_xor_b32 v30, v30, v27'); p('v_lshl_add_u32 v%d, v30, 4, v29' % (vER + x))
    p('v_and_b32 v28, 7, v%d' % v_lane); p('v_lshlrev_b32 v28, 4, v28'); p('v_lshl_add_u32 v14, v27, 10, v28')
    p('v_and_b32 v15, 15, v%d' % v_lane); p('v_lshlrev_b32 v15, 7, v15')
    p('v_lshlrev_b32 v16, 4, v%d' % v_lane)
    p('v_and_b32 v28, 31, v%d' % v_lane); p('v_lshrrev_b32 v29, 2, v28'); p('v_lshlrev_b32 v29, 7, v29'); p('v_and_b32 v28, 3, v28'); p('v_lshl_add_u32 v17, v28, 3, v29')

s_fl, s_oa, s_ga, s_out0, s_out1 = 47, 48, 49, 50, 51
def p3_scalars(p):
    p('s_lshl_b32 s%d, s%d, 1' % (s_t0, s_tb)); p('s_add_u32 s%d, s%d, s%d' % (s_t0, s_t0, s_hp)); p('s_lshl_b32 s%d, s%d, 11' % (s_t0, s_t0)); p('s_add_u32 s%d, s%d, %d' % (s_fl, s_t0, WS_FLAG))
    p('s_lshl_b32 s%d, s%d, 1' % (s_t0, s_tb)); p('s_add_u32 s%d, s%d, s%d' % (s_t0, s_t0, s_th)); p('s_lshl_b32 s%d, s%d, 16' % (s_t1, s_t0))
    p('s_lshl_b32 s%d, s%d, 15' % (s_t2, s_hp)); p('s_add_u32 s%d, s%d, s%d' % (s_t1, s_t1, s_t2)); p('s_add_u32 s%d, s%d, %d' % (s_oa, s_t1, WS_O))
    p('s_lshl_b32 s%d, s%d, 10' % (s_t0, s_t0)); p('s_add_u32 s%d, s%d, %d' % (s_ga, s_t0, WS_G))
    p('s_lshl_b32 s%d, s%d, 6' % (s_t0, s_tb)); p('s_lshl_b32 s%d, s%d, 4' % (s_t1, s_w)); p('s_add_u32 s%d, s%d, s%d' % (s_t0, s_t0, s_t1)); p('s_lshl_b32 s%d, s%d, 10' % (s_t0, s_t0))
    p('s_lshl_b32 s%d, s%d, 7' % (s_t1, s_cb)); p('s_add_u32 s%d, s%d, s%d' % (s_out0, s_t0, s_t1)); p('s_add_u32 s%d, s%d, 8192' % (s_out1, s_out0))
    if cfg.orot: p('s_mov_b32 s%d, s%d' % (s_rc, s_cb))
    else: p('s_mov_b32 s%d, 0' % s_rc)
    p('s_lshr_b32 s%d, s%d, 1' % (s_r4, s_r)); p('s_lshl_b32 s%d, s%d, 2' % (s_r4, s_r4))

def p3(p, vm, br):
    L = 'AB'[br]
    OACC = [64, 80]
    GV = 96
    vm.op('buffer_load_dwordx2 v[%d:%d], v17, s[%d:%d], s%d offen sc1' % (GV, GV + 1, sWS, sWS + 3, s_ga), 'g')
    p('s_mov_b32 s%d, %d' % (s_spin, cfg.spin))
    p.label('L_fl%s' % L)
    vm.op('buffer_load_dword v28, v15, s[%d:%d], s%d offen sc1' % (sWS, sWS + 3, s_fl))
    vm.wait_all()
    p('v_cmp_ne_u32 vcc, v28, v%d' % vT)
    spin_tail(p, 'fl%s' % L)
    p('s_barrier')
    stamp(p, 15)
    def oload(h):
        g, q = h >> 2, h & 3
        if q == 0:
            p('s_add_u32 s%d, s%d, %d' % (s_t2, s_rc, g)); p('s_and_b32 s%d, s%d, 7' % (s_t2, s_t2))
            p('s_add_u32 s%d, s%d, s%d' % (s_t2, s_t2, s_r4)); p('s_and_b32 s%d, s%d, 7' % (s_t2, s_t2)); p('s_lshl_b32 s%d, s%d, 12' % (s_t2, s_t2))
            p('s_add_u32 s%d, s%d, s%d' % (s_t1, s_oa, s_t2))
        vm.op('buffer_load_dwordx4 %s, v16, s[%d:%d], s%d offen offset:%d sc1' % (ar(4 * h, 4), sWS, sWS + 3, s_t1, q * 1024), 'o%d' % h)
    LA = cfg.ola
    for h in range(LA): oload(h)
    def gaddr(g):
        d = vOG + 2 * (g & 1)
        return ['s_add_u32 s%d, s%d, %d' % (s_t0, s_rc, g), 's_and_b32 s%d, s%d, 7' % (s_t0, s_t0), 's_lshl_b32 s%d, s%d, 13' % (s_t0, s_t0),
                'v_add_u32 v%d, s%d, v%d' % (d, s_t0, vOA), 'v_add_u32 v%d, s%d, v%d' % (d + 1, s_t0, vOA + 1)]
    def reads(h):
        wf = vWF + 8 * (h % 3); g = h >> 2
        pre = gaddr(g) if (h & 3) == 0 else []
        return pre + ['ds_read_b64_tr_b16 v[%d:%d], v%d offset:%d' % (wf + 4 * ct + 2 * rd, wf + 4 * ct + 2 * rd + 1, vOG + 2 * (g & 1) + ct, (h & 3) * 2048 + rd * 1024) for ct in range(2) for rd in range(2)]
    for h in range(2):
        for o in reads(h): p(o)
    if cfg.fine == 3: stamp(p, 41)
    p('s_mov_b32 s%d, %d' % (s_spin, cfg.spin))
    p('v_cmp_ne_u32 vcc, v%d, v%d' % (GV + 1, vT))
    p('s_cbranch_vccz L_g%s_ok' % L)
    p.label('L_g%s' % L)
    vm2 = VM(p)
    vm2.op('buffer_load_dwordx2 v[%d:%d], v17, s[%d:%d], s%d offen sc1' % (GV, GV + 1, sWS, sWS + 3, s_ga))
    vm2.wait_all()
    p('v_cmp_ne_u32 vcc, v%d, v%d' % (GV + 1, vT))
    spin_tail(p, 'g%s' % L)
    p('v_sub_f32 v%d, 1.0, v%d' % (GV + 1, GV))
    p('s_cmp_eq_u32 s%d, 0' % s_hp)
    p('s_cselect_b64 vcc, 0, -1')
    p('v_cndmask_b32 v%d, v%d, v%d, vcc' % (GV, GV, GV + 1))
    for h in range(32):
        wf = vWF + 8 * (h % 3)
        vm.wait('o%d' % h, ' lgkmcnt(%d)' % (4 if h < 31 else 0))
        if cfg.fine == 3 and h in (0, 8, 16, 24): stamp(p, 42 + h // 8)
        R = reads(h + 2) if h + 2 < 32 else []
        for ct in range(2):
            c = '0' if h == 0 else vr(OACC[ct], 16)
            p('%s %s, %s, %s, %s' % (MF, vr(OACC[ct], 16), vr(wf + 4 * ct, 4), ar(4 * h, 4), c))
            k = len(R) - 2
            for o in (R[:k] if ct == 0 else R[k:]): p(o)
            if ct == 0 and h + LA < 32: oload(h + LA)
    stamp(p, 16)
    for ct in range(2):
        for q in range(4):
            for i in range(2 * q, 2 * q + 2):
                p('v_pk_mul_f32 v[%d:%d], v[%d:%d], v[%d:%d] op_sel_hi:[1,0]' % (OACC[ct] + 2 * i, OACC[ct] + 2 * i + 1, OACC[ct] + 2 * i, OACC[ct] + 2 * i + 1, GV, GV + 1))
            p('ds_write_b128 v%d, %s offset:%d' % (vEW + q, vr(OACC[ct] + 4 * q, 4), 128 * ct))
    p('s_waitcnt lgkmcnt(0)')
    stamp(p, 17)
    p('s_barrier')
    RD = 168
    for a in range(2):
        for brr in range(2):
            for x in range(2):
                p('ds_read_b128 %s, v%d offset:%d' % (vr(RD + 16 * a + 8 * brr + 4 * x, 4), vER + x, a * 2048 + brr * 16384))
    for a in range(2):
        p('s_waitcnt lgkmcnt(%d)' % (4 if a == 0 else 0))
        r = RD + 16 * a
        for i in range(4): p('v_pk_add_f32 v[%d:%d], v[%d:%d], v[%d:%d]' % (r + 2 * i, r + 2 * i + 1, r + 2 * i, r + 2 * i + 1, r + 8 + 2 * i, r + 8 + 2 * i + 1))
        for i in range(4): cvt(p, r + 8 + i, r + 2 * i, r + 2 * i + 1)
        vm.op('buffer_store_dwordx4 %s, v14, s[%d:%d], s%d offen' % (vr(r + 8, 4), sOUT, sOUT + 3, s_out0 if a == 0 else s_out1))
    p('s_cmp_eq_u32 s%d, 0' % s_b); p('s_cbranch_scc0 L_noep%s' % L)
    p('s_cmp_eq_u32 s%d, 0' % s_w); p('s_cbranch_scc0 L_noep%s' % L)
    p('v_mov_b32 v27, 0'); p('s_mov_b64 exec, 1')
    vm.op('buffer_store_dword v%d, v27, s[%d:%d], 0 offen sc1' % (vT, sWS, sWS + 3))
    p('s_mov_b64 exec, -1')
    p.label('L_noep%s' % L)

def rstamp(p, idx):
    if not cfg.stamps: return
    p('s_memrealtime s[%d:%d]' % (s_stamp, s_stamp + 1))
    p('s_waitcnt lgkmcnt(0)')
    p('v_writelane_b32 v255, s%d, %d' % (s_stamp, idx))

def write_stamps(p, vm):
    if not cfg.stamps: return
    rstamp(p, 12)
    if cfg.stamps == 2:
        L = 'x%d' % len(p.ins)
        p('s_load_dwordx2 s[4:5], s[0:1], 72'); p('s_waitcnt lgkmcnt(0)')
        p('s_mov_b32 s%d, s4' % sDBG); p('s_and_b32 s%d, s5, 0xffff' % (sDBG + 1)); p('s_mov_b32 s%d, 256' % (sDBG + 2)); p('s_mov_b32 s%d, 0x00020000' % (sDBG + 3))
        p('s_cmp_eq_u32 s%d, 0' % s_w); p('s_cbranch_scc0 L_ds2' + L)
        p('v_lshlrev_b32 v27, 2, v%d' % v_lane)
        p('s_cmp_eq_u32 s%d, 8' % s_b); p('s_cbranch_scc0 L_ds1' + L)
        p('s_mov_b64 exec, 0x1fff')
        vm.op('buffer_store_dword v255, v27, s[%d:%d], 0 offen' % (sDBG, sDBG + 3))
        p('s_mov_b64 exec, -1')
        p.label('L_ds1' + L)
        p('s_cmp_eq_u32 s%d, 255' % s_b); p('s_cbranch_scc0 L_ds2' + L)
        p('s_mov_b64 exec, 0x1800')
        vm.op('buffer_store_dword v255, v27, s[%d:%d], 0 offen offset:8' % (sDBG, sDBG + 3))
        p('s_mov_b64 exec, -1')
        p.label('L_ds2' + L)
        return
    p('s_lshl_b32 s%d, s%d, 2' % (s_t0, s_b)); p('s_add_u32 s%d, s%d, s%d' % (s_t0, s_t0, s_w)); p('s_lshl_b32 s%d, s%d, 8' % (s_t0, s_t0)); p('s_add_u32 s%d, s%d, %d' % (s_t0, s_t0, WS_STAMP))
    p('v_lshlrev_b32 v27, 2, v%d' % v_lane)
    vm.op('buffer_store_dword v255, v27, s[%d:%d], s%d offen' % (sDBG, sDBG + 3, s_t0))

def body(p, vm, br, dco, dwq):
    extra = {m: [] for m in range(8)}
    for m in range(6): extra[m] = dco(m + 2)
    if br == 0: extra[4] = extra[4] + gate_load_ops(p, vm)
    extra[6] = dwq(0)
    extra[7] = dwq(1)
    pass1(p, vm, br, dco, dwq, extra)
    p('s_barrier')
    stamp(p, 2)
    if cfg.debug == 1: dump_regs(p, vm, vK[0], 64, 0)
    make_tag(p, vm)
    side = dma_wo_ops(p, vm, 0)
    if br == 1:
        feat_k_B(p, side)
    else:
        gate_finish(p, vm)
        feat_k_A(p, side)
    stamp(p, 3)
    exchange(p, vm, br)
    if cfg.debug == 2: dump_regs(p, vm, ST, 32, 0)
    stamp(p, 4)
    sched = {}
    sched[('bar', 1)] = True
    st = hop1_store_ops(p, vm, br)
    for k, f in enumerate(st): sched.setdefault(k, []).append(f)
    for k, f in enumerate(dma_wo_ops(p, vm, 1)): sched.setdefault(cfg.wo1step + k, []).append(f)
    hl = hop1_load_ops(p, vm, br)
    for k, f in enumerate(hl): sched.setdefault(min(31, cfg.h1step + k), []).append(f)
    pass2(p, vm, sched)
    stamp(p, 5)
    if cfg.debug == 1:
        p('s_nop 15'); dump_regs(p, vm, vQ[0], 32, 1)
    hop1_reduce(p, vm, br)
    stamp(p, 6)
    late = hop2_load_ops(p, vm, br)
    side = dma_wo_ops(p, vm, 2)
    if br == 1: feat_q_B(p, side, late)
    else: feat_q_A(p, side, late)
    p3_setup(p)
    stamp(p, 7)
    hop2_gather(p, vm, br)
    stamp(p, 8)
    if cfg.debug == 2: dump_regs(p, vm, KVA, 16, 1)
    o_phase(p, vm, br)
    p3_scalars(p)
    p('s_barrier')
    o_flag(p, vm)
    for f in dma_wo_ops(p, vm, 3): f()
    stamp(p, 9)
    p3(p, vm, br)
    stamp(p, 10)
    write_stamps(p, vm)
    p('s_endpgm')

if __name__ == '__main__':
    import argparse
    ap = argparse.ArgumentParser()
    ap.add_argument('-o', default='k.s'); ap.add_argument('--debug', type=int, default=0); ap.add_argument('--rot', type=int, default=1)
    ap.add_argument('--maprow', type=int, default=1); ap.add_argument('--fine', type=int, default=0); ap.add_argument('--ola', type=int, default=8); ap.add_argument('--wo1step', type=int, default=6); ap.add_argument('--korder', type=int, default=1); ap.add_argument('--pro3', type=int, default=0); ap.add_argument('--worot', type=int, default=1); ap.add_argument('--orot', type=int, default=1); ap.add_argument('--pretouch', type=int, default=1); ap.add_argument('--h1step', type=int, default=22); ap.add_argument('--h2lead', type=int, default=70); ap.add_argument('--stamps', type=int, default=0)
    a = ap.parse_args()
    cfg.debug = a.debug; cfg.rot = a.rot; cfg.maprow = a.maprow; cfg.h1step = a.h1step; cfg.fine = a.fine; cfg.ola = a.ola; cfg.wo1step = a.wo1step; cfg.korder = a.korder; cfg.pro3 = a.pro3; cfg.worot = a.worot; cfg.orot = a.orot; cfg.pretouch = a.pretouch; cfg.h2lead = a.h2lead; cfg.stamps = a.stamps
    open(a.o, 'w').write(build())
```

```python
import sys, os
sys.path.insert(0, os.path.dirname(os.path.abspath(__file__)))
from asmdsl import *

KNAME = "gated_mix__linear_attn_block__linear_kernel_hedgehog__prompt_kernel"

class Cfg:
    debug = 0
    rot = 1
    maprow = 1
    spin = 1 << 20
    fine = 0
    codepf = 1
    ola = 8
    wo1step = 6
    korder = 1
    pro3 = 0
    worot = 1
    orot = 1
    pretouch = 1
    h1step = 22
    h2lead = 70
    stamps = 0
cfg = Cfg()

WS_EPOCH = 0x0
WS_G     = 0x1000
WS_FLAG  = 0x20000
WS_OUTK  = 0x100000
WS_OUTZ  = 0x140000
WS_O     = 0x200000
WS_INB   = 0x800000
WS_SIZE  = 0x1000000
WS_DBG   = 0x1000000
WS_STAMP = 0x7000000

sX, sW, sWOA, sWOB, sWS, sOUT, sMISC, sDBG = 8, 12, 16, 20, 24, 28, 32, 36
s_w, s_th, s_hp, s_i, s_jj, s_rot, s_T = 40, 41, 42, 43, 44, 45, 46
s_xbase, s_wbase, s_m0x, s_m0w, s_ox, s_ow, s_t0, s_t1, s_t2, s_t3 = 47, 48, 49, 50, 51, 52, 53, 54, 55, 56
s_tb, s_cb, s_head, s_qbase, s_m0q = 57, 58, 59, 60, 61
s_mask16 = 62
s_log2e = 84
s_eps = 86
s_spin = 88
s_ht = 89
s_stamp = 90
s_b = 92
s_exec = 94
s_wobase, s_m0o = 96, 97
s_qadj, s_q0 = 4, 5
s_t2x, s_t3x = 98, 99
s_r = 6
s_odd = 94
KA = 64

v_lane = 1
vXA = 2
vWA = 14
vDX = 17
vDQ = 21
vONES = 25
vT = 26
vtmp = 27
vK = [32, 48]; vV = [64, 80]; vQ = [96, 112]
vWF = 128
vWP = 152
vSEL = 160
vTMP = 168

SLOT = 32768
def slot_set(s): return s // 2
def slot_imm(s): return (s % 2) * SLOT

class VM:
    def __init__(self, p): self.p = p; self.n = 0; self.marks = {}; self.done = 0
    def op(self, text, mark=None):
        self.p(text); self.n += 1
        if mark: self.marks[mark] = self.n
    def mark(self, name): self.marks[name] = self.n
    def wait(self, name, extra=''):
        if self.marks[name] <= self.done:
            if extra: self.p('s_waitcnt' + extra)
            return
        k = self.n - self.marks[name]
        assert 0 <= k <= 63, (name, k)
        self.p('s_waitcnt vmcnt(%d)%s' % (k, extra))
        self.done = self.marks[name]
    def wait_all(self):
        self.p('s_waitcnt vmcnt(0)'); self.done = self.n

def stamp(p, idx):
    if not cfg.stamps: return
    p('s_memtime s[%d:%d]' % (s_stamp, s_stamp + 1))
    p('s_waitcnt lgkmcnt(0)')
    p('v_writelane_b32 v255, s%d, %d' % (s_stamp, idx))


def korder(n): return (2 * (n & 3) + (n >> 2)) if cfg.korder else n

def srd(p, d, ptr, size):
    p('s_mov_b32 s%d, s%d' % (d, ptr)); p('s_and_b32 s%d, s%d, 0xffff' % (d + 1, ptr + 1))
    p('s_mov_b32 s%d, 0x%x' % (d + 2, size)); p('s_mov_b32 s%d, 0x00020000' % (d + 3))

SOFF = 64
WPT = 168
GX, GW = 168, 184

def gen_path(br):
    p = Prog(); vm = VM(p)
    L = 'A' if br == 0 else 'B'
    p.label('L_path' + L)
    if cfg.stamps: p('v_mov_b32 v255, 0')
    stamp(p, 0)
    rstamp(p, 11)
    p('v_lshrrev_b32 v27, 6, v0')
    p('v_and_b32 v%d, 63, v0' % v_lane)
    p('v_readfirstlane_b32 s%d, v27' % s_w)
    p('v_lshrrev_b32 v27, 3, v%d' % v_lane)
    p('v_and_b32 v28, 7, v%d' % v_lane)
    p('v_lshrrev_b32 v29, 4, v%d' % v_lane)
    for q in range(2):
        p('v_add_u32 v30, %d, v29' % (4 * (q & 1)))
        p('v_xor_b32 v30, v28, v30')
        p('v_lshlrev_b32 v30, 4, v30')
        p('v_add_u32 v31, %d, v27' % (7 * q))
        p('v_lshl_add_u32 v%d, v31, 10, v30' % (vDX + q))
    p('v_add_u32 v%d, %d, v%d' % (vDX + 2, 14 * 1024, vDX)); p('v_add_u32 v%d, %d, v%d' % (vDX + 3, 14 * 1024, vDX + 1))
    p('v_and_b32 v30, 1, v29'); p('v_lshlrev_b32 v30, 2, v30'); p('v_xor_b32 v30, v28, v30'); p('v_lshlrev_b32 v30, 4, v30')
    p('v_mul_u32_u24 v31, 3072, v27')
    p('v_add_u32 v%d, v30, v31' % vDQ)
    for q in range(1, 4):
        p('v_add_u32 v%d, %d, v%d' % (vDQ + q, 8 * q * 3072 - 1024 * q, vDQ))
    p('s_and_b32 s%d, s%d, 1' % (s_th, s_w))
    p('s_lshr_b32 s%d, s%d, 1' % (s_hp, s_w))
    p('s_lshl_b32 s%d, s%d, 17' % (s_xbase, s_i))
    p('s_lshl_b32 s%d, s%d, 15' % (s_t0, s_w))
    p('s_add_u32 s%d, s%d, s%d' % (s_xbase, s_xbase, s_t0))
    p('s_lshl_b32 s%d, s%d, 7' % (s_qbase, s_jj))
    p('s_mul_i32 s%d, s%d, 98304' % (s_t0, s_th))
    p('s_add_u32 s%d, s%d, s%d' % (s_wbase, s_qbase, s_t0))
    p('s_add_u32 s%d, s%d, 1' % (s_t0, s_hp))
    p('s_lshl_b32 s%d, s%d, 10' % (s_t0, s_t0))
    p('s_add_u32 s%d, s%d, s%d' % (s_wbase, s_wbase, s_t0))
    p('s_lshl_b32 s%d, s%d, 12' % (s_m0x, s_w))
    p('s_lshl_b32 s%d, s%d, 13' % (s_m0w, s_hp))
    p('s_lshl_b32 s%d, s%d, 12' % (s_t0, s_th))
    p('s_add_u32 s%d, s%d, s%d' % (s_m0w, s_m0w, s_t0))
    p('s_add_u32 s%d, s%d, 16384' % (s_m0w, s_m0w))
    p('s_lshl_b32 s%d, s%d, 11' % (s_m0q, s_w))
    p('s_mul_i32 s%d, s%d, 49152' % (s_t0, s_w))
    p('s_add_u32 s%d, s%d, s%d' % (s_t0, s_t0, s_qbase))
    p('s_sub_u32 s%d, s%d, s%d' % (s_qadj, s_wbase, s_t0))

    def chunk_offsets(n, dx, dw):
        p('s_add_u32 s%d, s%d, %d' % (s_t0, s_rot, korder(n))); p('s_and_b32 s%d, s%d, 7' % (s_t0, s_t0))
        p('s_lshl_b32 s%d, s%d, 7' % (s_t1, s_t0)); p('s_add_u32 s%d, s%d, s%d' % (dx, s_xbase, s_t1))
        p('s_mul_i32 s%d, s%d, 196608' % (s_t1, s_t0)); p('s_add_u32 s%d, s%d, s%d' % (dw, s_wbase, s_t1))
    def dma_chunk_ops(n):
        slot = (n % 4) * SLOT
        ox = s_ox if n == 0 else SOFF + 2 * n
        ow = s_ow if n == 0 else SOFF + 2 * n + 1
        ops = []
        def x0():
            p('s_add_u32 m0, s%d, %d' % (s_m0x, slot)); p('s_nop 0')
            vm.op('buffer_load_dwordx4 v%d, s[%d:%d], s%d offen lds' % (vDX, sX, sX + 3, ox))
        ops.append(x0)
        for q in range(1, 4):
            ops.append(lambda q=q: vm.op('buffer_load_dwordx4 v%d, s[%d:%d], s%d offen offset:%d lds' % (vDX + q, sX, sX + 3, ox, q * 1024)))
        def w0():
            p('s_add_u32 m0, s%d, %d' % (s_m0w, slot)); p('s_nop 0')
            vm.op('buffer_load_dwordx4 v%d, s[%d:%d], s%d offen lds' % (vDQ, sW, sW + 3, ow))
        ops.append(w0)
        for q in range(1, 4):
            ops.append(lambda q=q: vm.op('buffer_load_dwordx4 v%d, s[%d:%d], s%d offen offset:%d lds' % (vDQ + q, sW, sW + 3, ow, q * 1024), 'c%d' % n if q == 3 else None))
        return ops
    def dma_wq_ops(hf):
        ops = []
        for c in range(4 * hf, 4 * hf + 4):
            def m(c=c):
                if c == 0: p('s_add_u32 s%d, s%d, 0' % (s_ow, s_q0))
                else: p('s_sub_u32 s%d, s%d, s%d' % (s_ow, SOFF + 2 * c + 1, s_qadj))
                p('s_add_u32 m0, s%d, %d' % (s_m0q, (4 * (c >> 2)) * SLOT + (c & 3) * 8192)); p('s_nop 0')
                vm.op('buffer_load_dwordx4 v%d, s[%d:%d], s%d offen lds' % (vDQ, sW, sW + 3, s_ow))
            ops.append(m)
            ops.append(lambda c=c: vm.op('buffer_load_dwordx4 v%d, s[%d:%d], s%d offen offset:1024 lds' % (vDQ + 1, sW, sW + 3, s_ow), 'wq%d' % hf if (c & 3) == 3 else None))
        return ops

    chunk_offsets(0, s_ox, s_ow)
    p('s_sub_u32 s%d, s%d, s%d' % (s_q0, s_ow, s_qadj))
    p('s_waitcnt lgkmcnt(0)')
    srd(p, sX, KA + 0, 2048 * 1024)
    srd(p, sW, KA + (2 if br == 0 else 8), 512 * 3072)
    stamp(p, 20)
    for f in dma_chunk_ops(0): f()
    if cfg.codepf:
        p('s_getpc_b64 s[%d:%d]' % (s_t2x, s_t2x + 1))
        p.label('L_pc%s' % L)
        p('s_sub_u32 s%d, s%d, L_pc%s-%s' % (s_t2x, s_t2x, L, KNAME)); p('s_subb_u32 s%d, s%d, 0' % (s_t2x + 1, s_t2x + 1))
        p('s_lshr_b32 s%d, s%d, 3' % (s_t0, s_b)); p('s_lshl_b32 s%d, s%d, 2' % (s_t0, s_t0)); p('s_add_u32 s%d, s%d, s%d' % (s_t0, s_t0, s_w)); p('s_lshl_b32 s%d, s%d, 9' % (s_t0, s_t0))
        p('v_lshlrev_b32 v27, 7, v%d' % v_lane); p('v_and_b32 v27, 0x1ff, v27')
        p('v_add_u32 v27, s%d, v27' % s_t0)
        p('v_min_u32 v27, L_end-%s, v27' % KNAME)
        p('v_mov_b32 v29, s%d' % (s_t2x + 1))
        p('v_add_co_u32 v28, vcc, s%d, v27' % s_t2x); p('v_addc_co_u32 v29, vcc, 0, v29, vcc')
        p('s_mov_b64 exec, 15')
        vm.op('global_load_dword v239, v[28:29], off')
        p('s_mov_b64 exec, -1')
    srd(p, sWS, KA + 18, WS_SIZE)
    if br == 0: srd(p, sMISC, KA + 14, 1024)
    else:
        srd(p, sMISC, KA + 10, 32 * 512)
        p('s_lshl_b32 s%d, s%d, 11' % (s_t0, s_jj)); p('s_lshl_b32 s%d, s%d, 10' % (s_t1, s_hp)); p('s_add_u32 s%d, s%d, s%d' % (s_t0, s_t0, s_t1))
        p('s_lshl_b32 s%d, s%d, 10' % (s_t1, s_w)); p('s_add_u32 m0, s%d, %d' % (s_t1, 4 * SLOT))
        p('v_lshlrev_b32 v27, 4, v%d' % v_lane)
        vm.op('buffer_load_dwordx4 v27, s[%d:%d], s%d offen lds' % (sMISC, sMISC + 3, s_t0), 'wphi')
    p('v_mov_b32 v28, 0')
    vm.op('buffer_load_dword v%d, v28, s[%d:%d], 0 offen sc1' % (vT, sWS, sWS + 3), 'epoch')
    srd(p, sWOA, KA + 4, 512 * 1024)
    srd(p, sWOB, KA + 12, 512 * 1024)
    srd(p, sOUT, KA + 16, 2048 * 1024)
    if cfg.debug or cfg.stamps: srd(p, sDBG, KA + 18, 0x8000000)
    for n in range(1, 8): chunk_offsets(n, SOFF + 2 * n, SOFF + 2 * n + 1)
    if cfg.pretouch:
        p('s_lshl_b32 s%d, s%d, 18' % (s_t0, s_jj)); p('s_add_u32 s%d, s%d, %d' % (s_t0, s_t0, WS_INB + br * 0x200000))
        vm.op('buffer_load_dword v232, v28, s[%d:%d], s%d offen' % (sWS, sWS + 3, s_t0))
        p('s_lshl_b32 s%d, s%d, 18' % (s_t0, s_i)); p('s_add_u32 s%d, s%d, %d' % (s_t0, s_t0, WS_O))
        vm.op('buffer_load_dword v233, v28, s[%d:%d], s%d offen' % (sWS, sWS + 3, s_t0))
        p('s_lshl_b32 s%d, s%d, 17' % (s_t0, s_tb)); p('s_add_u32 s%d, s%d, %d' % (s_t0, s_t0, WS_O))
        vm.op('buffer_load_dword v234, v28, s[%d:%d], s%d offen' % (sWS, sWS + 3, s_t0))
        vm.op('buffer_load_dword v235, v28, s[%d:%d], 0 offen' % (sWOA, sWOA + 3))
        vm.op('buffer_load_dword v236, v28, s[%d:%d], 0 offen' % (sWOB, sWOB + 3))
        p('s_lshl_b32 s%d, s%d, 16' % (s_t0, s_tb))
        vm.op('buffer_load_dword v237, v28, s[%d:%d], s%d offen' % (sOUT, sOUT + 3, s_t0))
    wo_setup(p)
    p('v_and_b32 v27, 31, v%d' % v_lane)
    p('v_lshrrev_b32 v28, 5, v%d' % v_lane)
    p('v_lshrrev_b32 v29, 1, v27'); p('v_and_b32 v29, 7, v29'); p('v_xor_b32 v29, v28, v29')
    p('s_lshl_b32 s%d, s%d, 13' % (s_t0, s_th))
    p('v_lshlrev_b32 v30, 7, v27'); p('v_add_u32 v30, s%d, v30' % s_t0)
    for ks in range(4):
        p('v_xor_b32 v31, %d, v29' % (2 * ks)); p('v_lshl_add_u32 v%d, v31, 4, v30' % (vXA + ks))
        p('v_add_u32 v%d, 0x10000, v%d' % (vXA + 4 + ks, vXA + ks))
    p('v_lshrrev_b32 v27, 2, v%d' % v_lane); p('v_and_b32 v27, 3, v27')
    p('v_lshl_add_u32 v29, v28, 3, v27')
    p('v_lshlrev_b32 v29, 7, v29')
    p('v_lshrrev_b32 v30, 1, v27'); p('v_xor_b32 v30, s%d, v30' % s_hp); p('v_lshl_add_u32 v29, v30, 6, v29')
    p('v_lshrrev_b32 v30, 4, v%d' % v_lane); p('v_xor_b32 v30, s%d, v30' % s_th); p('v_and_b32 v30, 1, v30'); p('v_lshl_add_u32 v29, v30, 5, v29')
    p('v_and_b32 v30, 3, v%d' % v_lane); p('v_lshl_add_u32 v%d, v30, 3, v29' % vWA)
    p('v_add_u32 v%d, 0x10000, v%d' % (vWA + 1, vWA)); p('v_add_u32 v%d, 0x20000, v%d' % (vWA + 2, vWA))
    p('v_mov_b32 v%d, 0x3f803f80' % vONES)
    p('s_mov_b32 s%d, 0xffff0000' % s_mask16); p('s_mov_b32 s%d, 0xffff0000' % (s_mask16 + 1))
    p('s_mov_b32 s%d, 0x3fb8aa3b' % s_log2e); p('s_mov_b32 s%d, 0x3fb8aa3b' % (s_log2e + 1))
    p('s_mov_b32 s%d, 0x358637bd' % s_eps); p('s_mov_b32 s%d, 0x358637bd' % (s_eps + 1))
    if br == 1:
        p('v_and_b32 v27, 31, v%d' % v_lane)
        p('v_lshrrev_b32 v28, 5, v%d' % v_lane)
        p('v_bfe_u32 v29, v27, 2, 1')
        p('v_cmp_eq_u32 vcc, v28, v29')
        p('v_bfe_u32 v29, v27, 3, 1'); p('v_and_b32 v30, 3, v27'); p('v_lshl_add_u32 v29, v29, 2, v30')
        p('v_and_b32 v30, 1, v29'); p('v_lshlrev_b32 v30, 4, v30'); p('v_mov_b32 v31, 0x3f80'); p('v_lshlrev_b32 v30, v30, v31')
        p('v_cndmask_b32 v30, 0, v30, vcc')
        p('v_lshrrev_b32 v29, 1, v29')
        p('v_bfe_u32 v28, v27, 4, 1')
        p('v_lshl_add_u32 v29, v28, 2, v29')
        for q in range(8):
            p('v_cmp_eq_u32 vcc, %d, v29' % q)
            p('v_cndmask_b32 v%d, 0, v30, vcc' % (vSEL + q))
    p('s_mov_b32 s%d, 0xaaaaaaaa' % s_odd); p('s_mov_b32 s%d, 0xaaaaaaaa' % (s_odd + 1))
    if br == 1:
        p('v_lshrrev_b32 v27, 5, v%d' % v_lane); p('v_lshlrev_b32 v27, 2, v27')
        p('v_bfe_u32 v28, v%d, 2, 2' % v_lane); p('v_add_u32 v27, v27, v28'); p('v_lshlrev_b32 v27, 5, v27')
        p('v_bfe_u32 v28, v%d, 1, 1' % v_lane); p('v_lshl_add_u32 v27, v28, 3, v27')
        p('v_bfe_u32 v28, v%d, 4, 1' % v_lane); p('v_lshl_add_u32 v27, v28, 4, v27')
        p('s_lshl_b32 s%d, s%d, 10' % (s_t0, s_w)); p('s_add_u32 s%d, s%d, %d' % (s_t0, s_t0, 4 * SLOT))
        p('s_lshl_b32 s%d, s%d, 9' % (s_t1, s_th)); p('s_add_u32 s%d, s%d, s%d' % (s_t0, s_t0, s_t1))
        p('v_add_u32 v27, s%d, v27' % s_t0); p('v_xor_b32 v29, 512, v27')
        p('v_bfe_u32 v28, v%d, 2, 1' % v_lane); p('v_lshlrev_b32 v28, 31, v28'); p('v_lshrrev_b32 v30, 16, v28'); p('v_or_b32 v28, v28, v30')
    stamp(p, 21)
    for f in dma_chunk_ops(1): f()
    if br == 1:
        vm.wait('wphi')
        for u in range(2):
            for rd in range(2):
                p('ds_read_b64_tr_b16 v[%d:%d], v%d offset:%d' % (vWP + 4 * u + 2 * rd, vWP + 4 * u + 2 * rd + 1, 27 if u == 0 else 29, rd * 8 * 32))
        p('s_waitcnt lgkmcnt(0)')
        for q in range(8): p('v_xor_b32 v%d, v%d, v28' % (vWP + q, vWP + q))
    return p, vm, dma_chunk_ops, dma_wq_ops

def make_tag(p, vm):
    vm.wait('epoch')
    p('v_readfirstlane_b32 s%d, v%d' % (s_T, vT))
    p('s_mul_i32 s%d, s%d, 0x9e3779b1' % (s_T, s_T)); p('s_add_u32 s%d, s%d, 0x7f4a7c15' % (s_T, s_T))
    p('v_mov_b32 v%d, s%d' % (vT, s_T))

def emit(p, item):
    if callable(item): item()
    else: p(item)

def merge(p, main, side, every, start=0):
    side = list(side); k = 0
    for idx, m in enumerate(main):
        emit(p, m)
        if idx >= start and (idx - start) % every == every - 1 and side:
            emit(p, side.pop(0))
    for x in side: emit(p, x)

class Rec:
    def __init__(self): self.l = []
    def __call__(self, t, tag=None):
        for line in t.split('\n'):
            if line.strip(): self.l.append(line.strip())

def xf(s, blk): return ar((s * 2 + blk) * 4, 4)

def pass1(p, vm, br, dma_chunk_ops, dma_wq_ops, extra_ops):
    def reads(s):
        c, ks = s >> 2, s & 3; slot = c % 4; st = slot_set(slot); im = slot_imm(slot); buf = s % 3
        ops = []
        wf = vWF + 8 * buf
        for part in range(2):
            for rd in range(2):
                ops.append('ds_read_b64_tr_b16 v[%d:%d], v%d offset:%d' % (wf + 4 * part + 2 * rd, wf + 4 * part + 2 * rd + 1, vWA + st, im + 16384 + part * 8192 + (16 * ks + 4 * rd) * 128))
        for blk in range(2):
            ops.append('ds_read_b128 %s, v%d offset:%d' % (xf(s, blk), vXA + st * 4 + ks, im + blk * 4096))
        return ops
    def mfmas(s):
        wf = vWF + 8 * (s % 3); ops = []
        for blk in range(2):
            c = '0' if s == 0 else vr(vK[blk], 16)
            if br == 1: ops.append('v_mfma_f32_32x32x16_bf16 %s, %s, %s, %s' % (vr(vK[blk], 16), vr(wf, 4), xf(s, blk), c))
            else:       ops.append('v_mfma_f32_32x32x16_bf16 %s, %s, %s, %s' % (vr(vK[blk], 16), xf(s, blk), vr(wf, 4), c))
            c = '0' if s == 0 else vr(vV[blk], 16)
            ops.append('v_mfma_f32_32x32x16_bf16 %s, %s, %s, %s' % (vr(vV[blk], 16), xf(s, blk), vr(wf + 4, 4), c))
        return ops
    pend = []
    vm.wait('c0'); p('s_barrier')
    stamp(p, 1)
    pend += extra_ops[0]
    for o in reads(0): p(o)
    for o in reads(1): p(o)
    for s in range(32):
        nxt = s + 2
        p('s_waitcnt lgkmcnt(%d)' % (6 if s < 31 else 0))
        M = mfmas(s)
        R = reads(nxt) if nxt < 32 else []
        p(M[0])
        if nxt < 32 and nxt % 4 == 0:
            m = nxt // 4
            vm.wait('c%d' % m); p('s_barrier')
            if cfg.stamps == 1 and cfg.fine: stamp(p, 30 + m)
            pend += extra_ops[m]
        def take(n):
            for _ in range(n):
                if pend: pend.pop(0)()
        for k in range(4):
            if k > 0: p(M[k])
            for o in R[(k * 6) // 4:((k + 1) * 6) // 4]: p(o)
            if k % 2 == 1 or len(pend) > 8: take(1)
    while pend: pend.pop(0)()

def pass2(p, vm, sched):
    RA = 3
    def reads(s):
        c, ks = s >> 2, s & 3; slot = 4 * (c >> 2); st = slot_set(slot); im = slot_imm(slot); wf = vWF + 4 * (s % 4)
        return ['ds_read_b64_tr_b16 v[%d:%d], v%d offset:%d' % (wf + 2 * rd, wf + 2 * rd + 1, vWA + st, im + (c & 3) * 8192 + (16 * ks + 4 * rd) * 128) for rd in range(2)]
    for s in range(RA):
        for o in reads(s): p(o)
    for s in range(32):
        out = min(RA - 1, 31 - s)
        p('s_waitcnt lgkmcnt(%d)' % (2 * out))
        wf = vWF + 4 * (s % 4)
        if ('bar', s) in sched: p('s_barrier')
        if cfg.fine == 2 and s % 4 == 0 and s > 0:
            stamp(p, 40 + s // 4);
        items = list(sched.get(s, []))
        h = (len(items) + 1) // 2
        for blk in range(2):
            c = '0' if s == 0 else vr(vQ[blk], 16)
            p('v_mfma_f32_32x32x16_bf16 %s, %s, %s, %s' % (vr(vQ[blk], 16), vr(wf, 4), xf(s, blk), c))
            if blk == 0 and s + RA < 32:
                for o in reads(s + RA): p(o)
            for it in (items[:h] if blk == 0 else items[h:]): emit(p, it)

def dump_regs(p, vm, base_reg, n, slot_index):
    p('s_lshl_b32 s%d, s%d, 2' % (s_t0, s_b)); p('s_add_u32 s%d, s%d, s%d' % (s_t0, s_t0, s_w))
    p('s_mul_i32 s%d, s%d, %d' % (s_t0, s_t0, n * 256)); p('s_add_u32 s%d, s%d, %d' % (s_t0, s_t0, WS_DBG + slot_index * 0x1000000))
    p('v_lshlrev_b32 v27, 4, v%d' % v_lane)
    for r in range(0, n, 4):
        vm.op('buffer_store_dwordx4 %s, v27, s[%d:%d], s%d offen' % (vr(base_reg + r, 4), sDBG, sDBG + 3, s_t0))
        p('s_add_u32 s%d, s%d, 1024' % (s_t0, s_t0))
    vm.wait_all()

def build():
    top = Prog()
    top('s_cmp_ge_u32 s2, 256')
    top('s_cbranch_scc1 L_end')
    top('s_load_dwordx16 s[64:79], s[0:1], 0')
    top('s_load_dwordx2 s[80:81], s[0:1], 64')
    top('s_load_dwordx2 s[82:83], s[0:1], 80')
    top('s_mov_b32 s%d, s2' % s_b)
    top('s_and_b32 s%d, s2, 7' % s_t0)
    top('s_lshr_b32 s%d, s2, 3' % s_t1)
    if cfg.maprow == 0:
        top('s_mov_b32 s%d, s%d' % (s_jj, s_t0))
        top('s_lshr_b32 s%d, s%d, 1' % (s_i, s_t1))
        top('s_and_b32 s%d, s%d, 1' % (s_t2, s_t1))
        top('s_lshl_b32 s%d, s%d, 2' % (s_rot, s_t2)); top('s_add_u32 s%d, s%d, s%d' % (s_rot, s_rot, s_i)); top('s_and_b32 s%d, s%d, 7' % (s_rot, s_rot))
    else:
        top('s_and_b32 s%d, s%d, 1' % (s_i, s_t0)); top('s_lshl_b32 s%d, s%d, 3' % (s_i, s_i)); top('s_and_b32 s%d, s%d, 7' % (s_t2, s_t1)); top('s_add_u32 s%d, s%d, s%d' % (s_i, s_i, s_t2))
        top('s_lshr_b32 s%d, s%d, 1' % (s_t3, s_t0)); top('s_lshl_b32 s%d, s%d, 2' % (s_t3, s_t3)); top('s_lshr_b32 s%d, s%d, 3' % (s_t2, s_t1)); top('s_add_u32 s%d, s%d, s%d' % (s_t3, s_t3, s_t2))
        top('s_lshr_b32 s%d, s%d, 1' % (s_jj, s_t3))
        top('s_lshl_b32 s%d, s%d, 1' % (s_rot, s_t3)); top('s_add_u32 s%d, s%d, s%d' % (s_rot, s_rot, s_i)); top('s_and_b32 s%d, s%d, 7' % (s_rot, s_rot))
        top('s_and_b32 s%d, s%d, 1' % (s_t2, s_t3))
    if not cfg.rot: top('s_mov_b32 s%d, 0' % s_rot)
    top('s_lshl_b32 s%d, s%d, 2' % (s_tb, s_t0)); top('s_and_b32 s%d, s%d, 3' % (s_t3, s_t1)); top('s_add_u32 s%d, s%d, s%d' % (s_tb, s_tb, s_t3))
    top('s_lshr_b32 s%d, s%d, 2' % (s_cb, s_t1))
    top('s_cmp_eq_u32 s%d, 0' % s_t2)
    top('s_cbranch_scc0 L_pathB')
    paths = []
    for br in range(2):
        p, vm, dco, dwq = gen_path(br)
        body(p, vm, br, dco, dwq)
        added = p.fix_hazards()
        errs = p.check_waits()
        if errs:
            for e in errs[:20]: print('WAITERR', e, file=sys.stderr)
            raise SystemExit('wait check failed')
        print('path', 'AB'[br], 'instructions:', sum(1 for i in p.ins if i.op), 'nop states added:', added, file=sys.stderr)
        paths.append(p)
    top.fix_hazards()
    hdr = open(os.path.join(os.path.dirname(os.path.abspath(__file__)), 'header.txt')).read()
    s = hdr
    s += '; @launch grid=(256,1,1) block=(256,1,1) lds=163840\n'
    s += '.amdgcn_target "amdgcn-amd-amdhsa--gfx950"\n.text\n.globl %s\n.p2align 8\n.type %s,@function\n%s:\n' % (KNAME, KNAME, KNAME)
    s += top.text()
    for p in paths: s += p.text()
    s += 'L_end:\n    s_endpgm\n'
    s += '.section .rodata,"a"\n.p2align 6\n.amdhsa_kernel %s\n  .amdhsa_next_free_vgpr 512\n  .amdhsa_next_free_sgpr 102\n  .amdhsa_accum_offset 256\n  .amdhsa_group_segment_fixed_size 0\n  .amdhsa_kernarg_size 88\n  .amdhsa_user_sgpr_count 2\n  .amdhsa_user_sgpr_kernarg_segment_ptr 1\n  .amdhsa_system_sgpr_workgroup_id_x 1\n.end_amdhsa_kernel\n' % KNAME
    return s


MF = 'v_mfma_f32_32x32x16_bf16'
vDO = 10
vOA = 2
vEW = 4
vER = 8
vOG = 18
s_rc, s_r4 = 7, 3

def cvt(p, d, a, b): p('v_cvt_pk_bf16_f32 v%d, v%d, v%d' % (d, a, b))

def wo_setup(p):
    p('v_lshrrev_b32 v27, 3, v%d' % v_lane); p('v_and_b32 v28, 7, v%d' % v_lane)
    p('v_bfe_u32 v29, v%d, 4, 1' % v_lane); p('v_lshlrev_b32 v29, 2, v29'); p('v_xor_b32 v28, v28, v29'); p('v_lshlrev_b32 v28, 4, v28')
    p('s_lshl_b32 s%d, s%d, 7' % (s_t0, s_cb)); p('v_add_u32 v28, s%d, v28' % s_t0)
    p('v_lshl_add_u32 v%d, v27, 10, v28' % vDO)
    for q in range(1, 4): p('v_add_u32 v%d, %d, v%d' % (vDO + q, 7 * q * 1024, vDO))
    p('s_lshl_b32 s%d, s%d, 16' % (s_wobase, s_w)); p('s_lshl_b32 s%d, s%d, 13' % (s_m0o, s_w))
    if cfg.worot:
        p('s_and_b32 s%d, s%d, 3' % (s_r, s_tb))
        p('s_lshr_b32 s%d, s%d, 1' % (s_t0, s_r)); p('s_lshl_b32 s%d, s%d, 18' % (s_t0, s_t0)); p('s_add_u32 s%d, s%d, s%d' % (s_wobase, s_wobase, s_t0))
        p('s_bitcmp1_b32 s%d, 0' % s_r)
        p('s_cselect_b32 s%d, s%d, s%d' % (s_t0, sWOB, sWOA)); p('s_cselect_b32 s%d, s%d, s%d' % (s_t1, sWOA, sWOB))
        p('s_cselect_b32 s%d, s%d, s%d' % (s_t2x, sWOB + 1, sWOA + 1)); p('s_cselect_b32 s%d, s%d, s%d' % (s_t3x, sWOA + 1, sWOB + 1))
        p('s_mov_b32 s%d, s%d' % (sWOA, s_t0)); p('s_mov_b32 s%d, s%d' % (sWOB, s_t1)); p('s_mov_b32 s%d, s%d' % (sWOA + 1, s_t2x)); p('s_mov_b32 s%d, s%d' % (sWOB + 1, s_t3x))
    else:
        p('s_mov_b32 s%d, 0' % s_r)

def dma_wo_ops(p, vm, part):
    srd_ = sWOA if part < 2 else sWOB
    ops = []
    for grp in range(2):
        def m(grp=grp):
            if part & 1: p('s_xor_b32 s%d, s%d, 262144' % (s_ow, s_wobase))
            else: p('s_mov_b32 s%d, s%d' % (s_ow, s_wobase))
            if grp: p('s_add_u32 s%d, s%d, 32768' % (s_ow, s_ow))
            p('s_add_u32 m0, s%d, %d' % (s_m0o, (part + 1) * SLOT + grp * 4096)); p('s_nop 0')
            vm.op('buffer_load_dwordx4 v%d, s[%d:%d], s%d offen lds' % (vDO, srd_, srd_ + 3, s_ow))
        ops.append(m)
        for q in range(1, 4):
            ops.append(lambda q=q, grp=grp: vm.op('buffer_load_dwordx4 v%d, s[%d:%d], s%d offen offset:%d lds' % (vDO + q, srd_, srd_ + 3, s_ow, q * 1024), 'wo%d' % part if (q == 3 and grp == 1) else None))
    return ops

def softmax16(p, P, F, tmp):
    m, S = tmp, tmp + 2
    p('v_max3_f32 v%d, v%d, v%d, v%d' % (m, P, P + 1, P + 2))
    p('v_max3_f32 v%d, v%d, v%d, v%d' % (m + 1, P + 3, P + 4, P + 5))
    p('v_max3_f32 v%d, v%d, v%d, v%d' % (m, m, P + 6, P + 7))
    p('v_max3_f32 v%d, v%d, v%d, v%d' % (m + 1, m + 1, P + 8, P + 9))
    p('v_max3_f32 v%d, v%d, v%d, v%d' % (m, m, P + 10, P + 11))
    p('v_max3_f32 v%d, v%d, v%d, v%d' % (m + 1, m + 1, P + 12, P + 13))
    p('v_max3_f32 v%d, v%d, v%d, v%d' % (m, m, P + 14, P + 15))
    p('v_max_f32 v%d, v%d, v%d' % (m, m, m + 1))
    p('v_mul_f32 v%d, s%d, v%d' % (m, s_log2e, m))
    for i in range(8):
        p('v_pk_fma_f32 v[%d:%d], v[%d:%d], s[%d:%d], v[%d:%d] op_sel_hi:[1,1,0] neg_lo:[0,0,1] neg_hi:[0,0,1]' % (P + 2 * i, P + 2 * i + 1, P + 2 * i, P + 2 * i + 1, s_log2e, s_log2e + 1, m, m + 1))
    for i in range(16): p('v_exp_f32 v%d, v%d' % (P + i, P + i))
    p('v_pk_add_f32 v[%d:%d], v[%d:%d], v[%d:%d]' % (S, S + 1, P, P + 1, P + 2, P + 3))
    p('v_pk_add_f32 v[%d:%d], v[%d:%d], v[%d:%d]' % (m, m + 1, P + 4, P + 5, P + 6, P + 7))
    p('v_pk_add_f32 v[%d:%d], v[%d:%d], v[%d:%d]' % (S, S + 1, S, S + 1, P + 8, P + 9))
    p('v_pk_add_f32 v[%d:%d], v[%d:%d], v[%d:%d]' % (m, m + 1, m, m + 1, P + 10, P + 11))
    p('v_pk_add_f32 v[%d:%d], v[%d:%d], v[%d:%d]' % (S, S + 1, S, S + 1, P + 12, P + 13))
    p('v_pk_add_f32 v[%d:%d], v[%d:%d], v[%d:%d]' % (m, m + 1, m, m + 1, P + 14, P + 15))
    p('v_pk_add_f32 v[%d:%d], v[%d:%d], v[%d:%d]' % (S, S + 1, S, S + 1, m, m + 1))
    p('v_add_f32 v%d, v%d, v%d' % (S, S, S + 1))
    p('v_rcp_f32 v%d, v%d' % (S, S))
    for i in range(8):
        p('v_pk_mul_f32 v[%d:%d], v[%d:%d], v[%d:%d] op_sel_hi:[1,0]' % (P + 2 * i, P + 2 * i + 1, P + 2 * i, P + 2 * i + 1, S, S + 1))
    for i in range(8): cvt(p, F + i, P + 2 * i, P + 2 * i + 1)

def phi_elu(p, T, n, F, tmp):
    for base in range(0, n // 2, 4):
        prs = range(base, min(base + 4, n // 2))
        for k, i in enumerate(prs):
            p('v_pk_mul_f32 v[%d:%d], v[%d:%d], s[%d:%d]' % (tmp + 2 * k, tmp + 2 * k + 1, T + 2 * i, T + 2 * i + 1, s_log2e, s_log2e + 1))
        for k, i in enumerate(prs):
            p('v_exp_f32 v%d, v%d clamp' % (tmp + 2 * k, tmp + 2 * k)); p('v_exp_f32 v%d, v%d clamp' % (tmp + 2 * k + 1, tmp + 2 * k + 1))
        for k, i in enumerate(prs):
            p('v_max_f32 v%d, 0, v%d' % (T + 2 * i, T + 2 * i)); p('v_max_f32 v%d, 0, v%d' % (T + 2 * i + 1, T + 2 * i + 1))
        for k, i in enumerate(prs):
            p('v_pk_add_f32 v[%d:%d], v[%d:%d], v[%d:%d]' % (T + 2 * i, T + 2 * i + 1, T + 2 * i, T + 2 * i + 1, tmp + 2 * k, tmp + 2 * k + 1))
        for k, i in enumerate(prs):
            p('v_pk_add_f32 v[%d:%d], v[%d:%d], s[%d:%d]' % (T + 2 * i, T + 2 * i + 1, T + 2 * i, T + 2 * i + 1, s_eps, s_eps + 1))
        for k, i in enumerate(prs): cvt(p, F + i, T + 2 * i, T + 2 * i + 1)

ACC = [96, 112]
def vprep(p, VB0, VB1):
    for blk in range(2):
        for i in range(8): cvt(p, VB0 + 8 * blk + i, vV[blk] + 2 * i, vV[blk] + 2 * i + 1)
    for blk in range(2):
        for i in range(8): p('v_cndmask_b32_e64 v%d, v%d, v%d, s[%d:%d]' % (VB1 + 8 * blk + i, vONES, VB0 + 8 * blk + i, s_mask16, s_mask16 + 1))
    for blk in range(2):
        for i in range(8): p('v_cndmask_b32_e64 v%d, v%d, v%d, s[%d:%d]' % (VB0 + 8 * blk + i, VB0 + 8 * blk + i, vONES, s_mask16, s_mask16 + 1))

def insert_at(main, ins):
    out = []; ins = sorted(ins, key=lambda x: x[0]); k = 0
    for idx, m in enumerate(main):
        while k < len(ins) and ins[k][0] <= idx: out.append(ins[k][1]); k += 1
        out.append(m)
    out += [x[1] for x in ins[k:]]
    return out

UNITS = [(0, 0), (0, 1), (1, 0), (1, 1)]
ST = 184
def feat_k_B(p, side):
    KB, PB, G = 168, 184, 128
    VB0, VB1 = 32, 48
    TB = [64, 80]
    VB = [VB0, VB1]
    r = Rec()
    for un, (blk, u) in enumerate(UNITS):
        for i in range(4): cvt(r, KB + 4 * un + i, vK[blk] + 8 * u + 2 * i, vK[blk] + 8 * u + 2 * i + 1)
    head = list(r.l)
    r = Rec(); vprep(r, VB0, VB1); vp = list(r.l)
    PM = ['%s %s, %s, %s, 0' % (MF, vr(PB + 16 * un, 16), vr(vWP + 4 * u, 4), vr(KB + 4 * un, 4)) for un, (blk, u) in enumerate(UNITS)]
    stream = head[:6] + [PM[0]] + head[6:10] + [PM[1]] + head[10:14] + [PM[2]] + head[14:16] + vp[:4] + [PM[3]] + vp[4:]
    def TA(un): return '%s %s, %s, %s, 0' % (MF, vr(TB[un % 2], 16), vr(KB + 8 * (un % 2), 4), vr(vSEL, 4))
    def TBm(un): return '%s %s, %s, %s, %s' % (MF, vr(TB[un % 2], 16), vr(KB + 8 * (un % 2) + 4, 4), vr(vSEL + 4, 4), vr(TB[un % 2], 16))
    def CV(un):
        q = Rec()
        for i in range(8): cvt(q, G + i, TB[un % 2] + 2 * i, TB[un % 2] + 2 * i + 1)
        return q.l
    def AA(un):
        blk, u = UNITS[un]; c = '0' if blk == 0 else vr(ACC[u], 16)
        return '%s %s, %s, %s, %s' % (MF, vr(ACC[u], 16), vr(G, 4), vr(VB[u] + 8 * blk, 4), c)
    def AB(un):
        blk, u = UNITS[un]
        return '%s %s, %s, %s, %s' % (MF, vr(ACC[u], 16), vr(G + 4, 4), vr(VB[u] + 8 * blk + 4, 4), vr(ACC[u], 16))
    for un in range(4):
        q = Rec(); softmax16(q, PB + 16 * un, KB + 8 * (un % 2), 136); sm = q.l
        ins = []
        if un >= 1:
            ins += [(2, TA(un - 1)), (10, TBm(un - 1))]
            ins += [(34 + k, c) for k, c in enumerate(CV(un - 1))]
            ins += [(46, AA(un - 1)), (54, AB(un - 1))]
        stream += insert_at(sm, ins)
    tags = ['v_mov_b32 v%d, v%d' % (ST + 4 * k + 3, vT) for k in range(4)]
    q = Rec(); exchange_addr(q); ad = q.l
    stream += ['s_nop 1', TA(3)] + tags + ad[:4] + [TBm(3)] + ad[4:] + ['s_nop 3'] + CV(3) + ['s_nop 1', AA(3), AB(3)]
    merge(p, stream, side, 14, start=4)

def feat_k_A(p, side):
    PK, VB0, VB1 = 168, 200, 216
    r = Rec()
    for blk in range(2): phi_elu(r, vK[blk], 16, PK + 8 * blk, 184)
    vprep(r, VB0, VB1)
    VB = [VB0, VB1]
    for k in range(2): r('v_mov_b32 v%d, v%d' % (ST + 4 * k + 3, vT))
    exchange_addr(r)
    for blk in range(2):
        for u in range(2):
            c = '0' if blk == 0 else vr(ACC[u], 16)
            r('%s %s, %s, %s, %s' % (MF, vr(ACC[u], 16), vr(PK + 8 * blk, 4), vr(VB[u] + 8 * blk, 4), c))
            r('%s %s, %s, %s, %s' % (MF, vr(ACC[u], 16), vr(PK + 8 * blk + 4, 4), vr(VB[u] + 8 * blk + 4, 4), vr(ACC[u], 16)))
    merge(p, r.l, side, 10, start=2)

FQ = 32
def feat_q_B(p, side, late):
    KB, PB = 168, 184
    r = Rec()
    for un, (blk, u) in enumerate(UNITS):
        for i in range(4): cvt(r, KB + 4 * un + i, vQ[blk] + 8 * u + 2 * i, vQ[blk] + 8 * u + 2 * i + 1)
    head = list(r.l)
    PM = ['%s %s, %s, %s, 0' % (MF, vr(PB + 16 * un, 16), vr(vWP + 4 * u, 4), vr(KB + 4 * un, 4)) for un, (blk, u) in enumerate(UNITS)]
    stream = head[:6] + [PM[0]] + head[6:10] + [PM[1]] + head[10:14] + [PM[2]] + head[14:16] + ['s_nop 3', PM[3]]
    for un in range(4):
        q = Rec(); softmax16(q, PB + 16 * un, FQ + 8 * un, 136); stream += q.l
    n = len(stream)
    stream = insert_at(stream, [(n - cfg.h2lead + k, x) for k, x in enumerate(late)])
    merge(p, stream, side, 9, start=2)

def feat_q_A(p, side, late):
    r = Rec()
    for blk in range(2):
        for u in range(2): phi_elu(r, vQ[blk] + 8 * u, 8, FQ + 4 * (2 * blk + u), 184)
    merge(p, r.l, side, 6, start=1)
    for x in late: emit(p, x)

vEXW, vEXR, vH1S = 28, 29, 30
def exchange_addr(p):
    p('v_lshlrev_b32 v27, 4, v%d' % v_lane)
    p('s_lshl_b32 s%d, s%d, 12' % (s_t0, s_w)); p('s_add_u32 s%d, s%d, %d' % (s_t0, s_t0, 3 * SLOT))
    p('v_add_u32 v%d, s%d, v27' % (vEXW, s_t0))
    p('s_xor_b32 s%d, s%d, 4096' % (s_t0, s_t0))
    p('v_xor_b32 v27, 256, v27')
    p('v_add_u32 v%d, s%d, v27' % (vEXR, s_t0))
    p('v_lshrrev_b32 v%d, 4, v%d' % (vH1S, v_lane)); p('v_lshlrev_b32 v%d, 12, v%d' % (vH1S, vH1S)); p('v_and_b32 v27, 15, v%d' % v_lane); p('v_lshl_add_u32 v%d, v27, 4, v%d' % (vH1S, vH1S))

TZ = 200
def exchange(p, vm, br):
    nq = 4 if br == 1 else 2
    nh = 2 * nq
    RC = 216
    src1 = ACC[1] + (0 if br == 1 else 8)
    for q in range(nq): p('ds_write_b128 v%d, %s offset:%d' % (vEXW, vr(src1 + 4 * q, 4), q * 1024))
    p('s_lshl_b32 s%d, s%d, 2' % (s_head, s_jj)); p('s_add_u32 s%d, s%d, s%d' % (s_head, s_head, s_w)); p('s_add_u32 s%d, s%d, %d' % (s_head, s_head, 32 * br))
    p('s_lshl_b32 s%d, s%d, 16' % (s_t2, s_head)); p('s_lshl_b32 s%d, s%d, 8' % (s_t1, s_i)); p('s_add_u32 s%d, s%d, s%d' % (s_t2, s_t2, s_t1)); p('s_add_u32 s%d, s%d, %d' % (s_t2, s_t2, WS_INB))
    vm.wait('wq1', ' lgkmcnt(0)')
    stamp(p, 18)
    p('s_barrier')
    stamp(p, 19)
    for q in range(nq): p('ds_read_b128 %s, v%d offset:%d' % (vr(RC + 4 * q, 4), vEXR, q * 1024))
    pos = lambda r: ST + 4 * (r >> 1) + (r & 1)
    for q in range(nq):
        p('s_waitcnt lgkmcnt(%d)' % (nq - 1 - q))
        for r in range(4 * q, 4 * q + 4):
            d = pos(r) if r < nh else TZ + r - nh
            p('v_add_f32 v%d, v%d, v%d' % (d, ACC[0] + r, RC + r))
    nd = 8 if br == 1 else 4
    for r in range(nd): p('v_permlane16_swap_b32 v%d, v%d' % (pos(r), TZ + r))
    for m in range(nd // 2): p('v_cndmask_b32_e64 v%d, v%d, v%d, s[%d:%d]' % (ST + 4 * m + 2, TZ + 2 * m, TZ + 2 * m + 1, s_odd, s_odd + 1))

def hop1_store_ops(p, vm, br):
    nm = 4 if br == 1 else 2
    ops = []
    for m in range(nm):
        def f(m=m):
            vm.op('buffer_store_dwordx4 %s, v%d, s[%d:%d], s%d offen sc1' % (vr(ST + 4 * m, 4), vH1S, sWS, sWS + 3, s_t2))
            if m < nm - 1: p('s_add_u32 s%d, s%d, 16384' % (s_t2, s_t2))
        ops.append(f)
    return ops

def spin_tail(p, name):
    p('s_cbranch_vccz L_%s_ok' % name)
    p('s_sub_u32 s%d, s%d, 1' % (s_spin, s_spin))
    p('s_cmp_gt_i32 s%d, 0' % s_spin)
    p('s_cbranch_scc1 L_%s' % name)
    p.label('L_%s_ok' % name)

def tagcheck(p, regs, t0, t1):
    regs = list(regs)
    p('v_min_u32 v%d, v%d, v%d' % (t0, regs[0], regs[1])); p('v_max_u32 v%d, v%d, v%d' % (t1, regs[0], regs[1]))
    k = 2
    while k + 1 < len(regs):
        p('v_min3_u32 v%d, v%d, v%d, v%d' % (t0, t0, regs[k], regs[k + 1])); p('v_max3_u32 v%d, v%d, v%d, v%d' % (t1, t1, regs[k], regs[k + 1])); k += 2
    if k < len(regs):
        p('v_min_u32 v%d, v%d, v%d' % (t0, t0, regs[k])); p('v_max_u32 v%d, v%d, v%d' % (t1, t1, regs[k]))
    p('v_xor_b32 v%d, v%d, v%d' % (t0, vT, t0)); p('v_xor_b32 v%d, v%d, v%d' % (t1, vT, t1)); p('v_or_b32 v%d, v%d, v%d' % (t0, t0, t1))
    p('v_cmp_ne_u32 vcc, 0, v%d' % t0)

H1 = 184
s_h1a = 98
def hop1_load_ops(p, vm, br, retry=False):
    ops = []
    def addr():
        p('s_lshl_b32 s%d, s%d, 16' % (s_h1a, s_head)); p('s_lshl_b32 s%d, s%d, 12' % (s_t1, s_i)); p('s_add_u32 s%d, s%d, s%d' % (s_h1a, s_h1a, s_t1)); p('s_add_u32 s%d, s%d, %d' % (s_h1a, s_h1a, WS_INB))
        p('v_lshlrev_b32 v27, 4, v%d' % v_lane)
    if not retry: ops.append(addr)
    for n in range(4):
        ops.append(lambda n=n: vm.op('buffer_load_dwordx4 %s, v27, s[%d:%d], s%d offen offset:%d sc1' % (vr(H1 + 4 * n, 4), sWS, sWS + 3, s_h1a, n * 1024), 'h1l' if n == 3 else None))
    return ops

def hop1_reduce(p, vm, br):
    L = 'AB'[br]; LD = H1
    vm.wait('h1l')
    if br == 0:
        p('s_cmp_ge_u32 s%d, 8' % s_i); p('s_cbranch_scc1 L_h1skip')
    p('s_mov_b32 s%d, %d' % (s_spin, cfg.spin))
    tagcheck(p, [LD + 4 * n + 3 for n in range(4)], 28, 29)
    p('s_cbranch_vccz L_h1%s_ok' % L)
    p.label('L_h1%s' % L)
    for f in hop1_load_ops(p, vm, br, retry=True): f()
    vm.wait_all()
    tagcheck(p, [LD + 4 * n + 3 for n in range(4)], 28, 29)
    spin_tail(p, 'h1%s' % L)
    a, b, z, t = 216, 217, 218, 219
    p('v_add_f32 v%d, v%d, v%d' % (a, LD, LD + 4)); p('v_add_f32 v%d, v%d, v%d' % (b, LD + 1, LD + 5)); p('v_add_f32 v%d, v%d, v%d' % (z, LD + 2, LD + 6))
    for n in range(2, 4):
        p('v_add_f32 v%d, v%d, v%d' % (a, a, LD + 4 * n)); p('v_add_f32 v%d, v%d, v%d' % (b, b, LD + 4 * n + 1)); p('v_add_f32 v%d, v%d, v%d' % (z, z, LD + 4 * n + 2))
    p('v_mov_b32 v%d, v%d' % (t, z))
    p('s_lshl_b32 s%d, s%d, 11' % (s_t0, s_head)); p('s_lshl_b32 s%d, s%d, 7' % (s_t1, s_i)); p('s_add_u32 s%d, s%d, s%d' % (s_t0, s_t0, s_t1)); p('s_add_u32 s%d, s%d, %d' % (s_t0, s_t0, WS_OUTK))
    p('v_permlane32_swap_b32 v%d, v%d' % (a, b))
    p('v_permlane32_swap_b32 v%d, v%d' % (z, t))
    p('v_add_f32 v%d, v%d, v%d' % (a, a, b)); p('v_add_f32 v%d, v%d, v%d' % (z, z, t))
    p('v_lshlrev_b32 v27, 4, v%d' % v_lane)
    p('v_mov_b32 v%d, v%d' % (b, a)); p('v_mov_b32 v%d, v%d' % (t, z))
    p('v_mov_b32 v223, v%d' % vT)
    p('s_nop 0')
    p('v_permlane16_swap_b32 v%d, v%d' % (a, b))
    p('v_permlane16_swap_b32 v%d, v%d' % (z, t))
    p('v_add_f32 v%d, v%d, v%d' % (a, a, b)); p('v_add_f32 v%d, v%d, v%d' % (z, z, t))
    p('v_mov_b32 v%d, v%d' % (b, a))
    p('s_nop 0')
    p('v_mov_b32_dpp v%d, v%d quad_perm:[1,1,1,1] row_mask:0xf bank_mask:0xf' % (t, z))
    p('v_permlane32_swap_b32 v%d, v%d' % (a, b))
    p('v_mov_b32_dpp v%d, v%d quad_perm:[0,0,0,0] row_mask:0xf bank_mask:0xf' % (222, z))
    cvt(p, 220, a, b)
    cvt(p, 222, 222, t)
    p('v_mov_b32_dpp v221, v220 row_ror:8 row_mask:0xf bank_mask:0xf')
    p('s_mov_b32 exec_lo, 0xff'); p('s_mov_b32 exec_hi, 0')
    vm.op('buffer_store_dwordx4 v[220:223], v27, s[%d:%d], s%d offen sc1' % (sWS, sWS + 3, s_t0))
    p('s_mov_b64 exec, -1')
    if br == 0: p.label('L_h1skip')

KVA = 216
H2 = 64
s_h2a, s_h2b = 100, 101
s_hi8 = 98
def hop2_load_ops(p, vm, br, retry=False):
    nm = 4 if br == 1 else 2
    ops = []
    def addr():
        p('s_lshl_b32 s%d, s%d, 11' % (s_h2a, s_head)); p('s_add_u32 s%d, s%d, %d' % (s_h2a, s_h2a, WS_OUTK)); p('s_xor_b32 s%d, s%d, 2048' % (s_h2b, s_h2a))
        p('s_mov_b32 s%d, 0xff00ff00' % s_hi8); p('s_mov_b32 s%d, 0xff00ff00' % (s_hi8 + 1))
    def addr2():
        p('v_lshrrev_b32 v31, 4, v%d' % v_lane); p('v_lshlrev_b32 v31, 7, v31'); p('v_and_b32 v30, 7, v%d' % v_lane); p('v_lshl_add_u32 v31, v30, 4, v31')
    if not retry: ops += [addr, addr2]
    for u in range(2):
        for m in range(nm):
            r = H2 + 16 * u + 4 * m
            ops.append(lambda r=r, u=u, m=m: vm.op('buffer_load_dwordx4 %s, v31, s[%d:%d], s%d offen offset:%d sc1' % (vr(r, 4), sWS, sWS + 3, s_h2a if u == 0 else s_h2b, m * 512), 'h2l' if (u == 1 and m == nm - 1) else None))
    return ops

def hop2_gather(p, vm, br):
    L = 'AB'[br]; nm = 4 if br == 1 else 2
    tags = [H2 + 16 * u + 4 * m + 3 for u in range(2) for m in range(nm)]
    p('s_mov_b32 s%d, %d' % (s_spin, cfg.spin))
    vm.wait('h2l')
    tagcheck(p, tags, 28, 29)
    p('s_cbranch_vccz L_h2%s_ok' % L)
    p.label('L_h2%s' % L)
    for f in hop2_load_ops(p, vm, br, retry=True): f()
    vm.wait_all()
    tagcheck(p, tags, 28, 29)
    spin_tail(p, 'h2%s' % L)
    for u in range(2):
        for m in range(nm): p('v_cndmask_b32_e64 v%d, v%d, v%d, s[%d:%d]' % (KVA + 8 * u + m, H2 + 16 * u + 4 * m, H2 + 16 * u + 4 * m + 1, s_hi8, s_hi8 + 1))
        for m in range(nm): p('v_mov_b32 v%d, v%d' % (KVA + 8 * u + nm + m, H2 + 16 * u + 4 * m + 2))
    for u in range(2):
        for m in range(nm): p('v_permlane16_swap_b32 v%d, v%d' % (KVA + 8 * u + m, KVA + 8 * u + nm + m))

OF = 232
def o_phase(p, vm, br):
    NB = [64, 80, 96, 112]
    for un, (blk, u) in enumerate(UNITS):
        if br == 1:
            p('%s %s, %s, %s, 0' % (MF, vr(NB[un], 16), vr(KVA + 8 * u, 4), vr(FQ + 8 * un, 4)))
            p('%s %s, %s, %s, %s' % (MF, vr(NB[un], 16), vr(KVA + 8 * u + 4, 4), vr(FQ + 8 * un + 4, 4), vr(NB[un], 16)))
        else:
            p('%s %s, %s, %s, 0' % (MF, vr(NB[un], 16), vr(KVA + 8 * u, 4), vr(FQ + 4 * un, 4)))
        if un == 0:
            p('s_lshl_b32 s%d, s%d, 2' % (s_t0, s_i)); p('s_lshl_b32 s%d, s%d, 1' % (s_t1, s_th)); p('s_add_u32 s%d, s%d, s%d' % (s_t0, s_t0, s_t1))
            p('s_lshl_b32 s%d, s%d, 16' % (s_t0, s_t0)); p('s_lshl_b32 s%d, s%d, 10' % (s_t1, s_head)); p('s_add_u32 s%d, s%d, s%d' % (s_t0, s_t0, s_t1)); p('s_add_u32 s%d, s%d, %d' % (s_t0, s_t0, WS_O))
            p('s_xor_b32 s%d, s%d, 1024' % (s_t1, s_t0))
            p('s_add_u32 s%d, s%d, 65536' % (s_t2, s_t0)); p('s_add_u32 s%d, s%d, 65536' % (s_t3, s_t1))
            p('v_lshlrev_b32 v27, 4, v%d' % v_lane)
    soffs = {(0, 0): s_t0, (0, 1): s_t1, (1, 0): s_t2, (1, 1): s_t3}
    for un, (blk, u) in enumerate(UNITS):
        N = NB[un]; num = N; den = N + 8
        p('v_add_f32 v%d, s%d, v%d' % (den, s_eps, den))
        p('v_rcp_f32 v%d, v%d' % (den, den))
        for i in range(4):
            p('v_pk_mul_f32 v[%d:%d], v[%d:%d], v[%d:%d] op_sel_hi:[1,0]' % (num + 2 * i, num + 2 * i + 1, num + 2 * i, num + 2 * i + 1, den, den + 1))
        for i in range(4): cvt(p, OF + 4 * un + i, num + 2 * i, num + 2 * i + 1)
        vm.op('buffer_store_dwordx4 %s, v27, s[%d:%d], s%d offen sc1' % (vr(OF + 4 * un, 4), sWS, sWS + 3, soffs[(blk, u)]), 'ost')
    p('s_lshl_b32 s%d, s%d, 1' % (s_t0, s_i)); p('s_add_u32 s%d, s%d, s%d' % (s_t0, s_t0, s_th)); p('s_lshl_b32 s%d, s%d, 5' % (s_t0, s_t0))
    p('s_lshl_b32 s%d, s%d, 1' % (s_t1, s_jj)); p('s_add_u32 s%d, s%d, s%d' % (s_t0, s_t0, s_t1)); p('s_add_u32 s%d, s%d, s%d' % (s_t0, s_t0, s_hp))
    p('s_add_u32 s%d, s%d, %d' % (s_t0, s_t0, 16 * br)); p('s_lshl_b32 s%d, s%d, 7' % (s_t0, s_t0)); p('s_add_u32 s%d, s%d, %d' % (s_h2a, s_t0, WS_FLAG))

def o_flag(p, vm):
    p('v_mov_b32 v27, 0')
    vm.wait('ost')
    p('s_mov_b64 exec, 1')
    vm.op('buffer_store_dword v%d, v27, s[%d:%d], s%d offen sc1' % (vT, sWS, sWS + 3, s_h2a))
    p('s_mov_b64 exec, -1')

def gate_load_ops(p, vm):
    X, Gw = GX, GW
    def a0():
        p('s_lshl_b32 s%d, s%d, 7' % (s_t0, s_i)); p('s_lshl_b32 s%d, s%d, 4' % (s_t1, s_jj)); p('s_add_u32 s%d, s%d, s%d' % (s_t0, s_t0, s_t1))
        p('s_lshl_b32 s%d, s%d, 2' % (s_t1, s_w)); p('s_add_u32 s%d, s%d, s%d' % (s_t0, s_t0, s_t1))
        p('s_lshl_b32 s%d, s%d, 10' % (s_t2, s_t0))
    def a1():
        p('s_lshr_b32 s%d, s%d, 2' % (s_t3, s_t0)); p('s_lshl_b32 s%d, s%d, 7' % (s_t3, s_t3)); p('s_add_u32 s%d, s%d, %d' % (s_b + 1, s_t3, WS_G))
        p('v_and_b32 v27, 15, v%d' % v_lane); p('v_lshlrev_b32 v27, 4, v27')
    def a2():
        p('v_lshrrev_b32 v28, 4, v%d' % v_lane); p('v_lshl_add_u32 v28, v28, 10, v27')
    ops = [a0, a1, a2]
    for q in range(4):
        ops.append(lambda q=q: vm.op('buffer_load_dwordx4 %s, v28, s[%d:%d], s%d offen offset:%d' % (vr(X + 4 * q, 4), sX, sX + 3, s_t2, q * 256)))
    for q in range(4):
        ops.append(lambda q=q: vm.op('buffer_load_dwordx4 %s, v27, s[%d:%d], 0 offen offset:%d' % (vr(Gw + 4 * q, 4), sMISC, sMISC + 3, q * 256), 'gate' if q == 3 else None))
    return ops

def gate_finish(p, vm):
    X, Gw = GX, GW
    vm.wait('gate')
    acc = 200
    p('v_mov_b32 v%d, 0' % acc); p('v_mov_b32 v%d, 0' % (acc + 1))
    for k in range(16):
        p('v_lshlrev_b32 v202, 16, v%d' % (X + k)); p('v_lshlrev_b32 v203, 16, v%d' % (Gw + k))
        p('v_and_b32 v204, 0xffff0000, v%d' % (X + k)); p('v_and_b32 v205, 0xffff0000, v%d' % (Gw + k))
        p('v_fmac_f32 v%d, v202, v203' % acc); p('v_fmac_f32 v%d, v204, v205' % (acc + 1))
    p('v_add_f32 v%d, v%d, v%d' % (acc, acc, acc + 1))
    for sh in (8, 4, 2, 1):
        p('v_add_f32_dpp v%d, v%d, v%d row_ror:%d row_mask:0xf bank_mask:0xf' % (acc, acc, acc, sh))
    p('v_mul_f32 v%d, s%d, v%d' % (acc, s_log2e, acc))
    p('v_exp_f32_e64 v%d, -v%d' % (acc, acc))
    p('v_add_f32 v%d, 1.0, v%d' % (acc, acc))
    p('v_rcp_f32 v%d, v%d' % (acc, acc))
    p('v_mov_b32 v%d, v%d' % (acc + 1, vT))
    p('v_lshrrev_b32 v27, 4, v%d' % v_lane); p('v_lshlrev_b32 v27, 3, v27')
    p('s_mov_b32 exec_lo, 0x00010001'); p('s_mov_b32 exec_hi, 0x00010001')
    vm.op('buffer_store_dwordx2 v[%d:%d], v27, s[%d:%d], s%d offen sc1' % (acc, acc + 1, sWS, sWS + 3, s_b + 1))
    p('s_mov_b64 exec, -1')

def p3_setup(p):
    p('v_lshrrev_b32 v27, 5, v%d' % v_lane); p('v_lshlrev_b32 v27, 2, v27')
    p('v_bfe_u32 v28, v%d, 2, 2' % v_lane); p('v_add_u32 v27, v27, v28'); p('v_lshlrev_b32 v27, 7, v27')
    p('v_bfe_u32 v29, v%d, 4, 1' % v_lane); p('v_lshl_add_u32 v27, v29, 5, v27')
    p('v_and_b32 v29, 3, v%d' % v_lane); p('v_lshl_add_u32 v27, v29, 3, v27')
    p('s_and_b32 s%d, s%d, 1' % (s_t0, s_r)); p('s_xor_b32 s%d, s%d, s%d' % (s_t0, s_t0, s_hp))
    p('s_lshl_b32 s%d, s%d, 16' % (s_t0, s_t0)); p('s_add_u32 s%d, s%d, %d' % (s_t0, s_t0, SLOT)); p('v_add_u32 v27, s%d, v27' % s_t0)
    p('v_lshrrev_b32 v28, 1, v28')
    p('v_lshl_add_u32 v%d, v28, 6, v27' % vOA)
    p('v_xor_b32 v28, 1, v28'); p('v_lshl_add_u32 v%d, v28, 6, v27' % (vOA + 1))
    p('v_and_b32 v27, 31, v%d' % v_lane)
    p('s_lshl_b32 s%d, s%d, 14' % (s_t0, s_hp)); p('s_lshl_b32 s%d, s%d, 13' % (s_t1, s_th)); p('s_add_u32 s%d, s%d, s%d' % (s_t0, s_t0, s_t1))
    p('v_lshlrev_b32 v28, 8, v27'); p('v_add_u32 v28, s%d, v28' % s_t0)
    p('v_and_b32 v29, 7, v27'); p('v_lshrrev_b32 v27, 5, v%d' % v_lane); p('v_xor_b32 v29, v29, v27')
    for q in range(4):
        p('v_xor_b32 v27, %d, v29' % (2 * q)); p('v_lshl_add_u32 v%d, v27, 4, v28' % (vEW + q))
    p('v_lshrrev_b32 v27, 3, v%d' % v_lane); p('v_and_b32 v28, 7, v%d' % v_lane); p('v_lshlrev_b32 v28, 1, v28')
    p('s_lshl_b32 s%d, s%d, 12' % (s_t0, s_w))
    p('v_lshlrev_b32 v29, 8, v27'); p('v_add_u32 v29, s%d, v29' % s_t0)
    for x in range(2):
        p('v_or_b32 v30, %d, v28' % x); p('v_xor_b32 v30, v30, v27'); p('v_lshl_add_u32 v%d, v30, 4, v29' % (vER + x))
    p('v_and_b32 v28, 7, v%d' % v_lane); p('v_lshlrev_b32 v28, 4, v28'); p('v_lshl_add_u32 v14, v27, 10, v28')
    p('v_and_b32 v15, 15, v%d' % v_lane); p('v_lshlrev_b32 v15, 7, v15')
    p('v_lshlrev_b32 v16, 4, v%d' % v_lane)
    p('v_and_b32 v28, 31, v%d' % v_lane); p('v_lshrrev_b32 v29, 2, v28'); p('v_lshlrev_b32 v29, 7, v29'); p('v_and_b32 v28, 3, v28'); p('v_lshl_add_u32 v17, v28, 3, v29')

s_fl, s_oa, s_ga, s_out0, s_out1 = 47, 48, 49, 50, 51
def p3_scalars(p):
    p('s_lshl_b32 s%d, s%d, 1' % (s_t0, s_tb)); p('s_add_u32 s%d, s%d, s%d' % (s_t0, s_t0, s_hp)); p('s_lshl_b32 s%d, s%d, 11' % (s_t0, s_t0)); p('s_add_u32 s%d, s%d, %d' % (s_fl, s_t0, WS_FLAG))
    p('s_lshl_b32 s%d, s%d, 1' % (s_t0, s_tb)); p('s_add_u32 s%d, s%d, s%d' % (s_t0, s_t0, s_th)); p('s_lshl_b32 s%d, s%d, 16' % (s_t1, s_t0))
    p('s_lshl_b32 s%d, s%d, 15' % (s_t2, s_hp)); p('s_add_u32 s%d, s%d, s%d' % (s_t1, s_t1, s_t2)); p('s_add_u32 s%d, s%d, %d' % (s_oa, s_t1, WS_O))
    p('s_lshl_b32 s%d, s%d, 10' % (s_t0, s_t0)); p('s_add_u32 s%d, s%d, %d' % (s_ga, s_t0, WS_G))
    p('s_lshl_b32 s%d, s%d, 6' % (s_t0, s_tb)); p('s_lshl_b32 s%d, s%d, 4' % (s_t1, s_w)); p('s_add_u32 s%d, s%d, s%d' % (s_t0, s_t0, s_t1)); p('s_lshl_b32 s%d, s%d, 10' % (s_t0, s_t0))
    p('s_lshl_b32 s%d, s%d, 7' % (s_t1, s_cb)); p('s_add_u32 s%d, s%d, s%d' % (s_out0, s_t0, s_t1)); p('s_add_u32 s%d, s%d, 8192' % (s_out1, s_out0))
    if cfg.orot: p('s_mov_b32 s%d, s%d' % (s_rc, s_cb))
    else: p('s_mov_b32 s%d, 0' % s_rc)
    p('s_lshr_b32 s%d, s%d, 1' % (s_r4, s_r)); p('s_lshl_b32 s%d, s%d, 2' % (s_r4, s_r4))

def p3(p, vm, br):
    L = 'AB'[br]
    OACC = [64, 80]
    GV = 96
    vm.op('buffer_load_dwordx2 v[%d:%d], v17, s[%d:%d], s%d offen sc1' % (GV, GV + 1, sWS, sWS + 3, s_ga), 'g')
    p('s_mov_b32 s%d, %d' % (s_spin, cfg.spin))
    p.label('L_fl%s' % L)
    vm.op('buffer_load_dword v28, v15, s[%d:%d], s%d offen sc1' % (sWS, sWS + 3, s_fl))
    vm.wait_all()
    p('v_cmp_ne_u32 vcc, v28, v%d' % vT)
    spin_tail(p, 'fl%s' % L)
    p('s_barrier')
    stamp(p, 15)
    def oload(h):
        g, q = h >> 2, h & 3
        if q == 0:
            p('s_add_u32 s%d, s%d, %d' % (s_t2, s_rc, g)); p('s_and_b32 s%d, s%d, 7' % (s_t2, s_t2))
            p('s_add_u32 s%d, s%d, s%d' % (s_t2, s_t2, s_r4)); p('s_and_b32 s%d, s%d, 7' % (s_t2, s_t2)); p('s_lshl_b32 s%d, s%d, 12' % (s_t2, s_t2))
            p('s_add_u32 s%d, s%d, s%d' % (s_t1, s_oa, s_t2))
        vm.op('buffer_load_dwordx4 %s, v16, s[%d:%d], s%d offen offset:%d sc1' % (ar(4 * h, 4), sWS, sWS + 3, s_t1, q * 1024), 'o%d' % h)
    LA = cfg.ola
    for h in range(LA): oload(h)
    def gaddr(g):
        d = vOG + 2 * (g & 1)
        return ['s_add_u32 s%d, s%d, %d' % (s_t0, s_rc, g), 's_and_b32 s%d, s%d, 7' % (s_t0, s_t0), 's_lshl_b32 s%d, s%d, 13' % (s_t0, s_t0),
                'v_add_u32 v%d, s%d, v%d' % (d, s_t0, vOA), 'v_add_u32 v%d, s%d, v%d' % (d + 1, s_t0, vOA + 1)]
    def reads(h):
        wf = vWF + 8 * (h % 3); g = h >> 2
        pre = gaddr(g) if (h & 3) == 0 else []
        return pre + ['ds_read_b64_tr_b16 v[%d:%d], v%d offset:%d' % (wf + 4 * ct + 2 * rd, wf + 4 * ct + 2 * rd + 1, vOG + 2 * (g & 1) + ct, (h & 3) * 2048 + rd * 1024) for ct in range(2) for rd in range(2)]
    for h in range(2):
        for o in reads(h): p(o)
    if cfg.fine == 3: stamp(p, 41)
    p('s_mov_b32 s%d, %d' % (s_spin, cfg.spin))
    p('v_cmp_ne_u32 vcc, v%d, v%d' % (GV + 1, vT))
    p('s_cbranch_vccz L_g%s_ok' % L)
    p.label('L_g%s' % L)
    vm2 = VM(p)
    vm2.op('buffer_load_dwordx2 v[%d:%d], v17, s[%d:%d], s%d offen sc1' % (GV, GV + 1, sWS, sWS + 3, s_ga))
    vm2.wait_all()
    p('v_cmp_ne_u32 vcc, v%d, v%d' % (GV + 1, vT))
    spin_tail(p, 'g%s' % L)
    p('v_sub_f32 v%d, 1.0, v%d' % (GV + 1, GV))
    p('s_cmp_eq_u32 s%d, 0' % s_hp)
    p('s_cselect_b64 vcc, 0, -1')
    p('v_cndmask_b32 v%d, v%d, v%d, vcc' % (GV, GV, GV + 1))
    for h in range(32):
        wf = vWF + 8 * (h % 3)
        vm.wait('o%d' % h, ' lgkmcnt(%d)' % (4 if h < 31 else 0))
        if cfg.fine == 3 and h in (0, 8, 16, 24): stamp(p, 42 + h // 8)
        R = reads(h + 2) if h + 2 < 32 else []
        for ct in range(2):
            c = '0' if h == 0 else vr(OACC[ct], 16)
            p('%s %s, %s, %s, %s' % (MF, vr(OACC[ct], 16), vr(wf + 4 * ct, 4), ar(4 * h, 4), c))
            k = len(R) - 2
            for o in (R[:k] if ct == 0 else R[k:]): p(o)
            if ct == 0 and h + LA < 32: oload(h + LA)
    stamp(p, 16)
    for ct in range(2):
        for q in range(4):
            for i in range(2 * q, 2 * q + 2):
                p('v_pk_mul_f32 v[%d:%d], v[%d:%d], v[%d:%d] op_sel_hi:[1,0]' % (OACC[ct] + 2 * i, OACC[ct] + 2 * i + 1, OACC[ct] + 2 * i, OACC[ct] + 2 * i + 1, GV, GV + 1))
            p('ds_write_b128 v%d, %s offset:%d' % (vEW + q, vr(OACC[ct] + 4 * q, 4), 128 * ct))
    p('s_waitcnt lgkmcnt(0)')
    stamp(p, 17)
    p('s_barrier')
    RD = 168
    for a in range(2):
        for brr in range(2):
            for x in range(2):
                p('ds_read_b128 %s, v%d offset:%d' % (vr(RD + 16 * a + 8 * brr + 4 * x, 4), vER + x, a * 2048 + brr * 16384))
    for a in range(2):
        p('s_waitcnt lgkmcnt(%d)' % (4 if a == 0 else 0))
        r = RD + 16 * a
        for i in range(4): p('v_pk_add_f32 v[%d:%d], v[%d:%d], v[%d:%d]' % (r + 2 * i, r + 2 * i + 1, r + 2 * i, r + 2 * i + 1, r + 8 + 2 * i, r + 8 + 2 * i + 1))
        for i in range(4): cvt(p, r + 8 + i, r + 2 * i, r + 2 * i + 1)
        vm.op('buffer_store_dwordx4 %s, v14, s[%d:%d], s%d offen' % (vr(r + 8, 4), sOUT, sOUT + 3, s_out0 if a == 0 else s_out1))
    p('s_cmp_eq_u32 s%d, 0' % s_b); p('s_cbranch_scc0 L_noep%s' % L)
    p('s_cmp_eq_u32 s%d, 0' % s_w); p('s_cbranch_scc0 L_noep%s' % L)
    p('v_mov_b32 v27, 0'); p('s_mov_b64 exec, 1')
    vm.op('buffer_store_dword v%d, v27, s[%d:%d], 0 offen sc1' % (vT, sWS, sWS + 3))
    p('s_mov_b64 exec, -1')
    p.label('L_noep%s' % L)

def rstamp(p, idx):
    if not cfg.stamps: return
    p('s_memrealtime s[%d:%d]' % (s_stamp, s_stamp + 1))
    p('s_waitcnt lgkmcnt(0)')
    p('v_writelane_b32 v255, s%d, %d' % (s_stamp, idx))

def write_stamps(p, vm):
    if not cfg.stamps: return
    rstamp(p, 12)
    if cfg.stamps == 2:
        L = 'x%d' % len(p.ins)
        p('s_load_dwordx2 s[4:5], s[0:1], 72'); p('s_waitcnt lgkmcnt(0)')
        p('s_mov_b32 s%d, s4' % sDBG); p('s_and_b32 s%d, s5, 0xffff' % (sDBG + 1)); p('s_mov_b32 s%d, 256' % (sDBG + 2)); p('s_mov_b32 s%d, 0x00020000' % (sDBG + 3))
        p('s_cmp_eq_u32 s%d, 0' % s_w); p('s_cbranch_scc0 L_ds2' + L)
        p('v_lshlrev_b32 v27, 2, v%d' % v_lane)
        p('s_cmp_eq_u32 s%d, 8' % s_b); p('s_cbranch_scc0 L_ds1' + L)
        p('s_mov_b64 exec, 0x1fff')
        vm.op('buffer_store_dword v255, v27, s[%d:%d], 0 offen' % (sDBG, sDBG + 3))
        p('s_mov_b64 exec, -1')
        p.label('L_ds1' + L)
        p('s_cmp_eq_u32 s%d, 255' % s_b); p('s_cbranch_scc0 L_ds2' + L)
        p('s_mov_b64 exec, 0x1800')
        vm.op('buffer_store_dword v255, v27, s[%d:%d], 0 offen offset:8' % (sDBG, sDBG + 3))
        p('s_mov_b64 exec, -1')
        p.label('L_ds2' + L)
        return
    p('s_lshl_b32 s%d, s%d, 2' % (s_t0, s_b)); p('s_add_u32 s%d, s%d, s%d' % (s_t0, s_t0, s_w)); p('s_lshl_b32 s%d, s%d, 8' % (s_t0, s_t0)); p('s_add_u32 s%d, s%d, %d' % (s_t0, s_t0, WS_STAMP))
    p('v_lshlrev_b32 v27, 2, v%d' % v_lane)
    vm.op('buffer_store_dword v255, v27, s[%d:%d], s%d offen' % (sDBG, sDBG + 3, s_t0))

def body(p, vm, br, dco, dwq):
    extra = {m: [] for m in range(8)}
    for m in range(6): extra[m] = dco(m + 2)
    if br == 0: extra[4] = extra[4] + gate_load_ops(p, vm)
    extra[6] = dwq(0)
    extra[7] = dwq(1)
    pass1(p, vm, br, dco, dwq, extra)
    p('s_barrier')
    stamp(p, 2)
    if cfg.debug == 1: dump_regs(p, vm, vK[0], 64, 0)
    make_tag(p, vm)
    side = dma_wo_ops(p, vm, 0)
    if br == 1:
        feat_k_B(p, side)
    else:
        gate_finish(p, vm)
        feat_k_A(p, side)
    stamp(p, 3)
    exchange(p, vm, br)
    if cfg.debug == 2: dump_regs(p, vm, ST, 32, 0)
    stamp(p, 4)
    sched = {}
    sched[('bar', 1)] = True
    st = hop1_store_ops(p, vm, br)
    for k, f in enumerate(st): sched.setdefault(k, []).append(f)
    for k, f in enumerate(dma_wo_ops(p, vm, 1)): sched.setdefault(cfg.wo1step + k, []).append(f)
    hl = hop1_load_ops(p, vm, br)
    for k, f in enumerate(hl): sched.setdefault(min(31, cfg.h1step + k), []).append(f)
    pass2(p, vm, sched)
    stamp(p, 5)
    if cfg.debug == 1:
        p('s_nop 15'); dump_regs(p, vm, vQ[0], 32, 1)
    hop1_reduce(p, vm, br)
    stamp(p, 6)
    late = hop2_load_ops(p, vm, br)
    side = dma_wo_ops(p, vm, 2)
    if br == 1: feat_q_B(p, side, late)
    else: feat_q_A(p, side, late)
    p3_setup(p)
    stamp(p, 7)
    hop2_gather(p, vm, br)
    stamp(p, 8)
    if cfg.debug == 2: dump_regs(p, vm, KVA, 16, 1)
    o_phase(p, vm, br)
    p3_scalars(p)
    p('s_barrier')
    o_flag(p, vm)
    for f in dma_wo_ops(p, vm, 3): f()
    stamp(p, 9)
    p3(p, vm, br)
    stamp(p, 10)
    write_stamps(p, vm)
    p('s_endpgm')

if __name__ == '__main__':
    import argparse
    ap = argparse.ArgumentParser()
    ap.add_argument('-o', default='k.s'); ap.add_argument('--debug', type=int, default=0); ap.add_argument('--rot', type=int, default=1)
    ap.add_argument('--maprow', type=int, default=1); ap.add_argument('--fine', type=int, default=0); ap.add_argument('--codepf', type=int, default=1); ap.add_argument('--ola', type=int, default=8); ap.add_argument('--wo1step', type=int, default=6); ap.add_argument('--korder', type=int, default=1); ap.add_argument('--pro3', type=int, default=0); ap.add_argument('--worot', type=int, default=1); ap.add_argument('--orot', type=int, default=1); ap.add_argument('--pretouch', type=int, default=1); ap.add_argument('--h1step', type=int, default=22); ap.add_argument('--h2lead', type=int, default=70); ap.add_argument('--stamps', type=int, default=0)
    a = ap.parse_args()
    cfg.debug = a.debug; cfg.rot = a.rot; cfg.maprow = a.maprow; cfg.h1step = a.h1step; cfg.fine = a.fine; cfg.codepf = a.codepf; cfg.ola = a.ola; cfg.wo1step = a.wo1step; cfg.korder = a.korder; cfg.pro3 = a.pro3; cfg.worot = a.worot; cfg.orot = a.orot; cfg.pretouch = a.pretouch; cfg.h2lead = a.h2lead; cfg.stamps = a.stamps
    open(a.o, 'w').write(build())
```

```python
import sys, os
sys.path.insert(0, os.path.dirname(os.path.abspath(__file__)))
from asmdsl import *

KNAME = "gated_mix__linear_attn_block__linear_kernel_hedgehog__prompt_kernel"

class Cfg:
    debug = 0
    rot = 1
    maprow = 1
    spin = 1 << 20
    fine = 0
    wsoff = 0
    owarm = 0
    owarmfl = ''
    wo2p2 = 0
    nowo = 0
    codepf = 1
    ola = 8
    wo1step = 6
    korder = 1
    pro3 = 0
    worot = 1
    orot = 1
    pretouch = 1
    h1step = 22
    h2lead = 70
    stamps = 0
cfg = Cfg()

WS_EPOCH = 0x0
WS_G     = 0x1000
WS_FLAG  = 0x20000
WS_OUTK  = 0x100000
WS_OUTZ  = 0x140000
WS_O     = 0x200000
WS_INB   = 0x800000
WS_SIZE  = 0x1000000
WS_DBG   = 0x1000000
WS_STAMP = 0x7000000

sX, sW, sWOA, sWOB, sWS, sOUT, sMISC, sDBG = 8, 12, 16, 20, 24, 28, 32, 36
s_w, s_th, s_hp, s_i, s_jj, s_rot, s_T = 40, 41, 42, 43, 44, 45, 46
s_xbase, s_wbase, s_m0x, s_m0w, s_ox, s_ow, s_t0, s_t1, s_t2, s_t3 = 47, 48, 49, 50, 51, 52, 53, 54, 55, 56
s_tb, s_cb, s_head, s_qbase, s_m0q = 57, 58, 59, 60, 61
s_mask16 = 62
s_log2e = 84
s_eps = 86
s_spin = 88
s_ht = 89
s_stamp = 90
s_b = 92
s_exec = 94
s_wobase, s_m0o = 96, 97
s_qadj, s_q0 = 4, 5
s_t2x, s_t3x = 98, 99
s_r = 6
s_odd = 94
KA = 64

v_lane = 1
vXA = 2
vWA = 14
vDX = 17
vDQ = 21
vONES = 25
vT = 26
vtmp = 27
vK = [32, 48]; vV = [64, 80]; vQ = [96, 112]
vWF = 128
vWP = 152
vSEL = 160
vTMP = 168

SLOT = 32768
def slot_set(s): return s // 2
def slot_imm(s): return (s % 2) * SLOT

class VM:
    def __init__(self, p): self.p = p; self.n = 0; self.marks = {}; self.done = 0
    def op(self, text, mark=None):
        self.p(text); self.n += 1
        if mark: self.marks[mark] = self.n
    def mark(self, name): self.marks[name] = self.n
    def wait(self, name, extra=''):
        if self.marks[name] <= self.done:
            if extra: self.p('s_waitcnt' + extra)
            return
        k = self.n - self.marks[name]
        assert 0 <= k <= 63, (name, k)
        self.p('s_waitcnt vmcnt(%d)%s' % (k, extra))
        self.done = self.marks[name]
    def wait_all(self):
        self.p('s_waitcnt vmcnt(0)'); self.done = self.n

def stamp(p, idx):
    if not cfg.stamps: return
    p('s_memtime s[%d:%d]' % (s_stamp, s_stamp + 1))
    p('s_waitcnt lgkmcnt(0)')
    p('v_writelane_b32 v255, s%d, %d' % (s_stamp, idx))


def korder(n): return (2 * (n & 3) + (n >> 2)) if cfg.korder else n

def srd(p, d, ptr, size):
    p('s_mov_b32 s%d, s%d' % (d, ptr)); p('s_and_b32 s%d, s%d, 0xffff' % (d + 1, ptr + 1))
    p('s_mov_b32 s%d, 0x%x' % (d + 2, size)); p('s_mov_b32 s%d, 0x00020000' % (d + 3))

SOFF = 64
WPT = 168
GX, GW = 168, 184

def gen_path(br):
    p = Prog(); vm = VM(p)
    L = 'A' if br == 0 else 'B'
    p.label('L_path' + L)
    if cfg.stamps: p('v_mov_b32 v255, 0')
    stamp(p, 0)
    rstamp(p, 11)
    p('v_lshrrev_b32 v27, 6, v0')
    p('v_and_b32 v%d, 63, v0' % v_lane)
    p('v_readfirstlane_b32 s%d, v27' % s_w)
    p('v_lshrrev_b32 v27, 3, v%d' % v_lane)
    p('v_and_b32 v28, 7, v%d' % v_lane)
    p('v_lshrrev_b32 v29, 4, v%d' % v_lane)
    for q in range(2):
        p('v_add_u32 v30, %d, v29' % (4 * (q & 1)))
        p('v_xor_b32 v30, v28, v30')
        p('v_lshlrev_b32 v30, 4, v30')
        p('v_add_u32 v31, %d, v27' % (7 * q))
        p('v_lshl_add_u32 v%d, v31, 10, v30' % (vDX + q))
    p('v_add_u32 v%d, %d, v%d' % (vDX + 2, 14 * 1024, vDX)); p('v_add_u32 v%d, %d, v%d' % (vDX + 3, 14 * 1024, vDX + 1))
    p('v_and_b32 v30, 1, v29'); p('v_lshlrev_b32 v30, 2, v30'); p('v_xor_b32 v30, v28, v30'); p('v_lshlrev_b32 v30, 4, v30')
    p('v_mul_u32_u24 v31, 3072, v27')
    p('v_add_u32 v%d, v30, v31' % vDQ)
    for q in range(1, 4):
        p('v_add_u32 v%d, %d, v%d' % (vDQ + q, 8 * q * 3072 - 1024 * q, vDQ))
    p('s_and_b32 s%d, s%d, 1' % (s_th, s_w))
    p('s_lshr_b32 s%d, s%d, 1' % (s_hp, s_w))
    p('s_lshl_b32 s%d, s%d, 17' % (s_xbase, s_i))
    p('s_lshl_b32 s%d, s%d, 15' % (s_t0, s_w))
    p('s_add_u32 s%d, s%d, s%d' % (s_xbase, s_xbase, s_t0))
    p('s_lshl_b32 s%d, s%d, 7' % (s_qbase, s_jj))
    p('s_mul_i32 s%d, s%d, 98304' % (s_t0, s_th))
    p('s_add_u32 s%d, s%d, s%d' % (s_wbase, s_qbase, s_t0))
    p('s_add_u32 s%d, s%d, 1' % (s_t0, s_hp))
    p('s_lshl_b32 s%d, s%d, 10' % (s_t0, s_t0))
    p('s_add_u32 s%d, s%d, s%d' % (s_wbase, s_wbase, s_t0))
    p('s_lshl_b32 s%d, s%d, 12' % (s_m0x, s_w))
    p('s_lshl_b32 s%d, s%d, 13' % (s_m0w, s_hp))
    p('s_lshl_b32 s%d, s%d, 12' % (s_t0, s_th))
    p('s_add_u32 s%d, s%d, s%d' % (s_m0w, s_m0w, s_t0))
    p('s_add_u32 s%d, s%d, 16384' % (s_m0w, s_m0w))
    p('s_lshl_b32 s%d, s%d, 11' % (s_m0q, s_w))
    p('s_mul_i32 s%d, s%d, 49152' % (s_t0, s_w))
    p('s_add_u32 s%d, s%d, s%d' % (s_t0, s_t0, s_qbase))
    p('s_sub_u32 s%d, s%d, s%d' % (s_qadj, s_wbase, s_t0))

    def chunk_offsets(n, dx, dw):
        p('s_add_u32 s%d, s%d, %d' % (s_t0, s_rot, korder(n))); p('s_and_b32 s%d, s%d, 7' % (s_t0, s_t0))
        p('s_lshl_b32 s%d, s%d, 7' % (s_t1, s_t0)); p('s_add_u32 s%d, s%d, s%d' % (dx, s_xbase, s_t1))
        p('s_mul_i32 s%d, s%d, 196608' % (s_t1, s_t0)); p('s_add_u32 s%d, s%d, s%d' % (dw, s_wbase, s_t1))
    def dma_chunk_ops(n):
        slot = (n % 4) * SLOT
        ox = s_ox if n == 0 else SOFF + 2 * n
        ow = s_ow if n == 0 else SOFF + 2 * n + 1
        ops = []
        def x0():
            p('s_add_u32 m0, s%d, %d' % (s_m0x, slot)); p('s_nop 0')
            vm.op('buffer_load_dwordx4 v%d, s[%d:%d], s%d offen lds' % (vDX, sX, sX + 3, ox))
        ops.append(x0)
        for q in range(1, 4):
            ops.append(lambda q=q: vm.op('buffer_load_dwordx4 v%d, s[%d:%d], s%d offen offset:%d lds' % (vDX + q, sX, sX + 3, ox, q * 1024)))
        def w0():
            p('s_add_u32 m0, s%d, %d' % (s_m0w, slot)); p('s_nop 0')
            vm.op('buffer_load_dwordx4 v%d, s[%d:%d], s%d offen lds' % (vDQ, sW, sW + 3, ow))
        ops.append(w0)
        for q in range(1, 4):
            ops.append(lambda q=q: vm.op('buffer_load_dwordx4 v%d, s[%d:%d], s%d offen offset:%d lds' % (vDQ + q, sW, sW + 3, ow, q * 1024), 'c%d' % n if q == 3 else None))
        return ops
    def dma_wq_ops(hf):
        ops = []
        for c in range(4 * hf, 4 * hf + 4):
            def m(c=c):
                if c == 0: p('s_add_u32 s%d, s%d, 0' % (s_ow, s_q0))
                else: p('s_sub_u32 s%d, s%d, s%d' % (s_ow, SOFF + 2 * c + 1, s_qadj))
                p('s_add_u32 m0, s%d, %d' % (s_m0q, (4 * (c >> 2)) * SLOT + (c & 3) * 8192)); p('s_nop 0')
                vm.op('buffer_load_dwordx4 v%d, s[%d:%d], s%d offen lds' % (vDQ, sW, sW + 3, s_ow))
            ops.append(m)
            ops.append(lambda c=c: vm.op('buffer_load_dwordx4 v%d, s[%d:%d], s%d offen offset:1024 lds' % (vDQ + 1, sW, sW + 3, s_ow), 'wq%d' % hf if (c & 3) == 3 else None))
        return ops

    chunk_offsets(0, s_ox, s_ow)
    p('s_sub_u32 s%d, s%d, s%d' % (s_q0, s_ow, s_qadj))
    p('s_waitcnt lgkmcnt(0)')
    srd(p, sX, KA + 0, 2048 * 1024)
    srd(p, sW, KA + (2 if br == 0 else 8), 512 * 3072)
    stamp(p, 20)
    for f in dma_chunk_ops(0): f()
    if cfg.codepf:
        p('s_getpc_b64 s[%d:%d]' % (s_t2x, s_t2x + 1))
        p.label('L_pc%s' % L)
        p('s_sub_u32 s%d, s%d, L_pc%s-%s' % (s_t2x, s_t2x, L, KNAME)); p('s_subb_u32 s%d, s%d, 0' % (s_t2x + 1, s_t2x + 1))
        p('s_lshr_b32 s%d, s%d, 3' % (s_t0, s_b)); p('s_lshl_b32 s%d, s%d, 2' % (s_t0, s_t0)); p('s_add_u32 s%d, s%d, s%d' % (s_t0, s_t0, s_w)); p('s_lshl_b32 s%d, s%d, 9' % (s_t0, s_t0))
        p('v_lshlrev_b32 v27, 7, v%d' % v_lane); p('v_and_b32 v27, 0x1ff, v27')
        p('v_add_u32 v27, s%d, v27' % s_t0)
        p('v_min_u32 v27, L_end-%s, v27' % KNAME)
        p('v_mov_b32 v29, s%d' % (s_t2x + 1))
        p('v_add_co_u32 v28, vcc, s%d, v27' % s_t2x); p('v_addc_co_u32 v29, vcc, 0, v29, vcc')
        p('s_mov_b64 exec, 15')
        vm.op('global_load_dword v239, v[28:29], off')
        p('s_mov_b64 exec, -1')
    if cfg.wsoff:
        p('s_add_u32 s%d, s%d, 0x%x' % (KA + 18, KA + 18, cfg.wsoff)); p('s_addc_u32 s%d, s%d, 0' % (KA + 19, KA + 19))
    srd(p, sWS, KA + 18, WS_SIZE)
    if br == 0: srd(p, sMISC, KA + 14, 1024)
    else:
        srd(p, sMISC, KA + 10, 32 * 512)
        p('s_lshl_b32 s%d, s%d, 11' % (s_t0, s_jj)); p('s_lshl_b32 s%d, s%d, 10' % (s_t1, s_hp)); p('s_add_u32 s%d, s%d, s%d' % (s_t0, s_t0, s_t1))
        p('s_lshl_b32 s%d, s%d, 10' % (s_t1, s_w)); p('s_add_u32 m0, s%d, %d' % (s_t1, 4 * SLOT))
        p('v_lshlrev_b32 v27, 4, v%d' % v_lane)
        vm.op('buffer_load_dwordx4 v27, s[%d:%d], s%d offen lds' % (sMISC, sMISC + 3, s_t0), 'wphi')
    p('v_mov_b32 v28, 0')
    vm.op('buffer_load_dword v%d, v28, s[%d:%d], 0 offen sc1' % (vT, sWS, sWS + 3), 'epoch')
    srd(p, sWOA, KA + 4, 512 * 1024)
    srd(p, sWOB, KA + 12, 512 * 1024)
    srd(p, sOUT, KA + 16, 2048 * 1024)
    if cfg.debug or cfg.stamps: srd(p, sDBG, KA + 18, 0x8000000)
    for n in range(1, 8): chunk_offsets(n, SOFF + 2 * n, SOFF + 2 * n + 1)
    if cfg.pretouch:
        p('s_lshl_b32 s%d, s%d, 18' % (s_t0, s_jj)); p('s_add_u32 s%d, s%d, %d' % (s_t0, s_t0, WS_INB + br * 0x200000))
        vm.op('buffer_load_dword v232, v28, s[%d:%d], s%d offen' % (sWS, sWS + 3, s_t0))
        p('s_lshl_b32 s%d, s%d, 18' % (s_t0, s_i)); p('s_add_u32 s%d, s%d, %d' % (s_t0, s_t0, WS_O))
        vm.op('buffer_load_dword v233, v28, s[%d:%d], s%d offen' % (sWS, sWS + 3, s_t0))
        p('s_lshl_b32 s%d, s%d, 17' % (s_t0, s_tb)); p('s_add_u32 s%d, s%d, %d' % (s_t0, s_t0, WS_O))
        vm.op('buffer_load_dword v234, v28, s[%d:%d], s%d offen' % (sWS, sWS + 3, s_t0))
        vm.op('buffer_load_dword v235, v28, s[%d:%d], 0 offen' % (sWOA, sWOA + 3))
        vm.op('buffer_load_dword v236, v28, s[%d:%d], 0 offen' % (sWOB, sWOB + 3))
        p('s_lshl_b32 s%d, s%d, 16' % (s_t0, s_tb))
        vm.op('buffer_load_dword v237, v28, s[%d:%d], s%d offen' % (sOUT, sOUT + 3, s_t0))
    wo_setup(p)
    p('v_and_b32 v27, 31, v%d' % v_lane)
    p('v_lshrrev_b32 v28, 5, v%d' % v_lane)
    p('v_lshrrev_b32 v29, 1, v27'); p('v_and_b32 v29, 7, v29'); p('v_xor_b32 v29, v28, v29')
    p('s_lshl_b32 s%d, s%d, 13' % (s_t0, s_th))
    p('v_lshlrev_b32 v30, 7, v27'); p('v_add_u32 v30, s%d, v30' % s_t0)
    for ks in range(4):
        p('v_xor_b32 v31, %d, v29' % (2 * ks)); p('v_lshl_add_u32 v%d, v31, 4, v30' % (vXA + ks))
        p('v_add_u32 v%d, 0x10000, v%d' % (vXA + 4 + ks, vXA + ks))
    p('v_lshrrev_b32 v27, 2, v%d' % v_lane); p('v_and_b32 v27, 3, v27')
    p('v_lshl_add_u32 v29, v28, 3, v27')
    p('v_lshlrev_b32 v29, 7, v29')
    p('v_lshrrev_b32 v30, 1, v27'); p('v_xor_b32 v30, s%d, v30' % s_hp); p('v_lshl_add_u32 v29, v30, 6, v29')
    p('v_lshrrev_b32 v30, 4, v%d' % v_lane); p('v_xor_b32 v30, s%d, v30' % s_th); p('v_and_b32 v30, 1, v30'); p('v_lshl_add_u32 v29, v30, 5, v29')
    p('v_and_b32 v30, 3, v%d' % v_lane); p('v_lshl_add_u32 v%d, v30, 3, v29' % vWA)
    p('v_add_u32 v%d, 0x10000, v%d' % (vWA + 1, vWA)); p('v_add_u32 v%d, 0x20000, v%d' % (vWA + 2, vWA))
    p('v_mov_b32 v%d, 0x3f803f80' % vONES)
    p('s_mov_b32 s%d, 0xffff0000' % s_mask16); p('s_mov_b32 s%d, 0xffff0000' % (s_mask16 + 1))
    p('s_mov_b32 s%d, 0x3fb8aa3b' % s_log2e); p('s_mov_b32 s%d, 0x3fb8aa3b' % (s_log2e + 1))
    p('s_mov_b32 s%d, 0x358637bd' % s_eps); p('s_mov_b32 s%d, 0x358637bd' % (s_eps + 1))
    if br == 1:
        p('v_and_b32 v27, 31, v%d' % v_lane)
        p('v_lshrrev_b32 v28, 5, v%d' % v_lane)
        p('v_bfe_u32 v29, v27, 2, 1')
        p('v_cmp_eq_u32 vcc, v28, v29')
        p('v_bfe_u32 v29, v27, 3, 1'); p('v_and_b32 v30, 3, v27'); p('v_lshl_add_u32 v29, v29, 2, v30')
        p('v_and_b32 v30, 1, v29'); p('v_lshlrev_b32 v30, 4, v30'); p('v_mov_b32 v31, 0x3f80'); p('v_lshlrev_b32 v30, v30, v31')
        p('v_cndmask_b32 v30, 0, v30, vcc')
        p('v_lshrrev_b32 v29, 1, v29')
        p('v_bfe_u32 v28, v27, 4, 1')
        p('v_lshl_add_u32 v29, v28, 2, v29')
        for q in range(8):
            p('v_cmp_eq_u32 vcc, %d, v29' % q)
            p('v_cndmask_b32 v%d, 0, v30, vcc' % (vSEL + q))
    p('s_mov_b32 s%d, 0xaaaaaaaa' % s_odd); p('s_mov_b32 s%d, 0xaaaaaaaa' % (s_odd + 1))
    if br == 1:
        p('v_lshrrev_b32 v27, 5, v%d' % v_lane); p('v_lshlrev_b32 v27, 2, v27')
        p('v_bfe_u32 v28, v%d, 2, 2' % v_lane); p('v_add_u32 v27, v27, v28'); p('v_lshlrev_b32 v27, 5, v27')
        p('v_bfe_u32 v28, v%d, 1, 1' % v_lane); p('v_lshl_add_u32 v27, v28, 3, v27')
        p('v_bfe_u32 v28, v%d, 4, 1' % v_lane); p('v_lshl_add_u32 v27, v28, 4, v27')
        p('s_lshl_b32 s%d, s%d, 10' % (s_t0, s_w)); p('s_add_u32 s%d, s%d, %d' % (s_t0, s_t0, 4 * SLOT))
        p('s_lshl_b32 s%d, s%d, 9' % (s_t1, s_th)); p('s_add_u32 s%d, s%d, s%d' % (s_t0, s_t0, s_t1))
        p('v_add_u32 v27, s%d, v27' % s_t0); p('v_xor_b32 v29, 512, v27')
        p('v_bfe_u32 v28, v%d, 2, 1' % v_lane); p('v_lshlrev_b32 v28, 31, v28'); p('v_lshrrev_b32 v30, 16, v28'); p('v_or_b32 v28, v28, v30')
    stamp(p, 21)
    for f in dma_chunk_ops(1): f()
    if br == 1:
        vm.wait('wphi')
        for u in range(2):
            for rd in range(2):
                p('ds_read_b64_tr_b16 v[%d:%d], v%d offset:%d' % (vWP + 4 * u + 2 * rd, vWP + 4 * u + 2 * rd + 1, 27 if u == 0 else 29, rd * 8 * 32))
        p('s_waitcnt lgkmcnt(0)')
        for q in range(8): p('v_xor_b32 v%d, v%d, v28' % (vWP + q, vWP + q))
    return p, vm, dma_chunk_ops, dma_wq_ops

def make_tag(p, vm):
    vm.wait('epoch')
    p('v_readfirstlane_b32 s%d, v%d' % (s_T, vT))
    p('s_mul_i32 s%d, s%d, 0x9e3779b1' % (s_T, s_T)); p('s_add_u32 s%d, s%d, 0x7f4a7c15' % (s_T, s_T))
    p('v_mov_b32 v%d, s%d' % (vT, s_T))

def emit(p, item):
    if callable(item): item()
    else: p(item)

def merge(p, main, side, every, start=0):
    side = list(side); k = 0
    for idx, m in enumerate(main):
        emit(p, m)
        if idx >= start and (idx - start) % every == every - 1 and side:
            emit(p, side.pop(0))
    for x in side: emit(p, x)

class Rec:
    def __init__(self): self.l = []
    def __call__(self, t, tag=None):
        for line in t.split('\n'):
            if line.strip(): self.l.append(line.strip())

def xf(s, blk): return ar((s * 2 + blk) * 4, 4)

def pass1(p, vm, br, dma_chunk_ops, dma_wq_ops, extra_ops):
    def reads(s):
        c, ks = s >> 2, s & 3; slot = c % 4; st = slot_set(slot); im = slot_imm(slot); buf = s % 3
        ops = []
        wf = vWF + 8 * buf
        for part in range(2):
            for rd in range(2):
                ops.append('ds_read_b64_tr_b16 v[%d:%d], v%d offset:%d' % (wf + 4 * part + 2 * rd, wf + 4 * part + 2 * rd + 1, vWA + st, im + 16384 + part * 8192 + (16 * ks + 4 * rd) * 128))
        for blk in range(2):
            ops.append('ds_read_b128 %s, v%d offset:%d' % (xf(s, blk), vXA + st * 4 + ks, im + blk * 4096))
        return ops
    def mfmas(s):
        wf = vWF + 8 * (s % 3); ops = []
        for blk in range(2):
            c = '0' if s == 0 else vr(vK[blk], 16)
            if br == 1: ops.append('v_mfma_f32_32x32x16_bf16 %s, %s, %s, %s' % (vr(vK[blk], 16), vr(wf, 4), xf(s, blk), c))
            else:       ops.append('v_mfma_f32_32x32x16_bf16 %s, %s, %s, %s' % (vr(vK[blk], 16), xf(s, blk), vr(wf, 4), c))
            c = '0' if s == 0 else vr(vV[blk], 16)
            ops.append('v_mfma_f32_32x32x16_bf16 %s, %s, %s, %s' % (vr(vV[blk], 16), xf(s, blk), vr(wf + 4, 4), c))
        return ops
    pend = []
    vm.wait('c0'); p('s_barrier')
    stamp(p, 1)
    pend += extra_ops[0]
    for o in reads(0): p(o)
    for o in reads(1): p(o)
    for s in range(32):
        nxt = s + 2
        p('s_waitcnt lgkmcnt(%d)' % (6 if s < 31 else 0))
        M = mfmas(s)
        R = reads(nxt) if nxt < 32 else []
        p(M[0])
        if nxt < 32 and nxt % 4 == 0:
            m = nxt // 4
            vm.wait('c%d' % m); p('s_barrier')
            if cfg.stamps == 1 and cfg.fine: stamp(p, 30 + m)
            pend += extra_ops[m]
        def take(n):
            for _ in range(n):
                if pend: pend.pop(0)()
        for k in range(4):
            if k > 0: p(M[k])
            for o in R[(k * 6) // 4:((k + 1) * 6) // 4]: p(o)
            if k % 2 == 1 or len(pend) > 8: take(1)
    while pend: pend.pop(0)()

def pass2(p, vm, sched):
    RA = 3
    def reads(s):
        c, ks = s >> 2, s & 3; slot = 4 * (c >> 2); st = slot_set(slot); im = slot_imm(slot); wf = vWF + 4 * (s % 4)
        return ['ds_read_b64_tr_b16 v[%d:%d], v%d offset:%d' % (wf + 2 * rd, wf + 2 * rd + 1, vWA + st, im + (c & 3) * 8192 + (16 * ks + 4 * rd) * 128) for rd in range(2)]
    for s in range(RA):
        for o in reads(s): p(o)
    for s in range(32):
        out = min(RA - 1, 31 - s)
        p('s_waitcnt lgkmcnt(%d)' % (2 * out))
        wf = vWF + 4 * (s % 4)
        if ('bar', s) in sched: p('s_barrier')
        if cfg.fine == 2 and s % 4 == 0 and s > 0:
            stamp(p, 40 + s // 4);
        items = list(sched.get(s, []))
        h = (len(items) + 1) // 2
        for blk in range(2):
            c = '0' if s == 0 else vr(vQ[blk], 16)
            p('v_mfma_f32_32x32x16_bf16 %s, %s, %s, %s' % (vr(vQ[blk], 16), vr(wf, 4), xf(s, blk), c))
            if blk == 0 and s + RA < 32:
                for o in reads(s + RA): p(o)
            for it in (items[:h] if blk == 0 else items[h:]): emit(p, it)

def dump_regs(p, vm, base_reg, n, slot_index):
    p('s_lshl_b32 s%d, s%d, 2' % (s_t0, s_b)); p('s_add_u32 s%d, s%d, s%d' % (s_t0, s_t0, s_w))
    p('s_mul_i32 s%d, s%d, %d' % (s_t0, s_t0, n * 256)); p('s_add_u32 s%d, s%d, %d' % (s_t0, s_t0, WS_DBG + slot_index * 0x1000000))
    p('v_lshlrev_b32 v27, 4, v%d' % v_lane)
    for r in range(0, n, 4):
        vm.op('buffer_store_dwordx4 %s, v27, s[%d:%d], s%d offen' % (vr(base_reg + r, 4), sDBG, sDBG + 3, s_t0))
        p('s_add_u32 s%d, s%d, 1024' % (s_t0, s_t0))
    vm.wait_all()

def build():
    top = Prog()
    top('s_cmp_ge_u32 s2, 256')
    top('s_cbranch_scc1 L_end')
    top('s_load_dwordx16 s[64:79], s[0:1], 0')
    top('s_load_dwordx2 s[80:81], s[0:1], 64')
    top('s_load_dwordx2 s[82:83], s[0:1], 80')
    top('s_mov_b32 s%d, s2' % s_b)
    top('s_and_b32 s%d, s2, 7' % s_t0)
    top('s_lshr_b32 s%d, s2, 3' % s_t1)
    if cfg.maprow == 0:
        top('s_mov_b32 s%d, s%d' % (s_jj, s_t0))
        top('s_lshr_b32 s%d, s%d, 1' % (s_i, s_t1))
        top('s_and_b32 s%d, s%d, 1' % (s_t2, s_t1))
        top('s_lshl_b32 s%d, s%d, 2' % (s_rot, s_t2)); top('s_add_u32 s%d, s%d, s%d' % (s_rot, s_rot, s_i)); top('s_and_b32 s%d, s%d, 7' % (s_rot, s_rot))
    else:
        top('s_and_b32 s%d, s%d, 1' % (s_i, s_t0)); top('s_lshl_b32 s%d, s%d, 3' % (s_i, s_i)); top('s_and_b32 s%d, s%d, 7' % (s_t2, s_t1)); top('s_add_u32 s%d, s%d, s%d' % (s_i, s_i, s_t2))
        top('s_lshr_b32 s%d, s%d, 1' % (s_t3, s_t0)); top('s_lshl_b32 s%d, s%d, 2' % (s_t3, s_t3)); top('s_lshr_b32 s%d, s%d, 3' % (s_t2, s_t1)); top('s_add_u32 s%d, s%d, s%d' % (s_t3, s_t3, s_t2))
        top('s_lshr_b32 s%d, s%d, 1' % (s_jj, s_t3))
        top('s_lshl_b32 s%d, s%d, 1' % (s_rot, s_t3)); top('s_add_u32 s%d, s%d, s%d' % (s_rot, s_rot, s_i)); top('s_and_b32 s%d, s%d, 7' % (s_rot, s_rot))
        top('s_and_b32 s%d, s%d, 1' % (s_t2, s_t3))
    if not cfg.rot: top('s_mov_b32 s%d, 0' % s_rot)
    top('s_lshl_b32 s%d, s%d, 2' % (s_tb, s_t0)); top('s_and_b32 s%d, s%d, 3' % (s_t3, s_t1)); top('s_add_u32 s%d, s%d, s%d' % (s_tb, s_tb, s_t3))
    top('s_lshr_b32 s%d, s%d, 2' % (s_cb, s_t1))
    top('s_cmp_eq_u32 s%d, 0' % s_t2)
    top('s_cbranch_scc0 L_pathB')
    paths = []
    for br in range(2):
        p, vm, dco, dwq = gen_path(br)
        body(p, vm, br, dco, dwq)
        added = p.fix_hazards()
        errs = p.check_waits()
        if errs:
            for e in errs[:20]: print('WAITERR', e, file=sys.stderr)
            raise SystemExit('wait check failed')
        print('path', 'AB'[br], 'instructions:', sum(1 for i in p.ins if i.op), 'nop states added:', added, file=sys.stderr)
        paths.append(p)
    top.fix_hazards()
    hdr = open(os.path.join(os.path.dirname(os.path.abspath(__file__)), 'header.txt')).read()
    s = hdr
    s += '; @launch grid=(256,1,1) block=(256,1,1) lds=163840\n'
    s += '.amdgcn_target "amdgcn-amd-amdhsa--gfx950"\n.text\n.globl %s\n.p2align 8\n.type %s,@function\n%s:\n' % (KNAME, KNAME, KNAME)
    s += top.text()
    for p in paths: s += p.text()
    s += 'L_end:\n    s_endpgm\n'
    s += '.section .rodata,"a"\n.p2align 6\n.amdhsa_kernel %s\n  .amdhsa_next_free_vgpr 512\n  .amdhsa_next_free_sgpr 102\n  .amdhsa_accum_offset 256\n  .amdhsa_group_segment_fixed_size 0\n  .amdhsa_kernarg_size 88\n  .amdhsa_user_sgpr_count 2\n  .amdhsa_user_sgpr_kernarg_segment_ptr 1\n  .amdhsa_system_sgpr_workgroup_id_x 1\n.end_amdhsa_kernel\n' % KNAME
    return s


MF = 'v_mfma_f32_32x32x16_bf16'
vDO = 10
vOA = 2
vEW = 4
vER = 8
vOG = 18
s_rc, s_r4 = 7, 3

def cvt(p, d, a, b): p('v_cvt_pk_bf16_f32 v%d, v%d, v%d' % (d, a, b))

def wo_setup(p):
    p('v_lshrrev_b32 v27, 3, v%d' % v_lane); p('v_and_b32 v28, 7, v%d' % v_lane)
    p('v_bfe_u32 v29, v%d, 4, 1' % v_lane); p('v_lshlrev_b32 v29, 2, v29'); p('v_xor_b32 v28, v28, v29'); p('v_lshlrev_b32 v28, 4, v28')
    p('s_lshl_b32 s%d, s%d, 7' % (s_t0, s_cb)); p('v_add_u32 v28, s%d, v28' % s_t0)
    p('v_lshl_add_u32 v%d, v27, 10, v28' % vDO)
    for q in range(1, 4): p('v_add_u32 v%d, %d, v%d' % (vDO + q, 7 * q * 1024, vDO))
    p('s_lshl_b32 s%d, s%d, 16' % (s_wobase, s_w)); p('s_lshl_b32 s%d, s%d, 13' % (s_m0o, s_w))
    if cfg.worot:
        p('s_and_b32 s%d, s%d, 3' % (s_r, s_tb))
        p('s_lshr_b32 s%d, s%d, 1' % (s_t0, s_r)); p('s_lshl_b32 s%d, s%d, 18' % (s_t0, s_t0)); p('s_add_u32 s%d, s%d, s%d' % (s_wobase, s_wobase, s_t0))
        p('s_bitcmp1_b32 s%d, 0' % s_r)
        p('s_cselect_b32 s%d, s%d, s%d' % (s_t0, sWOB, sWOA)); p('s_cselect_b32 s%d, s%d, s%d' % (s_t1, sWOA, sWOB))
        p('s_cselect_b32 s%d, s%d, s%d' % (s_t2x, sWOB + 1, sWOA + 1)); p('s_cselect_b32 s%d, s%d, s%d' % (s_t3x, sWOA + 1, sWOB + 1))
        p('s_mov_b32 s%d, s%d' % (sWOA, s_t0)); p('s_mov_b32 s%d, s%d' % (sWOB, s_t1)); p('s_mov_b32 s%d, s%d' % (sWOA + 1, s_t2x)); p('s_mov_b32 s%d, s%d' % (sWOB + 1, s_t3x))
    else:
        p('s_mov_b32 s%d, 0' % s_r)

def dma_wo_ops(p, vm, part):
    if cfg.nowo:
        def f(): vm.mark('wo%d' % part)
        return [f]
    return dma_wo_ops_real(p, vm, part)

def dma_wo_ops_real(p, vm, part):
    srd_ = sWOA if part < 2 else sWOB
    ops = []
    for grp in range(2):
        def m(grp=grp):
            if part & 1: p('s_xor_b32 s%d, s%d, 262144' % (s_ow, s_wobase))
            else: p('s_mov_b32 s%d, s%d' % (s_ow, s_wobase))
            if grp: p('s_add_u32 s%d, s%d, 32768' % (s_ow, s_ow))
            p('s_add_u32 m0, s%d, %d' % (s_m0o, (part + 1) * SLOT + grp * 4096)); p('s_nop 0')
            vm.op('buffer_load_dwordx4 v%d, s[%d:%d], s%d offen lds' % (vDO, srd_, srd_ + 3, s_ow))
        ops.append(m)
        for q in range(1, 4):
            ops.append(lambda q=q, grp=grp: vm.op('buffer_load_dwordx4 v%d, s[%d:%d], s%d offen offset:%d lds' % (vDO + q, srd_, srd_ + 3, s_ow, q * 1024), 'wo%d' % part if (q == 3 and grp == 1) else None))
    return ops

def softmax16(p, P, F, tmp):
    m, S = tmp, tmp + 2
    p('v_max3_f32 v%d, v%d, v%d, v%d' % (m, P, P + 1, P + 2))
    p('v_max3_f32 v%d, v%d, v%d, v%d' % (m + 1, P + 3, P + 4, P + 5))
    p('v_max3_f32 v%d, v%d, v%d, v%d' % (m, m, P + 6, P + 7))
    p('v_max3_f32 v%d, v%d, v%d, v%d' % (m + 1, m + 1, P + 8, P + 9))
    p('v_max3_f32 v%d, v%d, v%d, v%d' % (m, m, P + 10, P + 11))
    p('v_max3_f32 v%d, v%d, v%d, v%d' % (m + 1, m + 1, P + 12, P + 13))
    p('v_max3_f32 v%d, v%d, v%d, v%d' % (m, m, P + 14, P + 15))
    p('v_max_f32 v%d, v%d, v%d' % (m, m, m + 1))
    p('v_mul_f32 v%d, s%d, v%d' % (m, s_log2e, m))
    for i in range(8):
        p('v_pk_fma_f32 v[%d:%d], v[%d:%d], s[%d:%d], v[%d:%d] op_sel_hi:[1,1,0] neg_lo:[0,0,1] neg_hi:[0,0,1]' % (P + 2 * i, P + 2 * i + 1, P + 2 * i, P + 2 * i + 1, s_log2e, s_log2e + 1, m, m + 1))
    for i in range(16): p('v_exp_f32 v%d, v%d' % (P + i, P + i))
    p('v_pk_add_f32 v[%d:%d], v[%d:%d], v[%d:%d]' % (S, S + 1, P, P + 1, P + 2, P + 3))
    p('v_pk_add_f32 v[%d:%d], v[%d:%d], v[%d:%d]' % (m, m + 1, P + 4, P + 5, P + 6, P + 7))
    p('v_pk_add_f32 v[%d:%d], v[%d:%d], v[%d:%d]' % (S, S + 1, S, S + 1, P + 8, P + 9))
    p('v_pk_add_f32 v[%d:%d], v[%d:%d], v[%d:%d]' % (m, m + 1, m, m + 1, P + 10, P + 11))
    p('v_pk_add_f32 v[%d:%d], v[%d:%d], v[%d:%d]' % (S, S + 1, S, S + 1, P + 12, P + 13))
    p('v_pk_add_f32 v[%d:%d], v[%d:%d], v[%d:%d]' % (m, m + 1, m, m + 1, P + 14, P + 15))
    p('v_pk_add_f32 v[%d:%d], v[%d:%d], v[%d:%d]' % (S, S + 1, S, S + 1, m, m + 1))
    p('v_add_f32 v%d, v%d, v%d' % (S, S, S + 1))
    p('v_rcp_f32 v%d, v%d' % (S, S))
    for i in range(8):
        p('v_pk_mul_f32 v[%d:%d], v[%d:%d], v[%d:%d] op_sel_hi:[1,0]' % (P + 2 * i, P + 2 * i + 1, P + 2 * i, P + 2 * i + 1, S, S + 1))
    for i in range(8): cvt(p, F + i, P + 2 * i, P + 2 * i + 1)

def phi_elu(p, T, n, F, tmp):
    for base in range(0, n // 2, 4):
        prs = range(base, min(base + 4, n // 2))
        for k, i in enumerate(prs):
            p('v_pk_mul_f32 v[%d:%d], v[%d:%d], s[%d:%d]' % (tmp + 2 * k, tmp + 2 * k + 1, T + 2 * i, T + 2 * i + 1, s_log2e, s_log2e + 1))
        for k, i in enumerate(prs):
            p('v_exp_f32 v%d, v%d clamp' % (tmp + 2 * k, tmp + 2 * k)); p('v_exp_f32 v%d, v%d clamp' % (tmp + 2 * k + 1, tmp + 2 * k + 1))
        for k, i in enumerate(prs):
            p('v_max_f32 v%d, 0, v%d' % (T + 2 * i, T + 2 * i)); p('v_max_f32 v%d, 0, v%d' % (T + 2 * i + 1, T + 2 * i + 1))
        for k, i in enumerate(prs):
            p('v_pk_add_f32 v[%d:%d], v[%d:%d], v[%d:%d]' % (T + 2 * i, T + 2 * i + 1, T + 2 * i, T + 2 * i + 1, tmp + 2 * k, tmp + 2 * k + 1))
        for k, i in enumerate(prs):
            p('v_pk_add_f32 v[%d:%d], v[%d:%d], s[%d:%d]' % (T + 2 * i, T + 2 * i + 1, T + 2 * i, T + 2 * i + 1, s_eps, s_eps + 1))
        for k, i in enumerate(prs): cvt(p, F + i, T + 2 * i, T + 2 * i + 1)

ACC = [96, 112]
def vprep(p, VB0, VB1):
    for blk in range(2):
        for i in range(8): cvt(p, VB0 + 8 * blk + i, vV[blk] + 2 * i, vV[blk] + 2 * i + 1)
    for blk in range(2):
        for i in range(8): p('v_cndmask_b32_e64 v%d, v%d, v%d, s[%d:%d]' % (VB1 + 8 * blk + i, vONES, VB0 + 8 * blk + i, s_mask16, s_mask16 + 1))
    for blk in range(2):
        for i in range(8): p('v_cndmask_b32_e64 v%d, v%d, v%d, s[%d:%d]' % (VB0 + 8 * blk + i, VB0 + 8 * blk + i, vONES, s_mask16, s_mask16 + 1))

def insert_at(main, ins):
    out = []; ins = sorted(ins, key=lambda x: x[0]); k = 0
    for idx, m in enumerate(main):
        while k < len(ins) and ins[k][0] <= idx: out.append(ins[k][1]); k += 1
        out.append(m)
    out += [x[1] for x in ins[k:]]
    return out

UNITS = [(0, 0), (0, 1), (1, 0), (1, 1)]
ST = 184
UNITS_K = [(0, 1), (1, 1), (0, 0), (1, 0)]
def feat_k_B(p, vm, side):
    KB, PB, G = 168, 184, 128
    VB0, VB1 = 32, 48
    TB = [64, 80]
    VB = [VB0, VB1]
    U = UNITS_K
    r = Rec()
    for un, (blk, u) in enumerate(U):
        for i in range(4): cvt(r, KB + 4 * un + i, vK[blk] + 8 * u + 2 * i, vK[blk] + 8 * u + 2 * i + 1)
    head = list(r.l)
    r = Rec(); vprep(r, VB0, VB1); vp = list(r.l)
    PM = ['%s %s, %s, %s, 0' % (MF, vr(PB + 16 * un, 16), vr(vWP + 4 * u, 4), vr(KB + 4 * un, 4)) for un, (blk, u) in enumerate(U)]
    stream = head[:6] + [PM[0]] + head[6:10] + [PM[1]] + head[10:14] + [PM[2]] + head[14:16] + vp[:4] + [PM[3]] + vp[4:]
    def TA(un): return '%s %s, %s, %s, 0' % (MF, vr(TB[un % 2], 16), vr(KB + 8 * (un % 2), 4), vr(vSEL, 4))
    def TBm(un): return '%s %s, %s, %s, %s' % (MF, vr(TB[un % 2], 16), vr(KB + 8 * (un % 2) + 4, 4), vr(vSEL + 4, 4), vr(TB[un % 2], 16))
    def CV(un):
        q = Rec()
        for i in range(8): cvt(q, G + i, TB[un % 2] + 2 * i, TB[un % 2] + 2 * i + 1)
        return q.l
    def AA(un):
        blk, u = U[un]; c = '0' if blk == 0 else vr(ACC[u], 16)
        return '%s %s, %s, %s, %s' % (MF, vr(ACC[u], 16), vr(G, 4), vr(VB[u] + 8 * blk, 4), c)
    def AB(un):
        blk, u = U[un]
        return '%s %s, %s, %s, %s' % (MF, vr(ACC[u], 16), vr(G + 4, 4), vr(VB[u] + 8 * blk + 4, 4), vr(ACC[u], 16))
    q = Rec(); exchange_addr(q); ad = q.l
    q = Rec(); exchange_scal(q, 1); sc = q.l
    for un in range(4):
        q = Rec(); softmax16(q, PB + 16 * un, KB + 8 * (un % 2), 136); sm = q.l
        ins = []
        if un >= 1:
            ins += [(2, TA(un - 1)), (10, TBm(un - 1))]
            ins += [(34 + k, c) for k, c in enumerate(CV(un - 1))]
            ins += [(46, AA(un - 1)), (54, AB(un - 1))]
        if un == 2: ins += [(12 + k, x) for k, x in enumerate(ad)]
        if un == 3:
            ins += [(14 + 2 * k, 'ds_write_b128 v%d, %s offset:%d' % (vEXW, vr(ACC[1] + 4 * k, 4), k * 1024)) for k in range(4)]
            ins += [(24 + k, x) for k, x in enumerate(sc)]
        stream += insert_at(sm, ins)
    merge(p, stream, side, 14, start=4)
    tags = ['v_mov_b32 v%d, v%d' % (ST + 4 * k + 3, vT) for k in range(4)]
    RC = 216
    p('s_nop 1'); p(TA(3))
    for t in tags: p(t)
    p(TBm(3))
    vm.wait('wq1', ' lgkmcnt(0)')
    stamp(p, 18)
    p('s_barrier')
    stamp(p, 19)
    for q in range(4): p('ds_read_b128 %s, v%d offset:%d' % (vr(RC + 4 * q, 4), vEXR, q * 1024))
    for c in CV(3): p(c)
    p('s_nop 1'); p(AA(3)); p(AB(3))
    exchange_finish(p, 1)

def feat_k_A(p, side):
    PK, VB0, VB1 = 168, 200, 216
    r = Rec()
    for blk in range(2): phi_elu(r, vK[blk], 16, PK + 8 * blk, 184)
    vprep(r, VB0, VB1)
    VB = [VB0, VB1]
    for k in range(2): r('v_mov_b32 v%d, v%d' % (ST + 4 * k + 3, vT))
    exchange_addr(r)
    for blk in range(2):
        for u in range(2):
            c = '0' if blk == 0 else vr(ACC[u], 16)
            r('%s %s, %s, %s, %s' % (MF, vr(ACC[u], 16), vr(PK + 8 * blk, 4), vr(VB[u] + 8 * blk, 4), c))
            r('%s %s, %s, %s, %s' % (MF, vr(ACC[u], 16), vr(PK + 8 * blk + 4, 4), vr(VB[u] + 8 * blk + 4, 4), vr(ACC[u], 16)))
    merge(p, r.l, side, 10, start=2)

FQ = 32
def feat_q_B(p, side, late):
    KB, PB = 168, 184
    r = Rec()
    for un, (blk, u) in enumerate(UNITS):
        for i in range(4): cvt(r, KB + 4 * un + i, vQ[blk] + 8 * u + 2 * i, vQ[blk] + 8 * u + 2 * i + 1)
    head = list(r.l)
    PM = ['%s %s, %s, %s, 0' % (MF, vr(PB + 16 * un, 16), vr(vWP + 4 * u, 4), vr(KB + 4 * un, 4)) for un, (blk, u) in enumerate(UNITS)]
    stream = head[:6] + [PM[0]] + head[6:10] + [PM[1]] + head[10:14] + [PM[2]] + head[14:16] + ['s_nop 3', PM[3]]
    for un in range(4):
        q = Rec(); softmax16(q, PB + 16 * un, FQ + 8 * un, 136); stream += q.l
    n = len(stream)
    stream = insert_at(stream, [(n - cfg.h2lead + k, x) for k, x in enumerate(late)])
    merge(p, stream, side, 9, start=2)

def feat_q_A(p, side, late):
    r = Rec()
    for blk in range(2):
        for u in range(2): phi_elu(r, vQ[blk] + 8 * u, 8, FQ + 4 * (2 * blk + u), 184)
    merge(p, r.l, side, 6, start=1)
    for x in late: emit(p, x)

vEXW, vEXR, vH1S = 28, 29, 30
def exchange_addr(p):
    p('v_lshlrev_b32 v27, 4, v%d' % v_lane)
    p('s_lshl_b32 s%d, s%d, 12' % (s_t0, s_w)); p('s_add_u32 s%d, s%d, %d' % (s_t0, s_t0, 3 * SLOT))
    p('v_add_u32 v%d, s%d, v27' % (vEXW, s_t0))
    p('s_xor_b32 s%d, s%d, 4096' % (s_t0, s_t0))
    p('v_xor_b32 v27, 256, v27')
    p('v_add_u32 v%d, s%d, v27' % (vEXR, s_t0))
    p('v_lshrrev_b32 v%d, 4, v%d' % (vH1S, v_lane)); p('v_lshlrev_b32 v%d, 12, v%d' % (vH1S, vH1S)); p('v_and_b32 v27, 15, v%d' % v_lane); p('v_lshl_add_u32 v%d, v27, 4, v%d' % (vH1S, vH1S))

TZ = 200
def exchange_scal(p, br):
    p('s_lshl_b32 s%d, s%d, 2' % (s_head, s_jj)); p('s_add_u32 s%d, s%d, s%d' % (s_head, s_head, s_w)); p('s_add_u32 s%d, s%d, %d' % (s_head, s_head, 32 * br))
    p('s_lshl_b32 s%d, s%d, 16' % (s_t2, s_head)); p('s_lshl_b32 s%d, s%d, 8' % (s_t1, s_i)); p('s_add_u32 s%d, s%d, s%d' % (s_t2, s_t2, s_t1)); p('s_add_u32 s%d, s%d, %d' % (s_t2, s_t2, WS_INB))

def exchange_finish(p, br):
    nq = 4 if br == 1 else 2
    nh = 2 * nq
    RC = 216
    pos = lambda r: ST + 4 * (r >> 1) + (r & 1)
    p('s_waitcnt lgkmcnt(0)')
    for r in range(4 * nq):
        d = pos(r) if r < nh else TZ + r - nh
        p('v_add_f32 v%d, v%d, v%d' % (d, ACC[0] + r, RC + r))
    nd = 8 if br == 1 else 4
    for r in range(nd): p('v_permlane16_swap_b32 v%d, v%d' % (pos(r), TZ + r))
    for m in range(nd // 2): p('v_cndmask_b32_e64 v%d, v%d, v%d, s[%d:%d]' % (ST + 4 * m + 2, TZ + 2 * m, TZ + 2 * m + 1, s_odd, s_odd + 1))

def exchange(p, vm, br):
    nq = 2
    RC = 216
    src1 = ACC[1] + 8
    for q in range(nq): p('ds_write_b128 v%d, %s offset:%d' % (vEXW, vr(src1 + 4 * q, 4), q * 1024))
    exchange_scal(p, br)
    vm.wait('wq1', ' lgkmcnt(0)')
    stamp(p, 18)
    p('s_barrier')
    stamp(p, 19)
    for q in range(nq): p('ds_read_b128 %s, v%d offset:%d' % (vr(RC + 4 * q, 4), vEXR, q * 1024))
    exchange_finish(p, br)

def hop1_store_ops(p, vm, br):
    nm = 4 if br == 1 else 2
    ops = []
    for m in range(nm):
        def f(m=m):
            vm.op('buffer_store_dwordx4 %s, v%d, s[%d:%d], s%d offen sc1' % (vr(ST + 4 * m, 4), vH1S, sWS, sWS + 3, s_t2))
            if m < nm - 1: p('s_add_u32 s%d, s%d, 16384' % (s_t2, s_t2))
        ops.append(f)
    return ops

def spin_tail(p, name):
    p('s_cbranch_vccz L_%s_ok' % name)
    p('s_sub_u32 s%d, s%d, 1' % (s_spin, s_spin))
    p('s_cmp_gt_i32 s%d, 0' % s_spin)
    p('s_cbranch_scc1 L_%s' % name)
    p.label('L_%s_ok' % name)

def tagcheck(p, regs, t0, t1):
    regs = list(regs)
    p('v_min_u32 v%d, v%d, v%d' % (t0, regs[0], regs[1])); p('v_max_u32 v%d, v%d, v%d' % (t1, regs[0], regs[1]))
    k = 2
    while k + 1 < len(regs):
        p('v_min3_u32 v%d, v%d, v%d, v%d' % (t0, t0, regs[k], regs[k + 1])); p('v_max3_u32 v%d, v%d, v%d, v%d' % (t1, t1, regs[k], regs[k + 1])); k += 2
    if k < len(regs):
        p('v_min_u32 v%d, v%d, v%d' % (t0, t0, regs[k])); p('v_max_u32 v%d, v%d, v%d' % (t1, t1, regs[k]))
    p('v_xor_b32 v%d, v%d, v%d' % (t0, vT, t0)); p('v_xor_b32 v%d, v%d, v%d' % (t1, vT, t1)); p('v_or_b32 v%d, v%d, v%d' % (t0, t0, t1))
    p('v_cmp_ne_u32 vcc, 0, v%d' % t0)

H1 = 184
s_h1a = 98
def hop1_load_ops(p, vm, br, retry=False):
    ops = []
    def addr():
        p('s_lshl_b32 s%d, s%d, 16' % (s_h1a, s_head)); p('s_lshl_b32 s%d, s%d, 12' % (s_t1, s_i)); p('s_add_u32 s%d, s%d, s%d' % (s_h1a, s_h1a, s_t1)); p('s_add_u32 s%d, s%d, %d' % (s_h1a, s_h1a, WS_INB))
        p('v_lshlrev_b32 v27, 4, v%d' % v_lane)
    if not retry: ops.append(addr)
    for n in range(4):
        ops.append(lambda n=n: vm.op('buffer_load_dwordx4 %s, v27, s[%d:%d], s%d offen offset:%d sc1' % (vr(H1 + 4 * n, 4), sWS, sWS + 3, s_h1a, n * 1024), 'h1l' if n == 3 else None))
    return ops

def hop1_reduce(p, vm, br):
    L = 'AB'[br]; LD = H1
    vm.wait('h1l')
    if br == 0:
        p('s_cmp_ge_u32 s%d, 8' % s_i); p('s_cbranch_scc1 L_h1skip')
    p('s_mov_b32 s%d, %d' % (s_spin, cfg.spin))
    tagcheck(p, [LD + 4 * n + 3 for n in range(4)], 28, 29)
    p('s_cbranch_vccz L_h1%s_ok' % L)
    p.label('L_h1%s' % L)
    for f in hop1_load_ops(p, vm, br, retry=True): f()
    vm.wait_all()
    tagcheck(p, [LD + 4 * n + 3 for n in range(4)], 28, 29)
    spin_tail(p, 'h1%s' % L)
    a, b, z, t = 216, 217, 218, 219
    p('v_add_f32 v%d, v%d, v%d' % (a, LD, LD + 4)); p('v_add_f32 v%d, v%d, v%d' % (b, LD + 1, LD + 5)); p('v_add_f32 v%d, v%d, v%d' % (z, LD + 2, LD + 6))
    for n in range(2, 4):
        p('v_add_f32 v%d, v%d, v%d' % (a, a, LD + 4 * n)); p('v_add_f32 v%d, v%d, v%d' % (b, b, LD + 4 * n + 1)); p('v_add_f32 v%d, v%d, v%d' % (z, z, LD + 4 * n + 2))
    p('v_mov_b32 v%d, v%d' % (t, z))
    p('s_lshl_b32 s%d, s%d, 11' % (s_t0, s_head)); p('s_lshl_b32 s%d, s%d, 7' % (s_t1, s_i)); p('s_add_u32 s%d, s%d, s%d' % (s_t0, s_t0, s_t1)); p('s_add_u32 s%d, s%d, %d' % (s_t0, s_t0, WS_OUTK))
    p('v_permlane32_swap_b32 v%d, v%d' % (a, b))
    p('v_permlane32_swap_b32 v%d, v%d' % (z, t))
    p('v_add_f32 v%d, v%d, v%d' % (a, a, b)); p('v_add_f32 v%d, v%d, v%d' % (z, z, t))
    p('v_lshlrev_b32 v27, 4, v%d' % v_lane)
    p('v_mov_b32 v%d, v%d' % (b, a)); p('v_mov_b32 v%d, v%d' % (t, z))
    p('v_mov_b32 v223, v%d' % vT)
    p('s_nop 0')
    p('v_permlane16_swap_b32 v%d, v%d' % (a, b))
    p('v_permlane16_swap_b32 v%d, v%d' % (z, t))
    p('v_add_f32 v%d, v%d, v%d' % (a, a, b)); p('v_add_f32 v%d, v%d, v%d' % (z, z, t))
    p('v_mov_b32 v%d, v%d' % (b, a))
    p('s_nop 0')
    p('v_mov_b32_dpp v%d, v%d quad_perm:[1,1,1,1] row_mask:0xf bank_mask:0xf' % (t, z))
    p('v_permlane32_swap_b32 v%d, v%d' % (a, b))
    p('v_mov_b32_dpp v%d, v%d quad_perm:[0,0,0,0] row_mask:0xf bank_mask:0xf' % (222, z))
    cvt(p, 220, a, b)
    cvt(p, 222, 222, t)
    p('v_mov_b32_dpp v221, v220 row_ror:8 row_mask:0xf bank_mask:0xf')
    p('s_mov_b32 exec_lo, 0xff'); p('s_mov_b32 exec_hi, 0')
    vm.op('buffer_store_dwordx4 v[220:223], v27, s[%d:%d], s%d offen sc1' % (sWS, sWS + 3, s_t0))
    p('s_mov_b64 exec, -1')
    if br == 0: p.label('L_h1skip')

KVA = 216
H2 = 64
s_h2a, s_h2b = 100, 101
s_hi8 = 98
def hop2_load_ops(p, vm, br, retry=False):
    nm = 4 if br == 1 else 2
    ops = []
    def addr():
        p('s_lshl_b32 s%d, s%d, 11' % (s_h2a, s_head)); p('s_add_u32 s%d, s%d, %d' % (s_h2a, s_h2a, WS_OUTK)); p('s_xor_b32 s%d, s%d, 2048' % (s_h2b, s_h2a))
        p('s_mov_b32 s%d, 0xff00ff00' % s_hi8); p('s_mov_b32 s%d, 0xff00ff00' % (s_hi8 + 1))
    def addr2():
        p('v_lshrrev_b32 v31, 4, v%d' % v_lane); p('v_lshlrev_b32 v31, 7, v31'); p('v_and_b32 v30, 7, v%d' % v_lane); p('v_lshl_add_u32 v31, v30, 4, v31')
    if not retry: ops += [addr, addr2]
    for u in range(2):
        for m in range(nm):
            r = H2 + 16 * u + 4 * m
            ops.append(lambda r=r, u=u, m=m: vm.op('buffer_load_dwordx4 %s, v31, s[%d:%d], s%d offen offset:%d sc1' % (vr(r, 4), sWS, sWS + 3, s_h2a if u == 0 else s_h2b, m * 512), 'h2l' if (u == 1 and m == nm - 1) else None))
    return ops

def hop2_gather(p, vm, br):
    L = 'AB'[br]; nm = 4 if br == 1 else 2
    tags = [H2 + 16 * u + 4 * m + 3 for u in range(2) for m in range(nm)]
    p('s_mov_b32 s%d, %d' % (s_spin, cfg.spin))
    vm.wait('h2l')
    tagcheck(p, tags, 28, 29)
    p('s_cbranch_vccz L_h2%s_ok' % L)
    p.label('L_h2%s' % L)
    for f in hop2_load_ops(p, vm, br, retry=True): f()
    vm.wait_all()
    tagcheck(p, tags, 28, 29)
    spin_tail(p, 'h2%s' % L)
    for u in range(2):
        for m in range(nm): p('v_cndmask_b32_e64 v%d, v%d, v%d, s[%d:%d]' % (KVA + 8 * u + m, H2 + 16 * u + 4 * m, H2 + 16 * u + 4 * m + 1, s_hi8, s_hi8 + 1))
        for m in range(nm): p('v_mov_b32 v%d, v%d' % (KVA + 8 * u + nm + m, H2 + 16 * u + 4 * m + 2))
    for u in range(2):
        for m in range(nm): p('v_permlane16_swap_b32 v%d, v%d' % (KVA + 8 * u + m, KVA + 8 * u + nm + m))

OF = 232
def o_addr(p):
    p('s_lshl_b32 s%d, s%d, 2' % (s_t0, s_i)); p('s_lshl_b32 s%d, s%d, 1' % (s_t1, s_th)); p('s_add_u32 s%d, s%d, s%d' % (s_t0, s_t0, s_t1))
    p('s_lshl_b32 s%d, s%d, 16' % (s_t0, s_t0)); p('s_lshl_b32 s%d, s%d, 10' % (s_t1, s_head)); p('s_add_u32 s%d, s%d, s%d' % (s_t0, s_t0, s_t1)); p('s_add_u32 s%d, s%d, %d' % (s_t0, s_t0, WS_O))
    p('s_xor_b32 s%d, s%d, 1024' % (s_t1, s_t0))
    p('s_add_u32 s%d, s%d, 65536' % (s_t2, s_t0)); p('s_add_u32 s%d, s%d, 65536' % (s_t3, s_t1))

def o_warm_ops(p, vm):
    def a():
        o_addr(p); p('v_lshlrev_b32 v27, 4, v%d' % v_lane)
    ops = [a]
    for k, sr_ in enumerate((s_t0, s_t1, s_t2, s_t3)):
        ops.append(lambda k=k, sr_=sr_: vm.op('buffer_load_dwordx4 v[%d:%d], v27, s[%d:%d], s%d offen %s' % (232 + 4 * k, 235 + 4 * k, sWS, sWS + 3, sr_, cfg.owarmfl)))
    return ops

def o_phase(p, vm, br):
    NB = [64, 80, 96, 112]
    for un, (blk, u) in enumerate(UNITS):
        if br == 1:
            p('%s %s, %s, %s, 0' % (MF, vr(NB[un], 16), vr(KVA + 8 * u, 4), vr(FQ + 8 * un, 4)))
            p('%s %s, %s, %s, %s' % (MF, vr(NB[un], 16), vr(KVA + 8 * u + 4, 4), vr(FQ + 8 * un + 4, 4), vr(NB[un], 16)))
        else:
            p('%s %s, %s, %s, 0' % (MF, vr(NB[un], 16), vr(KVA + 8 * u, 4), vr(FQ + 4 * un, 4)))
        if un == 0:
            p('s_lshl_b32 s%d, s%d, 2' % (s_t0, s_i)); p('s_lshl_b32 s%d, s%d, 1' % (s_t1, s_th)); p('s_add_u32 s%d, s%d, s%d' % (s_t0, s_t0, s_t1))
            p('s_lshl_b32 s%d, s%d, 16' % (s_t0, s_t0)); p('s_lshl_b32 s%d, s%d, 10' % (s_t1, s_head)); p('s_add_u32 s%d, s%d, s%d' % (s_t0, s_t0, s_t1)); p('s_add_u32 s%d, s%d, %d' % (s_t0, s_t0, WS_O))
            p('s_xor_b32 s%d, s%d, 1024' % (s_t1, s_t0))
            p('s_add_u32 s%d, s%d, 65536' % (s_t2, s_t0)); p('s_add_u32 s%d, s%d, 65536' % (s_t3, s_t1))
            p('v_lshlrev_b32 v27, 4, v%d' % v_lane)
    soffs = {(0, 0): s_t0, (0, 1): s_t1, (1, 0): s_t2, (1, 1): s_t3}
    for un, (blk, u) in enumerate(UNITS):
        N = NB[un]; num = N; den = N + 8
        p('v_add_f32 v%d, s%d, v%d' % (den, s_eps, den))
        p('v_rcp_f32 v%d, v%d' % (den, den))
        for i in range(4):
            p('v_pk_mul_f32 v[%d:%d], v[%d:%d], v[%d:%d] op_sel_hi:[1,0]' % (num + 2 * i, num + 2 * i + 1, num + 2 * i, num + 2 * i + 1, den, den + 1))
        for i in range(4): cvt(p, OF + 4 * un + i, num + 2 * i, num + 2 * i + 1)
        vm.op('buffer_store_dwordx4 %s, v27, s[%d:%d], s%d offen sc1' % (vr(OF + 4 * un, 4), sWS, sWS + 3, soffs[(blk, u)]), 'ost')
    p('s_lshl_b32 s%d, s%d, 1' % (s_t0, s_i)); p('s_add_u32 s%d, s%d, s%d' % (s_t0, s_t0, s_th)); p('s_lshl_b32 s%d, s%d, 5' % (s_t0, s_t0))
    p('s_lshl_b32 s%d, s%d, 1' % (s_t1, s_jj)); p('s_add_u32 s%d, s%d, s%d' % (s_t0, s_t0, s_t1)); p('s_add_u32 s%d, s%d, s%d' % (s_t0, s_t0, s_hp))
    p('s_add_u32 s%d, s%d, %d' % (s_t0, s_t0, 16 * br)); p('s_lshl_b32 s%d, s%d, 7' % (s_t0, s_t0)); p('s_add_u32 s%d, s%d, %d' % (s_h2a, s_t0, WS_FLAG))

def o_flag(p, vm):
    p('v_mov_b32 v27, 0')
    vm.wait('ost')
    p('s_mov_b64 exec, 1')
    vm.op('buffer_store_dword v%d, v27, s[%d:%d], s%d offen sc1' % (vT, sWS, sWS + 3, s_h2a))
    p('s_mov_b64 exec, -1')

def gate_load_ops(p, vm):
    X, Gw = GX, GW
    def a0():
        p('s_lshl_b32 s%d, s%d, 7' % (s_t0, s_i)); p('s_lshl_b32 s%d, s%d, 4' % (s_t1, s_jj)); p('s_add_u32 s%d, s%d, s%d' % (s_t0, s_t0, s_t1))
        p('s_lshl_b32 s%d, s%d, 2' % (s_t1, s_w)); p('s_add_u32 s%d, s%d, s%d' % (s_t0, s_t0, s_t1))
        p('s_lshl_b32 s%d, s%d, 10' % (s_t2, s_t0))
    def a1():
        p('s_lshr_b32 s%d, s%d, 2' % (s_t3, s_t0)); p('s_lshl_b32 s%d, s%d, 7' % (s_t3, s_t3)); p('s_add_u32 s%d, s%d, %d' % (s_b + 1, s_t3, WS_G))
        p('v_and_b32 v27, 15, v%d' % v_lane); p('v_lshlrev_b32 v27, 4, v27')
    def a2():
        p('v_lshrrev_b32 v28, 4, v%d' % v_lane); p('v_lshl_add_u32 v28, v28, 10, v27')
    ops = [a0, a1, a2]
    for q in range(4):
        ops.append(lambda q=q: vm.op('buffer_load_dwordx4 %s, v28, s[%d:%d], s%d offen offset:%d' % (vr(X + 4 * q, 4), sX, sX + 3, s_t2, q * 256)))
    for q in range(4):
        ops.append(lambda q=q: vm.op('buffer_load_dwordx4 %s, v27, s[%d:%d], 0 offen offset:%d' % (vr(Gw + 4 * q, 4), sMISC, sMISC + 3, q * 256), 'gate' if q == 3 else None))
    return ops

def gate_finish(p, vm):
    X, Gw = GX, GW
    vm.wait('gate')
    acc = 200
    p('v_mov_b32 v%d, 0' % acc); p('v_mov_b32 v%d, 0' % (acc + 1))
    for k in range(16):
        p('v_lshlrev_b32 v202, 16, v%d' % (X + k)); p('v_lshlrev_b32 v203, 16, v%d' % (Gw + k))
        p('v_and_b32 v204, 0xffff0000, v%d' % (X + k)); p('v_and_b32 v205, 0xffff0000, v%d' % (Gw + k))
        p('v_fmac_f32 v%d, v202, v203' % acc); p('v_fmac_f32 v%d, v204, v205' % (acc + 1))
    p('v_add_f32 v%d, v%d, v%d' % (acc, acc, acc + 1))
    for sh in (8, 4, 2, 1):
        p('v_add_f32_dpp v%d, v%d, v%d row_ror:%d row_mask:0xf bank_mask:0xf' % (acc, acc, acc, sh))
    p('v_mul_f32 v%d, s%d, v%d' % (acc, s_log2e, acc))
    p('v_exp_f32_e64 v%d, -v%d' % (acc, acc))
    p('v_add_f32 v%d, 1.0, v%d' % (acc, acc))
    p('v_rcp_f32 v%d, v%d' % (acc, acc))
    p('v_mov_b32 v%d, v%d' % (acc + 1, vT))
    p('v_lshrrev_b32 v27, 4, v%d' % v_lane); p('v_lshlrev_b32 v27, 3, v27')
    p('s_mov_b32 exec_lo, 0x00010001'); p('s_mov_b32 exec_hi, 0x00010001')
    vm.op('buffer_store_dwordx2 v[%d:%d], v27, s[%d:%d], s%d offen sc1' % (acc, acc + 1, sWS, sWS + 3, s_b + 1))
    p('s_mov_b64 exec, -1')

def p3_setup(p):
    p('v_lshrrev_b32 v27, 5, v%d' % v_lane); p('v_lshlrev_b32 v27, 2, v27')
    p('v_bfe_u32 v28, v%d, 2, 2' % v_lane); p('v_add_u32 v27, v27, v28'); p('v_lshlrev_b32 v27, 7, v27')
    p('v_bfe_u32 v29, v%d, 4, 1' % v_lane); p('v_lshl_add_u32 v27, v29, 5, v27')
    p('v_and_b32 v29, 3, v%d' % v_lane); p('v_lshl_add_u32 v27, v29, 3, v27')
    p('s_and_b32 s%d, s%d, 1' % (s_t0, s_r)); p('s_xor_b32 s%d, s%d, s%d' % (s_t0, s_t0, s_hp))
    p('s_lshl_b32 s%d, s%d, 16' % (s_t0, s_t0)); p('s_add_u32 s%d, s%d, %d' % (s_t0, s_t0, SLOT)); p('v_add_u32 v27, s%d, v27' % s_t0)
    p('v_lshrrev_b32 v28, 1, v28')
    p('v_lshl_add_u32 v%d, v28, 6, v27' % vOA)
    p('v_xor_b32 v28, 1, v28'); p('v_lshl_add_u32 v%d, v28, 6, v27' % (vOA + 1))
    p('v_and_b32 v27, 31, v%d' % v_lane)
    p('s_lshl_b32 s%d, s%d, 14' % (s_t0, s_hp)); p('s_lshl_b32 s%d, s%d, 13' % (s_t1, s_th)); p('s_add_u32 s%d, s%d, s%d' % (s_t0, s_t0, s_t1))
    p('v_lshlrev_b32 v28, 8, v27'); p('v_add_u32 v28, s%d, v28' % s_t0)
    p('v_and_b32 v29, 7, v27'); p('v_lshrrev_b32 v27, 5, v%d' % v_lane); p('v_xor_b32 v29, v29, v27')
    for q in range(4):
        p('v_xor_b32 v27, %d, v29' % (2 * q)); p('v_lshl_add_u32 v%d, v27, 4, v28' % (vEW + q))
    p('v_lshrrev_b32 v27, 3, v%d' % v_lane); p('v_and_b32 v28, 7, v%d' % v_lane); p('v_lshlrev_b32 v28, 1, v28')
    p('s_lshl_b32 s%d, s%d, 12' % (s_t0, s_w))
    p('v_lshlrev_b32 v29, 8, v27'); p('v_add_u32 v29, s%d, v29' % s_t0)
    for x in range(2):
        p('v_or_b32 v30, %d, v28' % x); p('v_xor_b32 v30, v30, v27'); p('v_lshl_add_u32 v%d, v30, 4, v29' % (vER + x))
    p('v_and_b32 v28, 7, v%d' % v_lane); p('v_lshlrev_b32 v28, 4, v28'); p('v_lshl_add_u32 v14, v27, 10, v28')
    p('v_and_b32 v15, 15, v%d' % v_lane); p('v_lshlrev_b32 v15, 7, v15')
    p('v_lshlrev_b32 v16, 4, v%d' % v_lane)
    p('v_and_b32 v28, 31, v%d' % v_lane); p('v_lshrrev_b32 v29, 2, v28'); p('v_lshlrev_b32 v29, 7, v29'); p('v_and_b32 v28, 3, v28'); p('v_lshl_add_u32 v17, v28, 3, v29')

s_fl, s_oa, s_ga, s_out0, s_out1 = 47, 48, 49, 50, 51
def p3_scalars(p):
    p('s_lshl_b32 s%d, s%d, 1' % (s_t0, s_tb)); p('s_add_u32 s%d, s%d, s%d' % (s_t0, s_t0, s_hp)); p('s_lshl_b32 s%d, s%d, 11' % (s_t0, s_t0)); p('s_add_u32 s%d, s%d, %d' % (s_fl, s_t0, WS_FLAG))
    p('s_lshl_b32 s%d, s%d, 1' % (s_t0, s_tb)); p('s_add_u32 s%d, s%d, s%d' % (s_t0, s_t0, s_th)); p('s_lshl_b32 s%d, s%d, 16' % (s_t1, s_t0))
    p('s_lshl_b32 s%d, s%d, 15' % (s_t2, s_hp)); p('s_add_u32 s%d, s%d, s%d' % (s_t1, s_t1, s_t2)); p('s_add_u32 s%d, s%d, %d' % (s_oa, s_t1, WS_O))
    p('s_lshl_b32 s%d, s%d, 10' % (s_t0, s_t0)); p('s_add_u32 s%d, s%d, %d' % (s_ga, s_t0, WS_G))
    p('s_lshl_b32 s%d, s%d, 6' % (s_t0, s_tb)); p('s_lshl_b32 s%d, s%d, 4' % (s_t1, s_w)); p('s_add_u32 s%d, s%d, s%d' % (s_t0, s_t0, s_t1)); p('s_lshl_b32 s%d, s%d, 10' % (s_t0, s_t0))
    p('s_lshl_b32 s%d, s%d, 7' % (s_t1, s_cb)); p('s_add_u32 s%d, s%d, s%d' % (s_out0, s_t0, s_t1)); p('s_add_u32 s%d, s%d, 8192' % (s_out1, s_out0))
    if cfg.orot: p('s_mov_b32 s%d, s%d' % (s_rc, s_cb))
    else: p('s_mov_b32 s%d, 0' % s_rc)
    p('s_lshr_b32 s%d, s%d, 1' % (s_r4, s_r)); p('s_lshl_b32 s%d, s%d, 2' % (s_r4, s_r4))

def p3(p, vm, br):
    L = 'AB'[br]
    OACC = [64, 80]
    GV = 96
    vm.op('buffer_load_dwordx2 v[%d:%d], v17, s[%d:%d], s%d offen sc1' % (GV, GV + 1, sWS, sWS + 3, s_ga), 'g')
    p('s_mov_b32 s%d, %d' % (s_spin, cfg.spin))
    p.label('L_fl%s' % L)
    vm.op('buffer_load_dword v28, v15, s[%d:%d], s%d offen sc1' % (sWS, sWS + 3, s_fl))
    vm.wait_all()
    p('v_cmp_ne_u32 vcc, v28, v%d' % vT)
    spin_tail(p, 'fl%s' % L)
    if cfg.fine == 4:
        stamp(p, 44)
        p('v_writelane_b32 v255, s%d, 45' % s_spin)
    p('s_barrier')
    stamp(p, 15)
    def oload(h):
        g, q = h >> 2, h & 3
        if q == 0:
            p('s_add_u32 s%d, s%d, %d' % (s_t2, s_rc, g)); p('s_and_b32 s%d, s%d, 7' % (s_t2, s_t2))
            p('s_add_u32 s%d, s%d, s%d' % (s_t2, s_t2, s_r4)); p('s_and_b32 s%d, s%d, 7' % (s_t2, s_t2)); p('s_lshl_b32 s%d, s%d, 12' % (s_t2, s_t2))
            p('s_add_u32 s%d, s%d, s%d' % (s_t1, s_oa, s_t2))
        vm.op('buffer_load_dwordx4 %s, v16, s[%d:%d], s%d offen offset:%d sc1' % (ar(4 * h, 4), sWS, sWS + 3, s_t1, q * 1024), 'o%d' % h)
    LA = cfg.ola
    for h in range(LA): oload(h)
    def gaddr(g):
        d = vOG + 2 * (g & 1)
        return ['s_add_u32 s%d, s%d, %d' % (s_t0, s_rc, g), 's_and_b32 s%d, s%d, 7' % (s_t0, s_t0), 's_lshl_b32 s%d, s%d, 13' % (s_t0, s_t0),
                'v_add_u32 v%d, s%d, v%d' % (d, s_t0, vOA), 'v_add_u32 v%d, s%d, v%d' % (d + 1, s_t0, vOA + 1)]
    def reads(h):
        wf = vWF + 8 * (h % 3); g = h >> 2
        pre = gaddr(g) if (h & 3) == 0 else []
        return pre + ['ds_read_b64_tr_b16 v[%d:%d], v%d offset:%d' % (wf + 4 * ct + 2 * rd, wf + 4 * ct + 2 * rd + 1, vOG + 2 * (g & 1) + ct, (h & 3) * 2048 + rd * 1024) for ct in range(2) for rd in range(2)]
    for h in range(2):
        for o in reads(h): p(o)
    if cfg.fine == 3: stamp(p, 41)
    p('s_mov_b32 s%d, %d' % (s_spin, cfg.spin))
    p('v_cmp_ne_u32 vcc, v%d, v%d' % (GV + 1, vT))
    p('s_cbranch_vccz L_g%s_ok' % L)
    p.label('L_g%s' % L)
    vm2 = VM(p)
    vm2.op('buffer_load_dwordx2 v[%d:%d], v17, s[%d:%d], s%d offen sc1' % (GV, GV + 1, sWS, sWS + 3, s_ga))
    vm2.wait_all()
    p('v_cmp_ne_u32 vcc, v%d, v%d' % (GV + 1, vT))
    spin_tail(p, 'g%s' % L)
    p('v_sub_f32 v%d, 1.0, v%d' % (GV + 1, GV))
    p('s_cmp_eq_u32 s%d, 0' % s_hp)
    p('s_cselect_b64 vcc, 0, -1')
    p('v_cndmask_b32 v%d, v%d, v%d, vcc' % (GV, GV, GV + 1))
    for h in range(32):
        wf = vWF + 8 * (h % 3)
        vm.wait('o%d' % h, ' lgkmcnt(%d)' % (4 if h < 31 else 0))
        if cfg.fine == 3 and h in (0, 8, 16, 24): stamp(p, 42 + h // 8)
        R = reads(h + 2) if h + 2 < 32 else []
        for ct in range(2):
            c = '0' if h == 0 else vr(OACC[ct], 16)
            p('%s %s, %s, %s, %s' % (MF, vr(OACC[ct], 16), vr(wf + 4 * ct, 4), ar(4 * h, 4), c))
            k = len(R) - 2
            for o in (R[:k] if ct == 0 else R[k:]): p(o)
            if ct == 0 and h + LA < 32: oload(h + LA)
    stamp(p, 16)
    for ct in range(2):
        for q in range(4):
            for i in range(2 * q, 2 * q + 2):
                p('v_pk_mul_f32 v[%d:%d], v[%d:%d], v[%d:%d] op_sel_hi:[1,0]' % (OACC[ct] + 2 * i, OACC[ct] + 2 * i + 1, OACC[ct] + 2 * i, OACC[ct] + 2 * i + 1, GV, GV + 1))
            p('ds_write_b128 v%d, %s offset:%d' % (vEW + q, vr(OACC[ct] + 4 * q, 4), 128 * ct))
    p('s_waitcnt lgkmcnt(0)')
    stamp(p, 17)
    p('s_barrier')
    RD = 168
    for a in range(2):
        for brr in range(2):
            for x in range(2):
                p('ds_read_b128 %s, v%d offset:%d' % (vr(RD + 16 * a + 8 * brr + 4 * x, 4), vER + x, a * 2048 + brr * 16384))
    for a in range(2):
        p('s_waitcnt lgkmcnt(%d)' % (4 if a == 0 else 0))
        r = RD + 16 * a
        for i in range(4): p('v_pk_add_f32 v[%d:%d], v[%d:%d], v[%d:%d]' % (r + 2 * i, r + 2 * i + 1, r + 2 * i, r + 2 * i + 1, r + 8 + 2 * i, r + 8 + 2 * i + 1))
        for i in range(4): cvt(p, r + 8 + i, r + 2 * i, r + 2 * i + 1)
        vm.op('buffer_store_dwordx4 %s, v14, s[%d:%d], s%d offen' % (vr(r + 8, 4), sOUT, sOUT + 3, s_out0 if a == 0 else s_out1))
    p('s_cmp_eq_u32 s%d, 0' % s_b); p('s_cbranch_scc0 L_noep%s' % L)
    p('s_cmp_eq_u32 s%d, 0' % s_w); p('s_cbranch_scc0 L_noep%s' % L)
    p('v_mov_b32 v27, 0'); p('s_mov_b64 exec, 1')
    vm.op('buffer_store_dword v%d, v27, s[%d:%d], 0 offen sc1' % (vT, sWS, sWS + 3))
    p('s_mov_b64 exec, -1')
    p.label('L_noep%s' % L)

def rstamp(p, idx):
    if not cfg.stamps: return
    p('s_memrealtime s[%d:%d]' % (s_stamp, s_stamp + 1))
    p('s_waitcnt lgkmcnt(0)')
    p('v_writelane_b32 v255, s%d, %d' % (s_stamp, idx))

def write_stamps(p, vm):
    if not cfg.stamps: return
    rstamp(p, 12)
    if cfg.stamps == 2:
        L = 'x%d' % len(p.ins)
        p('s_load_dwordx2 s[4:5], s[0:1], 72'); p('s_waitcnt lgkmcnt(0)')
        p('s_mov_b32 s%d, s4' % sDBG); p('s_and_b32 s%d, s5, 0xffff' % (sDBG + 1)); p('s_mov_b32 s%d, 256' % (sDBG + 2)); p('s_mov_b32 s%d, 0x00020000' % (sDBG + 3))
        p('s_cmp_eq_u32 s%d, 0' % s_w); p('s_cbranch_scc0 L_ds2' + L)
        p('v_lshlrev_b32 v27, 2, v%d' % v_lane)
        p('s_cmp_eq_u32 s%d, 8' % s_b); p('s_cbranch_scc0 L_ds1' + L)
        p('s_mov_b64 exec, 0x1fff')
        vm.op('buffer_store_dword v255, v27, s[%d:%d], 0 offen' % (sDBG, sDBG + 3))
        p('s_mov_b64 exec, -1')
        p.label('L_ds1' + L)
        p('s_cmp_eq_u32 s%d, 255' % s_b); p('s_cbranch_scc0 L_ds2' + L)
        p('s_mov_b64 exec, 0x1800')
        vm.op('buffer_store_dword v255, v27, s[%d:%d], 0 offen offset:8' % (sDBG, sDBG + 3))
        p('s_mov_b64 exec, -1')
        p.label('L_ds2' + L)
        return
    p('s_lshl_b32 s%d, s%d, 2' % (s_t0, s_b)); p('s_add_u32 s%d, s%d, s%d' % (s_t0, s_t0, s_w)); p('s_lshl_b32 s%d, s%d, 8' % (s_t0, s_t0)); p('s_add_u32 s%d, s%d, %d' % (s_t0, s_t0, WS_STAMP))
    p('v_lshlrev_b32 v27, 2, v%d' % v_lane)
    vm.op('buffer_store_dword v255, v27, s[%d:%d], s%d offen' % (sDBG, sDBG + 3, s_t0))

def body(p, vm, br, dco, dwq):
    extra = {m: [] for m in range(8)}
    for m in range(6): extra[m] = dco(m + 2)
    if br == 0: extra[4] = extra[4] + gate_load_ops(p, vm)
    extra[6] = dwq(0)
    extra[7] = dwq(1)
    pass1(p, vm, br, dco, dwq, extra)
    p('s_barrier')
    stamp(p, 2)
    if cfg.debug == 1: dump_regs(p, vm, vK[0], 64, 0)
    make_tag(p, vm)
    side = dma_wo_ops(p, vm, 0)
    if br == 1:
        feat_k_B(p, vm, side)
        stamp(p, 3)
    else:
        gate_finish(p, vm)
        feat_k_A(p, side)
        stamp(p, 3)
        exchange(p, vm, br)
    if cfg.debug == 2: dump_regs(p, vm, ST, 32, 0)
    stamp(p, 4)
    sched = {}
    sched[('bar', 1)] = True
    st = hop1_store_ops(p, vm, br)
    for k, f in enumerate(st): sched.setdefault(k, []).append(f)
    for k, f in enumerate(dma_wo_ops(p, vm, 1)): sched.setdefault(cfg.wo1step + k, []).append(f)
    if cfg.wo2p2:
        for k, f in enumerate(dma_wo_ops(p, vm, 2)): sched.setdefault(cfg.wo1step + 8 + k, []).append(f)
    hl = hop1_load_ops(p, vm, br)
    for k, f in enumerate(hl): sched.setdefault(min(31, cfg.h1step + k), []).append(f)
    if cfg.owarm:
        ow = o_warm_ops(p, vm)
        def allw():
            for f in ow: f()
        sched.setdefault(cfg.owarm, []).append(allw)
    pass2(p, vm, sched)
    stamp(p, 5)
    if cfg.debug == 1:
        p('s_nop 15'); dump_regs(p, vm, vQ[0], 32, 1)
    hop1_reduce(p, vm, br)
    stamp(p, 6)
    late = hop2_load_ops(p, vm, br)
    if cfg.wo2p2:
        p('s_barrier')
        side = dma_wo_ops(p, vm, 3)
    else:
        side = dma_wo_ops(p, vm, 2)
    if br == 1: feat_q_B(p, side, late)
    else: feat_q_A(p, side, late)
    stamp(p, 7)
    hop2_gather(p, vm, br)
    stamp(p, 8)
    if cfg.debug == 2: dump_regs(p, vm, KVA, 16, 1)
    o_phase(p, vm, br)
    if cfg.fine == 4: stamp(p, 41)
    if not cfg.wo2p2:
        p('s_barrier')
    p3_setup(p)
    p3_scalars(p)
    o_flag(p, vm)
    if cfg.fine == 4: stamp(p, 43)
    if not cfg.wo2p2:
        for f in dma_wo_ops(p, vm, 3): f()
    stamp(p, 9)
    p3(p, vm, br)
    stamp(p, 10)
    write_stamps(p, vm)
    p('s_endpgm')

if __name__ == '__main__':
    import argparse
    ap = argparse.ArgumentParser()
    ap.add_argument('-o', default='k.s'); ap.add_argument('--debug', type=int, default=0); ap.add_argument('--rot', type=int, default=1)
    ap.add_argument('--maprow', type=int, default=1); ap.add_argument('--fine', type=int, default=0); ap.add_argument('--wsoff', type=lambda x: int(x,0), default=0); ap.add_argument('--owarm', type=int, default=0); ap.add_argument('--owarmfl', default=''); ap.add_argument('--wo2p2', type=int, default=0); ap.add_argument('--nowo', type=int, default=0); ap.add_argument('--codepf', type=int, default=1); ap.add_argument('--ola', type=int, default=8); ap.add_argument('--wo1step', type=int, default=4); ap.add_argument('--korder', type=int, default=1); ap.add_argument('--pro3', type=int, default=0); ap.add_argument('--worot', type=int, default=1); ap.add_argument('--orot', type=int, default=1); ap.add_argument('--pretouch', type=int, default=1); ap.add_argument('--h1step', type=int, default=19); ap.add_argument('--h2lead', type=int, default=70); ap.add_argument('--stamps', type=int, default=0)
    a = ap.parse_args()
    cfg.debug = a.debug; cfg.rot = a.rot; cfg.maprow = a.maprow; cfg.h1step = a.h1step; cfg.fine = a.fine; cfg.wsoff = a.wsoff; cfg.owarm = a.owarm; cfg.owarmfl = a.owarmfl; cfg.wo2p2 = a.wo2p2; cfg.nowo = a.nowo; cfg.codepf = a.codepf; cfg.ola = a.ola; cfg.wo1step = a.wo1step; cfg.korder = a.korder; cfg.pro3 = a.pro3; cfg.worot = a.worot; cfg.orot = a.orot; cfg.pretouch = a.pretouch; cfg.h2lead = a.h2lead; cfg.stamps = a.stamps
    open(a.o, 'w').write(build())
```

```python
import sys, os
sys.path.insert(0, os.path.dirname(os.path.abspath(__file__)))
from asmdsl import *

KNAME = "gated_mix__linear_attn_block__linear_kernel_hedgehog__prompt_kernel"

class Cfg:
    debug = 0
    rot = 1
    maprow = 1
    spin = 1 << 20
    fine = 0
    wosched = 0
    earlyb4 = 1
    wsoff = 0
    owarm = 0
    owarmfl = ''
    wo2p2 = 0
    nowo = 0
    codepf = 1
    ola = 8
    wo1step = 6
    korder = 1
    pro3 = 0
    worot = 1
    orot = 1
    pretouch = 1
    h1step = 22
    h2lead = 70
    stamps = 0
cfg = Cfg()

WS_EPOCH = 0x0
WS_G     = 0x1000
WS_FLAG  = 0x20000
WS_OUTK  = 0x100000
WS_OUTZ  = 0x140000
WS_O     = 0x200000
WS_INB   = 0x800000
WS_SIZE  = 0x1000000
WS_DBG   = 0x1000000
WS_STAMP = 0x7000000

sX, sW, sWOA, sWOB, sWS, sOUT, sMISC, sDBG = 8, 12, 16, 20, 24, 28, 32, 36
s_w, s_th, s_hp, s_i, s_jj, s_rot, s_T = 40, 41, 42, 43, 44, 45, 46
s_xbase, s_wbase, s_m0x, s_m0w, s_ox, s_ow, s_t0, s_t1, s_t2, s_t3 = 47, 48, 49, 50, 51, 52, 53, 54, 55, 56
s_tb, s_cb, s_head, s_qbase, s_m0q = 57, 58, 59, 60, 61
s_mask16 = 62
s_log2e = 84
s_eps = 86
s_spin = 88
s_ht = 89
s_stamp = 90
s_b = 92
s_exec = 94
s_wobase, s_m0o = 96, 97
s_qadj, s_q0 = 4, 5
s_t2x, s_t3x = 98, 99
s_r = 6
s_odd = 94
KA = 64

v_lane = 1
vXA = 2
vWA = 14
vDX = 17
vDQ = 21
vONES = 25
vT = 26
vtmp = 27
vK = [32, 48]; vV = [64, 80]; vQ = [96, 112]
vWF = 128
vWP = 152
vSEL = 160
vTMP = 168

SLOT = 32768
def slot_set(s): return s // 2
def slot_imm(s): return (s % 2) * SLOT

class VM:
    def __init__(self, p): self.p = p; self.n = 0; self.marks = {}; self.done = 0
    def op(self, text, mark=None):
        self.p(text); self.n += 1
        if mark: self.marks[mark] = self.n
    def mark(self, name): self.marks[name] = self.n
    def wait(self, name, extra=''):
        if self.marks[name] <= self.done:
            if extra: self.p('s_waitcnt' + extra)
            return
        k = self.n - self.marks[name]
        assert 0 <= k <= 63, (name, k)
        self.p('s_waitcnt vmcnt(%d)%s' % (k, extra))
        self.done = self.marks[name]
    def wait_all(self):
        self.p('s_waitcnt vmcnt(0)'); self.done = self.n

def stamp(p, idx):
    if not cfg.stamps: return
    p('s_memtime s[%d:%d]' % (s_stamp, s_stamp + 1))
    p('s_waitcnt lgkmcnt(0)')
    p('v_writelane_b32 v255, s%d, %d' % (s_stamp, idx))


def korder(n): return (2 * (n & 3) + (n >> 2)) if cfg.korder else n

def srd(p, d, ptr, size):
    p('s_mov_b32 s%d, s%d' % (d, ptr)); p('s_and_b32 s%d, s%d, 0xffff' % (d + 1, ptr + 1))
    p('s_mov_b32 s%d, 0x%x' % (d + 2, size)); p('s_mov_b32 s%d, 0x00020000' % (d + 3))

SOFF = 64
WPT = 168
GX, GW = 168, 184

def gen_path(br):
    p = Prog(); vm = VM(p)
    L = 'A' if br == 0 else 'B'
    p.label('L_path' + L)
    if cfg.stamps: p('v_mov_b32 v255, 0')
    stamp(p, 0)
    rstamp(p, 11)
    p('v_lshrrev_b32 v27, 6, v0')
    p('v_and_b32 v%d, 63, v0' % v_lane)
    p('v_readfirstlane_b32 s%d, v27' % s_w)
    p('v_lshrrev_b32 v27, 3, v%d' % v_lane)
    p('v_and_b32 v28, 7, v%d' % v_lane)
    p('v_lshrrev_b32 v29, 4, v%d' % v_lane)
    for q in range(2):
        p('v_add_u32 v30, %d, v29' % (4 * (q & 1)))
        p('v_xor_b32 v30, v28, v30')
        p('v_lshlrev_b32 v30, 4, v30')
        p('v_add_u32 v31, %d, v27' % (7 * q))
        p('v_lshl_add_u32 v%d, v31, 10, v30' % (vDX + q))
    p('v_add_u32 v%d, %d, v%d' % (vDX + 2, 14 * 1024, vDX)); p('v_add_u32 v%d, %d, v%d' % (vDX + 3, 14 * 1024, vDX + 1))
    p('v_and_b32 v30, 1, v29'); p('v_lshlrev_b32 v30, 2, v30'); p('v_xor_b32 v30, v28, v30'); p('v_lshlrev_b32 v30, 4, v30')
    p('v_mul_u32_u24 v31, 3072, v27')
    p('v_add_u32 v%d, v30, v31' % vDQ)
    for q in range(1, 4):
        p('v_add_u32 v%d, %d, v%d' % (vDQ + q, 8 * q * 3072 - 1024 * q, vDQ))
    p('s_and_b32 s%d, s%d, 1' % (s_th, s_w))
    p('s_lshr_b32 s%d, s%d, 1' % (s_hp, s_w))
    p('s_lshl_b32 s%d, s%d, 17' % (s_xbase, s_i))
    p('s_lshl_b32 s%d, s%d, 15' % (s_t0, s_w))
    p('s_add_u32 s%d, s%d, s%d' % (s_xbase, s_xbase, s_t0))
    p('s_lshl_b32 s%d, s%d, 7' % (s_qbase, s_jj))
    p('s_mul_i32 s%d, s%d, 98304' % (s_t0, s_th))
    p('s_add_u32 s%d, s%d, s%d' % (s_wbase, s_qbase, s_t0))
    p('s_add_u32 s%d, s%d, 1' % (s_t0, s_hp))
    p('s_lshl_b32 s%d, s%d, 10' % (s_t0, s_t0))
    p('s_add_u32 s%d, s%d, s%d' % (s_wbase, s_wbase, s_t0))
    p('s_lshl_b32 s%d, s%d, 12' % (s_m0x, s_w))
    p('s_lshl_b32 s%d, s%d, 13' % (s_m0w, s_hp))
    p('s_lshl_b32 s%d, s%d, 12' % (s_t0, s_th))
    p('s_add_u32 s%d, s%d, s%d' % (s_m0w, s_m0w, s_t0))
    p('s_add_u32 s%d, s%d, 16384' % (s_m0w, s_m0w))
    p('s_lshl_b32 s%d, s%d, 11' % (s_m0q, s_w))
    p('s_mul_i32 s%d, s%d, 49152' % (s_t0, s_w))
    p('s_add_u32 s%d, s%d, s%d' % (s_t0, s_t0, s_qbase))
    p('s_sub_u32 s%d, s%d, s%d' % (s_qadj, s_wbase, s_t0))

    def chunk_offsets(n, dx, dw):
        p('s_add_u32 s%d, s%d, %d' % (s_t0, s_rot, korder(n))); p('s_and_b32 s%d, s%d, 7' % (s_t0, s_t0))
        p('s_lshl_b32 s%d, s%d, 7' % (s_t1, s_t0)); p('s_add_u32 s%d, s%d, s%d' % (dx, s_xbase, s_t1))
        p('s_mul_i32 s%d, s%d, 196608' % (s_t1, s_t0)); p('s_add_u32 s%d, s%d, s%d' % (dw, s_wbase, s_t1))
    def dma_chunk_ops(n):
        slot = (n % 4) * SLOT
        ox = s_ox if n == 0 else SOFF + 2 * n
        ow = s_ow if n == 0 else SOFF + 2 * n + 1
        ops = []
        def x0():
            p('s_add_u32 m0, s%d, %d' % (s_m0x, slot)); p('s_nop 0')
            vm.op('buffer_load_dwordx4 v%d, s[%d:%d], s%d offen lds' % (vDX, sX, sX + 3, ox))
        ops.append(x0)
        for q in range(1, 4):
            ops.append(lambda q=q: vm.op('buffer_load_dwordx4 v%d, s[%d:%d], s%d offen offset:%d lds' % (vDX + q, sX, sX + 3, ox, q * 1024)))
        def w0():
            p('s_add_u32 m0, s%d, %d' % (s_m0w, slot)); p('s_nop 0')
            vm.op('buffer_load_dwordx4 v%d, s[%d:%d], s%d offen lds' % (vDQ, sW, sW + 3, ow))
        ops.append(w0)
        for q in range(1, 4):
            ops.append(lambda q=q: vm.op('buffer_load_dwordx4 v%d, s[%d:%d], s%d offen offset:%d lds' % (vDQ + q, sW, sW + 3, ow, q * 1024), 'c%d' % n if q == 3 else None))
        return ops
    def dma_wq_ops(hf):
        ops = []
        for c in range(4 * hf, 4 * hf + 4):
            def m(c=c):
                if c == 0: p('s_add_u32 s%d, s%d, 0' % (s_ow, s_q0))
                else: p('s_sub_u32 s%d, s%d, s%d' % (s_ow, SOFF + 2 * c + 1, s_qadj))
                p('s_add_u32 m0, s%d, %d' % (s_m0q, (4 * (c >> 2)) * SLOT + (c & 3) * 8192)); p('s_nop 0')
                vm.op('buffer_load_dwordx4 v%d, s[%d:%d], s%d offen lds' % (vDQ, sW, sW + 3, s_ow))
            ops.append(m)
            ops.append(lambda c=c: vm.op('buffer_load_dwordx4 v%d, s[%d:%d], s%d offen offset:1024 lds' % (vDQ + 1, sW, sW + 3, s_ow), 'wq%d' % hf if (c & 3) == 3 else None))
        return ops

    chunk_offsets(0, s_ox, s_ow)
    p('s_sub_u32 s%d, s%d, s%d' % (s_q0, s_ow, s_qadj))
    p('s_waitcnt lgkmcnt(0)')
    srd(p, sX, KA + 0, 2048 * 1024)
    srd(p, sW, KA + (2 if br == 0 else 8), 512 * 3072)
    stamp(p, 20)
    for f in dma_chunk_ops(0): f()
    if cfg.codepf:
        p('s_getpc_b64 s[%d:%d]' % (s_t2x, s_t2x + 1))
        p.label('L_pc%s' % L)
        p('s_sub_u32 s%d, s%d, L_pc%s-%s' % (s_t2x, s_t2x, L, KNAME)); p('s_subb_u32 s%d, s%d, 0' % (s_t2x + 1, s_t2x + 1))
        p('s_lshr_b32 s%d, s%d, 3' % (s_t0, s_b)); p('s_lshl_b32 s%d, s%d, 2' % (s_t0, s_t0)); p('s_add_u32 s%d, s%d, s%d' % (s_t0, s_t0, s_w)); p('s_lshl_b32 s%d, s%d, 9' % (s_t0, s_t0))
        p('v_lshlrev_b32 v27, 7, v%d' % v_lane); p('v_and_b32 v27, 0x1ff, v27')
        p('v_add_u32 v27, s%d, v27' % s_t0)
        p('v_min_u32 v27, L_end-%s, v27' % KNAME)
        p('v_mov_b32 v29, s%d' % (s_t2x + 1))
        p('v_add_co_u32 v28, vcc, s%d, v27' % s_t2x); p('v_addc_co_u32 v29, vcc, 0, v29, vcc')
        p('s_mov_b64 exec, 15')
        vm.op('global_load_dword v239, v[28:29], off')
        p('s_mov_b64 exec, -1')
    if cfg.wsoff:
        p('s_add_u32 s%d, s%d, 0x%x' % (KA + 18, KA + 18, cfg.wsoff)); p('s_addc_u32 s%d, s%d, 0' % (KA + 19, KA + 19))
    srd(p, sWS, KA + 18, WS_SIZE)
    if br == 0: srd(p, sMISC, KA + 14, 1024)
    else:
        srd(p, sMISC, KA + 10, 32 * 512)
        p('s_lshl_b32 s%d, s%d, 11' % (s_t0, s_jj)); p('s_lshl_b32 s%d, s%d, 10' % (s_t1, s_hp)); p('s_add_u32 s%d, s%d, s%d' % (s_t0, s_t0, s_t1))
        p('s_lshl_b32 s%d, s%d, 10' % (s_t1, s_w)); p('s_add_u32 m0, s%d, %d' % (s_t1, 4 * SLOT))
        p('v_lshlrev_b32 v27, 4, v%d' % v_lane)
        vm.op('buffer_load_dwordx4 v27, s[%d:%d], s%d offen lds' % (sMISC, sMISC + 3, s_t0), 'wphi')
    p('v_mov_b32 v28, 0')
    vm.op('buffer_load_dword v%d, v28, s[%d:%d], 0 offen sc1' % (vT, sWS, sWS + 3), 'epoch')
    srd(p, sWOA, KA + 4, 512 * 1024)
    srd(p, sWOB, KA + 12, 512 * 1024)
    srd(p, sOUT, KA + 16, 2048 * 1024)
    if cfg.debug or cfg.stamps: srd(p, sDBG, KA + 18, 0x8000000)
    for n in range(1, 8): chunk_offsets(n, SOFF + 2 * n, SOFF + 2 * n + 1)
    if cfg.pretouch:
        p('s_lshl_b32 s%d, s%d, 18' % (s_t0, s_jj)); p('s_add_u32 s%d, s%d, %d' % (s_t0, s_t0, WS_INB + br * 0x200000))
        vm.op('buffer_load_dword v232, v28, s[%d:%d], s%d offen' % (sWS, sWS + 3, s_t0))
        p('s_lshl_b32 s%d, s%d, 18' % (s_t0, s_i)); p('s_add_u32 s%d, s%d, %d' % (s_t0, s_t0, WS_O))
        vm.op('buffer_load_dword v233, v28, s[%d:%d], s%d offen' % (sWS, sWS + 3, s_t0))
        p('s_lshl_b32 s%d, s%d, 17' % (s_t0, s_tb)); p('s_add_u32 s%d, s%d, %d' % (s_t0, s_t0, WS_O))
        vm.op('buffer_load_dword v234, v28, s[%d:%d], s%d offen' % (sWS, sWS + 3, s_t0))
        vm.op('buffer_load_dword v235, v28, s[%d:%d], 0 offen' % (sWOA, sWOA + 3))
        vm.op('buffer_load_dword v236, v28, s[%d:%d], 0 offen' % (sWOB, sWOB + 3))
        p('s_lshl_b32 s%d, s%d, 16' % (s_t0, s_tb))
        vm.op('buffer_load_dword v237, v28, s[%d:%d], s%d offen' % (sOUT, sOUT + 3, s_t0))
    wo_setup(p)
    p('v_and_b32 v27, 31, v%d' % v_lane)
    p('v_lshrrev_b32 v28, 5, v%d' % v_lane)
    p('v_lshrrev_b32 v29, 1, v27'); p('v_and_b32 v29, 7, v29'); p('v_xor_b32 v29, v28, v29')
    p('s_lshl_b32 s%d, s%d, 13' % (s_t0, s_th))
    p('v_lshlrev_b32 v30, 7, v27'); p('v_add_u32 v30, s%d, v30' % s_t0)
    for ks in range(4):
        p('v_xor_b32 v31, %d, v29' % (2 * ks)); p('v_lshl_add_u32 v%d, v31, 4, v30' % (vXA + ks))
        p('v_add_u32 v%d, 0x10000, v%d' % (vXA + 4 + ks, vXA + ks))
    p('v_lshrrev_b32 v27, 2, v%d' % v_lane); p('v_and_b32 v27, 3, v27')
    p('v_lshl_add_u32 v29, v28, 3, v27')
    p('v_lshlrev_b32 v29, 7, v29')
    p('v_lshrrev_b32 v30, 1, v27'); p('v_xor_b32 v30, s%d, v30' % s_hp); p('v_lshl_add_u32 v29, v30, 6, v29')
    p('v_lshrrev_b32 v30, 4, v%d' % v_lane); p('v_xor_b32 v30, s%d, v30' % s_th); p('v_and_b32 v30, 1, v30'); p('v_lshl_add_u32 v29, v30, 5, v29')
    p('v_and_b32 v30, 3, v%d' % v_lane); p('v_lshl_add_u32 v%d, v30, 3, v29' % vWA)
    p('v_add_u32 v%d, 0x10000, v%d' % (vWA + 1, vWA)); p('v_add_u32 v%d, 0x20000, v%d' % (vWA + 2, vWA))
    p('v_mov_b32 v%d, 0x3f803f80' % vONES)
    p('s_mov_b32 s%d, 0xffff0000' % s_mask16); p('s_mov_b32 s%d, 0xffff0000' % (s_mask16 + 1))
    p('s_mov_b32 s%d, 0x3fb8aa3b' % s_log2e); p('s_mov_b32 s%d, 0x3fb8aa3b' % (s_log2e + 1))
    p('s_mov_b32 s%d, 0x358637bd' % s_eps); p('s_mov_b32 s%d, 0x358637bd' % (s_eps + 1))
    if br == 1:
        p('v_and_b32 v27, 31, v%d' % v_lane)
        p('v_lshrrev_b32 v28, 5, v%d' % v_lane)
        p('v_bfe_u32 v29, v27, 2, 1')
        p('v_cmp_eq_u32 vcc, v28, v29')
        p('v_bfe_u32 v29, v27, 3, 1'); p('v_and_b32 v30, 3, v27'); p('v_lshl_add_u32 v29, v29, 2, v30')
        p('v_and_b32 v30, 1, v29'); p('v_lshlrev_b32 v30, 4, v30'); p('v_mov_b32 v31, 0x3f80'); p('v_lshlrev_b32 v30, v30, v31')
        p('v_cndmask_b32 v30, 0, v30, vcc')
        p('v_lshrrev_b32 v29, 1, v29')
        p('v_bfe_u32 v28, v27, 4, 1')
        p('v_lshl_add_u32 v29, v28, 2, v29')
        for q in range(8):
            p('v_cmp_eq_u32 vcc, %d, v29' % q)
            p('v_cndmask_b32 v%d, 0, v30, vcc' % (vSEL + q))
    p('s_mov_b32 s%d, 0xaaaaaaaa' % s_odd); p('s_mov_b32 s%d, 0xaaaaaaaa' % (s_odd + 1))
    if br == 1:
        p('v_lshrrev_b32 v27, 5, v%d' % v_lane); p('v_lshlrev_b32 v27, 2, v27')
        p('v_bfe_u32 v28, v%d, 2, 2' % v_lane); p('v_add_u32 v27, v27, v28'); p('v_lshlrev_b32 v27, 5, v27')
        p('v_bfe_u32 v28, v%d, 1, 1' % v_lane); p('v_lshl_add_u32 v27, v28, 3, v27')
        p('v_bfe_u32 v28, v%d, 4, 1' % v_lane); p('v_lshl_add_u32 v27, v28, 4, v27')
        p('s_lshl_b32 s%d, s%d, 10' % (s_t0, s_w)); p('s_add_u32 s%d, s%d, %d' % (s_t0, s_t0, 4 * SLOT))
        p('s_lshl_b32 s%d, s%d, 9' % (s_t1, s_th)); p('s_add_u32 s%d, s%d, s%d' % (s_t0, s_t0, s_t1))
        p('v_add_u32 v27, s%d, v27' % s_t0); p('v_xor_b32 v29, 512, v27')
        p('v_bfe_u32 v28, v%d, 2, 1' % v_lane); p('v_lshlrev_b32 v28, 31, v28'); p('v_lshrrev_b32 v30, 16, v28'); p('v_or_b32 v28, v28, v30')
    stamp(p, 21)
    for f in dma_chunk_ops(1): f()
    if br == 1:
        vm.wait('wphi')
        for u in range(2):
            for rd in range(2):
                p('ds_read_b64_tr_b16 v[%d:%d], v%d offset:%d' % (vWP + 4 * u + 2 * rd, vWP + 4 * u + 2 * rd + 1, 27 if u == 0 else 29, rd * 8 * 32))
        p('s_waitcnt lgkmcnt(0)')
        for q in range(8): p('v_xor_b32 v%d, v%d, v28' % (vWP + q, vWP + q))
    return p, vm, dma_chunk_ops, dma_wq_ops

def make_tag(p, vm):
    vm.wait('epoch')
    p('v_readfirstlane_b32 s%d, v%d' % (s_T, vT))
    p('s_mul_i32 s%d, s%d, 0x9e3779b1' % (s_T, s_T)); p('s_add_u32 s%d, s%d, 0x7f4a7c15' % (s_T, s_T))
    p('v_mov_b32 v%d, s%d' % (vT, s_T))

def emit(p, item):
    if callable(item): item()
    else: p(item)

def merge(p, main, side, every, start=0):
    side = list(side); k = 0
    for idx, m in enumerate(main):
        emit(p, m)
        if idx >= start and (idx - start) % every == every - 1 and side:
            emit(p, side.pop(0))
    for x in side: emit(p, x)

class Rec:
    def __init__(self): self.l = []
    def __call__(self, t, tag=None):
        for line in t.split('\n'):
            if line.strip(): self.l.append(line.strip())

def xf(s, blk): return ar((s * 2 + blk) * 4, 4)

def pass1(p, vm, br, dma_chunk_ops, dma_wq_ops, extra_ops):
    def reads(s):
        c, ks = s >> 2, s & 3; slot = c % 4; st = slot_set(slot); im = slot_imm(slot); buf = s % 3
        ops = []
        wf = vWF + 8 * buf
        for part in range(2):
            for rd in range(2):
                ops.append('ds_read_b64_tr_b16 v[%d:%d], v%d offset:%d' % (wf + 4 * part + 2 * rd, wf + 4 * part + 2 * rd + 1, vWA + st, im + 16384 + part * 8192 + (16 * ks + 4 * rd) * 128))
        for blk in range(2):
            ops.append('ds_read_b128 %s, v%d offset:%d' % (xf(s, blk), vXA + st * 4 + ks, im + blk * 4096))
        return ops
    def mfmas(s):
        wf = vWF + 8 * (s % 3); ops = []
        for blk in range(2):
            c = '0' if s == 0 else vr(vK[blk], 16)
            if br == 1: ops.append('v_mfma_f32_32x32x16_bf16 %s, %s, %s, %s' % (vr(vK[blk], 16), vr(wf, 4), xf(s, blk), c))
            else:       ops.append('v_mfma_f32_32x32x16_bf16 %s, %s, %s, %s' % (vr(vK[blk], 16), xf(s, blk), vr(wf, 4), c))
            c = '0' if s == 0 else vr(vV[blk], 16)
            ops.append('v_mfma_f32_32x32x16_bf16 %s, %s, %s, %s' % (vr(vV[blk], 16), xf(s, blk), vr(wf + 4, 4), c))
        return ops
    pend = []
    vm.wait('c0'); p('s_barrier')
    stamp(p, 1)
    pend += extra_ops[0]
    for o in reads(0): p(o)
    for o in reads(1): p(o)
    for s in range(32):
        nxt = s + 2
        p('s_waitcnt lgkmcnt(%d)' % (6 if s < 31 else 0))
        M = mfmas(s)
        R = reads(nxt) if nxt < 32 else []
        p(M[0])
        if nxt < 32 and nxt % 4 == 0:
            m = nxt // 4
            vm.wait('c%d' % m); p('s_barrier')
            if cfg.stamps == 1 and cfg.fine: stamp(p, 30 + m)
            pend += extra_ops[m]
        def take(n):
            for _ in range(n):
                if pend: pend.pop(0)()
        for k in range(4):
            if k > 0: p(M[k])
            for o in R[(k * 6) // 4:((k + 1) * 6) // 4]: p(o)
            if k % 2 == 1 or len(pend) > 8: take(1)
    while pend: pend.pop(0)()

def pass2(p, vm, sched):
    RA = 3
    def reads(s):
        c, ks = s >> 2, s & 3; slot = 4 * (c >> 2); st = slot_set(slot); im = slot_imm(slot); wf = vWF + 4 * (s % 4)
        return ['ds_read_b64_tr_b16 v[%d:%d], v%d offset:%d' % (wf + 2 * rd, wf + 2 * rd + 1, vWA + st, im + (c & 3) * 8192 + (16 * ks + 4 * rd) * 128) for rd in range(2)]
    for s in range(RA):
        for o in reads(s): p(o)
    for s in range(32):
        out = min(RA - 1, 31 - s)
        p('s_waitcnt lgkmcnt(%d)' % (2 * out))
        wf = vWF + 4 * (s % 4)
        if ('bar', s) in sched: p('s_barrier')
        if cfg.fine == 2 and s % 4 == 0 and s > 0:
            stamp(p, 40 + s // 4);
        items = list(sched.get(s, []))
        h = (len(items) + 1) // 2
        for blk in range(2):
            c = '0' if s == 0 else vr(vQ[blk], 16)
            p('v_mfma_f32_32x32x16_bf16 %s, %s, %s, %s' % (vr(vQ[blk], 16), vr(wf, 4), xf(s, blk), c))
            if blk == 0 and s + RA < 32:
                for o in reads(s + RA): p(o)
            for it in (items[:h] if blk == 0 else items[h:]): emit(p, it)

def dump_regs(p, vm, base_reg, n, slot_index):
    p('s_lshl_b32 s%d, s%d, 2' % (s_t0, s_b)); p('s_add_u32 s%d, s%d, s%d' % (s_t0, s_t0, s_w))
    p('s_mul_i32 s%d, s%d, %d' % (s_t0, s_t0, n * 256)); p('s_add_u32 s%d, s%d, %d' % (s_t0, s_t0, WS_DBG + slot_index * 0x1000000))
    p('v_lshlrev_b32 v27, 4, v%d' % v_lane)
    for r in range(0, n, 4):
        vm.op('buffer_store_dwordx4 %s, v27, s[%d:%d], s%d offen' % (vr(base_reg + r, 4), sDBG, sDBG + 3, s_t0))
        p('s_add_u32 s%d, s%d, 1024' % (s_t0, s_t0))
    vm.wait_all()

def build():
    top = Prog()
    top('s_cmp_ge_u32 s2, 256')
    top('s_cbranch_scc1 L_end')
    top('s_load_dwordx16 s[64:79], s[0:1], 0')
    top('s_load_dwordx2 s[80:81], s[0:1], 64')
    top('s_load_dwordx2 s[82:83], s[0:1], 80')
    top('s_mov_b32 s%d, s2' % s_b)
    top('s_and_b32 s%d, s2, 7' % s_t0)
    top('s_lshr_b32 s%d, s2, 3' % s_t1)
    if cfg.maprow == 0:
        top('s_mov_b32 s%d, s%d' % (s_jj, s_t0))
        top('s_lshr_b32 s%d, s%d, 1' % (s_i, s_t1))
        top('s_and_b32 s%d, s%d, 1' % (s_t2, s_t1))
        top('s_lshl_b32 s%d, s%d, 2' % (s_rot, s_t2)); top('s_add_u32 s%d, s%d, s%d' % (s_rot, s_rot, s_i)); top('s_and_b32 s%d, s%d, 7' % (s_rot, s_rot))
    else:
        top('s_and_b32 s%d, s%d, 1' % (s_i, s_t0)); top('s_lshl_b32 s%d, s%d, 3' % (s_i, s_i)); top('s_and_b32 s%d, s%d, 7' % (s_t2, s_t1)); top('s_add_u32 s%d, s%d, s%d' % (s_i, s_i, s_t2))
        top('s_lshr_b32 s%d, s%d, 1' % (s_t3, s_t0)); top('s_lshl_b32 s%d, s%d, 2' % (s_t3, s_t3)); top('s_lshr_b32 s%d, s%d, 3' % (s_t2, s_t1)); top('s_add_u32 s%d, s%d, s%d' % (s_t3, s_t3, s_t2))
        top('s_lshr_b32 s%d, s%d, 1' % (s_jj, s_t3))
        top('s_lshl_b32 s%d, s%d, 1' % (s_rot, s_t3)); top('s_add_u32 s%d, s%d, s%d' % (s_rot, s_rot, s_i)); top('s_and_b32 s%d, s%d, 7' % (s_rot, s_rot))
        top('s_and_b32 s%d, s%d, 1' % (s_t2, s_t3))
    if not cfg.rot: top('s_mov_b32 s%d, 0' % s_rot)
    top('s_lshl_b32 s%d, s%d, 2' % (s_tb, s_t0)); top('s_and_b32 s%d, s%d, 3' % (s_t3, s_t1)); top('s_add_u32 s%d, s%d, s%d' % (s_tb, s_tb, s_t3))
    top('s_lshr_b32 s%d, s%d, 2' % (s_cb, s_t1))
    top('s_cmp_eq_u32 s%d, 0' % s_t2)
    top('s_cbranch_scc0 L_pathB')
    paths = []
    for br in range(2):
        p, vm, dco, dwq = gen_path(br)
        body(p, vm, br, dco, dwq)
        added = p.fix_hazards()
        errs = p.check_waits()
        if errs:
            for e in errs[:20]: print('WAITERR', e, file=sys.stderr)
            raise SystemExit('wait check failed')
        print('path', 'AB'[br], 'instructions:', sum(1 for i in p.ins if i.op), 'nop states added:', added, file=sys.stderr)
        paths.append(p)
    top.fix_hazards()
    hdr = open(os.path.join(os.path.dirname(os.path.abspath(__file__)), 'header.txt')).read()
    s = hdr
    s += '; @launch grid=(256,1,1) block=(256,1,1) lds=163840\n'
    s += '.amdgcn_target "amdgcn-amd-amdhsa--gfx950"\n.text\n.globl %s\n.p2align 8\n.type %s,@function\n%s:\n' % (KNAME, KNAME, KNAME)
    s += top.text()
    for p in paths: s += p.text()
    s += 'L_end:\n    s_endpgm\n'
    s += '.section .rodata,"a"\n.p2align 6\n.amdhsa_kernel %s\n  .amdhsa_next_free_vgpr 512\n  .amdhsa_next_free_sgpr 102\n  .amdhsa_accum_offset 256\n  .amdhsa_group_segment_fixed_size 0\n  .amdhsa_kernarg_size 88\n  .amdhsa_user_sgpr_count 2\n  .amdhsa_user_sgpr_kernarg_segment_ptr 1\n  .amdhsa_system_sgpr_workgroup_id_x 1\n.end_amdhsa_kernel\n' % KNAME
    return s


MF = 'v_mfma_f32_32x32x16_bf16'
vDO = 10
vOA = 2
vEW = 4
vER = 8
vOG = 18
s_rc, s_r4 = 7, 3

def cvt(p, d, a, b): p('v_cvt_pk_bf16_f32 v%d, v%d, v%d' % (d, a, b))

def wo_setup(p):
    p('v_lshrrev_b32 v27, 3, v%d' % v_lane); p('v_and_b32 v28, 7, v%d' % v_lane)
    p('v_bfe_u32 v29, v%d, 4, 1' % v_lane); p('v_lshlrev_b32 v29, 2, v29'); p('v_xor_b32 v28, v28, v29'); p('v_lshlrev_b32 v28, 4, v28')
    p('s_lshl_b32 s%d, s%d, 7' % (s_t0, s_cb)); p('v_add_u32 v28, s%d, v28' % s_t0)
    p('v_lshl_add_u32 v%d, v27, 10, v28' % vDO)
    for q in range(1, 4): p('v_add_u32 v%d, %d, v%d' % (vDO + q, 7 * q * 1024, vDO))
    p('s_lshl_b32 s%d, s%d, 16' % (s_wobase, s_w)); p('s_lshl_b32 s%d, s%d, 13' % (s_m0o, s_w))
    if cfg.worot:
        p('s_and_b32 s%d, s%d, 3' % (s_r, s_tb))
        p('s_lshr_b32 s%d, s%d, 1' % (s_t0, s_r)); p('s_lshl_b32 s%d, s%d, 18' % (s_t0, s_t0)); p('s_add_u32 s%d, s%d, s%d' % (s_wobase, s_wobase, s_t0))
        p('s_bitcmp1_b32 s%d, 0' % s_r)
        p('s_cselect_b32 s%d, s%d, s%d' % (s_t0, sWOB, sWOA)); p('s_cselect_b32 s%d, s%d, s%d' % (s_t1, sWOA, sWOB))
        p('s_cselect_b32 s%d, s%d, s%d' % (s_t2x, sWOB + 1, sWOA + 1)); p('s_cselect_b32 s%d, s%d, s%d' % (s_t3x, sWOA + 1, sWOB + 1))
        p('s_mov_b32 s%d, s%d' % (sWOA, s_t0)); p('s_mov_b32 s%d, s%d' % (sWOB, s_t1)); p('s_mov_b32 s%d, s%d' % (sWOA + 1, s_t2x)); p('s_mov_b32 s%d, s%d' % (sWOB + 1, s_t3x))
    else:
        p('s_mov_b32 s%d, 0' % s_r)

def dma_wo_ops(p, vm, part):
    if cfg.nowo:
        def f(): vm.mark('wo%d' % part)
        return [f]
    return dma_wo_ops_real(p, vm, part)

def dma_wo_ops_real(p, vm, part):
    srd_ = sWOA if part < 2 else sWOB
    ops = []
    for grp in range(2):
        def m(grp=grp):
            if part & 1: p('s_xor_b32 s%d, s%d, 262144' % (s_ow, s_wobase))
            else: p('s_mov_b32 s%d, s%d' % (s_ow, s_wobase))
            if grp: p('s_add_u32 s%d, s%d, 32768' % (s_ow, s_ow))
            p('s_add_u32 m0, s%d, %d' % (s_m0o, (part + 1) * SLOT + grp * 4096)); p('s_nop 0')
            vm.op('buffer_load_dwordx4 v%d, s[%d:%d], s%d offen lds' % (vDO, srd_, srd_ + 3, s_ow))
        ops.append(m)
        for q in range(1, 4):
            ops.append(lambda q=q, grp=grp: vm.op('buffer_load_dwordx4 v%d, s[%d:%d], s%d offen offset:%d lds' % (vDO + q, srd_, srd_ + 3, s_ow, q * 1024), 'wo%d' % part if (q == 3 and grp == 1) else None))
    return ops

def softmax16(p, P, F, tmp):
    m, S = tmp, tmp + 2
    p('v_max3_f32 v%d, v%d, v%d, v%d' % (m, P, P + 1, P + 2))
    p('v_max3_f32 v%d, v%d, v%d, v%d' % (m + 1, P + 3, P + 4, P + 5))
    p('v_max3_f32 v%d, v%d, v%d, v%d' % (m, m, P + 6, P + 7))
    p('v_max3_f32 v%d, v%d, v%d, v%d' % (m + 1, m + 1, P + 8, P + 9))
    p('v_max3_f32 v%d, v%d, v%d, v%d' % (m, m, P + 10, P + 11))
    p('v_max3_f32 v%d, v%d, v%d, v%d' % (m + 1, m + 1, P + 12, P + 13))
    p('v_max3_f32 v%d, v%d, v%d, v%d' % (m, m, P + 14, P + 15))
    p('v_max_f32 v%d, v%d, v%d' % (m, m, m + 1))
    p('v_mul_f32 v%d, s%d, v%d' % (m, s_log2e, m))
    for i in range(8):
        p('v_pk_fma_f32 v[%d:%d], v[%d:%d], s[%d:%d], v[%d:%d] op_sel_hi:[1,1,0] neg_lo:[0,0,1] neg_hi:[0,0,1]' % (P + 2 * i, P + 2 * i + 1, P + 2 * i, P + 2 * i + 1, s_log2e, s_log2e + 1, m, m + 1))
    for i in range(16): p('v_exp_f32 v%d, v%d' % (P + i, P + i))
    p('v_pk_add_f32 v[%d:%d], v[%d:%d], v[%d:%d]' % (S, S + 1, P, P + 1, P + 2, P + 3))
    p('v_pk_add_f32 v[%d:%d], v[%d:%d], v[%d:%d]' % (m, m + 1, P + 4, P + 5, P + 6, P + 7))
    p('v_pk_add_f32 v[%d:%d], v[%d:%d], v[%d:%d]' % (S, S + 1, S, S + 1, P + 8, P + 9))
    p('v_pk_add_f32 v[%d:%d], v[%d:%d], v[%d:%d]' % (m, m + 1, m, m + 1, P + 10, P + 11))
    p('v_pk_add_f32 v[%d:%d], v[%d:%d], v[%d:%d]' % (S, S + 1, S, S + 1, P + 12, P + 13))
    p('v_pk_add_f32 v[%d:%d], v[%d:%d], v[%d:%d]' % (m, m + 1, m, m + 1, P + 14, P + 15))
    p('v_pk_add_f32 v[%d:%d], v[%d:%d], v[%d:%d]' % (S, S + 1, S, S + 1, m, m + 1))
    p('v_add_f32 v%d, v%d, v%d' % (S, S, S + 1))
    p('v_rcp_f32 v%d, v%d' % (S, S))
    for i in range(8):
        p('v_pk_mul_f32 v[%d:%d], v[%d:%d], v[%d:%d] op_sel_hi:[1,0]' % (P + 2 * i, P + 2 * i + 1, P + 2 * i, P + 2 * i + 1, S, S + 1))
    for i in range(8): cvt(p, F + i, P + 2 * i, P + 2 * i + 1)

def phi_elu(p, T, n, F, tmp):
    for base in range(0, n // 2, 4):
        prs = range(base, min(base + 4, n // 2))
        for k, i in enumerate(prs):
            p('v_pk_mul_f32 v[%d:%d], v[%d:%d], s[%d:%d]' % (tmp + 2 * k, tmp + 2 * k + 1, T + 2 * i, T + 2 * i + 1, s_log2e, s_log2e + 1))
        for k, i in enumerate(prs):
            p('v_exp_f32 v%d, v%d clamp' % (tmp + 2 * k, tmp + 2 * k)); p('v_exp_f32 v%d, v%d clamp' % (tmp + 2 * k + 1, tmp + 2 * k + 1))
        for k, i in enumerate(prs):
            p('v_max_f32 v%d, 0, v%d' % (T + 2 * i, T + 2 * i)); p('v_max_f32 v%d, 0, v%d' % (T + 2 * i + 1, T + 2 * i + 1))
        for k, i in enumerate(prs):
            p('v_pk_add_f32 v[%d:%d], v[%d:%d], v[%d:%d]' % (T + 2 * i, T + 2 * i + 1, T + 2 * i, T + 2 * i + 1, tmp + 2 * k, tmp + 2 * k + 1))
        for k, i in enumerate(prs):
            p('v_pk_add_f32 v[%d:%d], v[%d:%d], s[%d:%d]' % (T + 2 * i, T + 2 * i + 1, T + 2 * i, T + 2 * i + 1, s_eps, s_eps + 1))
        for k, i in enumerate(prs): cvt(p, F + i, T + 2 * i, T + 2 * i + 1)

ACC = [96, 112]
def vprep(p, VB0, VB1):
    for blk in range(2):
        for i in range(8): cvt(p, VB0 + 8 * blk + i, vV[blk] + 2 * i, vV[blk] + 2 * i + 1)
    for blk in range(2):
        for i in range(8): p('v_cndmask_b32_e64 v%d, v%d, v%d, s[%d:%d]' % (VB1 + 8 * blk + i, vONES, VB0 + 8 * blk + i, s_mask16, s_mask16 + 1))
    for blk in range(2):
        for i in range(8): p('v_cndmask_b32_e64 v%d, v%d, v%d, s[%d:%d]' % (VB0 + 8 * blk + i, VB0 + 8 * blk + i, vONES, s_mask16, s_mask16 + 1))

def insert_at(main, ins):
    out = []; ins = sorted(ins, key=lambda x: x[0]); k = 0
    for idx, m in enumerate(main):
        while k < len(ins) and ins[k][0] <= idx: out.append(ins[k][1]); k += 1
        out.append(m)
    out += [x[1] for x in ins[k:]]
    return out

UNITS = [(0, 0), (0, 1), (1, 0), (1, 1)]
ST = 184
UNITS_K = [(0, 1), (1, 1), (0, 0), (1, 0)]
def feat_k_B(p, vm, side):
    KB, PB, G = 168, 184, 128
    VB0, VB1 = 32, 48
    TB = [64, 80]
    VB = [VB0, VB1]
    U = UNITS_K
    r = Rec()
    for un, (blk, u) in enumerate(U):
        for i in range(4): cvt(r, KB + 4 * un + i, vK[blk] + 8 * u + 2 * i, vK[blk] + 8 * u + 2 * i + 1)
    head = list(r.l)
    r = Rec(); vprep(r, VB0, VB1); vp = list(r.l)
    PM = ['%s %s, %s, %s, 0' % (MF, vr(PB + 16 * un, 16), vr(vWP + 4 * u, 4), vr(KB + 4 * un, 4)) for un, (blk, u) in enumerate(U)]
    stream = head[:6] + [PM[0]] + head[6:10] + [PM[1]] + head[10:14] + [PM[2]] + head[14:16] + vp[:4] + [PM[3]] + vp[4:]
    def TA(un): return '%s %s, %s, %s, 0' % (MF, vr(TB[un % 2], 16), vr(KB + 8 * (un % 2), 4), vr(vSEL, 4))
    def TBm(un): return '%s %s, %s, %s, %s' % (MF, vr(TB[un % 2], 16), vr(KB + 8 * (un % 2) + 4, 4), vr(vSEL + 4, 4), vr(TB[un % 2], 16))
    def CV(un):
        q = Rec()
        for i in range(8): cvt(q, G + i, TB[un % 2] + 2 * i, TB[un % 2] + 2 * i + 1)
        return q.l
    def AA(un):
        blk, u = U[un]; c = '0' if blk == 0 else vr(ACC[u], 16)
        return '%s %s, %s, %s, %s' % (MF, vr(ACC[u], 16), vr(G, 4), vr(VB[u] + 8 * blk, 4), c)
    def AB(un):
        blk, u = U[un]
        return '%s %s, %s, %s, %s' % (MF, vr(ACC[u], 16), vr(G + 4, 4), vr(VB[u] + 8 * blk + 4, 4), vr(ACC[u], 16))
    q = Rec(); exchange_addr(q); ad = q.l
    q = Rec(); exchange_scal(q, 1); sc = q.l
    for un in range(4):
        q = Rec(); softmax16(q, PB + 16 * un, KB + 8 * (un % 2), 136); sm = q.l
        ins = []
        if un >= 1:
            ins += [(2, TA(un - 1)), (10, TBm(un - 1))]
            ins += [(34 + k, c) for k, c in enumerate(CV(un - 1))]
            ins += [(46, AA(un - 1)), (54, AB(un - 1))]
        if un == 2: ins += [(12 + k, x) for k, x in enumerate(ad)]
        if un == 3:
            ins += [(14 + 2 * k, 'ds_write_b128 v%d, %s offset:%d' % (vEXW, vr(ACC[1] + 4 * k, 4), k * 1024)) for k in range(4)]
            ins += [(24 + k, x) for k, x in enumerate(sc)]
        stream += insert_at(sm, ins)
    merge(p, stream, side, 14 if len(side) <= 8 else 12, start=4)
    tags = ['v_mov_b32 v%d, v%d' % (ST + 4 * k + 3, vT) for k in range(4)]
    RC = 216
    p('s_nop 1'); p(TA(3))
    for t in tags: p(t)
    p(TBm(3))
    vm.wait('wq1', ' lgkmcnt(0)')
    stamp(p, 18)
    p('s_barrier')
    stamp(p, 19)
    for q in range(4): p('ds_read_b128 %s, v%d offset:%d' % (vr(RC + 4 * q, 4), vEXR, q * 1024))
    for c in CV(3): p(c)
    p('s_nop 1'); p(AA(3)); p(AB(3))
    exchange_finish(p, 1)

def feat_k_A(p, side):
    PK, VB0, VB1 = 168, 200, 216
    r = Rec()
    for blk in range(2): phi_elu(r, vK[blk], 16, PK + 8 * blk, 184)
    vprep(r, VB0, VB1)
    VB = [VB0, VB1]
    for k in range(2): r('v_mov_b32 v%d, v%d' % (ST + 4 * k + 3, vT))
    exchange_addr(r)
    for blk in range(2):
        for u in range(2):
            c = '0' if blk == 0 else vr(ACC[u], 16)
            r('%s %s, %s, %s, %s' % (MF, vr(ACC[u], 16), vr(PK + 8 * blk, 4), vr(VB[u] + 8 * blk, 4), c))
            r('%s %s, %s, %s, %s' % (MF, vr(ACC[u], 16), vr(PK + 8 * blk + 4, 4), vr(VB[u] + 8 * blk + 4, 4), vr(ACC[u], 16)))
    merge(p, r.l, side, 10 if len(side) <= 8 else 7, start=2)

FQ = 32
def feat_q_B(p, side, late):
    KB, PB = 168, 184
    r = Rec()
    for un, (blk, u) in enumerate(UNITS):
        for i in range(4): cvt(r, KB + 4 * un + i, vQ[blk] + 8 * u + 2 * i, vQ[blk] + 8 * u + 2 * i + 1)
    head = list(r.l)
    PM = ['%s %s, %s, %s, 0' % (MF, vr(PB + 16 * un, 16), vr(vWP + 4 * u, 4), vr(KB + 4 * un, 4)) for un, (blk, u) in enumerate(UNITS)]
    stream = head[:6] + [PM[0]] + head[6:10] + [PM[1]] + head[10:14] + [PM[2]] + head[14:16] + ['s_nop 3', PM[3]]
    for un in range(4):
        q = Rec(); softmax16(q, PB + 16 * un, FQ + 8 * un, 136); stream += q.l
    n = len(stream)
    stream = insert_at(stream, [(n - cfg.h2lead + k, x) for k, x in enumerate(late)])
    merge(p, stream, side, 9, start=2)

def feat_q_A(p, side, late):
    r = Rec()
    for blk in range(2):
        for u in range(2): phi_elu(r, vQ[blk] + 8 * u, 8, FQ + 4 * (2 * blk + u), 184)
    merge(p, r.l, side, 6, start=1)
    for x in late: emit(p, x)

vEXW, vEXR, vH1S = 28, 29, 30
def exchange_addr(p):
    p('v_lshlrev_b32 v27, 4, v%d' % v_lane)
    p('s_lshl_b32 s%d, s%d, 12' % (s_t0, s_w)); p('s_add_u32 s%d, s%d, %d' % (s_t0, s_t0, (2 if cfg.wosched else 3) * SLOT))
    p('v_add_u32 v%d, s%d, v27' % (vEXW, s_t0))
    p('s_xor_b32 s%d, s%d, 4096' % (s_t0, s_t0))
    p('v_xor_b32 v27, 256, v27')
    p('v_add_u32 v%d, s%d, v27' % (vEXR, s_t0))
    p('v_lshrrev_b32 v%d, 4, v%d' % (vH1S, v_lane)); p('v_lshlrev_b32 v%d, 12, v%d' % (vH1S, vH1S)); p('v_and_b32 v27, 15, v%d' % v_lane); p('v_lshl_add_u32 v%d, v27, 4, v%d' % (vH1S, vH1S))

TZ = 200
def exchange_scal(p, br):
    p('s_lshl_b32 s%d, s%d, 2' % (s_head, s_jj)); p('s_add_u32 s%d, s%d, s%d' % (s_head, s_head, s_w)); p('s_add_u32 s%d, s%d, %d' % (s_head, s_head, 32 * br))
    p('s_lshl_b32 s%d, s%d, 16' % (s_t2, s_head)); p('s_lshl_b32 s%d, s%d, 8' % (s_t1, s_i)); p('s_add_u32 s%d, s%d, s%d' % (s_t2, s_t2, s_t1)); p('s_add_u32 s%d, s%d, %d' % (s_t2, s_t2, WS_INB))

def exchange_finish(p, br):
    nq = 4 if br == 1 else 2
    nh = 2 * nq
    RC = 216
    pos = lambda r: ST + 4 * (r >> 1) + (r & 1)
    p('s_waitcnt lgkmcnt(0)')
    for r in range(4 * nq):
        d = pos(r) if r < nh else TZ + r - nh
        p('v_add_f32 v%d, v%d, v%d' % (d, ACC[0] + r, RC + r))
    nd = 8 if br == 1 else 4
    for r in range(nd): p('v_permlane16_swap_b32 v%d, v%d' % (pos(r), TZ + r))
    for m in range(nd // 2): p('v_cndmask_b32_e64 v%d, v%d, v%d, s[%d:%d]' % (ST + 4 * m + 2, TZ + 2 * m, TZ + 2 * m + 1, s_odd, s_odd + 1))

def exchange(p, vm, br):
    nq = 2
    RC = 216
    src1 = ACC[1] + 8
    for q in range(nq): p('ds_write_b128 v%d, %s offset:%d' % (vEXW, vr(src1 + 4 * q, 4), q * 1024))
    exchange_scal(p, br)
    vm.wait('wq1', ' lgkmcnt(0)')
    stamp(p, 18)
    p('s_barrier')
    stamp(p, 19)
    for q in range(nq): p('ds_read_b128 %s, v%d offset:%d' % (vr(RC + 4 * q, 4), vEXR, q * 1024))
    exchange_finish(p, br)

def hop1_store_ops(p, vm, br):
    nm = 4 if br == 1 else 2
    ops = []
    for m in range(nm):
        def f(m=m):
            vm.op('buffer_store_dwordx4 %s, v%d, s[%d:%d], s%d offen sc1' % (vr(ST + 4 * m, 4), vH1S, sWS, sWS + 3, s_t2))
            if m < nm - 1: p('s_add_u32 s%d, s%d, 16384' % (s_t2, s_t2))
        ops.append(f)
    return ops

def spin_tail(p, name):
    p('s_cbranch_vccz L_%s_ok' % name)
    p('s_sub_u32 s%d, s%d, 1' % (s_spin, s_spin))
    p('s_cmp_gt_i32 s%d, 0' % s_spin)
    p('s_cbranch_scc1 L_%s' % name)
    p.label('L_%s_ok' % name)

def tagcheck(p, regs, t0, t1):
    regs = list(regs)
    p('v_min_u32 v%d, v%d, v%d' % (t0, regs[0], regs[1])); p('v_max_u32 v%d, v%d, v%d' % (t1, regs[0], regs[1]))
    k = 2
    while k + 1 < len(regs):
        p('v_min3_u32 v%d, v%d, v%d, v%d' % (t0, t0, regs[k], regs[k + 1])); p('v_max3_u32 v%d, v%d, v%d, v%d' % (t1, t1, regs[k], regs[k + 1])); k += 2
    if k < len(regs):
        p('v_min_u32 v%d, v%d, v%d' % (t0, t0, regs[k])); p('v_max_u32 v%d, v%d, v%d' % (t1, t1, regs[k]))
    p('v_xor_b32 v%d, v%d, v%d' % (t0, vT, t0)); p('v_xor_b32 v%d, v%d, v%d' % (t1, vT, t1)); p('v_or_b32 v%d, v%d, v%d' % (t0, t0, t1))
    p('v_cmp_ne_u32 vcc, 0, v%d' % t0)

H1 = 184
s_h1a = 98
def hop1_load_ops(p, vm, br, retry=False):
    ops = []
    def addr():
        p('s_lshl_b32 s%d, s%d, 16' % (s_h1a, s_head)); p('s_lshl_b32 s%d, s%d, 12' % (s_t1, s_i)); p('s_add_u32 s%d, s%d, s%d' % (s_h1a, s_h1a, s_t1)); p('s_add_u32 s%d, s%d, %d' % (s_h1a, s_h1a, WS_INB))
        p('v_lshlrev_b32 v27, 4, v%d' % v_lane)
    if not retry: ops.append(addr)
    for n in range(4):
        ops.append(lambda n=n: vm.op('buffer_load_dwordx4 %s, v27, s[%d:%d], s%d offen offset:%d sc1' % (vr(H1 + 4 * n, 4), sWS, sWS + 3, s_h1a, n * 1024), 'h1l' if n == 3 else None))
    return ops

def hop1_reduce(p, vm, br):
    L = 'AB'[br]; LD = H1
    vm.wait('h1l')
    if br == 0:
        p('s_cmp_ge_u32 s%d, 8' % s_i); p('s_cbranch_scc1 L_h1skip')
    p('s_mov_b32 s%d, %d' % (s_spin, cfg.spin))
    tagcheck(p, [LD + 4 * n + 3 for n in range(4)], 28, 29)
    p('s_cbranch_vccz L_h1%s_ok' % L)
    p.label('L_h1%s' % L)
    for f in hop1_load_ops(p, vm, br, retry=True): f()
    vm.wait_all()
    tagcheck(p, [LD + 4 * n + 3 for n in range(4)], 28, 29)
    spin_tail(p, 'h1%s' % L)
    a, b, z, t = 216, 217, 218, 219
    p('v_add_f32 v%d, v%d, v%d' % (a, LD, LD + 4)); p('v_add_f32 v%d, v%d, v%d' % (b, LD + 1, LD + 5)); p('v_add_f32 v%d, v%d, v%d' % (z, LD + 2, LD + 6))
    for n in range(2, 4):
        p('v_add_f32 v%d, v%d, v%d' % (a, a, LD + 4 * n)); p('v_add_f32 v%d, v%d, v%d' % (b, b, LD + 4 * n + 1)); p('v_add_f32 v%d, v%d, v%d' % (z, z, LD + 4 * n + 2))
    p('v_mov_b32 v%d, v%d' % (t, z))
    p('s_lshl_b32 s%d, s%d, 11' % (s_t0, s_head)); p('s_lshl_b32 s%d, s%d, 7' % (s_t1, s_i)); p('s_add_u32 s%d, s%d, s%d' % (s_t0, s_t0, s_t1)); p('s_add_u32 s%d, s%d, %d' % (s_t0, s_t0, WS_OUTK))
    p('v_permlane32_swap_b32 v%d, v%d' % (a, b))
    p('v_permlane32_swap_b32 v%d, v%d' % (z, t))
    p('v_add_f32 v%d, v%d, v%d' % (a, a, b)); p('v_add_f32 v%d, v%d, v%d' % (z, z, t))
    p('v_lshlrev_b32 v27, 4, v%d' % v_lane)
    p('v_mov_b32 v%d, v%d' % (b, a)); p('v_mov_b32 v%d, v%d' % (t, z))
    p('v_mov_b32 v223, v%d' % vT)
    p('s_nop 0')
    p('v_permlane16_swap_b32 v%d, v%d' % (a, b))
    p('v_permlane16_swap_b32 v%d, v%d' % (z, t))
    p('v_add_f32 v%d, v%d, v%d' % (a, a, b)); p('v_add_f32 v%d, v%d, v%d' % (z, z, t))
    p('v_mov_b32 v%d, v%d' % (b, a))
    p('s_nop 0')
    p('v_mov_b32_dpp v%d, v%d quad_perm:[1,1,1,1] row_mask:0xf bank_mask:0xf' % (t, z))
    p('v_permlane32_swap_b32 v%d, v%d' % (a, b))
    p('v_mov_b32_dpp v%d, v%d quad_perm:[0,0,0,0] row_mask:0xf bank_mask:0xf' % (222, z))
    cvt(p, 220, a, b)
    cvt(p, 222, 222, t)
    p('v_mov_b32_dpp v221, v220 row_ror:8 row_mask:0xf bank_mask:0xf')
    p('s_mov_b32 exec_lo, 0xff'); p('s_mov_b32 exec_hi, 0')
    vm.op('buffer_store_dwordx4 v[220:223], v27, s[%d:%d], s%d offen sc1' % (sWS, sWS + 3, s_t0))
    p('s_mov_b64 exec, -1')
    if br == 0: p.label('L_h1skip')

KVA = 216
H2 = 64
s_h2a, s_h2b = 100, 101
s_hi8 = 98
def hop2_load_ops(p, vm, br, retry=False):
    nm = 4 if br == 1 else 2
    ops = []
    def addr():
        p('s_lshl_b32 s%d, s%d, 11' % (s_h2a, s_head)); p('s_add_u32 s%d, s%d, %d' % (s_h2a, s_h2a, WS_OUTK)); p('s_xor_b32 s%d, s%d, 2048' % (s_h2b, s_h2a))
        p('s_mov_b32 s%d, 0xff00ff00' % s_hi8); p('s_mov_b32 s%d, 0xff00ff00' % (s_hi8 + 1))
    def addr2():
        p('v_lshrrev_b32 v31, 4, v%d' % v_lane); p('v_lshlrev_b32 v31, 7, v31'); p('v_and_b32 v30, 7, v%d' % v_lane); p('v_lshl_add_u32 v31, v30, 4, v31')
    if not retry: ops += [addr, addr2]
    for u in range(2):
        for m in range(nm):
            r = H2 + 16 * u + 4 * m
            ops.append(lambda r=r, u=u, m=m: vm.op('buffer_load_dwordx4 %s, v31, s[%d:%d], s%d offen offset:%d sc1' % (vr(r, 4), sWS, sWS + 3, s_h2a if u == 0 else s_h2b, m * 512), 'h2l' if (u == 1 and m == nm - 1) else None))
    return ops

def hop2_gather(p, vm, br):
    L = 'AB'[br]; nm = 4 if br == 1 else 2
    tags = [H2 + 16 * u + 4 * m + 3 for u in range(2) for m in range(nm)]
    p('s_mov_b32 s%d, %d' % (s_spin, cfg.spin))
    vm.wait('h2l')
    tagcheck(p, tags, 28, 29)
    p('s_cbranch_vccz L_h2%s_ok' % L)
    p.label('L_h2%s' % L)
    for f in hop2_load_ops(p, vm, br, retry=True): f()
    vm.wait_all()
    tagcheck(p, tags, 28, 29)
    spin_tail(p, 'h2%s' % L)
    for u in range(2):
        for m in range(nm): p('v_cndmask_b32_e64 v%d, v%d, v%d, s[%d:%d]' % (KVA + 8 * u + m, H2 + 16 * u + 4 * m, H2 + 16 * u + 4 * m + 1, s_hi8, s_hi8 + 1))
        for m in range(nm): p('v_mov_b32 v%d, v%d' % (KVA + 8 * u + nm + m, H2 + 16 * u + 4 * m + 2))
    for u in range(2):
        for m in range(nm): p('v_permlane16_swap_b32 v%d, v%d' % (KVA + 8 * u + m, KVA + 8 * u + nm + m))

OF = 232
def o_addr(p):
    p('s_lshl_b32 s%d, s%d, 2' % (s_t0, s_i)); p('s_lshl_b32 s%d, s%d, 1' % (s_t1, s_th)); p('s_add_u32 s%d, s%d, s%d' % (s_t0, s_t0, s_t1))
    p('s_lshl_b32 s%d, s%d, 16' % (s_t0, s_t0)); p('s_lshl_b32 s%d, s%d, 10' % (s_t1, s_head)); p('s_add_u32 s%d, s%d, s%d' % (s_t0, s_t0, s_t1)); p('s_add_u32 s%d, s%d, %d' % (s_t0, s_t0, WS_O))
    p('s_xor_b32 s%d, s%d, 1024' % (s_t1, s_t0))
    p('s_add_u32 s%d, s%d, 65536' % (s_t2, s_t0)); p('s_add_u32 s%d, s%d, 65536' % (s_t3, s_t1))

def o_warm_ops(p, vm):
    def a():
        o_addr(p); p('v_lshlrev_b32 v27, 4, v%d' % v_lane)
    ops = [a]
    for k, sr_ in enumerate((s_t0, s_t1, s_t2, s_t3)):
        ops.append(lambda k=k, sr_=sr_: vm.op('buffer_load_dwordx4 v[%d:%d], v27, s[%d:%d], s%d offen %s' % (232 + 4 * k, 235 + 4 * k, sWS, sWS + 3, sr_, cfg.owarmfl)))
    return ops

def o_phase(p, vm, br):
    NB = [64, 80, 96, 112]
    for un, (blk, u) in enumerate(UNITS):
        if br == 1:
            p('%s %s, %s, %s, 0' % (MF, vr(NB[un], 16), vr(KVA + 8 * u, 4), vr(FQ + 8 * un, 4)))
            p('%s %s, %s, %s, %s' % (MF, vr(NB[un], 16), vr(KVA + 8 * u + 4, 4), vr(FQ + 8 * un + 4, 4), vr(NB[un], 16)))
        else:
            p('%s %s, %s, %s, 0' % (MF, vr(NB[un], 16), vr(KVA + 8 * u, 4), vr(FQ + 4 * un, 4)))
        if un == 0:
            p('s_lshl_b32 s%d, s%d, 2' % (s_t0, s_i)); p('s_lshl_b32 s%d, s%d, 1' % (s_t1, s_th)); p('s_add_u32 s%d, s%d, s%d' % (s_t0, s_t0, s_t1))
            p('s_lshl_b32 s%d, s%d, 16' % (s_t0, s_t0)); p('s_lshl_b32 s%d, s%d, 10' % (s_t1, s_head)); p('s_add_u32 s%d, s%d, s%d' % (s_t0, s_t0, s_t1)); p('s_add_u32 s%d, s%d, %d' % (s_t0, s_t0, WS_O))
            p('s_xor_b32 s%d, s%d, 1024' % (s_t1, s_t0))
            p('s_add_u32 s%d, s%d, 65536' % (s_t2, s_t0)); p('s_add_u32 s%d, s%d, 65536' % (s_t3, s_t1))
            p('v_lshlrev_b32 v27, 4, v%d' % v_lane)
    soffs = {(0, 0): s_t0, (0, 1): s_t1, (1, 0): s_t2, (1, 1): s_t3}
    for un, (blk, u) in enumerate(UNITS):
        N = NB[un]; num = N; den = N + 8
        p('v_add_f32 v%d, s%d, v%d' % (den, s_eps, den))
        p('v_rcp_f32 v%d, v%d' % (den, den))
        for i in range(4):
            p('v_pk_mul_f32 v[%d:%d], v[%d:%d], v[%d:%d] op_sel_hi:[1,0]' % (num + 2 * i, num + 2 * i + 1, num + 2 * i, num + 2 * i + 1, den, den + 1))
        for i in range(4): cvt(p, OF + 4 * un + i, num + 2 * i, num + 2 * i + 1)
        vm.op('buffer_store_dwordx4 %s, v27, s[%d:%d], s%d offen sc1' % (vr(OF + 4 * un, 4), sWS, sWS + 3, soffs[(blk, u)]), 'ost')
    p('s_lshl_b32 s%d, s%d, 1' % (s_t0, s_i)); p('s_add_u32 s%d, s%d, s%d' % (s_t0, s_t0, s_th)); p('s_lshl_b32 s%d, s%d, 5' % (s_t0, s_t0))
    p('s_lshl_b32 s%d, s%d, 1' % (s_t1, s_jj)); p('s_add_u32 s%d, s%d, s%d' % (s_t0, s_t0, s_t1)); p('s_add_u32 s%d, s%d, s%d' % (s_t0, s_t0, s_hp))
    p('s_add_u32 s%d, s%d, %d' % (s_t0, s_t0, 16 * br)); p('s_lshl_b32 s%d, s%d, 7' % (s_t0, s_t0)); p('s_add_u32 s%d, s%d, %d' % (s_h2a, s_t0, WS_FLAG))

def o_flag(p, vm):
    p('v_mov_b32 v27, 0')
    vm.wait('ost')
    p('s_mov_b64 exec, 1')
    vm.op('buffer_store_dword v%d, v27, s[%d:%d], s%d offen sc1' % (vT, sWS, sWS + 3, s_h2a))
    p('s_mov_b64 exec, -1')

def gate_load_ops(p, vm):
    X, Gw = GX, GW
    def a0():
        p('s_lshl_b32 s%d, s%d, 7' % (s_t0, s_i)); p('s_lshl_b32 s%d, s%d, 4' % (s_t1, s_jj)); p('s_add_u32 s%d, s%d, s%d' % (s_t0, s_t0, s_t1))
        p('s_lshl_b32 s%d, s%d, 2' % (s_t1, s_w)); p('s_add_u32 s%d, s%d, s%d' % (s_t0, s_t0, s_t1))
        p('s_lshl_b32 s%d, s%d, 10' % (s_t2, s_t0))
    def a1():
        p('s_lshr_b32 s%d, s%d, 2' % (s_t3, s_t0)); p('s_lshl_b32 s%d, s%d, 7' % (s_t3, s_t3)); p('s_add_u32 s%d, s%d, %d' % (s_b + 1, s_t3, WS_G))
        p('v_and_b32 v27, 15, v%d' % v_lane); p('v_lshlrev_b32 v27, 4, v27')
    def a2():
        p('v_lshrrev_b32 v28, 4, v%d' % v_lane); p('v_lshl_add_u32 v28, v28, 10, v27')
    ops = [a0, a1, a2]
    for q in range(4):
        ops.append(lambda q=q: vm.op('buffer_load_dwordx4 %s, v28, s[%d:%d], s%d offen offset:%d' % (vr(X + 4 * q, 4), sX, sX + 3, s_t2, q * 256)))
    for q in range(4):
        ops.append(lambda q=q: vm.op('buffer_load_dwordx4 %s, v27, s[%d:%d], 0 offen offset:%d' % (vr(Gw + 4 * q, 4), sMISC, sMISC + 3, q * 256), 'gate' if q == 3 else None))
    return ops

def gate_finish(p, vm):
    X, Gw = GX, GW
    vm.wait('gate')
    acc = 200
    p('v_mov_b32 v%d, 0' % acc); p('v_mov_b32 v%d, 0' % (acc + 1))
    for k in range(16):
        p('v_lshlrev_b32 v202, 16, v%d' % (X + k)); p('v_lshlrev_b32 v203, 16, v%d' % (Gw + k))
        p('v_and_b32 v204, 0xffff0000, v%d' % (X + k)); p('v_and_b32 v205, 0xffff0000, v%d' % (Gw + k))
        p('v_fmac_f32 v%d, v202, v203' % acc); p('v_fmac_f32 v%d, v204, v205' % (acc + 1))
    p('v_add_f32 v%d, v%d, v%d' % (acc, acc, acc + 1))
    for sh in (8, 4, 2, 1):
        p('v_add_f32_dpp v%d, v%d, v%d row_ror:%d row_mask:0xf bank_mask:0xf' % (acc, acc, acc, sh))
    p('v_mul_f32 v%d, s%d, v%d' % (acc, s_log2e, acc))
    p('v_exp_f32_e64 v%d, -v%d' % (acc, acc))
    p('v_add_f32 v%d, 1.0, v%d' % (acc, acc))
    p('v_rcp_f32 v%d, v%d' % (acc, acc))
    p('v_mov_b32 v%d, v%d' % (acc + 1, vT))
    p('v_lshrrev_b32 v27, 4, v%d' % v_lane); p('v_lshlrev_b32 v27, 3, v27')
    p('s_mov_b32 exec_lo, 0x00010001'); p('s_mov_b32 exec_hi, 0x00010001')
    vm.op('buffer_store_dwordx2 v[%d:%d], v27, s[%d:%d], s%d offen sc1' % (acc, acc + 1, sWS, sWS + 3, s_b + 1))
    p('s_mov_b64 exec, -1')

def p3_setup(p):
    p('v_lshrrev_b32 v27, 5, v%d' % v_lane); p('v_lshlrev_b32 v27, 2, v27')
    p('v_bfe_u32 v28, v%d, 2, 2' % v_lane); p('v_add_u32 v27, v27, v28'); p('v_lshlrev_b32 v27, 7, v27')
    p('v_bfe_u32 v29, v%d, 4, 1' % v_lane); p('v_lshl_add_u32 v27, v29, 5, v27')
    p('v_and_b32 v29, 3, v%d' % v_lane); p('v_lshl_add_u32 v27, v29, 3, v27')
    p('s_and_b32 s%d, s%d, 1' % (s_t0, s_r)); p('s_xor_b32 s%d, s%d, s%d' % (s_t0, s_t0, s_hp))
    p('s_lshl_b32 s%d, s%d, 16' % (s_t0, s_t0)); p('s_add_u32 s%d, s%d, %d' % (s_t0, s_t0, SLOT)); p('v_add_u32 v27, s%d, v27' % s_t0)
    p('v_lshrrev_b32 v28, 1, v28')
    p('v_lshl_add_u32 v%d, v28, 6, v27' % vOA)
    p('v_xor_b32 v28, 1, v28'); p('v_lshl_add_u32 v%d, v28, 6, v27' % (vOA + 1))
    p('v_and_b32 v27, 31, v%d' % v_lane)
    p('s_lshl_b32 s%d, s%d, 14' % (s_t0, s_hp)); p('s_lshl_b32 s%d, s%d, 13' % (s_t1, s_th)); p('s_add_u32 s%d, s%d, s%d' % (s_t0, s_t0, s_t1))
    p('v_lshlrev_b32 v28, 8, v27'); p('v_add_u32 v28, s%d, v28' % s_t0)
    p('v_and_b32 v29, 7, v27'); p('v_lshrrev_b32 v27, 5, v%d' % v_lane); p('v_xor_b32 v29, v29, v27')
    for q in range(4):
        p('v_xor_b32 v27, %d, v29' % (2 * q)); p('v_lshl_add_u32 v%d, v27, 4, v28' % (vEW + q))
    p('v_lshrrev_b32 v27, 3, v%d' % v_lane); p('v_and_b32 v28, 7, v%d' % v_lane); p('v_lshlrev_b32 v28, 1, v28')
    p('s_lshl_b32 s%d, s%d, 12' % (s_t0, s_w))
    p('v_lshlrev_b32 v29, 8, v27'); p('v_add_u32 v29, s%d, v29' % s_t0)
    for x in range(2):
        p('v_or_b32 v30, %d, v28' % x); p('v_xor_b32 v30, v30, v27'); p('v_lshl_add_u32 v%d, v30, 4, v29' % (vER + x))
    p('v_and_b32 v28, 7, v%d' % v_lane); p('v_lshlrev_b32 v28, 4, v28'); p('v_lshl_add_u32 v14, v27, 10, v28')
    p('v_and_b32 v15, 15, v%d' % v_lane); p('v_lshlrev_b32 v15, 7, v15')
    p('v_lshlrev_b32 v16, 4, v%d' % v_lane)
    p('v_and_b32 v28, 31, v%d' % v_lane); p('v_lshrrev_b32 v29, 2, v28'); p('v_lshlrev_b32 v29, 7, v29'); p('v_and_b32 v28, 3, v28'); p('v_lshl_add_u32 v17, v28, 3, v29')

s_fl, s_oa, s_ga, s_out0, s_out1 = 47, 48, 49, 50, 51
def p3_scalars(p):
    p('s_lshl_b32 s%d, s%d, 1' % (s_t0, s_tb)); p('s_add_u32 s%d, s%d, s%d' % (s_t0, s_t0, s_hp)); p('s_lshl_b32 s%d, s%d, 11' % (s_t0, s_t0)); p('s_add_u32 s%d, s%d, %d' % (s_fl, s_t0, WS_FLAG))
    p('s_lshl_b32 s%d, s%d, 1' % (s_t0, s_tb)); p('s_add_u32 s%d, s%d, s%d' % (s_t0, s_t0, s_th)); p('s_lshl_b32 s%d, s%d, 16' % (s_t1, s_t0))
    p('s_lshl_b32 s%d, s%d, 15' % (s_t2, s_hp)); p('s_add_u32 s%d, s%d, s%d' % (s_t1, s_t1, s_t2)); p('s_add_u32 s%d, s%d, %d' % (s_oa, s_t1, WS_O))
    p('s_lshl_b32 s%d, s%d, 10' % (s_t0, s_t0)); p('s_add_u32 s%d, s%d, %d' % (s_ga, s_t0, WS_G))
    p('s_lshl_b32 s%d, s%d, 6' % (s_t0, s_tb)); p('s_lshl_b32 s%d, s%d, 4' % (s_t1, s_w)); p('s_add_u32 s%d, s%d, s%d' % (s_t0, s_t0, s_t1)); p('s_lshl_b32 s%d, s%d, 10' % (s_t0, s_t0))
    p('s_lshl_b32 s%d, s%d, 7' % (s_t1, s_cb)); p('s_add_u32 s%d, s%d, s%d' % (s_out0, s_t0, s_t1)); p('s_add_u32 s%d, s%d, 8192' % (s_out1, s_out0))
    if cfg.orot: p('s_mov_b32 s%d, s%d' % (s_rc, s_cb))
    else: p('s_mov_b32 s%d, 0' % s_rc)
    p('s_lshr_b32 s%d, s%d, 1' % (s_r4, s_r)); p('s_lshl_b32 s%d, s%d, 2' % (s_r4, s_r4))

def p3(p, vm, br):
    L = 'AB'[br]
    OACC = [64, 80]
    GV = 96
    vm.op('buffer_load_dwordx2 v[%d:%d], v17, s[%d:%d], s%d offen sc1' % (GV, GV + 1, sWS, sWS + 3, s_ga), 'g')
    p('s_mov_b32 s%d, %d' % (s_spin, cfg.spin))
    p.label('L_fl%s' % L)
    vm.op('buffer_load_dword v28, v15, s[%d:%d], s%d offen sc1' % (sWS, sWS + 3, s_fl))
    vm.wait_all()
    p('v_cmp_ne_u32 vcc, v28, v%d' % vT)
    spin_tail(p, 'fl%s' % L)
    if cfg.fine == 4:
        stamp(p, 44)
        p('v_writelane_b32 v255, s%d, 45' % s_spin)
    if not cfg.wosched and not cfg.earlyb4 and not cfg.wo2p2: p('s_barrier')
    stamp(p, 15)
    def oload(h):
        g, q = h >> 2, h & 3
        if q == 0:
            p('s_add_u32 s%d, s%d, %d' % (s_t2, s_rc, g)); p('s_and_b32 s%d, s%d, 7' % (s_t2, s_t2))
            p('s_add_u32 s%d, s%d, s%d' % (s_t2, s_t2, s_r4)); p('s_and_b32 s%d, s%d, 7' % (s_t2, s_t2)); p('s_lshl_b32 s%d, s%d, 12' % (s_t2, s_t2))
            p('s_add_u32 s%d, s%d, s%d' % (s_t1, s_oa, s_t2))
        vm.op('buffer_load_dwordx4 %s, v16, s[%d:%d], s%d offen offset:%d sc1' % (ar(4 * h, 4), sWS, sWS + 3, s_t1, q * 1024), 'o%d' % h)
    LA = cfg.ola
    for h in range(LA): oload(h)
    def gaddr(g):
        d = vOG + 2 * (g & 1)
        return ['s_add_u32 s%d, s%d, %d' % (s_t0, s_rc, g), 's_and_b32 s%d, s%d, 7' % (s_t0, s_t0), 's_lshl_b32 s%d, s%d, 13' % (s_t0, s_t0),
                'v_add_u32 v%d, s%d, v%d' % (d, s_t0, vOA), 'v_add_u32 v%d, s%d, v%d' % (d + 1, s_t0, vOA + 1)]
    def reads(h):
        wf = vWF + 8 * (h % 3); g = h >> 2
        pre = gaddr(g) if (h & 3) == 0 else []
        return pre + ['ds_read_b64_tr_b16 v[%d:%d], v%d offset:%d' % (wf + 4 * ct + 2 * rd, wf + 4 * ct + 2 * rd + 1, vOG + 2 * (g & 1) + ct, (h & 3) * 2048 + rd * 1024) for ct in range(2) for rd in range(2)]
    for h in range(2):
        for o in reads(h): p(o)
    if cfg.fine == 3: stamp(p, 41)
    p('s_mov_b32 s%d, %d' % (s_spin, cfg.spin))
    p('v_cmp_ne_u32 vcc, v%d, v%d' % (GV + 1, vT))
    p('s_cbranch_vccz L_g%s_ok' % L)
    p.label('L_g%s' % L)
    vm2 = VM(p)
    vm2.op('buffer_load_dwordx2 v[%d:%d], v17, s[%d:%d], s%d offen sc1' % (GV, GV + 1, sWS, sWS + 3, s_ga))
    vm2.wait_all()
    p('v_cmp_ne_u32 vcc, v%d, v%d' % (GV + 1, vT))
    spin_tail(p, 'g%s' % L)
    p('v_sub_f32 v%d, 1.0, v%d' % (GV + 1, GV))
    p('s_cmp_eq_u32 s%d, 0' % s_hp)
    p('s_cselect_b64 vcc, 0, -1')
    p('v_cndmask_b32 v%d, v%d, v%d, vcc' % (GV, GV, GV + 1))
    for h in range(32):
        wf = vWF + 8 * (h % 3)
        vm.wait('o%d' % h, ' lgkmcnt(%d)' % (4 if h < 31 else 0))
        if cfg.fine == 3 and h in (0, 8, 16, 24): stamp(p, 42 + h // 8)
        R = reads(h + 2) if h + 2 < 32 else []
        for ct in range(2):
            c = '0' if h == 0 else vr(OACC[ct], 16)
            p('%s %s, %s, %s, %s' % (MF, vr(OACC[ct], 16), vr(wf + 4 * ct, 4), ar(4 * h, 4), c))
            k = len(R) - 2
            for o in (R[:k] if ct == 0 else R[k:]): p(o)
            if ct == 0 and h + LA < 32: oload(h + LA)
    stamp(p, 16)
    for ct in range(2):
        for q in range(4):
            for i in range(2 * q, 2 * q + 2):
                p('v_pk_mul_f32 v[%d:%d], v[%d:%d], v[%d:%d] op_sel_hi:[1,0]' % (OACC[ct] + 2 * i, OACC[ct] + 2 * i + 1, OACC[ct] + 2 * i, OACC[ct] + 2 * i + 1, GV, GV + 1))
            p('ds_write_b128 v%d, %s offset:%d' % (vEW + q, vr(OACC[ct] + 4 * q, 4), 128 * ct))
    p('s_waitcnt lgkmcnt(0)')
    stamp(p, 17)
    p('s_barrier')
    RD = 168
    for a in range(2):
        for brr in range(2):
            for x in range(2):
                p('ds_read_b128 %s, v%d offset:%d' % (vr(RD + 16 * a + 8 * brr + 4 * x, 4), vER + x, a * 2048 + brr * 16384))
    for a in range(2):
        p('s_waitcnt lgkmcnt(%d)' % (4 if a == 0 else 0))
        r = RD + 16 * a
        for i in range(4): p('v_pk_add_f32 v[%d:%d], v[%d:%d], v[%d:%d]' % (r + 2 * i, r + 2 * i + 1, r + 2 * i, r + 2 * i + 1, r + 8 + 2 * i, r + 8 + 2 * i + 1))
        for i in range(4): cvt(p, r + 8 + i, r + 2 * i, r + 2 * i + 1)
        vm.op('buffer_store_dwordx4 %s, v14, s[%d:%d], s%d offen' % (vr(r + 8, 4), sOUT, sOUT + 3, s_out0 if a == 0 else s_out1))
    p('s_cmp_eq_u32 s%d, 0' % s_b); p('s_cbranch_scc0 L_noep%s' % L)
    p('s_cmp_eq_u32 s%d, 0' % s_w); p('s_cbranch_scc0 L_noep%s' % L)
    p('v_mov_b32 v27, 0'); p('s_mov_b64 exec, 1')
    vm.op('buffer_store_dword v%d, v27, s[%d:%d], 0 offen sc1' % (vT, sWS, sWS + 3))
    p('s_mov_b64 exec, -1')
    p.label('L_noep%s' % L)

def rstamp(p, idx):
    if not cfg.stamps: return
    p('s_memrealtime s[%d:%d]' % (s_stamp, s_stamp + 1))
    p('s_waitcnt lgkmcnt(0)')
    p('v_writelane_b32 v255, s%d, %d' % (s_stamp, idx))

def write_stamps(p, vm):
    if not cfg.stamps: return
    rstamp(p, 12)
    if cfg.stamps == 2:
        L = 'x%d' % len(p.ins)
        p('s_load_dwordx2 s[4:5], s[0:1], 72'); p('s_waitcnt lgkmcnt(0)')
        p('s_mov_b32 s%d, s4' % sDBG); p('s_and_b32 s%d, s5, 0xffff' % (sDBG + 1)); p('s_mov_b32 s%d, 256' % (sDBG + 2)); p('s_mov_b32 s%d, 0x00020000' % (sDBG + 3))
        p('s_cmp_eq_u32 s%d, 0' % s_w); p('s_cbranch_scc0 L_ds2' + L)
        p('v_lshlrev_b32 v27, 2, v%d' % v_lane)
        p('s_cmp_eq_u32 s%d, 8' % s_b); p('s_cbranch_scc0 L_ds1' + L)
        p('s_mov_b64 exec, 0x1fff')
        vm.op('buffer_store_dword v255, v27, s[%d:%d], 0 offen' % (sDBG, sDBG + 3))
        p('s_mov_b64 exec, -1')
        p.label('L_ds1' + L)
        p('s_cmp_eq_u32 s%d, 255' % s_b); p('s_cbranch_scc0 L_ds2' + L)
        p('s_mov_b64 exec, 0x1800')
        vm.op('buffer_store_dword v255, v27, s[%d:%d], 0 offen offset:8' % (sDBG, sDBG + 3))
        p('s_mov_b64 exec, -1')
        p.label('L_ds2' + L)
        return
    p('s_lshl_b32 s%d, s%d, 2' % (s_t0, s_b)); p('s_add_u32 s%d, s%d, s%d' % (s_t0, s_t0, s_w)); p('s_lshl_b32 s%d, s%d, 8' % (s_t0, s_t0)); p('s_add_u32 s%d, s%d, %d' % (s_t0, s_t0, WS_STAMP))
    p('v_lshlrev_b32 v27, 2, v%d' % v_lane)
    vm.op('buffer_store_dword v255, v27, s[%d:%d], s%d offen' % (sDBG, sDBG + 3, s_t0))

def body(p, vm, br, dco, dwq):
    extra = {m: [] for m in range(8)}
    for m in range(6): extra[m] = dco(m + 2)
    if br == 0: extra[4] = extra[4] + gate_load_ops(p, vm)
    extra[6] = dwq(0)
    extra[7] = dwq(1)
    pass1(p, vm, br, dco, dwq, extra)
    p('s_barrier')
    stamp(p, 2)
    if cfg.debug == 1: dump_regs(p, vm, vK[0], 64, 0)
    make_tag(p, vm)
    side = dma_wo_ops(p, vm, 0)
    if cfg.wosched: side = side + dma_wo_ops(p, vm, 2)
    if br == 1:
        feat_k_B(p, vm, side)
        stamp(p, 3)
    else:
        gate_finish(p, vm)
        feat_k_A(p, side)
        stamp(p, 3)
        exchange(p, vm, br)
    if cfg.debug == 2: dump_regs(p, vm, ST, 32, 0)
    stamp(p, 4)
    sched = {}
    sched[('bar', 1)] = True
    st = hop1_store_ops(p, vm, br)
    for k, f in enumerate(st): sched.setdefault(k, []).append(f)
    for k, f in enumerate(dma_wo_ops(p, vm, 1)): sched.setdefault(cfg.wo1step + k, []).append(f)
    if cfg.wo2p2:
        for k, f in enumerate(dma_wo_ops(p, vm, 2)): sched.setdefault(cfg.wo1step + 8 + k, []).append(f)
    hl = hop1_load_ops(p, vm, br)
    for k, f in enumerate(hl): sched.setdefault(min(31, cfg.h1step + k), []).append(f)
    if cfg.owarm:
        ow = o_warm_ops(p, vm)
        def allw():
            for f in ow: f()
        sched.setdefault(cfg.owarm, []).append(allw)
    pass2(p, vm, sched)
    stamp(p, 5)
    if cfg.debug == 1:
        p('s_nop 15'); dump_regs(p, vm, vQ[0], 32, 1)
    hop1_reduce(p, vm, br)
    stamp(p, 6)
    late = hop2_load_ops(p, vm, br)
    if cfg.wo2p2 or cfg.wosched:
        p('s_barrier')
        side = dma_wo_ops(p, vm, 3)
    else:
        side = dma_wo_ops(p, vm, 2)
    if br == 1: feat_q_B(p, side, late)
    else: feat_q_A(p, side, late)
    stamp(p, 7)
    hop2_gather(p, vm, br)
    stamp(p, 8)
    if cfg.debug == 2: dump_regs(p, vm, KVA, 16, 1)
    o_phase(p, vm, br)
    if cfg.fine == 4: stamp(p, 41)
    if cfg.wosched or cfg.wo2p2:
        vm.wait('wo3')
        p('s_barrier')
    elif not cfg.wo2p2:
        p('s_barrier')
    p3_setup(p)
    p3_scalars(p)
    o_flag(p, vm)
    if cfg.fine == 4: stamp(p, 43)
    if not cfg.wo2p2 and not cfg.wosched:
        for f in dma_wo_ops(p, vm, 3): f()
        if cfg.earlyb4:
            vm.wait('wo3')
            p('s_barrier')
    stamp(p, 9)
    p3(p, vm, br)
    stamp(p, 10)
    write_stamps(p, vm)
    p('s_endpgm')

if __name__ == '__main__':
    import argparse
    ap = argparse.ArgumentParser()
    ap.add_argument('-o', default='k.s'); ap.add_argument('--debug', type=int, default=0); ap.add_argument('--rot', type=int, default=1)
    ap.add_argument('--maprow', type=int, default=1); ap.add_argument('--fine', type=int, default=0); ap.add_argument('--wosched', type=int, default=0); ap.add_argument('--earlyb4', type=int, default=1); ap.add_argument('--wsoff', type=lambda x: int(x,0), default=0); ap.add_argument('--owarm', type=int, default=0); ap.add_argument('--owarmfl', default=''); ap.add_argument('--wo2p2', type=int, default=0); ap.add_argument('--nowo', type=int, default=0); ap.add_argument('--codepf', type=int, default=1); ap.add_argument('--ola', type=int, default=12); ap.add_argument('--wo1step', type=int, default=4); ap.add_argument('--korder', type=int, default=1); ap.add_argument('--pro3', type=int, default=0); ap.add_argument('--worot', type=int, default=1); ap.add_argument('--orot', type=int, default=1); ap.add_argument('--pretouch', type=int, default=1); ap.add_argument('--h1step', type=int, default=19); ap.add_argument('--h2lead', type=int, default=70); ap.add_argument('--stamps', type=int, default=0)
    a = ap.parse_args()
    cfg.debug = a.debug; cfg.rot = a.rot; cfg.maprow = a.maprow; cfg.h1step = a.h1step; cfg.fine = a.fine; cfg.wosched = a.wosched; cfg.earlyb4 = a.earlyb4; cfg.wsoff = a.wsoff; cfg.owarm = a.owarm; cfg.owarmfl = a.owarmfl; cfg.wo2p2 = a.wo2p2; cfg.nowo = a.nowo; cfg.codepf = a.codepf; cfg.ola = a.ola; cfg.wo1step = a.wo1step; cfg.korder = a.korder; cfg.pro3 = a.pro3; cfg.worot = a.worot; cfg.orot = a.orot; cfg.pretouch = a.pretouch; cfg.h2lead = a.h2lead; cfg.stamps = a.stamps
    open(a.o, 'w').write(build())
```

```python
import sys, os
sys.path.insert(0, os.path.dirname(os.path.abspath(__file__)))
from asmdsl import *

KNAME = "gated_mix__linear_attn_block__linear_kernel_hedgehog__prompt_kernel"

class Cfg:
    debug = 0
    rot = 1
    maprow = 1
    spin = 1 << 20
    fine = 0
    outfl = ''
    wosched = 0
    earlyb4 = 1
    wsoff = 0
    owarm = 0
    owarmfl = ''
    wo2p2 = 0
    nowo = 0
    codepf = 1
    ola = 8
    wo1step = 6
    korder = 1
    pro3 = 0
    worot = 1
    orot = 1
    pretouch = 1
    h1step = 22
    h2lead = 70
    stamps = 0
cfg = Cfg()

WS_EPOCH = 0x0
WS_G     = 0x1000
WS_FLAG  = 0x20000
WS_OUTK  = 0x100000
WS_OUTZ  = 0x140000
WS_O     = 0x200000
WS_INB   = 0x800000
WS_SIZE  = 0x1000000
WS_DBG   = 0x1000000
WS_STAMP = 0x7000000

sX, sW, sWOA, sWOB, sWS, sOUT, sMISC, sDBG = 8, 12, 16, 20, 24, 28, 32, 36
s_w, s_th, s_hp, s_i, s_jj, s_rot, s_T = 40, 41, 42, 43, 44, 45, 46
s_xbase, s_wbase, s_m0x, s_m0w, s_ox, s_ow, s_t0, s_t1, s_t2, s_t3 = 47, 48, 49, 50, 51, 52, 53, 54, 55, 56
s_tb, s_cb, s_head, s_qbase, s_m0q = 57, 58, 59, 60, 61
s_mask16 = 62
s_log2e = 84
s_eps = 86
s_spin = 88
s_ht = 89
s_stamp = 90
s_b = 92
s_exec = 94
s_wobase, s_m0o = 96, 97
s_qadj, s_q0 = 4, 5
s_t2x, s_t3x = 98, 99
s_r = 6
s_odd = 94
KA = 64

v_lane = 1
vXA = 2
vWA = 14
vDX = 17
vDQ = 21
vONES = 25
vT = 26
vtmp = 27
vK = [32, 48]; vV = [64, 80]; vQ = [96, 112]
vWF = 128
vWP = 152
vSEL = 160
vTMP = 168

SLOT = 32768
def slot_set(s): return s // 2
def slot_imm(s): return (s % 2) * SLOT

class VM:
    def __init__(self, p): self.p = p; self.n = 0; self.marks = {}; self.done = 0
    def op(self, text, mark=None):
        self.p(text); self.n += 1
        if mark: self.marks[mark] = self.n
    def mark(self, name): self.marks[name] = self.n
    def wait(self, name, extra=''):
        if self.marks[name] <= self.done:
            if extra: self.p('s_waitcnt' + extra)
            return
        k = self.n - self.marks[name]
        assert 0 <= k <= 63, (name, k)
        self.p('s_waitcnt vmcnt(%d)%s' % (k, extra))
        self.done = self.marks[name]
    def wait_all(self):
        self.p('s_waitcnt vmcnt(0)'); self.done = self.n

def stamp(p, idx):
    if not cfg.stamps: return
    p('s_memtime s[%d:%d]' % (s_stamp, s_stamp + 1))
    p('s_waitcnt lgkmcnt(0)')
    p('v_writelane_b32 v255, s%d, %d' % (s_stamp, idx))


def korder(n): return (2 * (n & 3) + (n >> 2)) if cfg.korder else n

def srd(p, d, ptr, size):
    p('s_mov_b32 s%d, s%d' % (d, ptr)); p('s_and_b32 s%d, s%d, 0xffff' % (d + 1, ptr + 1))
    p('s_mov_b32 s%d, 0x%x' % (d + 2, size)); p('s_mov_b32 s%d, 0x00020000' % (d + 3))

SOFF = 64
WPT = 168
GX, GW = 168, 184

def gen_path(br):
    p = Prog(); vm = VM(p)
    L = 'A' if br == 0 else 'B'
    p.label('L_path' + L)
    if cfg.stamps: p('v_mov_b32 v255, 0')
    stamp(p, 0)
    rstamp(p, 11)
    p('v_lshrrev_b32 v27, 6, v0')
    p('v_and_b32 v%d, 63, v0' % v_lane)
    p('v_readfirstlane_b32 s%d, v27' % s_w)
    p('v_lshrrev_b32 v27, 3, v%d' % v_lane)
    p('v_and_b32 v28, 7, v%d' % v_lane)
    p('v_lshrrev_b32 v29, 4, v%d' % v_lane)
    for q in range(2):
        p('v_add_u32 v30, %d, v29' % (4 * (q & 1)))
        p('v_xor_b32 v30, v28, v30')
        p('v_lshlrev_b32 v30, 4, v30')
        p('v_add_u32 v31, %d, v27' % (7 * q))
        p('v_lshl_add_u32 v%d, v31, 10, v30' % (vDX + q))
    p('v_add_u32 v%d, %d, v%d' % (vDX + 2, 14 * 1024, vDX)); p('v_add_u32 v%d, %d, v%d' % (vDX + 3, 14 * 1024, vDX + 1))
    p('v_and_b32 v30, 1, v29'); p('v_lshlrev_b32 v30, 2, v30'); p('v_xor_b32 v30, v28, v30'); p('v_lshlrev_b32 v30, 4, v30')
    p('v_mul_u32_u24 v31, 3072, v27')
    p('v_add_u32 v%d, v30, v31' % vDQ)
    for q in range(1, 4):
        p('v_add_u32 v%d, %d, v%d' % (vDQ + q, 8 * q * 3072 - 1024 * q, vDQ))
    p('s_and_b32 s%d, s%d, 1' % (s_th, s_w))
    p('s_lshr_b32 s%d, s%d, 1' % (s_hp, s_w))
    p('s_lshl_b32 s%d, s%d, 17' % (s_xbase, s_i))
    p('s_lshl_b32 s%d, s%d, 15' % (s_t0, s_w))
    p('s_add_u32 s%d, s%d, s%d' % (s_xbase, s_xbase, s_t0))
    p('s_lshl_b32 s%d, s%d, 7' % (s_qbase, s_jj))
    p('s_mul_i32 s%d, s%d, 98304' % (s_t0, s_th))
    p('s_add_u32 s%d, s%d, s%d' % (s_wbase, s_qbase, s_t0))
    p('s_add_u32 s%d, s%d, 1' % (s_t0, s_hp))
    p('s_lshl_b32 s%d, s%d, 10' % (s_t0, s_t0))
    p('s_add_u32 s%d, s%d, s%d' % (s_wbase, s_wbase, s_t0))
    p('s_lshl_b32 s%d, s%d, 12' % (s_m0x, s_w))
    p('s_lshl_b32 s%d, s%d, 13' % (s_m0w, s_hp))
    p('s_lshl_b32 s%d, s%d, 12' % (s_t0, s_th))
    p('s_add_u32 s%d, s%d, s%d' % (s_m0w, s_m0w, s_t0))
    p('s_add_u32 s%d, s%d, 16384' % (s_m0w, s_m0w))
    p('s_lshl_b32 s%d, s%d, 11' % (s_m0q, s_w))
    p('s_mul_i32 s%d, s%d, 49152' % (s_t0, s_w))
    p('s_add_u32 s%d, s%d, s%d' % (s_t0, s_t0, s_qbase))
    p('s_sub_u32 s%d, s%d, s%d' % (s_qadj, s_wbase, s_t0))

    def chunk_offsets(n, dx, dw):
        p('s_add_u32 s%d, s%d, %d' % (s_t0, s_rot, korder(n))); p('s_and_b32 s%d, s%d, 7' % (s_t0, s_t0))
        p('s_lshl_b32 s%d, s%d, 7' % (s_t1, s_t0)); p('s_add_u32 s%d, s%d, s%d' % (dx, s_xbase, s_t1))
        p('s_mul_i32 s%d, s%d, 196608' % (s_t1, s_t0)); p('s_add_u32 s%d, s%d, s%d' % (dw, s_wbase, s_t1))
    def dma_chunk_ops(n):
        slot = (n % 4) * SLOT
        ox = s_ox if n == 0 else SOFF + 2 * n
        ow = s_ow if n == 0 else SOFF + 2 * n + 1
        ops = []
        def x0():
            p('s_add_u32 m0, s%d, %d' % (s_m0x, slot)); p('s_nop 0')
            vm.op('buffer_load_dwordx4 v%d, s[%d:%d], s%d offen lds' % (vDX, sX, sX + 3, ox))
        ops.append(x0)
        for q in range(1, 4):
            ops.append(lambda q=q: vm.op('buffer_load_dwordx4 v%d, s[%d:%d], s%d offen offset:%d lds' % (vDX + q, sX, sX + 3, ox, q * 1024)))
        def w0():
            p('s_add_u32 m0, s%d, %d' % (s_m0w, slot)); p('s_nop 0')
            vm.op('buffer_load_dwordx4 v%d, s[%d:%d], s%d offen lds' % (vDQ, sW, sW + 3, ow))
        ops.append(w0)
        for q in range(1, 4):
            ops.append(lambda q=q: vm.op('buffer_load_dwordx4 v%d, s[%d:%d], s%d offen offset:%d lds' % (vDQ + q, sW, sW + 3, ow, q * 1024), 'c%d' % n if q == 3 else None))
        return ops
    def dma_wq_ops(hf):
        ops = []
        for c in range(4 * hf, 4 * hf + 4):
            def m(c=c):
                if c == 0: p('s_add_u32 s%d, s%d, 0' % (s_ow, s_q0))
                else: p('s_sub_u32 s%d, s%d, s%d' % (s_ow, SOFF + 2 * c + 1, s_qadj))
                p('s_add_u32 m0, s%d, %d' % (s_m0q, (4 * (c >> 2)) * SLOT + (c & 3) * 8192)); p('s_nop 0')
                vm.op('buffer_load_dwordx4 v%d, s[%d:%d], s%d offen lds' % (vDQ, sW, sW + 3, s_ow))
            ops.append(m)
            ops.append(lambda c=c: vm.op('buffer_load_dwordx4 v%d, s[%d:%d], s%d offen offset:1024 lds' % (vDQ + 1, sW, sW + 3, s_ow), 'wq%d' % hf if (c & 3) == 3 else None))
        return ops

    chunk_offsets(0, s_ox, s_ow)
    p('s_sub_u32 s%d, s%d, s%d' % (s_q0, s_ow, s_qadj))
    p('s_waitcnt lgkmcnt(0)')
    srd(p, sX, KA + 0, 2048 * 1024)
    srd(p, sW, KA + (2 if br == 0 else 8), 512 * 3072)
    stamp(p, 20)
    for f in dma_chunk_ops(0): f()
    if cfg.codepf:
        p('s_getpc_b64 s[%d:%d]' % (s_t2x, s_t2x + 1))
        p.label('L_pc%s' % L)
        p('s_sub_u32 s%d, s%d, L_pc%s-%s' % (s_t2x, s_t2x, L, KNAME)); p('s_subb_u32 s%d, s%d, 0' % (s_t2x + 1, s_t2x + 1))
        p('s_lshr_b32 s%d, s%d, 3' % (s_t0, s_b)); p('s_lshl_b32 s%d, s%d, 2' % (s_t0, s_t0)); p('s_add_u32 s%d, s%d, s%d' % (s_t0, s_t0, s_w)); p('s_lshl_b32 s%d, s%d, 9' % (s_t0, s_t0))
        p('v_lshlrev_b32 v27, 7, v%d' % v_lane); p('v_and_b32 v27, 0x1ff, v27')
        p('v_add_u32 v27, s%d, v27' % s_t0)
        p('v_min_u32 v27, L_end-%s, v27' % KNAME)
        p('v_mov_b32 v29, s%d' % (s_t2x + 1))
        p('v_add_co_u32 v28, vcc, s%d, v27' % s_t2x); p('v_addc_co_u32 v29, vcc, 0, v29, vcc')
        p('s_mov_b64 exec, 15')
        vm.op('global_load_dword v239, v[28:29], off')
        p('s_mov_b64 exec, -1')
    if cfg.wsoff:
        p('s_add_u32 s%d, s%d, 0x%x' % (KA + 18, KA + 18, cfg.wsoff)); p('s_addc_u32 s%d, s%d, 0' % (KA + 19, KA + 19))
    srd(p, sWS, KA + 18, WS_SIZE)
    if br == 0: srd(p, sMISC, KA + 14, 1024)
    else:
        srd(p, sMISC, KA + 10, 32 * 512)
        p('s_lshl_b32 s%d, s%d, 11' % (s_t0, s_jj)); p('s_lshl_b32 s%d, s%d, 10' % (s_t1, s_hp)); p('s_add_u32 s%d, s%d, s%d' % (s_t0, s_t0, s_t1))
        p('s_lshl_b32 s%d, s%d, 10' % (s_t1, s_w)); p('s_add_u32 m0, s%d, %d' % (s_t1, 4 * SLOT))
        p('v_lshlrev_b32 v27, 4, v%d' % v_lane)
        vm.op('buffer_load_dwordx4 v27, s[%d:%d], s%d offen lds' % (sMISC, sMISC + 3, s_t0), 'wphi')
    p('v_mov_b32 v28, 0')
    vm.op('buffer_load_dword v%d, v28, s[%d:%d], 0 offen sc1' % (vT, sWS, sWS + 3), 'epoch')
    srd(p, sWOA, KA + 4, 512 * 1024)
    srd(p, sWOB, KA + 12, 512 * 1024)
    srd(p, sOUT, KA + 16, 2048 * 1024)
    if cfg.debug or cfg.stamps: srd(p, sDBG, KA + 18, 0x8000000)
    for n in range(1, 8): chunk_offsets(n, SOFF + 2 * n, SOFF + 2 * n + 1)
    if cfg.pretouch:
        p('s_lshl_b32 s%d, s%d, 18' % (s_t0, s_jj)); p('s_add_u32 s%d, s%d, %d' % (s_t0, s_t0, WS_INB + br * 0x200000))
        vm.op('buffer_load_dword v232, v28, s[%d:%d], s%d offen' % (sWS, sWS + 3, s_t0))
        p('s_lshl_b32 s%d, s%d, 18' % (s_t0, s_i)); p('s_add_u32 s%d, s%d, %d' % (s_t0, s_t0, WS_O))
        vm.op('buffer_load_dword v233, v28, s[%d:%d], s%d offen' % (sWS, sWS + 3, s_t0))
        p('s_lshl_b32 s%d, s%d, 17' % (s_t0, s_tb)); p('s_add_u32 s%d, s%d, %d' % (s_t0, s_t0, WS_O))
        vm.op('buffer_load_dword v234, v28, s[%d:%d], s%d offen' % (sWS, sWS + 3, s_t0))
        vm.op('buffer_load_dword v235, v28, s[%d:%d], 0 offen' % (sWOA, sWOA + 3))
        vm.op('buffer_load_dword v236, v28, s[%d:%d], 0 offen' % (sWOB, sWOB + 3))
        p('s_lshl_b32 s%d, s%d, 16' % (s_t0, s_tb))
        vm.op('buffer_load_dword v237, v28, s[%d:%d], s%d offen' % (sOUT, sOUT + 3, s_t0))
    wo_setup(p)
    p('v_and_b32 v27, 31, v%d' % v_lane)
    p('v_lshrrev_b32 v28, 5, v%d' % v_lane)
    p('v_lshrrev_b32 v29, 1, v27'); p('v_and_b32 v29, 7, v29'); p('v_xor_b32 v29, v28, v29')
    p('s_lshl_b32 s%d, s%d, 13' % (s_t0, s_th))
    p('v_lshlrev_b32 v30, 7, v27'); p('v_add_u32 v30, s%d, v30' % s_t0)
    for ks in range(4):
        p('v_xor_b32 v31, %d, v29' % (2 * ks)); p('v_lshl_add_u32 v%d, v31, 4, v30' % (vXA + ks))
        p('v_add_u32 v%d, 0x10000, v%d' % (vXA + 4 + ks, vXA + ks))
    p('v_lshrrev_b32 v27, 2, v%d' % v_lane); p('v_and_b32 v27, 3, v27')
    p('v_lshl_add_u32 v29, v28, 3, v27')
    p('v_lshlrev_b32 v29, 7, v29')
    p('v_lshrrev_b32 v30, 1, v27'); p('v_xor_b32 v30, s%d, v30' % s_hp); p('v_lshl_add_u32 v29, v30, 6, v29')
    p('v_lshrrev_b32 v30, 4, v%d' % v_lane); p('v_xor_b32 v30, s%d, v30' % s_th); p('v_and_b32 v30, 1, v30'); p('v_lshl_add_u32 v29, v30, 5, v29')
    p('v_and_b32 v30, 3, v%d' % v_lane); p('v_lshl_add_u32 v%d, v30, 3, v29' % vWA)
    p('v_add_u32 v%d, 0x10000, v%d' % (vWA + 1, vWA)); p('v_add_u32 v%d, 0x20000, v%d' % (vWA + 2, vWA))
    p('v_mov_b32 v%d, 0x3f803f80' % vONES)
    p('s_mov_b32 s%d, 0xffff0000' % s_mask16); p('s_mov_b32 s%d, 0xffff0000' % (s_mask16 + 1))
    p('s_mov_b32 s%d, 0x3fb8aa3b' % s_log2e); p('s_mov_b32 s%d, 0x3fb8aa3b' % (s_log2e + 1))
    p('s_mov_b32 s%d, 0x358637bd' % s_eps); p('s_mov_b32 s%d, 0x358637bd' % (s_eps + 1))
    if br == 1:
        p('v_and_b32 v27, 31, v%d' % v_lane)
        p('v_lshrrev_b32 v28, 5, v%d' % v_lane)
        p('v_bfe_u32 v29, v27, 2, 1')
        p('v_cmp_eq_u32 vcc, v28, v29')
        p('v_bfe_u32 v29, v27, 3, 1'); p('v_and_b32 v30, 3, v27'); p('v_lshl_add_u32 v29, v29, 2, v30')
        p('v_and_b32 v30, 1, v29'); p('v_lshlrev_b32 v30, 4, v30'); p('v_mov_b32 v31, 0x3f80'); p('v_lshlrev_b32 v30, v30, v31')
        p('v_cndmask_b32 v30, 0, v30, vcc')
        p('v_lshrrev_b32 v29, 1, v29')
        p('v_bfe_u32 v28, v27, 4, 1')
        p('v_lshl_add_u32 v29, v28, 2, v29')
        for q in range(8):
            p('v_cmp_eq_u32 vcc, %d, v29' % q)
            p('v_cndmask_b32 v%d, 0, v30, vcc' % (vSEL + q))
    p('s_mov_b32 s%d, 0xaaaaaaaa' % s_odd); p('s_mov_b32 s%d, 0xaaaaaaaa' % (s_odd + 1))
    if br == 1:
        p('v_lshrrev_b32 v27, 5, v%d' % v_lane); p('v_lshlrev_b32 v27, 2, v27')
        p('v_bfe_u32 v28, v%d, 2, 2' % v_lane); p('v_add_u32 v27, v27, v28'); p('v_lshlrev_b32 v27, 5, v27')
        p('v_bfe_u32 v28, v%d, 1, 1' % v_lane); p('v_lshl_add_u32 v27, v28, 3, v27')
        p('v_bfe_u32 v28, v%d, 4, 1' % v_lane); p('v_lshl_add_u32 v27, v28, 4, v27')
        p('s_lshl_b32 s%d, s%d, 10' % (s_t0, s_w)); p('s_add_u32 s%d, s%d, %d' % (s_t0, s_t0, 4 * SLOT))
        p('s_lshl_b32 s%d, s%d, 9' % (s_t1, s_th)); p('s_add_u32 s%d, s%d, s%d' % (s_t0, s_t0, s_t1))
        p('v_add_u32 v27, s%d, v27' % s_t0); p('v_xor_b32 v29, 512, v27')
        p('v_bfe_u32 v28, v%d, 2, 1' % v_lane); p('v_lshlrev_b32 v28, 31, v28'); p('v_lshrrev_b32 v30, 16, v28'); p('v_or_b32 v28, v28, v30')
    stamp(p, 21)
    for f in dma_chunk_ops(1): f()
    if br == 1:
        vm.wait('wphi')
        for u in range(2):
            for rd in range(2):
                p('ds_read_b64_tr_b16 v[%d:%d], v%d offset:%d' % (vWP + 4 * u + 2 * rd, vWP + 4 * u + 2 * rd + 1, 27 if u == 0 else 29, rd * 8 * 32))
        p('s_waitcnt lgkmcnt(0)')
        for q in range(8): p('v_xor_b32 v%d, v%d, v28' % (vWP + q, vWP + q))
    return p, vm, dma_chunk_ops, dma_wq_ops

def make_tag(p, vm):
    vm.wait('epoch')
    p('v_readfirstlane_b32 s%d, v%d' % (s_T, vT))
    p('s_mul_i32 s%d, s%d, 0x9e3779b1' % (s_T, s_T)); p('s_add_u32 s%d, s%d, 0x7f4a7c15' % (s_T, s_T))
    p('v_mov_b32 v%d, s%d' % (vT, s_T))

def emit(p, item):
    if callable(item): item()
    else: p(item)

def merge(p, main, side, every, start=0):
    side = list(side); k = 0
    for idx, m in enumerate(main):
        emit(p, m)
        if idx >= start and (idx - start) % every == every - 1 and side:
            emit(p, side.pop(0))
    for x in side: emit(p, x)

class Rec:
    def __init__(self): self.l = []
    def __call__(self, t, tag=None):
        for line in t.split('\n'):
            if line.strip(): self.l.append(line.strip())

def xf(s, blk): return ar((s * 2 + blk) * 4, 4)

def pass1(p, vm, br, dma_chunk_ops, dma_wq_ops, extra_ops):
    def reads(s):
        c, ks = s >> 2, s & 3; slot = c % 4; st = slot_set(slot); im = slot_imm(slot); buf = s % 3
        ops = []
        wf = vWF + 8 * buf
        for part in range(2):
            for rd in range(2):
                ops.append('ds_read_b64_tr_b16 v[%d:%d], v%d offset:%d' % (wf + 4 * part + 2 * rd, wf + 4 * part + 2 * rd + 1, vWA + st, im + 16384 + part * 8192 + (16 * ks + 4 * rd) * 128))
        for blk in range(2):
            ops.append('ds_read_b128 %s, v%d offset:%d' % (xf(s, blk), vXA + st * 4 + ks, im + blk * 4096))
        return ops
    def mfmas(s):
        wf = vWF + 8 * (s % 3); ops = []
        for blk in range(2):
            c = '0' if s == 0 else vr(vK[blk], 16)
            if br == 1: ops.append('v_mfma_f32_32x32x16_bf16 %s, %s, %s, %s' % (vr(vK[blk], 16), vr(wf, 4), xf(s, blk), c))
            else:       ops.append('v_mfma_f32_32x32x16_bf16 %s, %s, %s, %s' % (vr(vK[blk], 16), xf(s, blk), vr(wf, 4), c))
            c = '0' if s == 0 else vr(vV[blk], 16)
            ops.append('v_mfma_f32_32x32x16_bf16 %s, %s, %s, %s' % (vr(vV[blk], 16), xf(s, blk), vr(wf + 4, 4), c))
        return ops
    pend = []
    vm.wait('c0'); p('s_barrier')
    stamp(p, 1)
    pend += extra_ops[0]
    for o in reads(0): p(o)
    for o in reads(1): p(o)
    for s in range(32):
        nxt = s + 2
        p('s_waitcnt lgkmcnt(%d)' % (6 if s < 31 else 0))
        M = mfmas(s)
        R = reads(nxt) if nxt < 32 else []
        p(M[0])
        if nxt < 32 and nxt % 4 == 0:
            m = nxt // 4
            vm.wait('c%d' % m); p('s_barrier')
            if cfg.stamps == 1 and cfg.fine: stamp(p, 30 + m)
            pend += extra_ops[m]
        def take(n):
            for _ in range(n):
                if pend: pend.pop(0)()
        for k in range(4):
            if k > 0: p(M[k])
            for o in R[(k * 6) // 4:((k + 1) * 6) // 4]: p(o)
            if k % 2 == 1 or len(pend) > 8: take(1)
    while pend: pend.pop(0)()

def pass2(p, vm, sched):
    RA = 3
    def reads(s):
        c, ks = s >> 2, s & 3; slot = 4 * (c >> 2); st = slot_set(slot); im = slot_imm(slot); wf = vWF + 4 * (s % 4)
        return ['ds_read_b64_tr_b16 v[%d:%d], v%d offset:%d' % (wf + 2 * rd, wf + 2 * rd + 1, vWA + st, im + (c & 3) * 8192 + (16 * ks + 4 * rd) * 128) for rd in range(2)]
    for s in range(RA):
        for o in reads(s): p(o)
    for s in range(32):
        out = min(RA - 1, 31 - s)
        p('s_waitcnt lgkmcnt(%d)' % (2 * out))
        wf = vWF + 4 * (s % 4)
        if ('bar', s) in sched: p('s_barrier')
        if cfg.fine == 2 and s % 4 == 0 and s > 0:
            stamp(p, 40 + s // 4);
        items = list(sched.get(s, []))
        h = (len(items) + 1) // 2
        for blk in range(2):
            c = '0' if s == 0 else vr(vQ[blk], 16)
            p('v_mfma_f32_32x32x16_bf16 %s, %s, %s, %s' % (vr(vQ[blk], 16), vr(wf, 4), xf(s, blk), c))
            if blk == 0 and s + RA < 32:
                for o in reads(s + RA): p(o)
            for it in (items[:h] if blk == 0 else items[h:]): emit(p, it)

def dump_regs(p, vm, base_reg, n, slot_index):
    p('s_lshl_b32 s%d, s%d, 2' % (s_t0, s_b)); p('s_add_u32 s%d, s%d, s%d' % (s_t0, s_t0, s_w))
    p('s_mul_i32 s%d, s%d, %d' % (s_t0, s_t0, n * 256)); p('s_add_u32 s%d, s%d, %d' % (s_t0, s_t0, WS_DBG + slot_index * 0x1000000))
    p('v_lshlrev_b32 v27, 4, v%d' % v_lane)
    for r in range(0, n, 4):
        vm.op('buffer_store_dwordx4 %s, v27, s[%d:%d], s%d offen' % (vr(base_reg + r, 4), sDBG, sDBG + 3, s_t0))
        p('s_add_u32 s%d, s%d, 1024' % (s_t0, s_t0))
    vm.wait_all()

def build():
    top = Prog()
    top('s_cmp_ge_u32 s2, 256')
    top('s_cbranch_scc1 L_end')
    top('s_load_dwordx16 s[64:79], s[0:1], 0')
    top('s_load_dwordx2 s[80:81], s[0:1], 64')
    top('s_load_dwordx2 s[82:83], s[0:1], 80')
    top('s_mov_b32 s%d, s2' % s_b)
    top('s_and_b32 s%d, s2, 7' % s_t0)
    top('s_lshr_b32 s%d, s2, 3' % s_t1)
    if cfg.maprow == 0:
        top('s_mov_b32 s%d, s%d' % (s_jj, s_t0))
        top('s_lshr_b32 s%d, s%d, 1' % (s_i, s_t1))
        top('s_and_b32 s%d, s%d, 1' % (s_t2, s_t1))
        top('s_lshl_b32 s%d, s%d, 2' % (s_rot, s_t2)); top('s_add_u32 s%d, s%d, s%d' % (s_rot, s_rot, s_i)); top('s_and_b32 s%d, s%d, 7' % (s_rot, s_rot))
    else:
        top('s_and_b32 s%d, s%d, 1' % (s_i, s_t0)); top('s_lshl_b32 s%d, s%d, 3' % (s_i, s_i)); top('s_and_b32 s%d, s%d, 7' % (s_t2, s_t1)); top('s_add_u32 s%d, s%d, s%d' % (s_i, s_i, s_t2))
        top('s_lshr_b32 s%d, s%d, 1' % (s_t3, s_t0)); top('s_lshl_b32 s%d, s%d, 2' % (s_t3, s_t3)); top('s_lshr_b32 s%d, s%d, 3' % (s_t2, s_t1)); top('s_add_u32 s%d, s%d, s%d' % (s_t3, s_t3, s_t2))
        top('s_lshr_b32 s%d, s%d, 1' % (s_jj, s_t3))
        top('s_lshl_b32 s%d, s%d, 1' % (s_rot, s_t3)); top('s_add_u32 s%d, s%d, s%d' % (s_rot, s_rot, s_i)); top('s_and_b32 s%d, s%d, 7' % (s_rot, s_rot))
        top('s_and_b32 s%d, s%d, 1' % (s_t2, s_t3))
    if not cfg.rot: top('s_mov_b32 s%d, 0' % s_rot)
    top('s_lshl_b32 s%d, s%d, 2' % (s_tb, s_t0)); top('s_and_b32 s%d, s%d, 3' % (s_t3, s_t1)); top('s_add_u32 s%d, s%d, s%d' % (s_tb, s_tb, s_t3))
    top('s_lshr_b32 s%d, s%d, 2' % (s_cb, s_t1))
    top('s_cmp_eq_u32 s%d, 0' % s_t2)
    top('s_cbranch_scc0 L_pathB')
    paths = []
    for br in range(2):
        p, vm, dco, dwq = gen_path(br)
        body(p, vm, br, dco, dwq)
        added = p.fix_hazards()
        errs = p.check_waits()
        if errs:
            for e in errs[:20]: print('WAITERR', e, file=sys.stderr)
            raise SystemExit('wait check failed')
        print('path', 'AB'[br], 'instructions:', sum(1 for i in p.ins if i.op), 'nop states added:', added, file=sys.stderr)
        paths.append(p)
    top.fix_hazards()
    hdr = open(os.path.join(os.path.dirname(os.path.abspath(__file__)), 'header.txt')).read()
    s = hdr
    s += '; @launch grid=(256,1,1) block=(256,1,1) lds=163840\n'
    s += '.amdgcn_target "amdgcn-amd-amdhsa--gfx950"\n.text\n.globl %s\n.p2align 8\n.type %s,@function\n%s:\n' % (KNAME, KNAME, KNAME)
    s += top.text()
    for p in paths: s += p.text()
    s += 'L_end:\n    s_endpgm\n'
    s += '.section .rodata,"a"\n.p2align 6\n.amdhsa_kernel %s\n  .amdhsa_next_free_vgpr 512\n  .amdhsa_next_free_sgpr 102\n  .amdhsa_accum_offset 256\n  .amdhsa_group_segment_fixed_size 0\n  .amdhsa_kernarg_size 88\n  .amdhsa_user_sgpr_count 2\n  .amdhsa_user_sgpr_kernarg_segment_ptr 1\n  .amdhsa_system_sgpr_workgroup_id_x 1\n.end_amdhsa_kernel\n' % KNAME
    return s


MF = 'v_mfma_f32_32x32x16_bf16'
vDO = 10
vOA = 2
vEW = 4
vER = 8
vOG = 18
s_rc, s_r4 = 7, 3

def cvt(p, d, a, b): p('v_cvt_pk_bf16_f32 v%d, v%d, v%d' % (d, a, b))

def wo_setup(p):
    p('v_lshrrev_b32 v27, 3, v%d' % v_lane); p('v_and_b32 v28, 7, v%d' % v_lane)
    p('v_bfe_u32 v29, v%d, 4, 1' % v_lane); p('v_lshlrev_b32 v29, 2, v29'); p('v_xor_b32 v28, v28, v29'); p('v_lshlrev_b32 v28, 4, v28')
    p('s_lshl_b32 s%d, s%d, 7' % (s_t0, s_cb)); p('v_add_u32 v28, s%d, v28' % s_t0)
    p('v_lshl_add_u32 v%d, v27, 10, v28' % vDO)
    for q in range(1, 4): p('v_add_u32 v%d, %d, v%d' % (vDO + q, 7 * q * 1024, vDO))
    p('s_lshl_b32 s%d, s%d, 16' % (s_wobase, s_w)); p('s_lshl_b32 s%d, s%d, 13' % (s_m0o, s_w))
    if cfg.worot:
        p('s_and_b32 s%d, s%d, 3' % (s_r, s_tb))
        p('s_lshr_b32 s%d, s%d, 1' % (s_t0, s_r)); p('s_lshl_b32 s%d, s%d, 18' % (s_t0, s_t0)); p('s_add_u32 s%d, s%d, s%d' % (s_wobase, s_wobase, s_t0))
        p('s_bitcmp1_b32 s%d, 0' % s_r)
        p('s_cselect_b32 s%d, s%d, s%d' % (s_t0, sWOB, sWOA)); p('s_cselect_b32 s%d, s%d, s%d' % (s_t1, sWOA, sWOB))
        p('s_cselect_b32 s%d, s%d, s%d' % (s_t2x, sWOB + 1, sWOA + 1)); p('s_cselect_b32 s%d, s%d, s%d' % (s_t3x, sWOA + 1, sWOB + 1))
        p('s_mov_b32 s%d, s%d' % (sWOA, s_t0)); p('s_mov_b32 s%d, s%d' % (sWOB, s_t1)); p('s_mov_b32 s%d, s%d' % (sWOA + 1, s_t2x)); p('s_mov_b32 s%d, s%d' % (sWOB + 1, s_t3x))
    else:
        p('s_mov_b32 s%d, 0' % s_r)

def dma_wo_ops(p, vm, part):
    if cfg.nowo:
        def f(): vm.mark('wo%d' % part)
        return [f]
    return dma_wo_ops_real(p, vm, part)

def dma_wo_ops_real(p, vm, part):
    srd_ = sWOA if part < 2 else sWOB
    ops = []
    for grp in range(2):
        def m(grp=grp):
            if part & 1: p('s_xor_b32 s%d, s%d, 262144' % (s_ow, s_wobase))
            else: p('s_mov_b32 s%d, s%d' % (s_ow, s_wobase))
            if grp: p('s_add_u32 s%d, s%d, 32768' % (s_ow, s_ow))
            p('s_add_u32 m0, s%d, %d' % (s_m0o, (part + 1) * SLOT + grp * 4096)); p('s_nop 0')
            vm.op('buffer_load_dwordx4 v%d, s[%d:%d], s%d offen lds' % (vDO, srd_, srd_ + 3, s_ow))
        ops.append(m)
        for q in range(1, 4):
            ops.append(lambda q=q, grp=grp: vm.op('buffer_load_dwordx4 v%d, s[%d:%d], s%d offen offset:%d lds' % (vDO + q, srd_, srd_ + 3, s_ow, q * 1024), 'wo%d' % part if (q == 3 and grp == 1) else None))
    return ops

def softmax16(p, P, F, tmp):
    m, S = tmp, tmp + 2
    p('v_max3_f32 v%d, v%d, v%d, v%d' % (m, P, P + 1, P + 2))
    p('v_max3_f32 v%d, v%d, v%d, v%d' % (m + 1, P + 3, P + 4, P + 5))
    p('v_max3_f32 v%d, v%d, v%d, v%d' % (m, m, P + 6, P + 7))
    p('v_max3_f32 v%d, v%d, v%d, v%d' % (m + 1, m + 1, P + 8, P + 9))
    p('v_max3_f32 v%d, v%d, v%d, v%d' % (m, m, P + 10, P + 11))
    p('v_max3_f32 v%d, v%d, v%d, v%d' % (m + 1, m + 1, P + 12, P + 13))
    p('v_max3_f32 v%d, v%d, v%d, v%d' % (m, m, P + 14, P + 15))
    p('v_max_f32 v%d, v%d, v%d' % (m, m, m + 1))
    p('v_mul_f32 v%d, s%d, v%d' % (m, s_log2e, m))
    for i in range(8):
        p('v_pk_fma_f32 v[%d:%d], v[%d:%d], s[%d:%d], v[%d:%d] op_sel_hi:[1,1,0] neg_lo:[0,0,1] neg_hi:[0,0,1]' % (P + 2 * i, P + 2 * i + 1, P + 2 * i, P + 2 * i + 1, s_log2e, s_log2e + 1, m, m + 1))
    for i in range(16): p('v_exp_f32 v%d, v%d' % (P + i, P + i))
    p('v_pk_add_f32 v[%d:%d], v[%d:%d], v[%d:%d]' % (S, S + 1, P, P + 1, P + 2, P + 3))
    p('v_pk_add_f32 v[%d:%d], v[%d:%d], v[%d:%d]' % (m, m + 1, P + 4, P + 5, P + 6, P + 7))
    p('v_pk_add_f32 v[%d:%d], v[%d:%d], v[%d:%d]' % (S, S + 1, S, S + 1, P + 8, P + 9))
    p('v_pk_add_f32 v[%d:%d], v[%d:%d], v[%d:%d]' % (m, m + 1, m, m + 1, P + 10, P + 11))
    p('v_pk_add_f32 v[%d:%d], v[%d:%d], v[%d:%d]' % (S, S + 1, S, S + 1, P + 12, P + 13))
    p('v_pk_add_f32 v[%d:%d], v[%d:%d], v[%d:%d]' % (m, m + 1, m, m + 1, P + 14, P + 15))
    p('v_pk_add_f32 v[%d:%d], v[%d:%d], v[%d:%d]' % (S, S + 1, S, S + 1, m, m + 1))
    p('v_add_f32 v%d, v%d, v%d' % (S, S, S + 1))
    p('v_rcp_f32 v%d, v%d' % (S, S))
    for i in range(8):
        p('v_pk_mul_f32 v[%d:%d], v[%d:%d], v[%d:%d] op_sel_hi:[1,0]' % (P + 2 * i, P + 2 * i + 1, P + 2 * i, P + 2 * i + 1, S, S + 1))
    for i in range(8): cvt(p, F + i, P + 2 * i, P + 2 * i + 1)

def phi_elu(p, T, n, F, tmp):
    for base in range(0, n // 2, 4):
        prs = range(base, min(base + 4, n // 2))
        for k, i in enumerate(prs):
            p('v_pk_mul_f32 v[%d:%d], v[%d:%d], s[%d:%d]' % (tmp + 2 * k, tmp + 2 * k + 1, T + 2 * i, T + 2 * i + 1, s_log2e, s_log2e + 1))
        for k, i in enumerate(prs):
            p('v_exp_f32 v%d, v%d clamp' % (tmp + 2 * k, tmp + 2 * k)); p('v_exp_f32 v%d, v%d clamp' % (tmp + 2 * k + 1, tmp + 2 * k + 1))
        for k, i in enumerate(prs):
            p('v_max_f32 v%d, 0, v%d' % (T + 2 * i, T + 2 * i)); p('v_max_f32 v%d, 0, v%d' % (T + 2 * i + 1, T + 2 * i + 1))
        for k, i in enumerate(prs):
            p('v_pk_add_f32 v[%d:%d], v[%d:%d], v[%d:%d]' % (T + 2 * i, T + 2 * i + 1, T + 2 * i, T + 2 * i + 1, tmp + 2 * k, tmp + 2 * k + 1))
        for k, i in enumerate(prs):
            p('v_pk_add_f32 v[%d:%d], v[%d:%d], s[%d:%d]' % (T + 2 * i, T + 2 * i + 1, T + 2 * i, T + 2 * i + 1, s_eps, s_eps + 1))
        for k, i in enumerate(prs): cvt(p, F + i, T + 2 * i, T + 2 * i + 1)

ACC = [96, 112]
def vprep(p, VB0, VB1):
    for blk in range(2):
        for i in range(8): cvt(p, VB0 + 8 * blk + i, vV[blk] + 2 * i, vV[blk] + 2 * i + 1)
    for blk in range(2):
        for i in range(8): p('v_cndmask_b32_e64 v%d, v%d, v%d, s[%d:%d]' % (VB1 + 8 * blk + i, vONES, VB0 + 8 * blk + i, s_mask16, s_mask16 + 1))
    for blk in range(2):
        for i in range(8): p('v_cndmask_b32_e64 v%d, v%d, v%d, s[%d:%d]' % (VB0 + 8 * blk + i, VB0 + 8 * blk + i, vONES, s_mask16, s_mask16 + 1))

def insert_at(main, ins):
    out = []; ins = sorted(ins, key=lambda x: x[0]); k = 0
    for idx, m in enumerate(main):
        while k < len(ins) and ins[k][0] <= idx: out.append(ins[k][1]); k += 1
        out.append(m)
    out += [x[1] for x in ins[k:]]
    return out

UNITS = [(0, 0), (0, 1), (1, 0), (1, 1)]
ST = 184
UNITS_K = [(0, 1), (1, 1), (0, 0), (1, 0)]
def feat_k_B(p, vm, side):
    KB, PB, G = 168, 184, 128
    VB0, VB1 = 32, 48
    TB = [64, 80]
    VB = [VB0, VB1]
    U = UNITS_K
    r = Rec()
    for un, (blk, u) in enumerate(U):
        for i in range(4): cvt(r, KB + 4 * un + i, vK[blk] + 8 * u + 2 * i, vK[blk] + 8 * u + 2 * i + 1)
    head = list(r.l)
    r = Rec(); vprep(r, VB0, VB1); vp = list(r.l)
    PM = ['%s %s, %s, %s, 0' % (MF, vr(PB + 16 * un, 16), vr(vWP + 4 * u, 4), vr(KB + 4 * un, 4)) for un, (blk, u) in enumerate(U)]
    stream = head[:6] + [PM[0]] + head[6:10] + [PM[1]] + head[10:14] + [PM[2]] + head[14:16] + vp[:4] + [PM[3]] + vp[4:]
    def TA(un): return '%s %s, %s, %s, 0' % (MF, vr(TB[un % 2], 16), vr(KB + 8 * (un % 2), 4), vr(vSEL, 4))
    def TBm(un): return '%s %s, %s, %s, %s' % (MF, vr(TB[un % 2], 16), vr(KB + 8 * (un % 2) + 4, 4), vr(vSEL + 4, 4), vr(TB[un % 2], 16))
    def CV(un):
        q = Rec()
        for i in range(8): cvt(q, G + i, TB[un % 2] + 2 * i, TB[un % 2] + 2 * i + 1)
        return q.l
    def AA(un):
        blk, u = U[un]; c = '0' if blk == 0 else vr(ACC[u], 16)
        return '%s %s, %s, %s, %s' % (MF, vr(ACC[u], 16), vr(G, 4), vr(VB[u] + 8 * blk, 4), c)
    def AB(un):
        blk, u = U[un]
        return '%s %s, %s, %s, %s' % (MF, vr(ACC[u], 16), vr(G + 4, 4), vr(VB[u] + 8 * blk + 4, 4), vr(ACC[u], 16))
    q = Rec(); exchange_addr(q); ad = q.l
    q = Rec(); exchange_scal(q, 1); sc = q.l
    for un in range(4):
        q = Rec(); softmax16(q, PB + 16 * un, KB + 8 * (un % 2), 136); sm = q.l
        ins = []
        if un >= 1:
            ins += [(2, TA(un - 1)), (10, TBm(un - 1))]
            ins += [(34 + k, c) for k, c in enumerate(CV(un - 1))]
            ins += [(46, AA(un - 1)), (54, AB(un - 1))]
        if un == 2: ins += [(12 + k, x) for k, x in enumerate(ad)]
        if un == 3:
            ins += [(14 + 2 * k, 'ds_write_b128 v%d, %s offset:%d' % (vEXW, vr(ACC[1] + 4 * k, 4), k * 1024)) for k in range(4)]
            ins += [(24 + k, x) for k, x in enumerate(sc)]
        stream += insert_at(sm, ins)
    merge(p, stream, side, 14 if len(side) <= 8 else 12, start=4)
    tags = ['v_mov_b32 v%d, v%d' % (ST + 4 * k + 3, vT) for k in range(4)]
    RC = 216
    p('s_nop 1'); p(TA(3))
    for t in tags: p(t)
    p(TBm(3))
    vm.wait('wq1', ' lgkmcnt(0)')
    stamp(p, 18)
    p('s_barrier')
    stamp(p, 19)
    for q in range(4): p('ds_read_b128 %s, v%d offset:%d' % (vr(RC + 4 * q, 4), vEXR, q * 1024))
    for c in CV(3): p(c)
    p('s_nop 1'); p(AA(3)); p(AB(3))
    exchange_finish(p, 1)

def feat_k_A(p, side):
    PK, VB0, VB1 = 168, 200, 216
    r = Rec()
    for blk in range(2): phi_elu(r, vK[blk], 16, PK + 8 * blk, 184)
    vprep(r, VB0, VB1)
    VB = [VB0, VB1]
    for k in range(2): r('v_mov_b32 v%d, v%d' % (ST + 4 * k + 3, vT))
    exchange_addr(r)
    for blk in range(2):
        for u in range(2):
            c = '0' if blk == 0 else vr(ACC[u], 16)
            r('%s %s, %s, %s, %s' % (MF, vr(ACC[u], 16), vr(PK + 8 * blk, 4), vr(VB[u] + 8 * blk, 4), c))
            r('%s %s, %s, %s, %s' % (MF, vr(ACC[u], 16), vr(PK + 8 * blk + 4, 4), vr(VB[u] + 8 * blk + 4, 4), vr(ACC[u], 16)))
    merge(p, r.l, side, 10 if len(side) <= 8 else 7, start=2)

FQ = 32
def feat_q_B(p, side, late):
    KB, PB = 168, 184
    r = Rec()
    for un, (blk, u) in enumerate(UNITS):
        for i in range(4): cvt(r, KB + 4 * un + i, vQ[blk] + 8 * u + 2 * i, vQ[blk] + 8 * u + 2 * i + 1)
    head = list(r.l)
    PM = ['%s %s, %s, %s, 0' % (MF, vr(PB + 16 * un, 16), vr(vWP + 4 * u, 4), vr(KB + 4 * un, 4)) for un, (blk, u) in enumerate(UNITS)]
    stream = head[:6] + [PM[0]] + head[6:10] + [PM[1]] + head[10:14] + [PM[2]] + head[14:16] + ['s_nop 3', PM[3]]
    for un in range(4):
        q = Rec(); softmax16(q, PB + 16 * un, FQ + 8 * un, 136); stream += q.l
    n = len(stream)
    stream = insert_at(stream, [(n - cfg.h2lead + k, x) for k, x in enumerate(late)])
    merge(p, stream, side, 9, start=2)

def feat_q_A(p, side, late):
    r = Rec()
    for blk in range(2):
        for u in range(2): phi_elu(r, vQ[blk] + 8 * u, 8, FQ + 4 * (2 * blk + u), 184)
    merge(p, r.l, side, 6, start=1)
    for x in late: emit(p, x)

vEXW, vEXR, vH1S = 28, 29, 30
def exchange_addr(p):
    p('v_lshlrev_b32 v27, 4, v%d' % v_lane)
    p('s_lshl_b32 s%d, s%d, 12' % (s_t0, s_w)); p('s_add_u32 s%d, s%d, %d' % (s_t0, s_t0, (2 if cfg.wosched else 3) * SLOT))
    p('v_add_u32 v%d, s%d, v27' % (vEXW, s_t0))
    p('s_xor_b32 s%d, s%d, 4096' % (s_t0, s_t0))
    p('v_xor_b32 v27, 256, v27')
    p('v_add_u32 v%d, s%d, v27' % (vEXR, s_t0))
    p('v_lshrrev_b32 v%d, 4, v%d' % (vH1S, v_lane)); p('v_lshlrev_b32 v%d, 12, v%d' % (vH1S, vH1S)); p('v_and_b32 v27, 15, v%d' % v_lane); p('v_lshl_add_u32 v%d, v27, 4, v%d' % (vH1S, vH1S))

TZ = 200
def exchange_scal(p, br):
    p('s_lshl_b32 s%d, s%d, 2' % (s_head, s_jj)); p('s_add_u32 s%d, s%d, s%d' % (s_head, s_head, s_w)); p('s_add_u32 s%d, s%d, %d' % (s_head, s_head, 32 * br))
    p('s_lshl_b32 s%d, s%d, 16' % (s_t2, s_head)); p('s_lshl_b32 s%d, s%d, 8' % (s_t1, s_i)); p('s_add_u32 s%d, s%d, s%d' % (s_t2, s_t2, s_t1)); p('s_add_u32 s%d, s%d, %d' % (s_t2, s_t2, WS_INB))

def exchange_finish(p, br):
    nq = 4 if br == 1 else 2
    nh = 2 * nq
    RC = 216
    pos = lambda r: ST + 4 * (r >> 1) + (r & 1)
    p('s_waitcnt lgkmcnt(0)')
    for r in range(4 * nq):
        d = pos(r) if r < nh else TZ + r - nh
        p('v_add_f32 v%d, v%d, v%d' % (d, ACC[0] + r, RC + r))
    nd = 8 if br == 1 else 4
    for r in range(nd): p('v_permlane16_swap_b32 v%d, v%d' % (pos(r), TZ + r))
    for m in range(nd // 2): p('v_cndmask_b32_e64 v%d, v%d, v%d, s[%d:%d]' % (ST + 4 * m + 2, TZ + 2 * m, TZ + 2 * m + 1, s_odd, s_odd + 1))

def exchange(p, vm, br):
    nq = 2
    RC = 216
    src1 = ACC[1] + 8
    for q in range(nq): p('ds_write_b128 v%d, %s offset:%d' % (vEXW, vr(src1 + 4 * q, 4), q * 1024))
    exchange_scal(p, br)
    vm.wait('wq1', ' lgkmcnt(0)')
    stamp(p, 18)
    p('s_barrier')
    stamp(p, 19)
    for q in range(nq): p('ds_read_b128 %s, v%d offset:%d' % (vr(RC + 4 * q, 4), vEXR, q * 1024))
    exchange_finish(p, br)

def hop1_store_ops(p, vm, br):
    nm = 4 if br == 1 else 2
    ops = []
    for m in range(nm):
        def f(m=m):
            vm.op('buffer_store_dwordx4 %s, v%d, s[%d:%d], s%d offen sc1' % (vr(ST + 4 * m, 4), vH1S, sWS, sWS + 3, s_t2))
            if m < nm - 1: p('s_add_u32 s%d, s%d, 16384' % (s_t2, s_t2))
        ops.append(f)
    return ops

def spin_tail(p, name):
    p('s_cbranch_vccz L_%s_ok' % name)
    p('s_sub_u32 s%d, s%d, 1' % (s_spin, s_spin))
    p('s_cmp_gt_i32 s%d, 0' % s_spin)
    p('s_cbranch_scc1 L_%s' % name)
    p.label('L_%s_ok' % name)

def tagcheck(p, regs, t0, t1):
    regs = list(regs)
    p('v_min_u32 v%d, v%d, v%d' % (t0, regs[0], regs[1])); p('v_max_u32 v%d, v%d, v%d' % (t1, regs[0], regs[1]))
    k = 2
    while k + 1 < len(regs):
        p('v_min3_u32 v%d, v%d, v%d, v%d' % (t0, t0, regs[k], regs[k + 1])); p('v_max3_u32 v%d, v%d, v%d, v%d' % (t1, t1, regs[k], regs[k + 1])); k += 2
    if k < len(regs):
        p('v_min_u32 v%d, v%d, v%d' % (t0, t0, regs[k])); p('v_max_u32 v%d, v%d, v%d' % (t1, t1, regs[k]))
    p('v_xor_b32 v%d, v%d, v%d' % (t0, vT, t0)); p('v_xor_b32 v%d, v%d, v%d' % (t1, vT, t1)); p('v_or_b32 v%d, v%d, v%d' % (t0, t0, t1))
    p('v_cmp_ne_u32 vcc, 0, v%d' % t0)

H1 = 184
s_h1a = 98
def hop1_load_ops(p, vm, br, retry=False):
    ops = []
    def addr():
        p('s_lshl_b32 s%d, s%d, 16' % (s_h1a, s_head)); p('s_lshl_b32 s%d, s%d, 12' % (s_t1, s_i)); p('s_add_u32 s%d, s%d, s%d' % (s_h1a, s_h1a, s_t1)); p('s_add_u32 s%d, s%d, %d' % (s_h1a, s_h1a, WS_INB))
        p('v_lshlrev_b32 v27, 4, v%d' % v_lane)
    if not retry: ops.append(addr)
    for n in range(4):
        ops.append(lambda n=n: vm.op('buffer_load_dwordx4 %s, v27, s[%d:%d], s%d offen offset:%d sc1' % (vr(H1 + 4 * n, 4), sWS, sWS + 3, s_h1a, n * 1024), 'h1l' if n == 3 else None))
    return ops

def hop1_reduce(p, vm, br):
    L = 'AB'[br]; LD = H1
    vm.wait('h1l')
    if br == 0:
        p('s_cmp_ge_u32 s%d, 8' % s_i); p('s_cbranch_scc1 L_h1skip')
    p('s_mov_b32 s%d, %d' % (s_spin, cfg.spin))
    tagcheck(p, [LD + 4 * n + 3 for n in range(4)], 28, 29)
    p('s_cbranch_vccz L_h1%s_ok' % L)
    p.label('L_h1%s' % L)
    for f in hop1_load_ops(p, vm, br, retry=True): f()
    vm.wait_all()
    tagcheck(p, [LD + 4 * n + 3 for n in range(4)], 28, 29)
    spin_tail(p, 'h1%s' % L)
    a, b, z, t = 216, 217, 218, 219
    p('v_add_f32 v%d, v%d, v%d' % (a, LD, LD + 4)); p('v_add_f32 v%d, v%d, v%d' % (b, LD + 1, LD + 5)); p('v_add_f32 v%d, v%d, v%d' % (z, LD + 2, LD + 6))
    for n in range(2, 4):
        p('v_add_f32 v%d, v%d, v%d' % (a, a, LD + 4 * n)); p('v_add_f32 v%d, v%d, v%d' % (b, b, LD + 4 * n + 1)); p('v_add_f32 v%d, v%d, v%d' % (z, z, LD + 4 * n + 2))
    p('v_mov_b32 v%d, v%d' % (t, z))
    p('s_lshl_b32 s%d, s%d, 11' % (s_t0, s_head)); p('s_lshl_b32 s%d, s%d, 7' % (s_t1, s_i)); p('s_add_u32 s%d, s%d, s%d' % (s_t0, s_t0, s_t1)); p('s_add_u32 s%d, s%d, %d' % (s_t0, s_t0, WS_OUTK))
    p('v_permlane32_swap_b32 v%d, v%d' % (a, b))
    p('v_permlane32_swap_b32 v%d, v%d' % (z, t))
    p('v_add_f32 v%d, v%d, v%d' % (a, a, b)); p('v_add_f32 v%d, v%d, v%d' % (z, z, t))
    p('v_lshlrev_b32 v27, 4, v%d' % v_lane)
    p('v_mov_b32 v%d, v%d' % (b, a)); p('v_mov_b32 v%d, v%d' % (t, z))
    p('v_mov_b32 v223, v%d' % vT)
    p('s_nop 0')
    p('v_permlane16_swap_b32 v%d, v%d' % (a, b))
    p('v_permlane16_swap_b32 v%d, v%d' % (z, t))
    p('v_add_f32 v%d, v%d, v%d' % (a, a, b)); p('v_add_f32 v%d, v%d, v%d' % (z, z, t))
    p('v_mov_b32 v%d, v%d' % (b, a))
    p('s_nop 0')
    p('v_mov_b32_dpp v%d, v%d quad_perm:[1,1,1,1] row_mask:0xf bank_mask:0xf' % (t, z))
    p('v_permlane32_swap_b32 v%d, v%d' % (a, b))
    p('v_mov_b32_dpp v%d, v%d quad_perm:[0,0,0,0] row_mask:0xf bank_mask:0xf' % (222, z))
    cvt(p, 220, a, b)
    cvt(p, 222, 222, t)
    p('v_mov_b32_dpp v221, v220 row_ror:8 row_mask:0xf bank_mask:0xf')
    p('s_mov_b32 exec_lo, 0xff'); p('s_mov_b32 exec_hi, 0')
    vm.op('buffer_store_dwordx4 v[220:223], v27, s[%d:%d], s%d offen sc1' % (sWS, sWS + 3, s_t0))
    p('s_mov_b64 exec, -1')
    if br == 0: p.label('L_h1skip')

KVA = 216
H2 = 64
s_h2a, s_h2b = 100, 101
s_hi8 = 98
def hop2_load_ops(p, vm, br, retry=False):
    nm = 4 if br == 1 else 2
    ops = []
    def addr():
        p('s_lshl_b32 s%d, s%d, 11' % (s_h2a, s_head)); p('s_add_u32 s%d, s%d, %d' % (s_h2a, s_h2a, WS_OUTK)); p('s_xor_b32 s%d, s%d, 2048' % (s_h2b, s_h2a))
        p('s_mov_b32 s%d, 0xff00ff00' % s_hi8); p('s_mov_b32 s%d, 0xff00ff00' % (s_hi8 + 1))
    def addr2():
        p('v_lshrrev_b32 v31, 4, v%d' % v_lane); p('v_lshlrev_b32 v31, 7, v31'); p('v_and_b32 v30, 7, v%d' % v_lane); p('v_lshl_add_u32 v31, v30, 4, v31')
    if not retry: ops += [addr, addr2]
    for u in range(2):
        for m in range(nm):
            r = H2 + 16 * u + 4 * m
            ops.append(lambda r=r, u=u, m=m: vm.op('buffer_load_dwordx4 %s, v31, s[%d:%d], s%d offen offset:%d sc1' % (vr(r, 4), sWS, sWS + 3, s_h2a if u == 0 else s_h2b, m * 512), 'h2l' if (u == 1 and m == nm - 1) else None))
    return ops

def hop2_gather(p, vm, br):
    L = 'AB'[br]; nm = 4 if br == 1 else 2
    tags = [H2 + 16 * u + 4 * m + 3 for u in range(2) for m in range(nm)]
    p('s_mov_b32 s%d, %d' % (s_spin, cfg.spin))
    vm.wait('h2l')
    tagcheck(p, tags, 28, 29)
    p('s_cbranch_vccz L_h2%s_ok' % L)
    p.label('L_h2%s' % L)
    for f in hop2_load_ops(p, vm, br, retry=True): f()
    vm.wait_all()
    tagcheck(p, tags, 28, 29)
    spin_tail(p, 'h2%s' % L)
    for u in range(2):
        for m in range(nm): p('v_cndmask_b32_e64 v%d, v%d, v%d, s[%d:%d]' % (KVA + 8 * u + m, H2 + 16 * u + 4 * m, H2 + 16 * u + 4 * m + 1, s_hi8, s_hi8 + 1))
        for m in range(nm): p('v_mov_b32 v%d, v%d' % (KVA + 8 * u + nm + m, H2 + 16 * u + 4 * m + 2))
    for u in range(2):
        for m in range(nm): p('v_permlane16_swap_b32 v%d, v%d' % (KVA + 8 * u + m, KVA + 8 * u + nm + m))

OF = 232
def o_addr(p):
    p('s_lshl_b32 s%d, s%d, 2' % (s_t0, s_i)); p('s_lshl_b32 s%d, s%d, 1' % (s_t1, s_th)); p('s_add_u32 s%d, s%d, s%d' % (s_t0, s_t0, s_t1))
    p('s_lshl_b32 s%d, s%d, 16' % (s_t0, s_t0)); p('s_lshl_b32 s%d, s%d, 10' % (s_t1, s_head)); p('s_add_u32 s%d, s%d, s%d' % (s_t0, s_t0, s_t1)); p('s_add_u32 s%d, s%d, %d' % (s_t0, s_t0, WS_O))
    p('s_xor_b32 s%d, s%d, 1024' % (s_t1, s_t0))
    p('s_add_u32 s%d, s%d, 65536' % (s_t2, s_t0)); p('s_add_u32 s%d, s%d, 65536' % (s_t3, s_t1))

def o_warm_ops(p, vm):
    def a():
        o_addr(p); p('v_lshlrev_b32 v27, 4, v%d' % v_lane)
    ops = [a]
    for k, sr_ in enumerate((s_t0, s_t1, s_t2, s_t3)):
        ops.append(lambda k=k, sr_=sr_: vm.op('buffer_load_dwordx4 v[%d:%d], v27, s[%d:%d], s%d offen %s' % (232 + 4 * k, 235 + 4 * k, sWS, sWS + 3, sr_, cfg.owarmfl)))
    return ops

def o_phase(p, vm, br):
    NB = [64, 80, 96, 112]
    for un, (blk, u) in enumerate(UNITS):
        if br == 1:
            p('%s %s, %s, %s, 0' % (MF, vr(NB[un], 16), vr(KVA + 8 * u, 4), vr(FQ + 8 * un, 4)))
            p('%s %s, %s, %s, %s' % (MF, vr(NB[un], 16), vr(KVA + 8 * u + 4, 4), vr(FQ + 8 * un + 4, 4), vr(NB[un], 16)))
        else:
            p('%s %s, %s, %s, 0' % (MF, vr(NB[un], 16), vr(KVA + 8 * u, 4), vr(FQ + 4 * un, 4)))
        if un == 0:
            p('s_lshl_b32 s%d, s%d, 2' % (s_t0, s_i)); p('s_lshl_b32 s%d, s%d, 1' % (s_t1, s_th)); p('s_add_u32 s%d, s%d, s%d' % (s_t0, s_t0, s_t1))
            p('s_lshl_b32 s%d, s%d, 16' % (s_t0, s_t0)); p('s_lshl_b32 s%d, s%d, 10' % (s_t1, s_head)); p('s_add_u32 s%d, s%d, s%d' % (s_t0, s_t0, s_t1)); p('s_add_u32 s%d, s%d, %d' % (s_t0, s_t0, WS_O))
            p('s_xor_b32 s%d, s%d, 1024' % (s_t1, s_t0))
            p('s_add_u32 s%d, s%d, 65536' % (s_t2, s_t0)); p('s_add_u32 s%d, s%d, 65536' % (s_t3, s_t1))
            p('v_lshlrev_b32 v27, 4, v%d' % v_lane)
    soffs = {(0, 0): s_t0, (0, 1): s_t1, (1, 0): s_t2, (1, 1): s_t3}
    for un, (blk, u) in enumerate(UNITS):
        N = NB[un]; num = N; den = N + 8
        p('v_add_f32 v%d, s%d, v%d' % (den, s_eps, den))
        p('v_rcp_f32 v%d, v%d' % (den, den))
        for i in range(4):
            p('v_pk_mul_f32 v[%d:%d], v[%d:%d], v[%d:%d] op_sel_hi:[1,0]' % (num + 2 * i, num + 2 * i + 1, num + 2 * i, num + 2 * i + 1, den, den + 1))
        for i in range(4): cvt(p, OF + 4 * un + i, num + 2 * i, num + 2 * i + 1)
        vm.op('buffer_store_dwordx4 %s, v27, s[%d:%d], s%d offen sc1' % (vr(OF + 4 * un, 4), sWS, sWS + 3, soffs[(blk, u)]), 'ost')
    p('s_lshl_b32 s%d, s%d, 1' % (s_t0, s_i)); p('s_add_u32 s%d, s%d, s%d' % (s_t0, s_t0, s_th)); p('s_lshl_b32 s%d, s%d, 5' % (s_t0, s_t0))
    p('s_lshl_b32 s%d, s%d, 1' % (s_t1, s_jj)); p('s_add_u32 s%d, s%d, s%d' % (s_t0, s_t0, s_t1)); p('s_add_u32 s%d, s%d, s%d' % (s_t0, s_t0, s_hp))
    p('s_add_u32 s%d, s%d, %d' % (s_t0, s_t0, 16 * br)); p('s_lshl_b32 s%d, s%d, 7' % (s_t0, s_t0)); p('s_add_u32 s%d, s%d, %d' % (s_h2a, s_t0, WS_FLAG))

def o_flag(p, vm):
    p('v_mov_b32 v27, 0')
    vm.wait('ost')
    p('s_mov_b64 exec, 1')
    vm.op('buffer_store_dword v%d, v27, s[%d:%d], s%d offen sc1' % (vT, sWS, sWS + 3, s_h2a))
    p('s_mov_b64 exec, -1')

def gate_load_ops(p, vm):
    X, Gw = GX, GW
    def a0():
        p('s_lshl_b32 s%d, s%d, 7' % (s_t0, s_i)); p('s_lshl_b32 s%d, s%d, 4' % (s_t1, s_jj)); p('s_add_u32 s%d, s%d, s%d' % (s_t0, s_t0, s_t1))
        p('s_lshl_b32 s%d, s%d, 2' % (s_t1, s_w)); p('s_add_u32 s%d, s%d, s%d' % (s_t0, s_t0, s_t1))
        p('s_lshl_b32 s%d, s%d, 10' % (s_t2, s_t0))
    def a1():
        p('s_lshr_b32 s%d, s%d, 2' % (s_t3, s_t0)); p('s_lshl_b32 s%d, s%d, 7' % (s_t3, s_t3)); p('s_add_u32 s%d, s%d, %d' % (s_b + 1, s_t3, WS_G))
        p('v_and_b32 v27, 15, v%d' % v_lane); p('v_lshlrev_b32 v27, 4, v27')
    def a2():
        p('v_lshrrev_b32 v28, 4, v%d' % v_lane); p('v_lshl_add_u32 v28, v28, 10, v27')
    ops = [a0, a1, a2]
    for q in range(4):
        ops.append(lambda q=q: vm.op('buffer_load_dwordx4 %s, v28, s[%d:%d], s%d offen offset:%d' % (vr(X + 4 * q, 4), sX, sX + 3, s_t2, q * 256)))
    for q in range(4):
        ops.append(lambda q=q: vm.op('buffer_load_dwordx4 %s, v27, s[%d:%d], 0 offen offset:%d' % (vr(Gw + 4 * q, 4), sMISC, sMISC + 3, q * 256), 'gate' if q == 3 else None))
    return ops

def gate_finish(p, vm):
    X, Gw = GX, GW
    vm.wait('gate')
    acc = 200
    p('v_mov_b32 v%d, 0' % acc); p('v_mov_b32 v%d, 0' % (acc + 1))
    for k in range(16):
        p('v_lshlrev_b32 v202, 16, v%d' % (X + k)); p('v_lshlrev_b32 v203, 16, v%d' % (Gw + k))
        p('v_and_b32 v204, 0xffff0000, v%d' % (X + k)); p('v_and_b32 v205, 0xffff0000, v%d' % (Gw + k))
        p('v_fmac_f32 v%d, v202, v203' % acc); p('v_fmac_f32 v%d, v204, v205' % (acc + 1))
    p('v_add_f32 v%d, v%d, v%d' % (acc, acc, acc + 1))
    for sh in (8, 4, 2, 1):
        p('v_add_f32_dpp v%d, v%d, v%d row_ror:%d row_mask:0xf bank_mask:0xf' % (acc, acc, acc, sh))
    p('v_mul_f32 v%d, s%d, v%d' % (acc, s_log2e, acc))
    p('v_exp_f32_e64 v%d, -v%d' % (acc, acc))
    p('v_add_f32 v%d, 1.0, v%d' % (acc, acc))
    p('v_rcp_f32 v%d, v%d' % (acc, acc))
    p('v_mov_b32 v%d, v%d' % (acc + 1, vT))
    p('v_lshrrev_b32 v27, 4, v%d' % v_lane); p('v_lshlrev_b32 v27, 3, v27')
    p('s_mov_b32 exec_lo, 0x00010001'); p('s_mov_b32 exec_hi, 0x00010001')
    vm.op('buffer_store_dwordx2 v[%d:%d], v27, s[%d:%d], s%d offen sc1' % (acc, acc + 1, sWS, sWS + 3, s_b + 1))
    p('s_mov_b64 exec, -1')

def p3_setup(p):
    p('v_lshrrev_b32 v27, 5, v%d' % v_lane); p('v_lshlrev_b32 v27, 2, v27')
    p('v_bfe_u32 v28, v%d, 2, 2' % v_lane); p('v_add_u32 v27, v27, v28'); p('v_lshlrev_b32 v27, 7, v27')
    p('v_bfe_u32 v29, v%d, 4, 1' % v_lane); p('v_lshl_add_u32 v27, v29, 5, v27')
    p('v_and_b32 v29, 3, v%d' % v_lane); p('v_lshl_add_u32 v27, v29, 3, v27')
    p('s_and_b32 s%d, s%d, 1' % (s_t0, s_r)); p('s_xor_b32 s%d, s%d, s%d' % (s_t0, s_t0, s_hp))
    p('s_lshl_b32 s%d, s%d, 16' % (s_t0, s_t0)); p('s_add_u32 s%d, s%d, %d' % (s_t0, s_t0, SLOT)); p('v_add_u32 v27, s%d, v27' % s_t0)
    p('v_lshrrev_b32 v28, 1, v28')
    p('v_lshl_add_u32 v%d, v28, 6, v27' % vOA)
    p('v_xor_b32 v28, 1, v28'); p('v_lshl_add_u32 v%d, v28, 6, v27' % (vOA + 1))
    p('v_and_b32 v27, 31, v%d' % v_lane)
    p('s_lshl_b32 s%d, s%d, 14' % (s_t0, s_hp)); p('s_lshl_b32 s%d, s%d, 13' % (s_t1, s_th)); p('s_add_u32 s%d, s%d, s%d' % (s_t0, s_t0, s_t1))
    p('v_lshlrev_b32 v28, 8, v27'); p('v_add_u32 v28, s%d, v28' % s_t0)
    p('v_and_b32 v29, 7, v27'); p('v_lshrrev_b32 v27, 5, v%d' % v_lane); p('v_xor_b32 v29, v29, v27')
    for q in range(4):
        p('v_xor_b32 v27, %d, v29' % (2 * q)); p('v_lshl_add_u32 v%d, v27, 4, v28' % (vEW + q))
    p('v_lshrrev_b32 v27, 3, v%d' % v_lane); p('v_and_b32 v28, 7, v%d' % v_lane); p('v_lshlrev_b32 v28, 1, v28')
    p('s_lshl_b32 s%d, s%d, 12' % (s_t0, s_w))
    p('v_lshlrev_b32 v29, 8, v27'); p('v_add_u32 v29, s%d, v29' % s_t0)
    for x in range(2):
        p('v_or_b32 v30, %d, v28' % x); p('v_xor_b32 v30, v30, v27'); p('v_lshl_add_u32 v%d, v30, 4, v29' % (vER + x))
    p('v_and_b32 v28, 7, v%d' % v_lane); p('v_lshlrev_b32 v28, 4, v28'); p('v_lshl_add_u32 v14, v27, 10, v28')
    p('v_and_b32 v15, 15, v%d' % v_lane); p('v_lshlrev_b32 v15, 7, v15')
    p('v_lshlrev_b32 v16, 4, v%d' % v_lane)
    p('v_and_b32 v28, 31, v%d' % v_lane); p('v_lshrrev_b32 v29, 2, v28'); p('v_lshlrev_b32 v29, 7, v29'); p('v_and_b32 v28, 3, v28'); p('v_lshl_add_u32 v17, v28, 3, v29')

s_fl, s_oa, s_ga, s_out0, s_out1 = 47, 48, 49, 50, 51
def p3_scalars(p):
    p('s_lshl_b32 s%d, s%d, 1' % (s_t0, s_tb)); p('s_add_u32 s%d, s%d, s%d' % (s_t0, s_t0, s_hp)); p('s_lshl_b32 s%d, s%d, 11' % (s_t0, s_t0)); p('s_add_u32 s%d, s%d, %d' % (s_fl, s_t0, WS_FLAG))
    p('s_lshl_b32 s%d, s%d, 1' % (s_t0, s_tb)); p('s_add_u32 s%d, s%d, s%d' % (s_t0, s_t0, s_th)); p('s_lshl_b32 s%d, s%d, 16' % (s_t1, s_t0))
    p('s_lshl_b32 s%d, s%d, 15' % (s_t2, s_hp)); p('s_add_u32 s%d, s%d, s%d' % (s_t1, s_t1, s_t2)); p('s_add_u32 s%d, s%d, %d' % (s_oa, s_t1, WS_O))
    p('s_lshl_b32 s%d, s%d, 10' % (s_t0, s_t0)); p('s_add_u32 s%d, s%d, %d' % (s_ga, s_t0, WS_G))
    p('s_lshl_b32 s%d, s%d, 6' % (s_t0, s_tb)); p('s_lshl_b32 s%d, s%d, 4' % (s_t1, s_w)); p('s_add_u32 s%d, s%d, s%d' % (s_t0, s_t0, s_t1)); p('s_lshl_b32 s%d, s%d, 10' % (s_t0, s_t0))
    p('s_lshl_b32 s%d, s%d, 7' % (s_t1, s_cb)); p('s_add_u32 s%d, s%d, s%d' % (s_out0, s_t0, s_t1)); p('s_add_u32 s%d, s%d, 8192' % (s_out1, s_out0))
    if cfg.orot: p('s_mov_b32 s%d, s%d' % (s_rc, s_cb))
    else: p('s_mov_b32 s%d, 0' % s_rc)
    p('s_lshr_b32 s%d, s%d, 1' % (s_r4, s_r)); p('s_lshl_b32 s%d, s%d, 2' % (s_r4, s_r4))

def p3(p, vm, br):
    L = 'AB'[br]
    OACC = [64, 80]
    GV = 96
    vm.op('buffer_load_dwordx2 v[%d:%d], v17, s[%d:%d], s%d offen sc1' % (GV, GV + 1, sWS, sWS + 3, s_ga), 'g')
    p('s_mov_b32 s%d, %d' % (s_spin, cfg.spin))
    p.label('L_fl%s' % L)
    vm.op('buffer_load_dword v28, v15, s[%d:%d], s%d offen sc1' % (sWS, sWS + 3, s_fl))
    vm.wait_all()
    p('v_cmp_ne_u32 vcc, v28, v%d' % vT)
    spin_tail(p, 'fl%s' % L)
    if cfg.fine == 4:
        stamp(p, 44)
        p('v_writelane_b32 v255, s%d, 45' % s_spin)
    if not cfg.wosched and not cfg.earlyb4 and not cfg.wo2p2: p('s_barrier')
    stamp(p, 15)
    def oload(h):
        g, q = h >> 2, h & 3
        if q == 0:
            p('s_add_u32 s%d, s%d, %d' % (s_t2, s_rc, g)); p('s_and_b32 s%d, s%d, 7' % (s_t2, s_t2))
            p('s_add_u32 s%d, s%d, s%d' % (s_t2, s_t2, s_r4)); p('s_and_b32 s%d, s%d, 7' % (s_t2, s_t2)); p('s_lshl_b32 s%d, s%d, 12' % (s_t2, s_t2))
            p('s_add_u32 s%d, s%d, s%d' % (s_t1, s_oa, s_t2))
        vm.op('buffer_load_dwordx4 %s, v16, s[%d:%d], s%d offen offset:%d sc1' % (ar(4 * h, 4), sWS, sWS + 3, s_t1, q * 1024), 'o%d' % h)
    LA = cfg.ola
    for h in range(LA): oload(h)
    def gaddr(g):
        d = vOG + 2 * (g & 1)
        return ['s_add_u32 s%d, s%d, %d' % (s_t0, s_rc, g), 's_and_b32 s%d, s%d, 7' % (s_t0, s_t0), 's_lshl_b32 s%d, s%d, 13' % (s_t0, s_t0),
                'v_add_u32 v%d, s%d, v%d' % (d, s_t0, vOA), 'v_add_u32 v%d, s%d, v%d' % (d + 1, s_t0, vOA + 1)]
    def reads(h):
        wf = vWF + 8 * (h % 3); g = h >> 2
        pre = gaddr(g) if (h & 3) == 0 else []
        return pre + ['ds_read_b64_tr_b16 v[%d:%d], v%d offset:%d' % (wf + 4 * ct + 2 * rd, wf + 4 * ct + 2 * rd + 1, vOG + 2 * (g & 1) + ct, (h & 3) * 2048 + rd * 1024) for ct in range(2) for rd in range(2)]
    for h in range(2):
        for o in reads(h): p(o)
    if cfg.fine == 3: stamp(p, 41)
    p('s_mov_b32 s%d, %d' % (s_spin, cfg.spin))
    p('v_cmp_ne_u32 vcc, v%d, v%d' % (GV + 1, vT))
    p('s_cbranch_vccz L_g%s_ok' % L)
    p.label('L_g%s' % L)
    vm2 = VM(p)
    vm2.op('buffer_load_dwordx2 v[%d:%d], v17, s[%d:%d], s%d offen sc1' % (GV, GV + 1, sWS, sWS + 3, s_ga))
    vm2.wait_all()
    p('v_cmp_ne_u32 vcc, v%d, v%d' % (GV + 1, vT))
    spin_tail(p, 'g%s' % L)
    p('v_sub_f32 v%d, 1.0, v%d' % (GV + 1, GV))
    p('s_cmp_eq_u32 s%d, 0' % s_hp)
    p('s_cselect_b64 vcc, 0, -1')
    p('v_cndmask_b32 v%d, v%d, v%d, vcc' % (GV, GV, GV + 1))
    for h in range(32):
        wf = vWF + 8 * (h % 3)
        vm.wait('o%d' % h, ' lgkmcnt(%d)' % (4 if h < 31 else 0))
        if cfg.fine == 3 and h in (0, 8, 16, 24): stamp(p, 42 + h // 8)
        R = reads(h + 2) if h + 2 < 32 else []
        for ct in range(2):
            c = '0' if h == 0 else vr(OACC[ct], 16)
            p('%s %s, %s, %s, %s' % (MF, vr(OACC[ct], 16), vr(wf + 4 * ct, 4), ar(4 * h, 4), c))
            k = len(R) - 2
            for o in (R[:k] if ct == 0 else R[k:]): p(o)
            if ct == 0 and h + LA < 32: oload(h + LA)
    stamp(p, 16)
    for ct in range(2):
        for q in range(4):
            for i in range(2 * q, 2 * q + 2):
                p('v_pk_mul_f32 v[%d:%d], v[%d:%d], v[%d:%d] op_sel_hi:[1,0]' % (OACC[ct] + 2 * i, OACC[ct] + 2 * i + 1, OACC[ct] + 2 * i, OACC[ct] + 2 * i + 1, GV, GV + 1))
            p('ds_write_b128 v%d, %s offset:%d' % (vEW + q, vr(OACC[ct] + 4 * q, 4), 128 * ct))
    p('s_waitcnt lgkmcnt(0)')
    stamp(p, 17)
    p('s_barrier')
    RD = 168
    for a in range(2):
        for brr in range(2):
            for x in range(2):
                p('ds_read_b128 %s, v%d offset:%d' % (vr(RD + 16 * a + 8 * brr + 4 * x, 4), vER + x, a * 2048 + brr * 16384))
    for a in range(2):
        p('s_waitcnt lgkmcnt(%d)' % (4 if a == 0 else 0))
        r = RD + 16 * a
        for i in range(4): p('v_pk_add_f32 v[%d:%d], v[%d:%d], v[%d:%d]' % (r + 2 * i, r + 2 * i + 1, r + 2 * i, r + 2 * i + 1, r + 8 + 2 * i, r + 8 + 2 * i + 1))
        for i in range(4): cvt(p, r + 8 + i, r + 2 * i, r + 2 * i + 1)
        vm.op('buffer_store_dwordx4 %s, v14, s[%d:%d], s%d offen %s' % (vr(r + 8, 4), sOUT, sOUT + 3, s_out0 if a == 0 else s_out1, cfg.outfl))
    p('s_cmp_eq_u32 s%d, 0' % s_b); p('s_cbranch_scc0 L_noep%s' % L)
    p('s_cmp_eq_u32 s%d, 0' % s_w); p('s_cbranch_scc0 L_noep%s' % L)
    p('v_mov_b32 v27, 0'); p('s_mov_b64 exec, 1')
    vm.op('buffer_store_dword v%d, v27, s[%d:%d], 0 offen sc1' % (vT, sWS, sWS + 3))
    p('s_mov_b64 exec, -1')
    p.label('L_noep%s' % L)

def rstamp(p, idx):
    if not cfg.stamps: return
    p('s_memrealtime s[%d:%d]' % (s_stamp, s_stamp + 1))
    p('s_waitcnt lgkmcnt(0)')
    p('v_writelane_b32 v255, s%d, %d' % (s_stamp, idx))

def write_stamps(p, vm):
    if not cfg.stamps: return
    rstamp(p, 12)
    if cfg.stamps == 2:
        L = 'x%d' % len(p.ins)
        p('s_load_dwordx2 s[4:5], s[0:1], 72'); p('s_waitcnt lgkmcnt(0)')
        p('s_mov_b32 s%d, s4' % sDBG); p('s_and_b32 s%d, s5, 0xffff' % (sDBG + 1)); p('s_mov_b32 s%d, 256' % (sDBG + 2)); p('s_mov_b32 s%d, 0x00020000' % (sDBG + 3))
        p('s_cmp_eq_u32 s%d, 0' % s_w); p('s_cbranch_scc0 L_ds2' + L)
        p('v_lshlrev_b32 v27, 2, v%d' % v_lane)
        p('s_cmp_eq_u32 s%d, 8' % s_b); p('s_cbranch_scc0 L_ds1' + L)
        p('s_mov_b64 exec, 0x1fff')
        vm.op('buffer_store_dword v255, v27, s[%d:%d], 0 offen' % (sDBG, sDBG + 3))
        p('s_mov_b64 exec, -1')
        p.label('L_ds1' + L)
        p('s_cmp_eq_u32 s%d, 255' % s_b); p('s_cbranch_scc0 L_ds2' + L)
        p('s_mov_b64 exec, 0x1800')
        vm.op('buffer_store_dword v255, v27, s[%d:%d], 0 offen offset:8' % (sDBG, sDBG + 3))
        p('s_mov_b64 exec, -1')
        p.label('L_ds2' + L)
        return
    p('s_lshl_b32 s%d, s%d, 2' % (s_t0, s_b)); p('s_add_u32 s%d, s%d, s%d' % (s_t0, s_t0, s_w)); p('s_lshl_b32 s%d, s%d, 8' % (s_t0, s_t0)); p('s_add_u32 s%d, s%d, %d' % (s_t0, s_t0, WS_STAMP))
    p('v_lshlrev_b32 v27, 2, v%d' % v_lane)
    vm.op('buffer_store_dword v255, v27, s[%d:%d], s%d offen' % (sDBG, sDBG + 3, s_t0))

def body(p, vm, br, dco, dwq):
    extra = {m: [] for m in range(8)}
    for m in range(6): extra[m] = dco(m + 2)
    if br == 0: extra[4] = extra[4] + gate_load_ops(p, vm)
    extra[6] = dwq(0)
    extra[7] = dwq(1)
    pass1(p, vm, br, dco, dwq, extra)
    p('s_barrier')
    stamp(p, 2)
    if cfg.debug == 1: dump_regs(p, vm, vK[0], 64, 0)
    make_tag(p, vm)
    side = dma_wo_ops(p, vm, 0)
    if cfg.wosched: side = side + dma_wo_ops(p, vm, 2)
    if br == 1:
        feat_k_B(p, vm, side)
        stamp(p, 3)
    else:
        gate_finish(p, vm)
        feat_k_A(p, side)
        stamp(p, 3)
        exchange(p, vm, br)
    if cfg.debug == 2: dump_regs(p, vm, ST, 32, 0)
    stamp(p, 4)
    sched = {}
    sched[('bar', 1)] = True
    st = hop1_store_ops(p, vm, br)
    for k, f in enumerate(st): sched.setdefault(k, []).append(f)
    for k, f in enumerate(dma_wo_ops(p, vm, 1)): sched.setdefault(cfg.wo1step + k, []).append(f)
    if cfg.wo2p2:
        for k, f in enumerate(dma_wo_ops(p, vm, 2)): sched.setdefault(cfg.wo1step + 8 + k, []).append(f)
    hl = hop1_load_ops(p, vm, br)
    for k, f in enumerate(hl): sched.setdefault(min(31, cfg.h1step + k), []).append(f)
    if cfg.owarm:
        ow = o_warm_ops(p, vm)
        def allw():
            for f in ow: f()
        sched.setdefault(cfg.owarm, []).append(allw)
    pass2(p, vm, sched)
    stamp(p, 5)
    if cfg.debug == 1:
        p('s_nop 15'); dump_regs(p, vm, vQ[0], 32, 1)
    hop1_reduce(p, vm, br)
    stamp(p, 6)
    late = hop2_load_ops(p, vm, br)
    if cfg.wo2p2 or cfg.wosched:
        p('s_barrier')
        side = dma_wo_ops(p, vm, 3)
    else:
        side = dma_wo_ops(p, vm, 2)
    if br == 1: feat_q_B(p, side, late)
    else: feat_q_A(p, side, late)
    stamp(p, 7)
    hop2_gather(p, vm, br)
    stamp(p, 8)
    if cfg.debug == 2: dump_regs(p, vm, KVA, 16, 1)
    o_phase(p, vm, br)
    if cfg.fine == 4: stamp(p, 41)
    if cfg.wosched or cfg.wo2p2:
        vm.wait('wo3')
        p('s_barrier')
    elif not cfg.wo2p2:
        p('s_barrier')
    p3_setup(p)
    p3_scalars(p)
    o_flag(p, vm)
    if cfg.fine == 4: stamp(p, 43)
    if not cfg.wo2p2 and not cfg.wosched:
        for f in dma_wo_ops(p, vm, 3): f()
        if cfg.earlyb4:
            vm.wait('wo3')
            p('s_barrier')
    stamp(p, 9)
    p3(p, vm, br)
    stamp(p, 10)
    write_stamps(p, vm)
    p('s_endpgm')

if __name__ == '__main__':
    import argparse
    ap = argparse.ArgumentParser()
    ap.add_argument('-o', default='k.s'); ap.add_argument('--debug', type=int, default=0); ap.add_argument('--rot', type=int, default=1)
    ap.add_argument('--maprow', type=int, default=1); ap.add_argument('--fine', type=int, default=0); ap.add_argument('--outfl', default=''); ap.add_argument('--wosched', type=int, default=0); ap.add_argument('--earlyb4', type=int, default=1); ap.add_argument('--wsoff', type=lambda x: int(x,0), default=0); ap.add_argument('--owarm', type=int, default=0); ap.add_argument('--owarmfl', default=''); ap.add_argument('--wo2p2', type=int, default=0); ap.add_argument('--nowo', type=int, default=0); ap.add_argument('--codepf', type=int, default=1); ap.add_argument('--ola', type=int, default=12); ap.add_argument('--wo1step', type=int, default=4); ap.add_argument('--korder', type=int, default=1); ap.add_argument('--pro3', type=int, default=0); ap.add_argument('--worot', type=int, default=1); ap.add_argument('--orot', type=int, default=1); ap.add_argument('--pretouch', type=int, default=1); ap.add_argument('--h1step', type=int, default=19); ap.add_argument('--h2lead', type=int, default=70); ap.add_argument('--stamps', type=int, default=0)
    a = ap.parse_args()
    cfg.debug = a.debug; cfg.rot = a.rot; cfg.maprow = a.maprow; cfg.h1step = a.h1step; cfg.fine = a.fine; cfg.outfl = a.outfl; cfg.wosched = a.wosched; cfg.earlyb4 = a.earlyb4; cfg.wsoff = a.wsoff; cfg.owarm = a.owarm; cfg.owarmfl = a.owarmfl; cfg.wo2p2 = a.wo2p2; cfg.nowo = a.nowo; cfg.codepf = a.codepf; cfg.ola = a.ola; cfg.wo1step = a.wo1step; cfg.korder = a.korder; cfg.pro3 = a.pro3; cfg.worot = a.worot; cfg.orot = a.orot; cfg.pretouch = a.pretouch; cfg.h2lead = a.h2lead; cfg.stamps = a.stamps
    open(a.o, 'w').write(build())
```

```python
import sys, os
sys.path.insert(0, os.path.dirname(os.path.abspath(__file__)))
from asmdsl import *

KNAME = "gated_mix__linear_attn_block__linear_kernel_hedgehog__prompt_kernel"

class Cfg:
    debug = 0
    rot = 1
    maprow = 1
    spin = 1 << 20
    fine = 0
    oalias = 1
    lwarm = 0
    poison = 0
    p3e = 0
    h1red = 0
    mfexp = 0
    outfl = ''
    wosched = 0
    earlyb4 = 1
    wsoff = 0
    owarm = 0
    owarmfl = ''
    wo2p2 = 0
    nowo = 0
    codepf = 1
    ola = 8
    wo1step = 6
    korder = 1
    pro3 = 0
    worot = 1
    orot = 1
    pretouch = 1
    h1step = 22
    h2lead = 70
    stamps = 0
cfg = Cfg()

WS_EPOCH = 0x0
WS_G     = 0x1000
WS_FLAG  = 0x20000
WS_OUTK  = 0x100000
WS_OUTZ  = 0x140000
WS_O     = 0x200000
WS_INB   = 0x800000
WS_SIZE  = 0x1000000
WS_DBG   = 0x1000000
WS_STAMP = 0x7000000

sX, sW, sWOA, sWOB, sWS, sOUT, sMISC, sDBG = 8, 12, 16, 20, 24, 28, 32, 36
s_w, s_th, s_hp, s_i, s_jj, s_rot, s_T = 40, 41, 42, 43, 44, 45, 46
s_xbase, s_wbase, s_m0x, s_m0w, s_ox, s_ow, s_t0, s_t1, s_t2, s_t3 = 47, 48, 49, 50, 51, 52, 53, 54, 55, 56
s_tb, s_cb, s_head, s_qbase, s_m0q = 57, 58, 59, 60, 61
s_mask16 = 62
s_log2e = 84
s_eps = 86
s_spin = 88
s_ht = 89
s_stamp = 90
s_b = 92
s_exec = 94
s_wobase, s_m0o = 96, 97
s_qadj, s_q0 = 4, 5
s_t2x, s_t3x = 98, 99
s_r = 6
s_fast = 89
s_odd = 94
KA = 64

v_lane = 1
vXA = 2
vWA = 14
vDX = 17
vDQ = 21
vONES = 25
vT = 26
vtmp = 27
vK = [32, 48]; vV = [64, 80]; vQ = [96, 112]
vWF = 128
vWP = 152
vSEL = 160
vTMP = 168

SLOT = 32768
def slot_set(s): return s // 2
def slot_imm(s): return (s % 2) * SLOT

class VM:
    def __init__(self, p): self.p = p; self.n = 0; self.marks = {}; self.done = 0
    def op(self, text, mark=None):
        self.p(text); self.n += 1
        if mark: self.marks[mark] = self.n
    def mark(self, name): self.marks[name] = self.n
    def wait(self, name, extra=''):
        if self.marks[name] <= self.done:
            if extra: self.p('s_waitcnt' + extra)
            return
        k = self.n - self.marks[name]
        assert 0 <= k <= 63, (name, k)
        self.p('s_waitcnt vmcnt(%d)%s' % (k, extra))
        self.done = self.marks[name]
    def wait_all(self):
        self.p('s_waitcnt vmcnt(0)'); self.done = self.n

def stamp(p, idx):
    if not cfg.stamps: return
    p('s_memtime s[%d:%d]' % (s_stamp, s_stamp + 1))
    p('s_waitcnt lgkmcnt(0)')
    p('v_writelane_b32 v255, s%d, %d' % (s_stamp, idx))


def korder(n): return (2 * (n & 3) + (n >> 2)) if cfg.korder else n

def srd(p, d, ptr, size):
    p('s_mov_b32 s%d, s%d' % (d, ptr)); p('s_and_b32 s%d, s%d, 0xffff' % (d + 1, ptr + 1))
    p('s_mov_b32 s%d, 0x%x' % (d + 2, size)); p('s_mov_b32 s%d, 0x00020000' % (d + 3))

SOFF = 64
WPT = 168
GX, GW = 168, 184

def gen_path(br):
    p = Prog(); vm = VM(p)
    L = 'A' if br == 0 else 'B'
    p.label('L_path' + L)
    if cfg.stamps: p('v_mov_b32 v255, 0')
    stamp(p, 0)
    rstamp(p, 11)
    p('v_lshrrev_b32 v27, 6, v0')
    p('v_and_b32 v%d, 63, v0' % v_lane)
    p('v_readfirstlane_b32 s%d, v27' % s_w)
    p('v_lshrrev_b32 v27, 3, v%d' % v_lane)
    p('v_and_b32 v28, 7, v%d' % v_lane)
    p('v_lshrrev_b32 v29, 4, v%d' % v_lane)
    for q in range(2):
        p('v_add_u32 v30, %d, v29' % (4 * (q & 1)))
        p('v_xor_b32 v30, v28, v30')
        p('v_lshlrev_b32 v30, 4, v30')
        p('v_add_u32 v31, %d, v27' % (7 * q))
        p('v_lshl_add_u32 v%d, v31, 10, v30' % (vDX + q))
    p('v_add_u32 v%d, %d, v%d' % (vDX + 2, 14 * 1024, vDX)); p('v_add_u32 v%d, %d, v%d' % (vDX + 3, 14 * 1024, vDX + 1))
    p('v_and_b32 v30, 1, v29'); p('v_lshlrev_b32 v30, 2, v30'); p('v_xor_b32 v30, v28, v30'); p('v_lshlrev_b32 v30, 4, v30')
    p('v_mul_u32_u24 v31, 3072, v27')
    p('v_add_u32 v%d, v30, v31' % vDQ)
    for q in range(1, 4):
        p('v_add_u32 v%d, %d, v%d' % (vDQ + q, 8 * q * 3072 - 1024 * q, vDQ))
    p('s_and_b32 s%d, s%d, 1' % (s_th, s_w))
    p('s_lshr_b32 s%d, s%d, 1' % (s_hp, s_w))
    p('s_lshl_b32 s%d, s%d, 17' % (s_xbase, s_i))
    p('s_lshl_b32 s%d, s%d, 15' % (s_t0, s_w))
    p('s_add_u32 s%d, s%d, s%d' % (s_xbase, s_xbase, s_t0))
    p('s_lshl_b32 s%d, s%d, 7' % (s_qbase, s_jj))
    p('s_mul_i32 s%d, s%d, 98304' % (s_t0, s_th))
    p('s_add_u32 s%d, s%d, s%d' % (s_wbase, s_qbase, s_t0))
    p('s_add_u32 s%d, s%d, 1' % (s_t0, s_hp))
    p('s_lshl_b32 s%d, s%d, 10' % (s_t0, s_t0))
    p('s_add_u32 s%d, s%d, s%d' % (s_wbase, s_wbase, s_t0))
    p('s_lshl_b32 s%d, s%d, 12' % (s_m0x, s_w))
    p('s_lshl_b32 s%d, s%d, 13' % (s_m0w, s_hp))
    p('s_lshl_b32 s%d, s%d, 12' % (s_t0, s_th))
    p('s_add_u32 s%d, s%d, s%d' % (s_m0w, s_m0w, s_t0))
    p('s_add_u32 s%d, s%d, 16384' % (s_m0w, s_m0w))
    p('s_lshl_b32 s%d, s%d, 11' % (s_m0q, s_w))
    p('s_mul_i32 s%d, s%d, 49152' % (s_t0, s_w))
    p('s_add_u32 s%d, s%d, s%d' % (s_t0, s_t0, s_qbase))
    p('s_sub_u32 s%d, s%d, s%d' % (s_qadj, s_wbase, s_t0))

    def chunk_offsets(n, dx, dw):
        p('s_add_u32 s%d, s%d, %d' % (s_t0, s_rot, korder(n))); p('s_and_b32 s%d, s%d, 7' % (s_t0, s_t0))
        p('s_lshl_b32 s%d, s%d, 7' % (s_t1, s_t0)); p('s_add_u32 s%d, s%d, s%d' % (dx, s_xbase, s_t1))
        p('s_mul_i32 s%d, s%d, 196608' % (s_t1, s_t0)); p('s_add_u32 s%d, s%d, s%d' % (dw, s_wbase, s_t1))
    def dma_chunk_ops(n):
        slot = (n % 4) * SLOT
        ox = s_ox if n == 0 else SOFF + 2 * n
        ow = s_ow if n == 0 else SOFF + 2 * n + 1
        ops = []
        def x0():
            p('s_add_u32 m0, s%d, %d' % (s_m0x, slot)); p('s_nop 0')
            vm.op('buffer_load_dwordx4 v%d, s[%d:%d], s%d offen lds' % (vDX, sX, sX + 3, ox))
        ops.append(x0)
        for q in range(1, 4):
            ops.append(lambda q=q: vm.op('buffer_load_dwordx4 v%d, s[%d:%d], s%d offen offset:%d lds' % (vDX + q, sX, sX + 3, ox, q * 1024)))
        def w0():
            p('s_add_u32 m0, s%d, %d' % (s_m0w, slot)); p('s_nop 0')
            vm.op('buffer_load_dwordx4 v%d, s[%d:%d], s%d offen lds' % (vDQ, sW, sW + 3, ow))
        ops.append(w0)
        for q in range(1, 4):
            ops.append(lambda q=q: vm.op('buffer_load_dwordx4 v%d, s[%d:%d], s%d offen offset:%d lds' % (vDQ + q, sW, sW + 3, ow, q * 1024), 'c%d' % n if q == 3 else None))
        return ops
    def dma_wq_ops(hf):
        ops = []
        for c in range(4 * hf, 4 * hf + 4):
            def m(c=c):
                if c == 0: p('s_add_u32 s%d, s%d, 0' % (s_ow, s_q0))
                else: p('s_sub_u32 s%d, s%d, s%d' % (s_ow, SOFF + 2 * c + 1, s_qadj))
                p('s_add_u32 m0, s%d, %d' % (s_m0q, (4 * (c >> 2)) * SLOT + (c & 3) * 8192)); p('s_nop 0')
                vm.op('buffer_load_dwordx4 v%d, s[%d:%d], s%d offen lds' % (vDQ, sW, sW + 3, s_ow))
            ops.append(m)
            ops.append(lambda c=c: vm.op('buffer_load_dwordx4 v%d, s[%d:%d], s%d offen offset:1024 lds' % (vDQ + 1, sW, sW + 3, s_ow), 'wq%d' % hf if (c & 3) == 3 else None))
        return ops

    chunk_offsets(0, s_ox, s_ow)
    p('s_sub_u32 s%d, s%d, s%d' % (s_q0, s_ow, s_qadj))
    p('s_waitcnt lgkmcnt(0)')
    srd(p, sX, KA + 0, 2048 * 1024)
    srd(p, sW, KA + (2 if br == 0 else 8), 512 * 3072)
    stamp(p, 20)
    for f in dma_chunk_ops(0): f()
    if cfg.codepf:
        p('s_getpc_b64 s[%d:%d]' % (s_t2x, s_t2x + 1))
        p.label('L_pc%s' % L)
        p('s_sub_u32 s%d, s%d, L_pc%s-%s' % (s_t2x, s_t2x, L, KNAME)); p('s_subb_u32 s%d, s%d, 0' % (s_t2x + 1, s_t2x + 1))
        p('s_lshr_b32 s%d, s%d, 3' % (s_t0, s_b)); p('s_lshl_b32 s%d, s%d, 2' % (s_t0, s_t0)); p('s_add_u32 s%d, s%d, s%d' % (s_t0, s_t0, s_w)); p('s_lshl_b32 s%d, s%d, 9' % (s_t0, s_t0))
        p('v_lshlrev_b32 v27, 7, v%d' % v_lane); p('v_and_b32 v27, 0x1ff, v27')
        p('v_add_u32 v27, s%d, v27' % s_t0)
        p('v_min_u32 v27, L_end-%s, v27' % KNAME)
        p('v_mov_b32 v29, s%d' % (s_t2x + 1))
        p('v_add_co_u32 v28, vcc, s%d, v27' % s_t2x); p('v_addc_co_u32 v29, vcc, 0, v29, vcc')
        p('s_mov_b64 exec, 15')
        vm.op('global_load_dword v239, v[28:29], off')
        p('s_mov_b64 exec, -1')
    if cfg.wsoff:
        p('s_add_u32 s%d, s%d, 0x%x' % (KA + 18, KA + 18, cfg.wsoff)); p('s_addc_u32 s%d, s%d, 0' % (KA + 19, KA + 19))
    srd(p, sWS, KA + 18, WS_SIZE)
    if br == 0: srd(p, sMISC, KA + 14, 1024)
    else:
        srd(p, sMISC, KA + 10, 32 * 512)
        p('s_lshl_b32 s%d, s%d, 11' % (s_t0, s_jj)); p('s_lshl_b32 s%d, s%d, 10' % (s_t1, s_hp)); p('s_add_u32 s%d, s%d, s%d' % (s_t0, s_t0, s_t1))
        p('s_lshl_b32 s%d, s%d, 10' % (s_t1, s_w)); p('s_add_u32 m0, s%d, %d' % (s_t1, 4 * SLOT))
        p('v_lshlrev_b32 v27, 4, v%d' % v_lane)
        vm.op('buffer_load_dwordx4 v27, s[%d:%d], s%d offen lds' % (sMISC, sMISC + 3, s_t0), 'wphi')
    p('v_mov_b32 v28, 0')
    vm.op('buffer_load_dword v%d, v28, s[%d:%d], 0 offen sc1' % (vT, sWS, sWS + 3), 'epoch')
    srd(p, sWOA, KA + 4, 512 * 1024)
    srd(p, sWOB, KA + 12, 512 * 1024)
    srd(p, sOUT, KA + 16, 2048 * 1024)
    if cfg.debug or cfg.stamps: srd(p, sDBG, KA + 18, 0x8000000)
    for n in range(1, 8): chunk_offsets(n, SOFF + 2 * n, SOFF + 2 * n + 1)
    if cfg.pretouch:
        p('s_lshl_b32 s%d, s%d, 18' % (s_t0, s_jj)); p('s_add_u32 s%d, s%d, %d' % (s_t0, s_t0, WS_INB + br * 0x200000))
        vm.op('buffer_load_dword v232, v28, s[%d:%d], s%d offen' % (sWS, sWS + 3, s_t0))
        p('s_lshl_b32 s%d, s%d, 18' % (s_t0, s_i)); p('s_add_u32 s%d, s%d, %d' % (s_t0, s_t0, WS_O))
        vm.op('buffer_load_dword v233, v28, s[%d:%d], s%d offen' % (sWS, sWS + 3, s_t0))
        p('s_lshl_b32 s%d, s%d, 17' % (s_t0, s_tb)); p('s_add_u32 s%d, s%d, %d' % (s_t0, s_t0, WS_O))
        vm.op('buffer_load_dword v234, v28, s[%d:%d], s%d offen' % (sWS, sWS + 3, s_t0))
        vm.op('buffer_load_dword v235, v28, s[%d:%d], 0 offen' % (sWOA, sWOA + 3))
        vm.op('buffer_load_dword v236, v28, s[%d:%d], 0 offen' % (sWOB, sWOB + 3))
        p('s_lshl_b32 s%d, s%d, 16' % (s_t0, s_tb))
        vm.op('buffer_load_dword v237, v28, s[%d:%d], s%d offen' % (sOUT, sOUT + 3, s_t0))
    wo_setup(p)
    p('v_and_b32 v27, 31, v%d' % v_lane)
    p('v_lshrrev_b32 v28, 5, v%d' % v_lane)
    p('v_lshrrev_b32 v29, 1, v27'); p('v_and_b32 v29, 7, v29'); p('v_xor_b32 v29, v28, v29')
    p('s_lshl_b32 s%d, s%d, 13' % (s_t0, s_th))
    p('v_lshlrev_b32 v30, 7, v27'); p('v_add_u32 v30, s%d, v30' % s_t0)
    for ks in range(4):
        p('v_xor_b32 v31, %d, v29' % (2 * ks)); p('v_lshl_add_u32 v%d, v31, 4, v30' % (vXA + ks))
        p('v_add_u32 v%d, 0x10000, v%d' % (vXA + 4 + ks, vXA + ks))
    p('v_lshrrev_b32 v27, 2, v%d' % v_lane); p('v_and_b32 v27, 3, v27')
    p('v_lshl_add_u32 v29, v28, 3, v27')
    p('v_lshlrev_b32 v29, 7, v29')
    p('v_lshrrev_b32 v30, 1, v27'); p('v_xor_b32 v30, s%d, v30' % s_hp); p('v_lshl_add_u32 v29, v30, 6, v29')
    p('v_lshrrev_b32 v30, 4, v%d' % v_lane); p('v_xor_b32 v30, s%d, v30' % s_th); p('v_and_b32 v30, 1, v30'); p('v_lshl_add_u32 v29, v30, 5, v29')
    p('v_and_b32 v30, 3, v%d' % v_lane); p('v_lshl_add_u32 v%d, v30, 3, v29' % vWA)
    p('v_add_u32 v%d, 0x10000, v%d' % (vWA + 1, vWA)); p('v_add_u32 v%d, 0x20000, v%d' % (vWA + 2, vWA))
    p('v_mov_b32 v%d, 0x3f803f80' % vONES)
    p('s_mov_b32 s%d, 0xffff0000' % s_mask16); p('s_mov_b32 s%d, 0xffff0000' % (s_mask16 + 1))
    p('s_mov_b32 s%d, 0x3fb8aa3b' % s_log2e); p('s_mov_b32 s%d, 0x3fb8aa3b' % (s_log2e + 1))
    p('s_mov_b32 s%d, 0x358637bd' % s_eps); p('s_mov_b32 s%d, 0x358637bd' % (s_eps + 1))
    if br == 1:
        p('v_and_b32 v27, 31, v%d' % v_lane)
        p('v_lshrrev_b32 v28, 5, v%d' % v_lane)
        p('v_bfe_u32 v29, v27, 2, 1')
        p('v_cmp_eq_u32 vcc, v28, v29')
        p('v_bfe_u32 v29, v27, 3, 1'); p('v_and_b32 v30, 3, v27'); p('v_lshl_add_u32 v29, v29, 2, v30')
        p('v_and_b32 v30, 1, v29'); p('v_lshlrev_b32 v30, 4, v30'); p('v_mov_b32 v31, 0x3f80'); p('v_lshlrev_b32 v30, v30, v31')
        p('v_cndmask_b32 v30, 0, v30, vcc')
        p('v_lshrrev_b32 v29, 1, v29')
        p('v_bfe_u32 v28, v27, 4, 1')
        p('v_lshl_add_u32 v29, v28, 2, v29')
        for q in range(8):
            p('v_cmp_eq_u32 vcc, %d, v29' % q)
            p('v_cndmask_b32 v%d, 0, v30, vcc' % (vSEL + q))
    p('s_mov_b32 s%d, 0xaaaaaaaa' % s_odd); p('s_mov_b32 s%d, 0xaaaaaaaa' % (s_odd + 1))
    if br == 1:
        p('v_lshrrev_b32 v27, 5, v%d' % v_lane); p('v_lshlrev_b32 v27, 2, v27')
        p('v_bfe_u32 v28, v%d, 2, 2' % v_lane); p('v_add_u32 v27, v27, v28'); p('v_lshlrev_b32 v27, 5, v27')
        p('v_bfe_u32 v28, v%d, 1, 1' % v_lane); p('v_lshl_add_u32 v27, v28, 3, v27')
        p('v_bfe_u32 v28, v%d, 4, 1' % v_lane); p('v_lshl_add_u32 v27, v28, 4, v27')
        p('s_lshl_b32 s%d, s%d, 10' % (s_t0, s_w)); p('s_add_u32 s%d, s%d, %d' % (s_t0, s_t0, 4 * SLOT))
        p('s_lshl_b32 s%d, s%d, 9' % (s_t1, s_th)); p('s_add_u32 s%d, s%d, s%d' % (s_t0, s_t0, s_t1))
        p('v_add_u32 v27, s%d, v27' % s_t0); p('v_xor_b32 v29, 512, v27')
        p('v_bfe_u32 v28, v%d, 2, 1' % v_lane); p('v_lshlrev_b32 v28, 31, v28'); p('v_lshrrev_b32 v30, 16, v28'); p('v_or_b32 v28, v28, v30')
    stamp(p, 21)
    for f in dma_chunk_ops(1): f()
    if br == 1:
        vm.wait('wphi')
        for u in range(2):
            for rd in range(2):
                p('ds_read_b64_tr_b16 v[%d:%d], v%d offset:%d' % (vWP + 4 * u + 2 * rd, vWP + 4 * u + 2 * rd + 1, 27 if u == 0 else 29, rd * 8 * 32))
        p('s_waitcnt lgkmcnt(0)')
        for q in range(8): p('v_xor_b32 v%d, v%d, v28' % (vWP + q, vWP + q))
    return p, vm, dma_chunk_ops, dma_wq_ops

def make_tag(p, vm):
    vm.wait('epoch')
    p('v_readfirstlane_b32 s%d, v%d' % (s_T, vT))
    p('s_mul_i32 s%d, s%d, 0x9e3779b1' % (s_T, s_T)); p('s_add_u32 s%d, s%d, 0x7f4a7c15' % (s_T, s_T))
    p('v_mov_b32 v%d, s%d' % (vT, s_T))

def emit(p, item):
    if callable(item): item()
    else: p(item)

def merge(p, main, side, every, start=0):
    side = list(side); k = 0
    for idx, m in enumerate(main):
        emit(p, m)
        if idx >= start and (idx - start) % every == every - 1 and side:
            emit(p, side.pop(0))
    for x in side: emit(p, x)

class Rec:
    def __init__(self): self.l = []
    def __call__(self, t, tag=None):
        for line in t.split('\n'):
            if line.strip(): self.l.append(line.strip())

def xf(s, blk): return ar((s * 2 + blk) * 4, 4)

def pass1(p, vm, br, dma_chunk_ops, dma_wq_ops, extra_ops):
    def reads(s):
        c, ks = s >> 2, s & 3; slot = c % 4; st = slot_set(slot); im = slot_imm(slot); buf = s % 3
        ops = []
        wf = vWF + 8 * buf
        for part in range(2):
            for rd in range(2):
                ops.append('ds_read_b64_tr_b16 v[%d:%d], v%d offset:%d' % (wf + 4 * part + 2 * rd, wf + 4 * part + 2 * rd + 1, vWA + st, im + 16384 + part * 8192 + (16 * ks + 4 * rd) * 128))
        for blk in range(2):
            ops.append('ds_read_b128 %s, v%d offset:%d' % (xf(s, blk), vXA + st * 4 + ks, im + blk * 4096))
        return ops
    def mfmas(s):
        wf = vWF + 8 * (s % 3); ops = []
        for blk in range(2):
            c = '0' if s == 0 else vr(vK[blk], 16)
            if br == 1: ops.append('v_mfma_f32_32x32x16_bf16 %s, %s, %s, %s' % (vr(vK[blk], 16), vr(wf, 4), xf(s, blk), c))
            else:       ops.append('v_mfma_f32_32x32x16_bf16 %s, %s, %s, %s' % (vr(vK[blk], 16), xf(s, blk), vr(wf, 4), c))
            c = '0' if s == 0 else vr(vV[blk], 16)
            ops.append('v_mfma_f32_32x32x16_bf16 %s, %s, %s, %s' % (vr(vV[blk], 16), xf(s, blk), vr(wf + 4, 4), c))
        return ops
    pend = []
    vm.wait('c0'); p('s_barrier')
    stamp(p, 1)
    pend += extra_ops[0]
    for o in reads(0): p(o)
    for o in reads(1): p(o)
    for s in range(32):
        nxt = s + 2
        p('s_waitcnt lgkmcnt(%d)' % (6 if s < 31 else 0))
        M = mfmas(s)
        R = reads(nxt) if nxt < 32 else []
        p(M[0])
        if nxt < 32 and nxt % 4 == 0:
            m = nxt // 4
            vm.wait('c%d' % m); p('s_barrier')
            if cfg.stamps == 1 and cfg.fine: stamp(p, 30 + m)
            pend += extra_ops[m]
        def take(n):
            for _ in range(n):
                if pend: pend.pop(0)()
        for k in range(4):
            if k > 0: p(M[k])
            for o in R[(k * 6) // 4:((k + 1) * 6) // 4]: p(o)
            if k % 2 == 1 or len(pend) > 8: take(1)
    while pend: pend.pop(0)()

def pass2(p, vm, sched):
    RA = 3
    def reads(s):
        c, ks = s >> 2, s & 3; slot = 4 * (c >> 2); st = slot_set(slot); im = slot_imm(slot); wf = vWF + 4 * (s % 4)
        return ['ds_read_b64_tr_b16 v[%d:%d], v%d offset:%d' % (wf + 2 * rd, wf + 2 * rd + 1, vWA + st, im + (c & 3) * 8192 + (16 * ks + 4 * rd) * 128) for rd in range(2)]
    for s in range(RA):
        for o in reads(s): p(o)
    for s in range(32):
        out = min(RA - 1, 31 - s)
        p('s_waitcnt lgkmcnt(%d)' % (2 * out))
        wf = vWF + 4 * (s % 4)
        if ('bar', s) in sched: p('s_barrier')
        if ('hook', s) in sched: sched[('hook', s)]()
        if cfg.fine == 2 and s % 4 == 0 and s > 0:
            stamp(p, 40 + s // 4);
        items = list(sched.get(s, []))
        h = (len(items) + 1) // 2
        for blk in range(2):
            c = '0' if s == 0 else vr(vQ[blk], 16)
            p('v_mfma_f32_32x32x16_bf16 %s, %s, %s, %s' % (vr(vQ[blk], 16), vr(wf, 4), xf(s, blk), c))
            if blk == 0 and s + RA < 32:
                for o in reads(s + RA): p(o)
            for it in (items[:h] if blk == 0 else items[h:]): emit(p, it)

def dump_regs(p, vm, base_reg, n, slot_index):
    p('s_lshl_b32 s%d, s%d, 2' % (s_t0, s_b)); p('s_add_u32 s%d, s%d, s%d' % (s_t0, s_t0, s_w))
    p('s_mul_i32 s%d, s%d, %d' % (s_t0, s_t0, n * 256)); p('s_add_u32 s%d, s%d, %d' % (s_t0, s_t0, WS_DBG + slot_index * 0x1000000))
    p('v_lshlrev_b32 v27, 4, v%d' % v_lane)
    for r in range(0, n, 4):
        vm.op('buffer_store_dwordx4 %s, v27, s[%d:%d], s%d offen' % (vr(base_reg + r, 4), sDBG, sDBG + 3, s_t0))
        p('s_add_u32 s%d, s%d, 1024' % (s_t0, s_t0))
    vm.wait_all()

def build():
    top = Prog()
    top('s_cmp_ge_u32 s2, 256')
    top('s_cbranch_scc1 L_end')
    top('s_load_dwordx16 s[64:79], s[0:1], 0')
    top('s_load_dwordx2 s[80:81], s[0:1], 64')
    top('s_load_dwordx2 s[82:83], s[0:1], 80')
    top('s_mov_b32 s%d, s2' % s_b)
    top('s_and_b32 s%d, s2, 7' % s_t0)
    top('s_lshr_b32 s%d, s2, 3' % s_t1)
    if cfg.maprow == 0:
        top('s_mov_b32 s%d, s%d' % (s_jj, s_t0))
        top('s_lshr_b32 s%d, s%d, 1' % (s_i, s_t1))
        top('s_and_b32 s%d, s%d, 1' % (s_t2, s_t1))
        top('s_lshl_b32 s%d, s%d, 2' % (s_rot, s_t2)); top('s_add_u32 s%d, s%d, s%d' % (s_rot, s_rot, s_i)); top('s_and_b32 s%d, s%d, 7' % (s_rot, s_rot))
    else:
        top('s_and_b32 s%d, s%d, 1' % (s_i, s_t0)); top('s_lshl_b32 s%d, s%d, 3' % (s_i, s_i)); top('s_and_b32 s%d, s%d, 7' % (s_t2, s_t1)); top('s_add_u32 s%d, s%d, s%d' % (s_i, s_i, s_t2))
        top('s_lshr_b32 s%d, s%d, 1' % (s_t3, s_t0)); top('s_lshl_b32 s%d, s%d, 2' % (s_t3, s_t3)); top('s_lshr_b32 s%d, s%d, 3' % (s_t2, s_t1)); top('s_add_u32 s%d, s%d, s%d' % (s_t3, s_t3, s_t2))
        top('s_lshr_b32 s%d, s%d, 1' % (s_jj, s_t3))
        top('s_lshl_b32 s%d, s%d, 1' % (s_rot, s_t3)); top('s_add_u32 s%d, s%d, s%d' % (s_rot, s_rot, s_i)); top('s_and_b32 s%d, s%d, 7' % (s_rot, s_rot))
        top('s_and_b32 s%d, s%d, 1' % (s_t2, s_t3))
    if not cfg.rot: top('s_mov_b32 s%d, 0' % s_rot)
    top('s_lshl_b32 s%d, s%d, 2' % (s_tb, s_t0)); top('s_and_b32 s%d, s%d, 3' % (s_t3, s_t1)); top('s_add_u32 s%d, s%d, s%d' % (s_tb, s_tb, s_t3))
    top('s_lshr_b32 s%d, s%d, 2' % (s_cb, s_t1))
    top('s_cmp_eq_u32 s%d, 0' % s_t2)
    top('s_cbranch_scc0 L_pathB')
    paths = []
    for br in range(2):
        p, vm, dco, dwq = gen_path(br)
        body(p, vm, br, dco, dwq)
        added = p.fix_hazards()
        errs = p.check_waits()
        if errs:
            for e in errs[:20]: print('WAITERR', e, file=sys.stderr)
            raise SystemExit('wait check failed')
        print('path', 'AB'[br], 'instructions:', sum(1 for i in p.ins if i.op), 'nop states added:', added, file=sys.stderr)
        paths.append(p)
    top.fix_hazards()
    hdr = open(os.path.join(os.path.dirname(os.path.abspath(__file__)), 'header.txt')).read()
    s = hdr
    s += '; @launch grid=(256,1,1) block=(256,1,1) lds=163840\n'
    s += '.amdgcn_target "amdgcn-amd-amdhsa--gfx950"\n.text\n.globl %s\n.p2align 8\n.type %s,@function\n%s:\n' % (KNAME, KNAME, KNAME)
    s += top.text()
    for p in paths: s += p.text()
    s += 'L_end:\n    s_endpgm\n'
    s += '.section .rodata,"a"\n.p2align 6\n.amdhsa_kernel %s\n  .amdhsa_next_free_vgpr 512\n  .amdhsa_next_free_sgpr 102\n  .amdhsa_accum_offset 256\n  .amdhsa_group_segment_fixed_size 0\n  .amdhsa_kernarg_size 88\n  .amdhsa_user_sgpr_count 2\n  .amdhsa_user_sgpr_kernarg_segment_ptr 1\n  .amdhsa_system_sgpr_workgroup_id_x 1\n.end_amdhsa_kernel\n' % KNAME
    return s


MF = 'v_mfma_f32_32x32x16_bf16'
vDO = 10
vOA = 2
vEW = 4
vER = 8
vOG = 18
s_rc, s_r4 = 7, 3

def cvt(p, d, a, b): p('v_cvt_pk_bf16_f32 v%d, v%d, v%d' % (d, a, b))

def wo_setup(p):
    p('v_lshrrev_b32 v27, 3, v%d' % v_lane); p('v_and_b32 v28, 7, v%d' % v_lane)
    p('v_bfe_u32 v29, v%d, 4, 1' % v_lane); p('v_lshlrev_b32 v29, 2, v29'); p('v_xor_b32 v28, v28, v29'); p('v_lshlrev_b32 v28, 4, v28')
    p('s_lshl_b32 s%d, s%d, 7' % (s_t0, s_cb)); p('v_add_u32 v28, s%d, v28' % s_t0)
    p('v_lshl_add_u32 v%d, v27, 10, v28' % vDO)
    for q in range(1, 4): p('v_add_u32 v%d, %d, v%d' % (vDO + q, 7 * q * 1024, vDO))
    p('s_lshl_b32 s%d, s%d, 16' % (s_wobase, s_w)); p('s_lshl_b32 s%d, s%d, 13' % (s_m0o, s_w))
    if cfg.worot:
        p('s_and_b32 s%d, s%d, 3' % (s_r, s_tb))
        p('s_lshr_b32 s%d, s%d, 1' % (s_t0, s_r)); p('s_lshl_b32 s%d, s%d, 18' % (s_t0, s_t0)); p('s_add_u32 s%d, s%d, s%d' % (s_wobase, s_wobase, s_t0))
        p('s_bitcmp1_b32 s%d, 0' % s_r)
        p('s_cselect_b32 s%d, s%d, s%d' % (s_t0, sWOB, sWOA)); p('s_cselect_b32 s%d, s%d, s%d' % (s_t1, sWOA, sWOB))
        p('s_cselect_b32 s%d, s%d, s%d' % (s_t2x, sWOB + 1, sWOA + 1)); p('s_cselect_b32 s%d, s%d, s%d' % (s_t3x, sWOA + 1, sWOB + 1))
        p('s_mov_b32 s%d, s%d' % (sWOA, s_t0)); p('s_mov_b32 s%d, s%d' % (sWOB, s_t1)); p('s_mov_b32 s%d, s%d' % (sWOA + 1, s_t2x)); p('s_mov_b32 s%d, s%d' % (sWOB + 1, s_t3x))
    else:
        p('s_mov_b32 s%d, 0' % s_r)

def dma_wo_ops(p, vm, part):
    if cfg.nowo == 1 or (cfg.nowo == 2 and part == 3):
        def f(): vm.mark('wo%d' % part)
        return [f]
    return dma_wo_ops_real(p, vm, part)

def dma_wo_ops_real(p, vm, part):
    srd_ = sWOA if part < 2 else sWOB
    ops = []
    for grp in range(2):
        def m(grp=grp):
            if part & 1: p('s_xor_b32 s%d, s%d, 262144' % (s_ow, s_wobase))
            else: p('s_mov_b32 s%d, s%d' % (s_ow, s_wobase))
            if grp: p('s_add_u32 s%d, s%d, 32768' % (s_ow, s_ow))
            p('s_add_u32 m0, s%d, %d' % (s_m0o, (part + 1) * SLOT + grp * 4096)); p('s_nop 0')
            vm.op('buffer_load_dwordx4 v%d, s[%d:%d], s%d offen lds' % (vDO, srd_, srd_ + 3, s_ow))
        ops.append(m)
        for q in range(1, 4):
            ops.append(lambda q=q, grp=grp: vm.op('buffer_load_dwordx4 v%d, s[%d:%d], s%d offen offset:%d lds' % (vDO + q, srd_, srd_ + 3, s_ow, q * 1024), 'wo%d' % part if (q == 3 and grp == 1) else None))
    return ops

def softmax16(p, P, F, tmp):
    m, S = tmp, tmp + 2
    p('v_max3_f32 v%d, v%d, v%d, v%d' % (m, P, P + 1, P + 2))
    p('v_max3_f32 v%d, v%d, v%d, v%d' % (m + 1, P + 3, P + 4, P + 5))
    p('v_max3_f32 v%d, v%d, v%d, v%d' % (m, m, P + 6, P + 7))
    p('v_max3_f32 v%d, v%d, v%d, v%d' % (m + 1, m + 1, P + 8, P + 9))
    p('v_max3_f32 v%d, v%d, v%d, v%d' % (m, m, P + 10, P + 11))
    p('v_max3_f32 v%d, v%d, v%d, v%d' % (m + 1, m + 1, P + 12, P + 13))
    p('v_max3_f32 v%d, v%d, v%d, v%d' % (m, m, P + 14, P + 15))
    p('v_max_f32 v%d, v%d, v%d' % (m, m, m + 1))
    p('v_mul_f32 v%d, s%d, v%d' % (m, s_log2e, m))
    for i in range(8):
        p('v_pk_fma_f32 v[%d:%d], v[%d:%d], s[%d:%d], v[%d:%d] op_sel_hi:[1,1,0] neg_lo:[0,0,1] neg_hi:[0,0,1]' % (P + 2 * i, P + 2 * i + 1, P + 2 * i, P + 2 * i + 1, s_log2e, s_log2e + 1, m, m + 1))
    for i in range(16): p('v_exp_f32 v%d, v%d' % (P + i, P + i))
    p('v_pk_add_f32 v[%d:%d], v[%d:%d], v[%d:%d]' % (S, S + 1, P, P + 1, P + 2, P + 3))
    p('v_pk_add_f32 v[%d:%d], v[%d:%d], v[%d:%d]' % (m, m + 1, P + 4, P + 5, P + 6, P + 7))
    p('v_pk_add_f32 v[%d:%d], v[%d:%d], v[%d:%d]' % (S, S + 1, S, S + 1, P + 8, P + 9))
    p('v_pk_add_f32 v[%d:%d], v[%d:%d], v[%d:%d]' % (m, m + 1, m, m + 1, P + 10, P + 11))
    p('v_pk_add_f32 v[%d:%d], v[%d:%d], v[%d:%d]' % (S, S + 1, S, S + 1, P + 12, P + 13))
    p('v_pk_add_f32 v[%d:%d], v[%d:%d], v[%d:%d]' % (m, m + 1, m, m + 1, P + 14, P + 15))
    p('v_pk_add_f32 v[%d:%d], v[%d:%d], v[%d:%d]' % (S, S + 1, S, S + 1, m, m + 1))
    p('v_add_f32 v%d, v%d, v%d' % (S, S, S + 1))
    p('v_rcp_f32 v%d, v%d' % (S, S))
    for i in range(8):
        p('v_pk_mul_f32 v[%d:%d], v[%d:%d], v[%d:%d] op_sel_hi:[1,0]' % (P + 2 * i, P + 2 * i + 1, P + 2 * i, P + 2 * i + 1, S, S + 1))
    for i in range(8): cvt(p, F + i, P + 2 * i, P + 2 * i + 1)

def phi_elu(p, T, n, F, tmp):
    for base in range(0, n // 2, 4):
        prs = range(base, min(base + 4, n // 2))
        for k, i in enumerate(prs):
            p('v_pk_mul_f32 v[%d:%d], v[%d:%d], s[%d:%d]' % (tmp + 2 * k, tmp + 2 * k + 1, T + 2 * i, T + 2 * i + 1, s_log2e, s_log2e + 1))
        for k, i in enumerate(prs):
            p('v_exp_f32 v%d, v%d clamp' % (tmp + 2 * k, tmp + 2 * k)); p('v_exp_f32 v%d, v%d clamp' % (tmp + 2 * k + 1, tmp + 2 * k + 1))
        for k, i in enumerate(prs):
            p('v_max_f32 v%d, 0, v%d' % (T + 2 * i, T + 2 * i)); p('v_max_f32 v%d, 0, v%d' % (T + 2 * i + 1, T + 2 * i + 1))
        for k, i in enumerate(prs):
            p('v_pk_add_f32 v[%d:%d], v[%d:%d], v[%d:%d]' % (T + 2 * i, T + 2 * i + 1, T + 2 * i, T + 2 * i + 1, tmp + 2 * k, tmp + 2 * k + 1))
        for k, i in enumerate(prs):
            p('v_pk_add_f32 v[%d:%d], v[%d:%d], s[%d:%d]' % (T + 2 * i, T + 2 * i + 1, T + 2 * i, T + 2 * i + 1, s_eps, s_eps + 1))
        for k, i in enumerate(prs): cvt(p, F + i, T + 2 * i, T + 2 * i + 1)

ACC = [96, 112]
def vprep(p, VB0, VB1):
    for blk in range(2):
        for i in range(8): cvt(p, VB0 + 8 * blk + i, vV[blk] + 2 * i, vV[blk] + 2 * i + 1)
    for blk in range(2):
        for i in range(8): p('v_cndmask_b32_e64 v%d, v%d, v%d, s[%d:%d]' % (VB1 + 8 * blk + i, vONES, VB0 + 8 * blk + i, s_mask16, s_mask16 + 1))
    for blk in range(2):
        for i in range(8): p('v_cndmask_b32_e64 v%d, v%d, v%d, s[%d:%d]' % (VB0 + 8 * blk + i, VB0 + 8 * blk + i, vONES, s_mask16, s_mask16 + 1))

def insert_at(main, ins):
    out = []; ins = sorted(ins, key=lambda x: x[0]); k = 0
    for idx, m in enumerate(main):
        while k < len(ins) and ins[k][0] <= idx: out.append(ins[k][1]); k += 1
        out.append(m)
    out += [x[1] for x in ins[k:]]
    return out

UNITS = [(0, 0), (0, 1), (1, 0), (1, 1)]
ST = 184
UNITS_K = [(0, 1), (1, 1), (0, 0), (1, 0)]
def feat_k_B(p, vm, side):
    KB, PB, G = 168, 184, 128
    VB0, VB1 = 32, 48
    TB = [64, 80]
    VB = [VB0, VB1]
    U = UNITS_K
    r = Rec()
    for un, (blk, u) in enumerate(U):
        for i in range(4): cvt(r, KB + 4 * un + i, vK[blk] + 8 * u + 2 * i, vK[blk] + 8 * u + 2 * i + 1)
    head = list(r.l)
    r = Rec(); vprep(r, VB0, VB1); vp = list(r.l)
    PM = ['%s %s, %s, %s, 0' % (MF, vr(PB + 16 * un, 16), vr(vWP + 4 * u, 4), vr(KB + 4 * un, 4)) for un, (blk, u) in enumerate(U)]
    stream = head[:6] + [PM[0]] + head[6:10] + [PM[1]] + head[10:14] + [PM[2]] + head[14:16] + vp[:4] + [PM[3]] + vp[4:]
    def TA(un): return '%s %s, %s, %s, 0' % (MF, vr(TB[un % 2], 16), vr(KB + 8 * (un % 2), 4), vr(vSEL, 4))
    def TBm(un): return '%s %s, %s, %s, %s' % (MF, vr(TB[un % 2], 16), vr(KB + 8 * (un % 2) + 4, 4), vr(vSEL + 4, 4), vr(TB[un % 2], 16))
    def CV(un):
        q = Rec()
        for i in range(8): cvt(q, G + i, TB[un % 2] + 2 * i, TB[un % 2] + 2 * i + 1)
        return q.l
    def AA(un):
        blk, u = U[un]; c = '0' if blk == 0 else vr(ACC[u], 16)
        return '%s %s, %s, %s, %s' % (MF, vr(ACC[u], 16), vr(G, 4), vr(VB[u] + 8 * blk, 4), c)
    def AB(un):
        blk, u = U[un]
        return '%s %s, %s, %s, %s' % (MF, vr(ACC[u], 16), vr(G + 4, 4), vr(VB[u] + 8 * blk + 4, 4), vr(ACC[u], 16))
    q = Rec(); exchange_addr(q); ad = q.l
    q = Rec(); exchange_scal(q, 1); sc = q.l
    for un in range(4):
        q = Rec(); softmax16(q, PB + 16 * un, KB + 8 * (un % 2), 136); sm = q.l
        ins = []
        if un >= 1:
            if cfg.mfexp:
                ins += [(17, TA(un - 1)), (21, TBm(un - 1))]
                if un >= 2: ins += [(25, AA(un - 2)), (29, AB(un - 2))]
                ins += [(35 + k, c) for k, c in enumerate(CV(un - 1))]
            else:
                ins += [(2, TA(un - 1)), (10, TBm(un - 1))]
                ins += [(34 + k, c) for k, c in enumerate(CV(un - 1))]
                ins += [(46, AA(un - 1)), (54, AB(un - 1))]
        if un == 2: ins += [(12 + k, x) for k, x in enumerate(ad)]
        if un == 3:
            w0 = 46 if cfg.mfexp else 14
            ins += [(w0 + 2 * k, 'ds_write_b128 v%d, %s offset:%d' % (vEXW, vr(ACC[1] + 4 * k, 4), k * 1024)) for k in range(4)]
            ins += [(4 + k, x) for k, x in enumerate(sc)]
        stream += insert_at(sm, ins)
    merge(p, stream, side, 14 if len(side) <= 8 else 12, start=4)
    tags = ['v_mov_b32 v%d, v%d' % (ST + 4 * k + 3, vT) for k in range(4)]
    RC = 216
    p('s_nop 1'); p(TA(3))
    for t in tags: p(t)
    p(TBm(3))
    if cfg.mfexp: p(AA(2)); p(AB(2))
    vm.wait('wq1', ' lgkmcnt(0)')
    stamp(p, 18)
    p('s_barrier')
    stamp(p, 19)
    for q in range(4): p('ds_read_b128 %s, v%d offset:%d' % (vr(RC + 4 * q, 4), vEXR, q * 1024))
    for c in CV(3): p(c)
    p('s_nop 1'); p(AA(3)); p(AB(3))
    exchange_finish(p, 1)

def feat_k_A(p, side):
    PK, VB0, VB1 = 168, 200, 216
    r = Rec()
    for blk in range(2): phi_elu(r, vK[blk], 16, PK + 8 * blk, 184)
    vprep(r, VB0, VB1)
    VB = [VB0, VB1]
    for k in range(2): r('v_mov_b32 v%d, v%d' % (ST + 4 * k + 3, vT))
    exchange_addr(r)
    for blk in range(2):
        for u in range(2):
            c = '0' if blk == 0 else vr(ACC[u], 16)
            r('%s %s, %s, %s, %s' % (MF, vr(ACC[u], 16), vr(PK + 8 * blk, 4), vr(VB[u] + 8 * blk, 4), c))
            r('%s %s, %s, %s, %s' % (MF, vr(ACC[u], 16), vr(PK + 8 * blk + 4, 4), vr(VB[u] + 8 * blk + 4, 4), vr(ACC[u], 16)))
    merge(p, r.l, side, 10 if len(side) <= 8 else 7, start=2)

FQ = 32
def feat_q_B(p, side, late):
    KB, PB = 168, 184
    r = Rec()
    for un, (blk, u) in enumerate(UNITS):
        for i in range(4): cvt(r, KB + 4 * un + i, vQ[blk] + 8 * u + 2 * i, vQ[blk] + 8 * u + 2 * i + 1)
    head = list(r.l)
    PM = ['%s %s, %s, %s, 0' % (MF, vr(PB + 16 * un, 16), vr(vWP + 4 * u, 4), vr(KB + 4 * un, 4)) for un, (blk, u) in enumerate(UNITS)]
    stream = head[:6] + [PM[0]] + head[6:10] + [PM[1]] + head[10:14] + [PM[2]] + head[14:16] + ['s_nop 3', PM[3]]
    for un in range(4):
        q = Rec(); softmax16(q, PB + 16 * un, FQ + 8 * un, 136); stream += q.l
    n = len(stream)
    stream = insert_at(stream, [(n - cfg.h2lead + k, x) for k, x in enumerate(late)])
    merge(p, stream, side, 9, start=2)

def feat_q_A(p, side, late):
    r = Rec()
    for blk in range(2):
        for u in range(2): phi_elu(r, vQ[blk] + 8 * u, 8, FQ + 4 * (2 * blk + u), 184)
    merge(p, r.l, side, 6, start=1)
    for x in late: emit(p, x)

vEXW, vEXR, vH1S = 28, 29, 30
def exchange_addr(p):
    p('v_lshlrev_b32 v27, 4, v%d' % v_lane)
    p('s_lshl_b32 s%d, s%d, 12' % (s_t0, s_w)); p('s_add_u32 s%d, s%d, %d' % (s_t0, s_t0, (2 if cfg.wosched else 3) * SLOT))
    p('v_add_u32 v%d, s%d, v27' % (vEXW, s_t0))
    p('s_xor_b32 s%d, s%d, 4096' % (s_t0, s_t0))
    p('v_xor_b32 v27, 256, v27')
    p('v_add_u32 v%d, s%d, v27' % (vEXR, s_t0))
    p('v_lshrrev_b32 v%d, 4, v%d' % (vH1S, v_lane)); p('v_lshlrev_b32 v%d, 12, v%d' % (vH1S, vH1S)); p('v_and_b32 v27, 15, v%d' % v_lane); p('v_lshl_add_u32 v%d, v27, 4, v%d' % (vH1S, vH1S))

TZ = 200
def exchange_scal(p, br):
    p('s_lshl_b32 s%d, s%d, 2' % (s_head, s_jj)); p('s_add_u32 s%d, s%d, s%d' % (s_head, s_head, s_w)); p('s_add_u32 s%d, s%d, %d' % (s_head, s_head, 32 * br))
    p('s_lshl_b32 s%d, s%d, 16' % (s_t2, s_head)); p('s_lshl_b32 s%d, s%d, 8' % (s_t1, s_i)); p('s_add_u32 s%d, s%d, s%d' % (s_t2, s_t2, s_t1)); p('s_add_u32 s%d, s%d, %d' % (s_t2, s_t2, WS_INB))

def exchange_finish(p, br):
    nq = 4 if br == 1 else 2
    nh = 2 * nq
    RC = 216
    pos = lambda r: ST + 4 * (r >> 1) + (r & 1)
    p('s_waitcnt lgkmcnt(0)')
    for r in range(4 * nq):
        d = pos(r) if r < nh else TZ + r - nh
        p('v_add_f32 v%d, v%d, v%d' % (d, ACC[0] + r, RC + r))
    nd = 8 if br == 1 else 4
    for r in range(nd): p('v_permlane16_swap_b32 v%d, v%d' % (pos(r), TZ + r))
    for m in range(nd // 2): p('v_cndmask_b32_e64 v%d, v%d, v%d, s[%d:%d]' % (ST + 4 * m + 2, TZ + 2 * m, TZ + 2 * m + 1, s_odd, s_odd + 1))

def exchange(p, vm, br):
    nq = 2
    RC = 216
    src1 = ACC[1] + 8
    for q in range(nq): p('ds_write_b128 v%d, %s offset:%d' % (vEXW, vr(src1 + 4 * q, 4), q * 1024))
    exchange_scal(p, br)
    vm.wait('wq1', ' lgkmcnt(0)')
    stamp(p, 18)
    p('s_barrier')
    stamp(p, 19)
    for q in range(nq): p('ds_read_b128 %s, v%d offset:%d' % (vr(RC + 4 * q, 4), vEXR, q * 1024))
    exchange_finish(p, br)

def hop1_store_ops(p, vm, br):
    nm = 4 if br == 1 else 2
    ops = []
    for m in range(nm):
        def f(m=m):
            vm.op('buffer_store_dwordx4 %s, v%d, s[%d:%d], s%d offen sc1' % (vr(ST + 4 * m, 4), vH1S, sWS, sWS + 3, s_t2))
            if m < nm - 1: p('s_add_u32 s%d, s%d, 16384' % (s_t2, s_t2))
        ops.append(f)
    return ops

def spin_tail(p, name):
    p('s_cbranch_vccz L_%s_ok' % name)
    p('s_sub_u32 s%d, s%d, 1' % (s_spin, s_spin))
    p('s_cmp_gt_i32 s%d, 0' % s_spin)
    p('s_cbranch_scc1 L_%s' % name)
    p.label('L_%s_ok' % name)

def tagcheck(p, regs, t0, t1):
    regs = list(regs)
    p('v_min_u32 v%d, v%d, v%d' % (t0, regs[0], regs[1])); p('v_max_u32 v%d, v%d, v%d' % (t1, regs[0], regs[1]))
    k = 2
    while k + 1 < len(regs):
        p('v_min3_u32 v%d, v%d, v%d, v%d' % (t0, t0, regs[k], regs[k + 1])); p('v_max3_u32 v%d, v%d, v%d, v%d' % (t1, t1, regs[k], regs[k + 1])); k += 2
    if k < len(regs):
        p('v_min_u32 v%d, v%d, v%d' % (t0, t0, regs[k])); p('v_max_u32 v%d, v%d, v%d' % (t1, t1, regs[k]))
    p('v_xor_b32 v%d, v%d, v%d' % (t0, vT, t0)); p('v_xor_b32 v%d, v%d, v%d' % (t1, vT, t1)); p('v_or_b32 v%d, v%d, v%d' % (t0, t0, t1))
    p('v_cmp_ne_u32 vcc, 0, v%d' % t0)

H1 = 184
s_h1a = 98
def hop1_load_ops(p, vm, br, retry=False):
    ops = []
    def addr():
        p('s_lshl_b32 s%d, s%d, 16' % (s_h1a, s_head)); p('s_lshl_b32 s%d, s%d, 12' % (s_t1, s_i)); p('s_add_u32 s%d, s%d, s%d' % (s_h1a, s_h1a, s_t1)); p('s_add_u32 s%d, s%d, %d' % (s_h1a, s_h1a, WS_INB))
        p('v_lshlrev_b32 v27, 4, v%d' % v_lane)
    if not retry: ops.append(addr)
    for n in range(4):
        ops.append(lambda n=n: vm.op('buffer_load_dwordx4 %s, v27, s[%d:%d], s%d offen offset:%d sc1' % (vr(H1 + 4 * n, 4), sWS, sWS + 3, s_h1a, n * 1024), 'h1l' if n == 3 else None))
    return ops

def hop1_reduce(p, vm, br):
    L = 'AB'[br]; LD = H1
    vm.wait('h1l')
    if br == 0:
        p('s_cmp_ge_u32 s%d, 8' % s_i); p('s_cbranch_scc1 L_h1skip')
    p('s_mov_b32 s%d, %d' % (s_spin, cfg.spin))
    tagcheck(p, [LD + 4 * n + 3 for n in range(4)], 28, 29)
    p('s_cbranch_vccz L_h1%s_ok' % L)
    p.label('L_h1%s' % L)
    for f in hop1_load_ops(p, vm, br, retry=True): f()
    vm.wait_all()
    tagcheck(p, [LD + 4 * n + 3 for n in range(4)], 28, 29)
    spin_tail(p, 'h1%s' % L)
    a, b, z, t = 216, 217, 218, 219
    p('v_add_f32 v%d, v%d, v%d' % (a, LD, LD + 4)); p('v_add_f32 v%d, v%d, v%d' % (b, LD + 1, LD + 5)); p('v_add_f32 v%d, v%d, v%d' % (z, LD + 2, LD + 6))
    for n in range(2, 4):
        p('v_add_f32 v%d, v%d, v%d' % (a, a, LD + 4 * n)); p('v_add_f32 v%d, v%d, v%d' % (b, b, LD + 4 * n + 1)); p('v_add_f32 v%d, v%d, v%d' % (z, z, LD + 4 * n + 2))
    p('v_mov_b32 v%d, v%d' % (t, z))
    p('s_lshl_b32 s%d, s%d, 11' % (s_t0, s_head)); p('s_lshl_b32 s%d, s%d, 7' % (s_t1, s_i)); p('s_add_u32 s%d, s%d, s%d' % (s_t0, s_t0, s_t1)); p('s_add_u32 s%d, s%d, %d' % (s_t0, s_t0, WS_OUTK))
    p('v_permlane32_swap_b32 v%d, v%d' % (a, b))
    p('v_permlane32_swap_b32 v%d, v%d' % (z, t))
    p('v_add_f32 v%d, v%d, v%d' % (a, a, b)); p('v_add_f32 v%d, v%d, v%d' % (z, z, t))
    p('v_lshlrev_b32 v27, 4, v%d' % v_lane)
    p('v_mov_b32 v%d, v%d' % (b, a)); p('v_mov_b32 v%d, v%d' % (t, z))
    p('v_mov_b32 v223, v%d' % vT)
    p('s_nop 0')
    p('v_permlane16_swap_b32 v%d, v%d' % (a, b))
    p('v_permlane16_swap_b32 v%d, v%d' % (z, t))
    p('v_add_f32 v%d, v%d, v%d' % (a, a, b)); p('v_add_f32 v%d, v%d, v%d' % (z, z, t))
    p('v_mov_b32 v%d, v%d' % (b, a))
    p('s_nop 0')
    p('v_mov_b32_dpp v%d, v%d quad_perm:[1,1,1,1] row_mask:0xf bank_mask:0xf' % (t, z))
    p('v_permlane32_swap_b32 v%d, v%d' % (a, b))
    p('v_mov_b32_dpp v%d, v%d quad_perm:[0,0,0,0] row_mask:0xf bank_mask:0xf' % (222, z))
    cvt(p, 220, a, b)
    cvt(p, 222, 222, t)
    p('v_mov_b32_dpp v221, v220 row_ror:8 row_mask:0xf bank_mask:0xf')
    p('s_mov_b32 exec_lo, 0xff'); p('s_mov_b32 exec_hi, 0')
    vm.op('buffer_store_dwordx4 v[220:223], v27, s[%d:%d], s%d offen sc1' % (sWS, sWS + 3, s_t0))
    p('s_mov_b64 exec, -1')
    if br == 0: p.label('L_h1skip')

KVA = 216
H2 = 64
s_h2a, s_h2b = 100, 101
s_hi8 = 98
def hop2_load_ops(p, vm, br, retry=False):
    nm = 4 if br == 1 else 2
    ops = []
    def addr():
        p('s_lshl_b32 s%d, s%d, 11' % (s_h2a, s_head)); p('s_add_u32 s%d, s%d, %d' % (s_h2a, s_h2a, WS_OUTK)); p('s_xor_b32 s%d, s%d, 2048' % (s_h2b, s_h2a))
        p('s_mov_b32 s%d, 0xff00ff00' % s_hi8); p('s_mov_b32 s%d, 0xff00ff00' % (s_hi8 + 1))
    def addr2():
        p('v_lshrrev_b32 v31, 4, v%d' % v_lane); p('v_lshlrev_b32 v31, 7, v31'); p('v_and_b32 v30, 7, v%d' % v_lane); p('v_lshl_add_u32 v31, v30, 4, v31')
    if not retry: ops += [addr, addr2]
    for u in range(2):
        for m in range(nm):
            r = H2 + 16 * u + 4 * m
            ops.append(lambda r=r, u=u, m=m: vm.op('buffer_load_dwordx4 %s, v31, s[%d:%d], s%d offen offset:%d sc1' % (vr(r, 4), sWS, sWS + 3, s_h2a if u == 0 else s_h2b, m * 512), 'h2l' if (u == 1 and m == nm - 1) else None))
    return ops

def hop2_gather(p, vm, br):
    L = 'AB'[br]; nm = 4 if br == 1 else 2
    tags = [H2 + 16 * u + 4 * m + 3 for u in range(2) for m in range(nm)]
    p('s_mov_b32 s%d, %d' % (s_spin, cfg.spin))
    vm.wait('h2l')
    tagcheck(p, tags, 28, 29)
    p('s_cbranch_vccz L_h2%s_ok' % L)
    p.label('L_h2%s' % L)
    for f in hop2_load_ops(p, vm, br, retry=True): f()
    vm.wait_all()
    tagcheck(p, tags, 28, 29)
    spin_tail(p, 'h2%s' % L)
    for u in range(2):
        for m in range(nm): p('v_cndmask_b32_e64 v%d, v%d, v%d, s[%d:%d]' % (KVA + 8 * u + m, H2 + 16 * u + 4 * m, H2 + 16 * u + 4 * m + 1, s_hi8, s_hi8 + 1))
        for m in range(nm): p('v_mov_b32 v%d, v%d' % (KVA + 8 * u + nm + m, H2 + 16 * u + 4 * m + 2))
    for u in range(2):
        for m in range(nm): p('v_permlane16_swap_b32 v%d, v%d' % (KVA + 8 * u + m, KVA + 8 * u + nm + m))

OF = 232
def o_addr(p):
    p('s_lshl_b32 s%d, s%d, 2' % (s_t0, s_i)); p('s_lshl_b32 s%d, s%d, 1' % (s_t1, s_th)); p('s_add_u32 s%d, s%d, s%d' % (s_t0, s_t0, s_t1))
    p('s_lshl_b32 s%d, s%d, 16' % (s_t0, s_t0)); p('s_lshl_b32 s%d, s%d, 10' % (s_t1, s_head)); p('s_add_u32 s%d, s%d, s%d' % (s_t0, s_t0, s_t1)); p('s_add_u32 s%d, s%d, %d' % (s_t0, s_t0, WS_O))
    p('s_xor_b32 s%d, s%d, 1024' % (s_t1, s_t0))
    p('s_add_u32 s%d, s%d, 65536' % (s_t2, s_t0)); p('s_add_u32 s%d, s%d, 65536' % (s_t3, s_t1))

def poison_ops(p, vm, br):
    def a():
        p('s_lshl_b32 s%d, s%d, 2' % (s_head, s_jj)); p('s_add_u32 s%d, s%d, s%d' % (s_head, s_head, s_w)); p('s_add_u32 s%d, s%d, %d' % (s_head, s_head, 32 * br))
        o_addr(p); p('v_lshlrev_b32 v27, 4, v%d' % v_lane)
        for k in range(4): p('v_mov_b32 v%d, -1' % (248 + k))
    ops = [a]
    for k, sr_ in enumerate((s_t0, s_t1, s_t2, s_t3)):
        ops.append(lambda k=k, sr_=sr_: vm.op('buffer_store_dwordx4 v[248:251], v27, s[%d:%d], s%d offen sc1' % (sWS, sWS + 3, sr_), 'poison' if k == 3 else None))
    def allp():
        for f in ops: f()
    return allp

def o_warm_ops(p, vm):
    def a():
        o_addr(p); p('v_lshlrev_b32 v27, 4, v%d' % v_lane)
    ops = [a]
    for k, sr_ in enumerate((s_t0, s_t1, s_t2, s_t3)):
        ops.append(lambda k=k, sr_=sr_: vm.op('buffer_load_dwordx4 v[%d:%d], v27, s[%d:%d], s%d offen %s' % (232 + 4 * k, 235 + 4 * k, sWS, sWS + 3, sr_, cfg.owarmfl)))
    return ops

def o_phase(p, vm, br):
    NB = [64, 80, 96, 112]
    for un, (blk, u) in enumerate(UNITS):
        if br == 1:
            p('%s %s, %s, %s, 0' % (MF, vr(NB[un], 16), vr(KVA + 8 * u, 4), vr(FQ + 8 * un, 4)))
            p('%s %s, %s, %s, %s' % (MF, vr(NB[un], 16), vr(KVA + 8 * u + 4, 4), vr(FQ + 8 * un + 4, 4), vr(NB[un], 16)))
        else:
            p('%s %s, %s, %s, 0' % (MF, vr(NB[un], 16), vr(KVA + 8 * u, 4), vr(FQ + 4 * un, 4)))
        if un == 0:
            if cfg.oalias:
                p('s_lshl_b32 s%d, s%d, 16' % (s_t0, s_head)); p('s_lshl_b32 s%d, s%d, 12' % (s_t1, s_i)); p('s_add_u32 s%d, s%d, s%d' % (s_t0, s_t0, s_t1)); p('s_add_u32 s%d, s%d, %d' % (s_t0, s_t0, WS_INB))
                p('s_add_u32 s%d, s%d, 1024' % (s_t1, s_t0)); p('s_add_u32 s%d, s%d, 2048' % (s_t2, s_t0)); p('s_add_u32 s%d, s%d, 3072' % (s_t3, s_t0))
            else:
                p('s_lshl_b32 s%d, s%d, 2' % (s_t0, s_i)); p('s_lshl_b32 s%d, s%d, 1' % (s_t1, s_th)); p('s_add_u32 s%d, s%d, s%d' % (s_t0, s_t0, s_t1))
                p('s_lshl_b32 s%d, s%d, 16' % (s_t0, s_t0)); p('s_lshl_b32 s%d, s%d, 10' % (s_t1, s_head)); p('s_add_u32 s%d, s%d, s%d' % (s_t0, s_t0, s_t1)); p('s_add_u32 s%d, s%d, %d' % (s_t0, s_t0, WS_O))
                p('s_xor_b32 s%d, s%d, 1024' % (s_t1, s_t0))
                p('s_add_u32 s%d, s%d, 65536' % (s_t2, s_t0)); p('s_add_u32 s%d, s%d, 65536' % (s_t3, s_t1))
            p('v_lshlrev_b32 v27, 4, v%d' % v_lane)
    soffs = {(0, 0): s_t0, (0, 1): s_t1, (1, 0): s_t2, (1, 1): s_t3}
    for un, (blk, u) in enumerate(UNITS):
        N = NB[un]; num = N; den = N + 8
        p('v_add_f32 v%d, s%d, v%d' % (den, s_eps, den))
        p('v_rcp_f32 v%d, v%d' % (den, den))
        for i in range(4):
            p('v_pk_mul_f32 v[%d:%d], v[%d:%d], v[%d:%d] op_sel_hi:[1,0]' % (num + 2 * i, num + 2 * i + 1, num + 2 * i, num + 2 * i + 1, den, den + 1))
        for i in range(4): cvt(p, OF + 4 * un + i, num + 2 * i, num + 2 * i + 1)
        vm.op('buffer_store_dwordx4 %s, v27, s[%d:%d], s%d offen sc1' % (vr(OF + 4 * un, 4), sWS, sWS + 3, soffs[(blk, u)]), 'ost')
    p('s_lshl_b32 s%d, s%d, 1' % (s_t0, s_i)); p('s_add_u32 s%d, s%d, s%d' % (s_t0, s_t0, s_th)); p('s_lshl_b32 s%d, s%d, 5' % (s_t0, s_t0))
    p('s_lshl_b32 s%d, s%d, 1' % (s_t1, s_jj)); p('s_add_u32 s%d, s%d, s%d' % (s_t0, s_t0, s_t1)); p('s_add_u32 s%d, s%d, s%d' % (s_t0, s_t0, s_hp))
    p('s_add_u32 s%d, s%d, %d' % (s_t0, s_t0, 16 * br)); p('s_lshl_b32 s%d, s%d, 7' % (s_t0, s_t0)); p('s_add_u32 s%d, s%d, %d' % (s_h2a, s_t0, WS_FLAG))

def o_flag(p, vm):
    p('v_mov_b32 v27, 0')
    vm.wait('ost')
    p('s_mov_b64 exec, 1')
    vm.op('buffer_store_dword v%d, v27, s[%d:%d], s%d offen sc1' % (vT, sWS, sWS + 3, s_h2a))
    p('s_mov_b64 exec, -1')

def gate_load_ops(p, vm):
    X, Gw = GX, GW
    def a0():
        p('s_lshl_b32 s%d, s%d, 7' % (s_t0, s_i)); p('s_lshl_b32 s%d, s%d, 4' % (s_t1, s_jj)); p('s_add_u32 s%d, s%d, s%d' % (s_t0, s_t0, s_t1))
        p('s_lshl_b32 s%d, s%d, 2' % (s_t1, s_w)); p('s_add_u32 s%d, s%d, s%d' % (s_t0, s_t0, s_t1))
        p('s_lshl_b32 s%d, s%d, 10' % (s_t2, s_t0))
    def a1():
        p('s_lshr_b32 s%d, s%d, 2' % (s_t3, s_t0)); p('s_lshl_b32 s%d, s%d, 7' % (s_t3, s_t3)); p('s_add_u32 s%d, s%d, %d' % (s_b + 1, s_t3, WS_G))
        p('v_and_b32 v27, 15, v%d' % v_lane); p('v_lshlrev_b32 v27, 4, v27')
    def a2():
        p('v_lshrrev_b32 v28, 4, v%d' % v_lane); p('v_lshl_add_u32 v28, v28, 10, v27')
    ops = [a0, a1, a2]
    for q in range(4):
        ops.append(lambda q=q: vm.op('buffer_load_dwordx4 %s, v28, s[%d:%d], s%d offen offset:%d' % (vr(X + 4 * q, 4), sX, sX + 3, s_t2, q * 256)))
    for q in range(4):
        ops.append(lambda q=q: vm.op('buffer_load_dwordx4 %s, v27, s[%d:%d], 0 offen offset:%d' % (vr(Gw + 4 * q, 4), sMISC, sMISC + 3, q * 256), 'gate' if q == 3 else None))
    return ops

def gate_finish(p, vm):
    X, Gw = GX, GW
    vm.wait('gate')
    acc = 200
    p('v_mov_b32 v%d, 0' % acc); p('v_mov_b32 v%d, 0' % (acc + 1))
    for k in range(16):
        p('v_lshlrev_b32 v202, 16, v%d' % (X + k)); p('v_lshlrev_b32 v203, 16, v%d' % (Gw + k))
        p('v_and_b32 v204, 0xffff0000, v%d' % (X + k)); p('v_and_b32 v205, 0xffff0000, v%d' % (Gw + k))
        p('v_fmac_f32 v%d, v202, v203' % acc); p('v_fmac_f32 v%d, v204, v205' % (acc + 1))
    p('v_add_f32 v%d, v%d, v%d' % (acc, acc, acc + 1))
    for sh in (8, 4, 2, 1):
        p('v_add_f32_dpp v%d, v%d, v%d row_ror:%d row_mask:0xf bank_mask:0xf' % (acc, acc, acc, sh))
    p('v_mul_f32 v%d, s%d, v%d' % (acc, s_log2e, acc))
    p('v_exp_f32_e64 v%d, -v%d' % (acc, acc))
    p('v_add_f32 v%d, 1.0, v%d' % (acc, acc))
    p('v_rcp_f32 v%d, v%d' % (acc, acc))
    p('v_mov_b32 v%d, v%d' % (acc + 1, vT))
    p('v_lshrrev_b32 v27, 4, v%d' % v_lane); p('v_lshlrev_b32 v27, 3, v27')
    p('s_mov_b32 exec_lo, 0x00010001'); p('s_mov_b32 exec_hi, 0x00010001')
    vm.op('buffer_store_dwordx2 v[%d:%d], v27, s[%d:%d], s%d offen sc1' % (acc, acc + 1, sWS, sWS + 3, s_b + 1))
    p('s_mov_b64 exec, -1')

def p3_setup(p):
    p('v_lshrrev_b32 v27, 5, v%d' % v_lane); p('v_lshlrev_b32 v27, 2, v27')
    p('v_bfe_u32 v28, v%d, 2, 2' % v_lane); p('v_add_u32 v27, v27, v28'); p('v_lshlrev_b32 v27, 7, v27')
    p('v_bfe_u32 v29, v%d, 4, 1' % v_lane); p('v_lshl_add_u32 v27, v29, 5, v27')
    p('v_and_b32 v29, 3, v%d' % v_lane); p('v_lshl_add_u32 v27, v29, 3, v27')
    p('s_and_b32 s%d, s%d, 1' % (s_t0, s_r)); p('s_xor_b32 s%d, s%d, s%d' % (s_t0, s_t0, s_hp))
    p('s_lshl_b32 s%d, s%d, 16' % (s_t0, s_t0)); p('s_add_u32 s%d, s%d, %d' % (s_t0, s_t0, SLOT)); p('v_add_u32 v27, s%d, v27' % s_t0)
    p('v_lshrrev_b32 v28, 1, v28')
    p('v_lshl_add_u32 v%d, v28, 6, v27' % vOA)
    p('v_xor_b32 v28, 1, v28'); p('v_lshl_add_u32 v%d, v28, 6, v27' % (vOA + 1))
    p('v_and_b32 v27, 31, v%d' % v_lane)
    p('s_lshl_b32 s%d, s%d, 14' % (s_t0, s_hp)); p('s_lshl_b32 s%d, s%d, 13' % (s_t1, s_th)); p('s_add_u32 s%d, s%d, s%d' % (s_t0, s_t0, s_t1))
    p('v_lshlrev_b32 v28, 8, v27'); p('v_add_u32 v28, s%d, v28' % s_t0)
    p('v_and_b32 v29, 7, v27'); p('v_lshrrev_b32 v27, 5, v%d' % v_lane); p('v_xor_b32 v29, v29, v27')
    for q in range(4):
        p('v_xor_b32 v27, %d, v29' % (2 * q)); p('v_lshl_add_u32 v%d, v27, 4, v28' % (vEW + q))
    p('v_lshrrev_b32 v27, 3, v%d' % v_lane); p('v_and_b32 v28, 7, v%d' % v_lane); p('v_lshlrev_b32 v28, 1, v28')
    p('s_lshl_b32 s%d, s%d, 12' % (s_t0, s_w))
    p('v_lshlrev_b32 v29, 8, v27'); p('v_add_u32 v29, s%d, v29' % s_t0)
    for x in range(2):
        p('v_or_b32 v30, %d, v28' % x); p('v_xor_b32 v30, v30, v27'); p('v_lshl_add_u32 v%d, v30, 4, v29' % (vER + x))
    p('v_and_b32 v28, 7, v%d' % v_lane); p('v_lshlrev_b32 v28, 4, v28'); p('v_lshl_add_u32 v14, v27, 10, v28')
    p('v_and_b32 v15, 15, v%d' % v_lane); p('v_lshlrev_b32 v15, 7, v15')
    p('v_lshlrev_b32 v16, 4, v%d' % v_lane)
    p('v_and_b32 v28, 31, v%d' % v_lane); p('v_lshrrev_b32 v29, 2, v28'); p('v_lshlrev_b32 v29, 7, v29'); p('v_and_b32 v28, 3, v28'); p('v_lshl_add_u32 v17, v28, 3, v29')

s_fl, s_oa, s_ga, s_out0, s_out1 = 47, 48, 49, 50, 51
def p3_scalars(p):
    p('s_lshl_b32 s%d, s%d, 1' % (s_t0, s_tb)); p('s_add_u32 s%d, s%d, s%d' % (s_t0, s_t0, s_hp)); p('s_lshl_b32 s%d, s%d, 11' % (s_t0, s_t0)); p('s_add_u32 s%d, s%d, %d' % (s_fl, s_t0, WS_FLAG))
    p('s_lshl_b32 s%d, s%d, 1' % (s_t0, s_tb)); p('s_add_u32 s%d, s%d, s%d' % (s_t0, s_t0, s_th)); p('s_lshl_b32 s%d, s%d, 16' % (s_t1, s_t0))
    p('s_lshl_b32 s%d, s%d, 15' % (s_t2, s_hp)); p('s_add_u32 s%d, s%d, s%d' % (s_t1, s_t1, s_t2)); p('s_add_u32 s%d, s%d, %d' % (s_oa, s_t1, WS_O))
    p('s_lshl_b32 s%d, s%d, 10' % (s_t0, s_t0)); p('s_add_u32 s%d, s%d, %d' % (s_ga, s_t0, WS_G))
    if cfg.oalias:
        p('s_and_b32 s%d, s%d, 1' % (s_t0, s_tb)); p('s_lshl_b32 s%d, s%d, 5' % (s_t1, s_hp)); p('s_add_u32 s%d, s%d, s%d' % (s_t1, s_t1, s_t0)); p('s_lshl_b32 s%d, s%d, 16' % (s_t1, s_t1))
        p('s_lshl_b32 s%d, s%d, 10' % (s_t0, s_t0)); p('s_add_u32 s%d, s%d, s%d' % (s_t1, s_t1, s_t0))
        p('s_lshr_b32 s%d, s%d, 1' % (s_t0, s_tb)); p('s_lshl_b32 s%d, s%d, 12' % (s_t0, s_t0)); p('s_add_u32 s%d, s%d, s%d' % (s_t1, s_t1, s_t0))
        p('s_lshl_b32 s%d, s%d, 11' % (s_t0, s_th)); p('s_add_u32 s%d, s%d, s%d' % (s_t1, s_t1, s_t0)); p('s_add_u32 s%d, s%d, %d' % (s_oa, s_t1, WS_INB))
    p('s_lshl_b32 s%d, s%d, 6' % (s_t0, s_tb)); p('s_lshl_b32 s%d, s%d, 4' % (s_t1, s_w)); p('s_add_u32 s%d, s%d, s%d' % (s_t0, s_t0, s_t1)); p('s_lshl_b32 s%d, s%d, 10' % (s_t0, s_t0))
    p('s_lshl_b32 s%d, s%d, 7' % (s_t1, s_cb)); p('s_add_u32 s%d, s%d, s%d' % (s_out0, s_t0, s_t1)); p('s_add_u32 s%d, s%d, 8192' % (s_out1, s_out0))
    if cfg.orot: p('s_mov_b32 s%d, s%d' % (s_rc, s_cb))
    else: p('s_mov_b32 s%d, 0' % s_rc)
    p('s_lshr_b32 s%d, s%d, 1' % (s_r4, s_r)); p('s_lshl_b32 s%d, s%d, 2' % (s_r4, s_r4))

def p3(p, vm, br):
    L = 'AB'[br]
    OACC = [64, 80]
    GV = 96
    vm.op('buffer_load_dwordx2 v[%d:%d], v17, s[%d:%d], s%d offen sc1' % (GV, GV + 1, sWS, sWS + 3, s_ga), 'g')
    p('s_mov_b32 s%d, %d' % (s_spin, cfg.spin))
    if cfg.p3e:
        vm.op('buffer_load_dword v28, v15, s[%d:%d], s%d offen sc1' % (sWS, sWS + 3, s_fl), 'poll1')
        for f in dma_wo_ops(p, vm, 3): f()
        vm.wait('poll1')
        p('v_cmp_ne_u32 vcc, v28, v%d' % vT)
        p('s_mov_b32 s%d, 1' % s_fast)
        p('s_cbranch_vccz L_fl%s_ok' % L)
        p('s_mov_b32 s%d, 0' % s_fast)
        p('buffer_load_dword v28, v15, s[%d:%d], s%d offen sc1' % (sWS, sWS + 3, s_fl))
        p('s_waitcnt vmcnt(0)')
        p('s_barrier')
        p('v_cmp_ne_u32 vcc, v28, v%d' % vT)
        p('s_cbranch_vccz L_fl%s_ok' % L)
        p.label('L_fl%s' % L)
        p('buffer_load_dword v28, v15, s[%d:%d], s%d offen sc1' % (sWS, sWS + 3, s_fl))
        p('s_waitcnt vmcnt(0)')
        p('v_cmp_ne_u32 vcc, v28, v%d' % vT)
        spin_tail(p, 'fl%s' % L)
    else:
        p.label('L_fl%s' % L)
        vm.op('buffer_load_dword v28, v15, s[%d:%d], s%d offen sc1' % (sWS, sWS + 3, s_fl))
        vm.wait_all()
        p('v_cmp_ne_u32 vcc, v28, v%d' % vT)
        spin_tail(p, 'fl%s' % L)
    if cfg.fine == 4:
        stamp(p, 44)
        p('v_writelane_b32 v255, s%d, 45' % s_spin)
    if not cfg.wosched and not cfg.earlyb4 and not cfg.wo2p2 and not cfg.p3e: p('s_barrier')
    stamp(p, 15)
    def oload(h):
        g, q = h >> 2, h & 3
        if q == 0:
            p('s_add_u32 s%d, s%d, %d' % (s_t2, s_rc, g)); p('s_and_b32 s%d, s%d, 7' % (s_t2, s_t2))
            p('s_add_u32 s%d, s%d, s%d' % (s_t2, s_t2, s_r4)); p('s_and_b32 s%d, s%d, 7' % (s_t2, s_t2)); p('s_lshl_b32 s%d, s%d, %d' % (s_t2, s_t2, 18 if cfg.oalias else 12))
            p('s_add_u32 s%d, s%d, s%d' % (s_t1, s_oa, s_t2))
        if cfg.oalias:
            if q == 1: p('s_xor_b32 s%d, s%d, 1024' % (s_t2, s_t1))
            if q == 2: p('s_add_u32 s%d, s%d, 131072' % (s_t1, s_t1))
            if q == 3: p('s_add_u32 s%d, s%d, 131072' % (s_t2, s_t2))
            vm.op('buffer_load_dwordx4 %s, v16, s[%d:%d], s%d offen sc1' % (ar(4 * h, 4), sWS, sWS + 3, s_t1 if q % 2 == 0 else s_t2), 'o%d' % h)
        else:
            vm.op('buffer_load_dwordx4 %s, v16, s[%d:%d], s%d offen offset:%d sc1' % (ar(4 * h, 4), sWS, sWS + 3, s_t1, q * 1024), 'o%d' % h)
    LA = cfg.ola
    for h in range(LA): oload(h)
    if cfg.p3e:
        p('s_cmp_eq_u32 s%d, 1' % s_fast); p('s_cbranch_scc0 L_nb%s' % L)
        p('s_waitcnt vmcnt(%d)' % LA)
        p('s_barrier')
        p.label('L_nb%s' % L)
    def gaddr(g):
        d = vOG + 2 * (g & 1)
        return ['s_add_u32 s%d, s%d, %d' % (s_t0, s_rc, g), 's_and_b32 s%d, s%d, 7' % (s_t0, s_t0), 's_lshl_b32 s%d, s%d, 13' % (s_t0, s_t0),
                'v_add_u32 v%d, s%d, v%d' % (d, s_t0, vOA), 'v_add_u32 v%d, s%d, v%d' % (d + 1, s_t0, vOA + 1)]
    def reads(h):
        wf = vWF + 8 * (h % 3); g = h >> 2
        pre = gaddr(g) if (h & 3) == 0 else []
        return pre + ['ds_read_b64_tr_b16 v[%d:%d], v%d offset:%d' % (wf + 4 * ct + 2 * rd, wf + 4 * ct + 2 * rd + 1, vOG + 2 * (g & 1) + ct, (h & 3) * 2048 + rd * 1024) for ct in range(2) for rd in range(2)]
    for h in range(2):
        for o in reads(h): p(o)
    if cfg.fine == 3: stamp(p, 41)
    p('s_mov_b32 s%d, %d' % (s_spin, cfg.spin))
    p('v_cmp_ne_u32 vcc, v%d, v%d' % (GV + 1, vT))
    p('s_cbranch_vccz L_g%s_ok' % L)
    p.label('L_g%s' % L)
    vm2 = VM(p)
    vm2.op('buffer_load_dwordx2 v[%d:%d], v17, s[%d:%d], s%d offen sc1' % (GV, GV + 1, sWS, sWS + 3, s_ga))
    vm2.wait_all()
    p('v_cmp_ne_u32 vcc, v%d, v%d' % (GV + 1, vT))
    spin_tail(p, 'g%s' % L)
    p('v_sub_f32 v%d, 1.0, v%d' % (GV + 1, GV))
    p('s_cmp_eq_u32 s%d, 0' % s_hp)
    p('s_cselect_b64 vcc, 0, -1')
    p('v_cndmask_b32 v%d, v%d, v%d, vcc' % (GV, GV, GV + 1))
    for h in range(32):
        wf = vWF + 8 * (h % 3)
        vm.wait('o%d' % h, ' lgkmcnt(%d)' % (4 if h < 31 else 0))
        if cfg.fine == 3 and h in (0, 8, 16, 24): stamp(p, 42 + h // 8)
        R = reads(h + 2) if h + 2 < 32 else []
        for ct in range(2):
            c = '0' if h == 0 else vr(OACC[ct], 16)
            p('%s %s, %s, %s, %s' % (MF, vr(OACC[ct], 16), vr(wf + 4 * ct, 4), ar(4 * h, 4), c))
            k = len(R) - 2
            for o in (R[:k] if ct == 0 else R[k:]): p(o)
            if ct == 0 and h + LA < 32: oload(h + LA)
    stamp(p, 16)
    for ct in range(2):
        for q in range(4):
            for i in range(2 * q, 2 * q + 2):
                p('v_pk_mul_f32 v[%d:%d], v[%d:%d], v[%d:%d] op_sel_hi:[1,0]' % (OACC[ct] + 2 * i, OACC[ct] + 2 * i + 1, OACC[ct] + 2 * i, OACC[ct] + 2 * i + 1, GV, GV + 1))
            p('ds_write_b128 v%d, %s offset:%d' % (vEW + q, vr(OACC[ct] + 4 * q, 4), 128 * ct))
    p('s_waitcnt lgkmcnt(0)')
    stamp(p, 17)
    p('s_barrier')
    RD = 168
    for a in range(2):
        for brr in range(2):
            for x in range(2):
                p('ds_read_b128 %s, v%d offset:%d' % (vr(RD + 16 * a + 8 * brr + 4 * x, 4), vER + x, a * 2048 + brr * 16384))
    for a in range(2):
        p('s_waitcnt lgkmcnt(%d)' % (4 if a == 0 else 0))
        r = RD + 16 * a
        for i in range(4): p('v_pk_add_f32 v[%d:%d], v[%d:%d], v[%d:%d]' % (r + 2 * i, r + 2 * i + 1, r + 2 * i, r + 2 * i + 1, r + 8 + 2 * i, r + 8 + 2 * i + 1))
        for i in range(4): cvt(p, r + 8 + i, r + 2 * i, r + 2 * i + 1)
        vm.op('buffer_store_dwordx4 %s, v14, s[%d:%d], s%d offen %s' % (vr(r + 8, 4), sOUT, sOUT + 3, s_out0 if a == 0 else s_out1, cfg.outfl))
    p('s_cmp_eq_u32 s%d, 0' % s_b); p('s_cbranch_scc0 L_noep%s' % L)
    p('s_cmp_eq_u32 s%d, 0' % s_w); p('s_cbranch_scc0 L_noep%s' % L)
    p('v_mov_b32 v27, 0'); p('s_mov_b64 exec, 1')
    vm.op('buffer_store_dword v%d, v27, s[%d:%d], 0 offen sc1' % (vT, sWS, sWS + 3))
    p('s_mov_b64 exec, -1')
    p.label('L_noep%s' % L)

def rstamp(p, idx):
    if not cfg.stamps: return
    p('s_memrealtime s[%d:%d]' % (s_stamp, s_stamp + 1))
    p('s_waitcnt lgkmcnt(0)')
    p('v_writelane_b32 v255, s%d, %d' % (s_stamp, idx))

def write_stamps(p, vm):
    if not cfg.stamps: return
    rstamp(p, 12)
    if cfg.stamps == 2:
        L = 'x%d' % len(p.ins)
        p('s_load_dwordx2 s[4:5], s[0:1], 72'); p('s_waitcnt lgkmcnt(0)')
        p('s_mov_b32 s%d, s4' % sDBG); p('s_and_b32 s%d, s5, 0xffff' % (sDBG + 1)); p('s_mov_b32 s%d, 256' % (sDBG + 2)); p('s_mov_b32 s%d, 0x00020000' % (sDBG + 3))
        p('s_cmp_eq_u32 s%d, 0' % s_w); p('s_cbranch_scc0 L_ds2' + L)
        p('v_lshlrev_b32 v27, 2, v%d' % v_lane)
        p('s_cmp_eq_u32 s%d, 8' % s_b); p('s_cbranch_scc0 L_ds1' + L)
        p('s_mov_b64 exec, 0x1fff')
        vm.op('buffer_store_dword v255, v27, s[%d:%d], 0 offen' % (sDBG, sDBG + 3))
        p('s_mov_b64 exec, -1')
        p.label('L_ds1' + L)
        p('s_cmp_eq_u32 s%d, 255' % s_b); p('s_cbranch_scc0 L_ds2' + L)
        p('s_mov_b64 exec, 0x1800')
        vm.op('buffer_store_dword v255, v27, s[%d:%d], 0 offen offset:8' % (sDBG, sDBG + 3))
        p('s_mov_b64 exec, -1')
        p.label('L_ds2' + L)
        return
    p('s_lshl_b32 s%d, s%d, 2' % (s_t0, s_b)); p('s_add_u32 s%d, s%d, s%d' % (s_t0, s_t0, s_w)); p('s_lshl_b32 s%d, s%d, 8' % (s_t0, s_t0)); p('s_add_u32 s%d, s%d, %d' % (s_t0, s_t0, WS_STAMP))
    p('v_lshlrev_b32 v27, 2, v%d' % v_lane)
    vm.op('buffer_store_dword v255, v27, s[%d:%d], s%d offen' % (sDBG, sDBG + 3, s_t0))

def body(p, vm, br, dco, dwq):
    extra = {m: [] for m in range(8)}
    for m in range(6): extra[m] = dco(m + 2)
    if br == 0: extra[4] = extra[4] + gate_load_ops(p, vm)
    extra[6] = dwq(0)
    extra[7] = dwq(1)
    if cfg.poison == 1: poison_ops(p, vm, br)()
    if cfg.poison == 2: extra[7] = extra[7] + [poison_ops(p, vm, br)]
    if cfg.poison == 4: extra[3] = extra[3] + [poison_ops(p, vm, br)]
    pass1(p, vm, br, dco, dwq, extra)
    p('s_barrier')
    if cfg.poison == 3: poison_ops(p, vm, br)()
    stamp(p, 2)
    if cfg.debug == 1: dump_regs(p, vm, vK[0], 64, 0)
    make_tag(p, vm)
    if cfg.lwarm:
        p('s_lshl_b32 s%d, s%d, 1' % (s_t0, s_i)); p('s_add_u32 s%d, s%d, s%d' % (s_t0, s_t0, s_th)); p('s_lshl_b32 s%d, s%d, 5' % (s_t0, s_t0))
        p('s_lshl_b32 s%d, s%d, 1' % (s_t1, s_jj)); p('s_add_u32 s%d, s%d, s%d' % (s_t0, s_t0, s_t1)); p('s_add_u32 s%d, s%d, s%d' % (s_t0, s_t0, s_hp))
        p('s_add_u32 s%d, s%d, %d' % (s_t0, s_t0, 16 * br)); p('s_lshl_b32 s%d, s%d, 7' % (s_t0, s_t0)); p('s_add_u32 s%d, s%d, %d' % (s_t0, s_t0, WS_FLAG))
        p('s_lshl_b32 s%d, s%d, 2' % (s_t1, s_jj)); p('s_add_u32 s%d, s%d, s%d' % (s_t1, s_t1, s_w)); p('s_add_u32 s%d, s%d, %d' % (s_t1, s_t1, 32 * br))
        p('s_lshl_b32 s%d, s%d, 11' % (s_t1, s_t1)); p('s_lshl_b32 s%d, s%d, 7' % (s_t2, s_i)); p('s_add_u32 s%d, s%d, s%d' % (s_t1, s_t1, s_t2)); p('s_add_u32 s%d, s%d, %d' % (s_t1, s_t1, WS_OUTK + 12))
        p('v_not_b32 v28, v%d' % vT); p('v_mov_b32 v27, 0')
        p('s_mov_b64 exec, 1')
        vm.op('buffer_store_dword v28, v27, s[%d:%d], s%d offen sc1' % (sWS, sWS + 3, s_t0))
        vm.op('buffer_store_dword v28, v27, s[%d:%d], s%d offen sc1' % (sWS, sWS + 3, s_t1))
        p('s_mov_b64 exec, -1')
    side = dma_wo_ops(p, vm, 0)
    if cfg.wosched: side = side + dma_wo_ops(p, vm, 2)
    if br == 1:
        feat_k_B(p, vm, side)
        stamp(p, 3)
    else:
        gate_finish(p, vm)
        feat_k_A(p, side)
        stamp(p, 3)
        exchange(p, vm, br)
    if cfg.debug == 2: dump_regs(p, vm, ST, 32, 0)
    stamp(p, 4)
    sched = {}
    sched[('bar', 1)] = True
    st = hop1_store_ops(p, vm, br)
    for k, f in enumerate(st): sched.setdefault(k, []).append(f)
    for k, f in enumerate(dma_wo_ops(p, vm, 1)): sched.setdefault(cfg.wo1step + k, []).append(f)
    if cfg.wo2p2:
        for k, f in enumerate(dma_wo_ops(p, vm, 2)): sched.setdefault(cfg.wo1step + 8 + k, []).append(f)
    hl = hop1_load_ops(p, vm, br)
    for k, f in enumerate(hl): sched.setdefault(min(31, cfg.h1step + k), []).append(f)
    if cfg.owarm:
        ow = o_warm_ops(p, vm)
        def allw():
            for f in ow: f()
        sched.setdefault(cfg.owarm, []).append(allw)
    if cfg.h1red:
        def hook():
            hop1_reduce(p, vm, br)
            stamp(p, 6)
        sched[('hook', cfg.h1red)] = hook
    pass2(p, vm, sched)
    stamp(p, 5)
    if cfg.debug == 1:
        p('s_nop 15'); dump_regs(p, vm, vQ[0], 32, 1)
    if not cfg.h1red:
        hop1_reduce(p, vm, br)
        stamp(p, 6)
    late = hop2_load_ops(p, vm, br)
    if cfg.wo2p2 or cfg.wosched:
        p('s_barrier')
        side = dma_wo_ops(p, vm, 3)
    else:
        side = dma_wo_ops(p, vm, 2)
    if br == 1: feat_q_B(p, side, late)
    else: feat_q_A(p, side, late)
    stamp(p, 7)
    hop2_gather(p, vm, br)
    stamp(p, 8)
    if cfg.debug == 2: dump_regs(p, vm, KVA, 16, 1)
    o_phase(p, vm, br)
    if cfg.fine == 4: stamp(p, 41)
    if cfg.wosched or cfg.wo2p2:
        vm.wait('wo3')
        p('s_barrier')
    elif not cfg.wo2p2:
        p('s_barrier')
    p3_setup(p)
    p3_scalars(p)
    o_flag(p, vm)
    if cfg.fine == 4: stamp(p, 43)
    if not cfg.wo2p2 and not cfg.wosched and not cfg.p3e:
        for f in dma_wo_ops(p, vm, 3): f()
        if cfg.earlyb4:
            vm.wait('wo3')
            p('s_barrier')
    stamp(p, 9)
    p3(p, vm, br)
    stamp(p, 10)
    write_stamps(p, vm)
    p('s_endpgm')

if __name__ == '__main__':
    import argparse
    ap = argparse.ArgumentParser()
    ap.add_argument('-o', default='k.s'); ap.add_argument('--debug', type=int, default=0); ap.add_argument('--rot', type=int, default=1)
    ap.add_argument('--maprow', type=int, default=1); ap.add_argument('--fine', type=int, default=0); ap.add_argument('--oalias', type=int, default=1); ap.add_argument('--lwarm', type=int, default=0); ap.add_argument('--poison', type=int, default=0); ap.add_argument('--p3e', type=int, default=0); ap.add_argument('--h1red', type=int, default=0); ap.add_argument('--mfexp', type=int, default=1); ap.add_argument('--outfl', default=''); ap.add_argument('--wosched', type=int, default=0); ap.add_argument('--earlyb4', type=int, default=1); ap.add_argument('--wsoff', type=lambda x: int(x,0), default=0); ap.add_argument('--owarm', type=int, default=0); ap.add_argument('--owarmfl', default=''); ap.add_argument('--wo2p2', type=int, default=0); ap.add_argument('--nowo', type=int, default=0); ap.add_argument('--codepf', type=int, default=1); ap.add_argument('--ola', type=int, default=12); ap.add_argument('--wo1step', type=int, default=4); ap.add_argument('--korder', type=int, default=1); ap.add_argument('--pro3', type=int, default=0); ap.add_argument('--worot', type=int, default=1); ap.add_argument('--orot', type=int, default=1); ap.add_argument('--pretouch', type=int, default=1); ap.add_argument('--h1step', type=int, default=19); ap.add_argument('--h2lead', type=int, default=130); ap.add_argument('--stamps', type=int, default=0)
    a = ap.parse_args()
    cfg.debug = a.debug; cfg.rot = a.rot; cfg.maprow = a.maprow; cfg.h1step = a.h1step; cfg.fine = a.fine; cfg.oalias = a.oalias; cfg.lwarm = a.lwarm; cfg.poison = a.poison; cfg.p3e = a.p3e; cfg.h1red = a.h1red; cfg.mfexp = a.mfexp; cfg.outfl = a.outfl; cfg.wosched = a.wosched; cfg.earlyb4 = a.earlyb4; cfg.wsoff = a.wsoff; cfg.owarm = a.owarm; cfg.owarmfl = a.owarmfl; cfg.wo2p2 = a.wo2p2; cfg.nowo = a.nowo; cfg.codepf = a.codepf; cfg.ola = a.ola; cfg.wo1step = a.wo1step; cfg.korder = a.korder; cfg.pro3 = a.pro3; cfg.worot = a.worot; cfg.orot = a.orot; cfg.pretouch = a.pretouch; cfg.h2lead = a.h2lead; cfg.stamps = a.stamps
    open(a.o, 'w').write(build())
```

```python
import sys, os
sys.path.insert(0, os.path.dirname(os.path.abspath(__file__)))
from asmdsl import *

KNAME = "gated_mix__linear_attn_block__linear_kernel_hedgehog__prompt_kernel"

class Cfg:
    debug = 0
    rot = 1
    maprow = 1
    spin = 1 << 20
    fine = 0
    olb = 14
    two = 1
    ola2 = 10
    pbstep = 8
    oalias = 1
    lwarm = 0
    poison = 0
    p3e = 0
    h1red = 0
    mfexp = 0
    outfl = ''
    wosched = 0
    earlyb4 = 1
    wsoff = 0
    owarm = 0
    owarmfl = ''
    wo2p2 = 0
    nowo = 0
    codepf = 1
    ola = 8
    wo1step = 6
    korder = 1
    pro3 = 0
    worot = 1
    orot = 1
    pretouch = 1
    h1step = 22
    h2lead = 70
    stamps = 0
cfg = Cfg()

WS_EPOCH = 0x0
WS_G     = 0x1000
WS_FLAG  = 0x20000
WS_OUTK  = 0x100000
WS_OUTZ  = 0x140000
WS_O     = 0x200000
WS_INB   = 0x800000
WS_SIZE  = 0x1000000
WS_DBG   = 0x1000000
WS_STAMP = 0x7000000

sX, sW, sWOA, sWOB, sWS, sOUT, sMISC, sDBG = 8, 12, 16, 20, 24, 28, 32, 36
s_w, s_th, s_hp, s_i, s_jj, s_rot, s_T = 40, 41, 42, 43, 44, 45, 46
s_xbase, s_wbase, s_m0x, s_m0w, s_ox, s_ow, s_t0, s_t1, s_t2, s_t3 = 47, 48, 49, 50, 51, 52, 53, 54, 55, 56
s_tb, s_cb, s_head, s_qbase, s_m0q = 57, 58, 59, 60, 61
s_mask16 = 62
s_log2e = 84
s_eps = 86
s_spin = 88
s_ht = 89
s_stamp = 90
s_b = 92
s_exec = 94
s_wobase, s_m0o = 96, 97
s_qadj, s_q0 = 4, 5
s_t2x, s_t3x = 98, 99
s_r = 6
s_fast = 89
s_odd = 94
KA = 64

v_lane = 1
vXA = 2
vWA = 14
vDX = 17
vDQ = 21
vONES = 25
vT = 26
vtmp = 27
vK = [32, 48]; vV = [64, 80]; vQ = [96, 112]
vWF = 128
vWP = 152
vSEL = 160
vTMP = 168

SLOT = 32768
def slot_set(s): return s // 2
def slot_imm(s): return (s % 2) * SLOT

class VM:
    def __init__(self, p): self.p = p; self.n = 0; self.marks = {}; self.done = 0
    def op(self, text, mark=None):
        self.p(text); self.n += 1
        if mark: self.marks[mark] = self.n
    def mark(self, name): self.marks[name] = self.n
    def wait(self, name, extra=''):
        if self.marks[name] <= self.done:
            if extra: self.p('s_waitcnt' + extra)
            return
        k = self.n - self.marks[name]
        assert 0 <= k <= 63, (name, k)
        self.p('s_waitcnt vmcnt(%d)%s' % (k, extra))
        self.done = self.marks[name]
    def wait_all(self):
        self.p('s_waitcnt vmcnt(0)'); self.done = self.n

def stamp(p, idx):
    if not cfg.stamps: return
    p('s_memtime s[%d:%d]' % (s_stamp, s_stamp + 1))
    p('s_waitcnt lgkmcnt(0)')
    p('v_writelane_b32 v255, s%d, %d' % (s_stamp, idx))


def korder(n): return (2 * (n & 3) + (n >> 2)) if cfg.korder else n

def srd(p, d, ptr, size):
    p('s_mov_b32 s%d, s%d' % (d, ptr)); p('s_and_b32 s%d, s%d, 0xffff' % (d + 1, ptr + 1))
    p('s_mov_b32 s%d, 0x%x' % (d + 2, size)); p('s_mov_b32 s%d, 0x00020000' % (d + 3))

SOFF = 64
WPT = 168
GX, GW = 168, 184

def gen_path(br):
    p = Prog(); vm = VM(p)
    L = 'A' if br == 0 else 'B'
    p.label('L_path' + L)
    if cfg.stamps: p('v_mov_b32 v255, 0')
    stamp(p, 0)
    rstamp(p, 11)
    p('v_lshrrev_b32 v27, 6, v0')
    p('v_and_b32 v%d, 63, v0' % v_lane)
    p('v_readfirstlane_b32 s%d, v27' % s_w)
    p('v_lshrrev_b32 v27, 3, v%d' % v_lane)
    p('v_and_b32 v28, 7, v%d' % v_lane)
    p('v_lshrrev_b32 v29, 4, v%d' % v_lane)
    for q in range(2):
        p('v_add_u32 v30, %d, v29' % (4 * (q & 1)))
        p('v_xor_b32 v30, v28, v30')
        p('v_lshlrev_b32 v30, 4, v30')
        p('v_add_u32 v31, %d, v27' % (7 * q))
        p('v_lshl_add_u32 v%d, v31, 10, v30' % (vDX + q))
    p('v_add_u32 v%d, %d, v%d' % (vDX + 2, 14 * 1024, vDX)); p('v_add_u32 v%d, %d, v%d' % (vDX + 3, 14 * 1024, vDX + 1))
    p('v_and_b32 v30, 1, v29'); p('v_lshlrev_b32 v30, 2, v30'); p('v_xor_b32 v30, v28, v30'); p('v_lshlrev_b32 v30, 4, v30')
    p('v_mul_u32_u24 v31, 3072, v27')
    p('v_add_u32 v%d, v30, v31' % vDQ)
    for q in range(1, 4):
        p('v_add_u32 v%d, %d, v%d' % (vDQ + q, 8 * q * 3072 - 1024 * q, vDQ))
    p('s_and_b32 s%d, s%d, 1' % (s_th, s_w))
    p('s_lshr_b32 s%d, s%d, 1' % (s_hp, s_w))
    p('s_lshl_b32 s%d, s%d, 17' % (s_xbase, s_i))
    p('s_lshl_b32 s%d, s%d, 15' % (s_t0, s_w))
    p('s_add_u32 s%d, s%d, s%d' % (s_xbase, s_xbase, s_t0))
    p('s_lshl_b32 s%d, s%d, 7' % (s_qbase, s_jj))
    p('s_mul_i32 s%d, s%d, 98304' % (s_t0, s_th))
    p('s_add_u32 s%d, s%d, s%d' % (s_wbase, s_qbase, s_t0))
    p('s_add_u32 s%d, s%d, 1' % (s_t0, s_hp))
    p('s_lshl_b32 s%d, s%d, 10' % (s_t0, s_t0))
    p('s_add_u32 s%d, s%d, s%d' % (s_wbase, s_wbase, s_t0))
    p('s_lshl_b32 s%d, s%d, 12' % (s_m0x, s_w))
    p('s_lshl_b32 s%d, s%d, 13' % (s_m0w, s_hp))
    p('s_lshl_b32 s%d, s%d, 12' % (s_t0, s_th))
    p('s_add_u32 s%d, s%d, s%d' % (s_m0w, s_m0w, s_t0))
    p('s_add_u32 s%d, s%d, 16384' % (s_m0w, s_m0w))
    p('s_lshl_b32 s%d, s%d, 11' % (s_m0q, s_w))
    p('s_mul_i32 s%d, s%d, 49152' % (s_t0, s_w))
    p('s_add_u32 s%d, s%d, s%d' % (s_t0, s_t0, s_qbase))
    p('s_sub_u32 s%d, s%d, s%d' % (s_qadj, s_wbase, s_t0))

    def chunk_offsets(n, dx, dw):
        p('s_add_u32 s%d, s%d, %d' % (s_t0, s_rot, korder(n))); p('s_and_b32 s%d, s%d, 7' % (s_t0, s_t0))
        p('s_lshl_b32 s%d, s%d, 7' % (s_t1, s_t0)); p('s_add_u32 s%d, s%d, s%d' % (dx, s_xbase, s_t1))
        p('s_mul_i32 s%d, s%d, 196608' % (s_t1, s_t0)); p('s_add_u32 s%d, s%d, s%d' % (dw, s_wbase, s_t1))
    def dma_chunk_ops(n):
        slot = (n % 4) * SLOT
        ox = s_ox if n == 0 else SOFF + 2 * n
        ow = s_ow if n == 0 else SOFF + 2 * n + 1
        ops = []
        def x0():
            p('s_add_u32 m0, s%d, %d' % (s_m0x, slot)); p('s_nop 0')
            vm.op('buffer_load_dwordx4 v%d, s[%d:%d], s%d offen lds' % (vDX, sX, sX + 3, ox))
        ops.append(x0)
        for q in range(1, 4):
            ops.append(lambda q=q: vm.op('buffer_load_dwordx4 v%d, s[%d:%d], s%d offen offset:%d lds' % (vDX + q, sX, sX + 3, ox, q * 1024)))
        def w0():
            p('s_add_u32 m0, s%d, %d' % (s_m0w, slot)); p('s_nop 0')
            vm.op('buffer_load_dwordx4 v%d, s[%d:%d], s%d offen lds' % (vDQ, sW, sW + 3, ow))
        ops.append(w0)
        for q in range(1, 4):
            ops.append(lambda q=q: vm.op('buffer_load_dwordx4 v%d, s[%d:%d], s%d offen offset:%d lds' % (vDQ + q, sW, sW + 3, ow, q * 1024), 'c%d' % n if q == 3 else None))
        return ops
    def dma_wq_ops(hf):
        ops = []
        for c in range(4 * hf, 4 * hf + 4):
            def m(c=c):
                if c == 0: p('s_add_u32 s%d, s%d, 0' % (s_ow, s_q0))
                else: p('s_sub_u32 s%d, s%d, s%d' % (s_ow, SOFF + 2 * c + 1, s_qadj))
                p('s_add_u32 m0, s%d, %d' % (s_m0q, (4 * (c >> 2)) * SLOT + (c & 3) * 8192)); p('s_nop 0')
                vm.op('buffer_load_dwordx4 v%d, s[%d:%d], s%d offen lds' % (vDQ, sW, sW + 3, s_ow))
            ops.append(m)
            ops.append(lambda c=c: vm.op('buffer_load_dwordx4 v%d, s[%d:%d], s%d offen offset:1024 lds' % (vDQ + 1, sW, sW + 3, s_ow), 'wq%d' % hf if (c & 3) == 3 else None))
        return ops

    chunk_offsets(0, s_ox, s_ow)
    p('s_sub_u32 s%d, s%d, s%d' % (s_q0, s_ow, s_qadj))
    p('s_waitcnt lgkmcnt(0)')
    srd(p, sX, KA + 0, 2048 * 1024)
    srd(p, sW, KA + (2 if br == 0 else 8), 512 * 3072)
    stamp(p, 20)
    for f in dma_chunk_ops(0): f()
    if cfg.codepf:
        p('s_getpc_b64 s[%d:%d]' % (s_t2x, s_t2x + 1))
        p.label('L_pc%s' % L)
        p('s_sub_u32 s%d, s%d, L_pc%s-%s' % (s_t2x, s_t2x, L, KNAME)); p('s_subb_u32 s%d, s%d, 0' % (s_t2x + 1, s_t2x + 1))
        p('s_lshr_b32 s%d, s%d, 3' % (s_t0, s_b)); p('s_lshl_b32 s%d, s%d, 2' % (s_t0, s_t0)); p('s_add_u32 s%d, s%d, s%d' % (s_t0, s_t0, s_w)); p('s_lshl_b32 s%d, s%d, 9' % (s_t0, s_t0))
        p('v_lshlrev_b32 v27, 7, v%d' % v_lane); p('v_and_b32 v27, 0x1ff, v27')
        p('v_add_u32 v27, s%d, v27' % s_t0)
        p('v_min_u32 v27, L_end-%s, v27' % KNAME)
        p('v_mov_b32 v29, s%d' % (s_t2x + 1))
        p('v_add_co_u32 v28, vcc, s%d, v27' % s_t2x); p('v_addc_co_u32 v29, vcc, 0, v29, vcc')
        p('s_mov_b64 exec, 15')
        vm.op('global_load_dword v239, v[28:29], off')
        p('s_mov_b64 exec, -1')
    if cfg.wsoff:
        p('s_add_u32 s%d, s%d, 0x%x' % (KA + 18, KA + 18, cfg.wsoff)); p('s_addc_u32 s%d, s%d, 0' % (KA + 19, KA + 19))
    srd(p, sWS, KA + 18, WS_SIZE)
    if br == 0: srd(p, sMISC, KA + 14, 1024)
    else:
        srd(p, sMISC, KA + 10, 32 * 512)
        p('s_lshl_b32 s%d, s%d, 11' % (s_t0, s_jj)); p('s_lshl_b32 s%d, s%d, 10' % (s_t1, s_hp)); p('s_add_u32 s%d, s%d, s%d' % (s_t0, s_t0, s_t1))
        p('s_lshl_b32 s%d, s%d, 10' % (s_t1, s_w)); p('s_add_u32 m0, s%d, %d' % (s_t1, 4 * SLOT))
        p('v_lshlrev_b32 v27, 4, v%d' % v_lane)
        vm.op('buffer_load_dwordx4 v27, s[%d:%d], s%d offen lds' % (sMISC, sMISC + 3, s_t0), 'wphi')
    p('v_mov_b32 v28, 0')
    vm.op('buffer_load_dword v%d, v28, s[%d:%d], 0 offen sc1' % (vT, sWS, sWS + 3), 'epoch')
    srd(p, sWOA, KA + 4, 512 * 1024)
    srd(p, sWOB, KA + 12, 512 * 1024)
    srd(p, sOUT, KA + 16, 2048 * 1024)
    if cfg.debug or cfg.stamps: srd(p, sDBG, KA + 18, 0x8000000)
    for n in range(1, 8): chunk_offsets(n, SOFF + 2 * n, SOFF + 2 * n + 1)
    if cfg.pretouch:
        p('s_lshl_b32 s%d, s%d, 18' % (s_t0, s_jj)); p('s_add_u32 s%d, s%d, %d' % (s_t0, s_t0, WS_INB + br * 0x200000))
        vm.op('buffer_load_dword v232, v28, s[%d:%d], s%d offen' % (sWS, sWS + 3, s_t0))
        p('s_lshl_b32 s%d, s%d, 18' % (s_t0, s_i)); p('s_add_u32 s%d, s%d, %d' % (s_t0, s_t0, WS_O))
        vm.op('buffer_load_dword v233, v28, s[%d:%d], s%d offen' % (sWS, sWS + 3, s_t0))
        p('s_lshl_b32 s%d, s%d, 17' % (s_t0, s_tb)); p('s_add_u32 s%d, s%d, %d' % (s_t0, s_t0, WS_O))
        vm.op('buffer_load_dword v234, v28, s[%d:%d], s%d offen' % (sWS, sWS + 3, s_t0))
        vm.op('buffer_load_dword v235, v28, s[%d:%d], 0 offen' % (sWOA, sWOA + 3))
        vm.op('buffer_load_dword v236, v28, s[%d:%d], 0 offen' % (sWOB, sWOB + 3))
        p('s_lshl_b32 s%d, s%d, 16' % (s_t0, s_tb))
        vm.op('buffer_load_dword v237, v28, s[%d:%d], s%d offen' % (sOUT, sOUT + 3, s_t0))
    wo_setup(p)
    p('v_and_b32 v27, 31, v%d' % v_lane)
    p('v_lshrrev_b32 v28, 5, v%d' % v_lane)
    p('v_lshrrev_b32 v29, 1, v27'); p('v_and_b32 v29, 7, v29'); p('v_xor_b32 v29, v28, v29')
    p('s_lshl_b32 s%d, s%d, 13' % (s_t0, s_th))
    p('v_lshlrev_b32 v30, 7, v27'); p('v_add_u32 v30, s%d, v30' % s_t0)
    for ks in range(4):
        p('v_xor_b32 v31, %d, v29' % (2 * ks)); p('v_lshl_add_u32 v%d, v31, 4, v30' % (vXA + ks))
        p('v_add_u32 v%d, 0x10000, v%d' % (vXA + 4 + ks, vXA + ks))
    p('v_lshrrev_b32 v27, 2, v%d' % v_lane); p('v_and_b32 v27, 3, v27')
    p('v_lshl_add_u32 v29, v28, 3, v27')
    p('v_lshlrev_b32 v29, 7, v29')
    p('v_lshrrev_b32 v30, 1, v27'); p('v_xor_b32 v30, s%d, v30' % s_hp); p('v_lshl_add_u32 v29, v30, 6, v29')
    p('v_lshrrev_b32 v30, 4, v%d' % v_lane); p('v_xor_b32 v30, s%d, v30' % s_th); p('v_and_b32 v30, 1, v30'); p('v_lshl_add_u32 v29, v30, 5, v29')
    p('v_and_b32 v30, 3, v%d' % v_lane); p('v_lshl_add_u32 v%d, v30, 3, v29' % vWA)
    p('v_add_u32 v%d, 0x10000, v%d' % (vWA + 1, vWA)); p('v_add_u32 v%d, 0x20000, v%d' % (vWA + 2, vWA))
    p('v_mov_b32 v%d, 0x3f803f80' % vONES)
    p('s_mov_b32 s%d, 0xffff0000' % s_mask16); p('s_mov_b32 s%d, 0xffff0000' % (s_mask16 + 1))
    p('s_mov_b32 s%d, 0x3fb8aa3b' % s_log2e); p('s_mov_b32 s%d, 0x3fb8aa3b' % (s_log2e + 1))
    p('s_mov_b32 s%d, 0x358637bd' % s_eps); p('s_mov_b32 s%d, 0x358637bd' % (s_eps + 1))
    if br == 1:
        p('v_and_b32 v27, 31, v%d' % v_lane)
        p('v_lshrrev_b32 v28, 5, v%d' % v_lane)
        p('v_bfe_u32 v29, v27, 2, 1')
        p('v_cmp_eq_u32 vcc, v28, v29')
        p('v_bfe_u32 v29, v27, 3, 1'); p('v_and_b32 v30, 3, v27'); p('v_lshl_add_u32 v29, v29, 2, v30')
        p('v_and_b32 v30, 1, v29'); p('v_lshlrev_b32 v30, 4, v30'); p('v_mov_b32 v31, 0x3f80'); p('v_lshlrev_b32 v30, v30, v31')
        p('v_cndmask_b32 v30, 0, v30, vcc')
        p('v_lshrrev_b32 v29, 1, v29')
        p('v_bfe_u32 v28, v27, 4, 1')
        p('v_lshl_add_u32 v29, v28, 2, v29')
        for q in range(8):
            p('v_cmp_eq_u32 vcc, %d, v29' % q)
            p('v_cndmask_b32 v%d, 0, v30, vcc' % (vSEL + q))
    p('s_mov_b32 s%d, 0xaaaaaaaa' % s_odd); p('s_mov_b32 s%d, 0xaaaaaaaa' % (s_odd + 1))
    if br == 1:
        p('v_lshrrev_b32 v27, 5, v%d' % v_lane); p('v_lshlrev_b32 v27, 2, v27')
        p('v_bfe_u32 v28, v%d, 2, 2' % v_lane); p('v_add_u32 v27, v27, v28'); p('v_lshlrev_b32 v27, 5, v27')
        p('v_bfe_u32 v28, v%d, 1, 1' % v_lane); p('v_lshl_add_u32 v27, v28, 3, v27')
        p('v_bfe_u32 v28, v%d, 4, 1' % v_lane); p('v_lshl_add_u32 v27, v28, 4, v27')
        p('s_lshl_b32 s%d, s%d, 10' % (s_t0, s_w)); p('s_add_u32 s%d, s%d, %d' % (s_t0, s_t0, 4 * SLOT))
        p('s_lshl_b32 s%d, s%d, 9' % (s_t1, s_th)); p('s_add_u32 s%d, s%d, s%d' % (s_t0, s_t0, s_t1))
        p('v_add_u32 v27, s%d, v27' % s_t0); p('v_xor_b32 v29, 512, v27')
        p('v_bfe_u32 v28, v%d, 2, 1' % v_lane); p('v_lshlrev_b32 v28, 31, v28'); p('v_lshrrev_b32 v30, 16, v28'); p('v_or_b32 v28, v28, v30')
    stamp(p, 21)
    for f in dma_chunk_ops(1): f()
    if br == 1:
        vm.wait('wphi')
        for u in range(2):
            for rd in range(2):
                p('ds_read_b64_tr_b16 v[%d:%d], v%d offset:%d' % (vWP + 4 * u + 2 * rd, vWP + 4 * u + 2 * rd + 1, 27 if u == 0 else 29, rd * 8 * 32))
        p('s_waitcnt lgkmcnt(0)')
        for q in range(8): p('v_xor_b32 v%d, v%d, v28' % (vWP + q, vWP + q))
    return p, vm, dma_chunk_ops, dma_wq_ops

def make_tag(p, vm):
    vm.wait('epoch')
    p('v_readfirstlane_b32 s%d, v%d' % (s_T, vT))
    p('s_mul_i32 s%d, s%d, 0x9e3779b1' % (s_T, s_T)); p('s_add_u32 s%d, s%d, 0x7f4a7c15' % (s_T, s_T))
    p('v_mov_b32 v%d, s%d' % (vT, s_T))

def emit(p, item):
    if callable(item): item()
    else: p(item)

def merge(p, main, side, every, start=0):
    side = list(side); k = 0
    for idx, m in enumerate(main):
        emit(p, m)
        if idx >= start and (idx - start) % every == every - 1 and side:
            emit(p, side.pop(0))
    for x in side: emit(p, x)

class Rec:
    def __init__(self): self.l = []
    def __call__(self, t, tag=None):
        for line in t.split('\n'):
            if line.strip(): self.l.append(line.strip())

def xf(s, blk): return ar((s * 2 + blk) * 4, 4)

def pass1(p, vm, br, dma_chunk_ops, dma_wq_ops, extra_ops):
    def reads(s):
        c, ks = s >> 2, s & 3; slot = c % 4; st = slot_set(slot); im = slot_imm(slot); buf = s % 3
        ops = []
        wf = vWF + 8 * buf
        for part in range(2):
            for rd in range(2):
                ops.append('ds_read_b64_tr_b16 v[%d:%d], v%d offset:%d' % (wf + 4 * part + 2 * rd, wf + 4 * part + 2 * rd + 1, vWA + st, im + 16384 + part * 8192 + (16 * ks + 4 * rd) * 128))
        for blk in range(2):
            ops.append('ds_read_b128 %s, v%d offset:%d' % (xf(s, blk), vXA + st * 4 + ks, im + blk * 4096))
        return ops
    def mfmas(s):
        wf = vWF + 8 * (s % 3); ops = []
        for blk in range(2):
            c = '0' if s == 0 else vr(vK[blk], 16)
            if br == 1: ops.append('v_mfma_f32_32x32x16_bf16 %s, %s, %s, %s' % (vr(vK[blk], 16), vr(wf, 4), xf(s, blk), c))
            else:       ops.append('v_mfma_f32_32x32x16_bf16 %s, %s, %s, %s' % (vr(vK[blk], 16), xf(s, blk), vr(wf, 4), c))
            c = '0' if s == 0 else vr(vV[blk], 16)
            ops.append('v_mfma_f32_32x32x16_bf16 %s, %s, %s, %s' % (vr(vV[blk], 16), xf(s, blk), vr(wf + 4, 4), c))
        return ops
    pend = []
    vm.wait('c0'); p('s_barrier')
    stamp(p, 1)
    pend += extra_ops[0]
    for o in reads(0): p(o)
    for o in reads(1): p(o)
    for s in range(32):
        nxt = s + 2
        p('s_waitcnt lgkmcnt(%d)' % (6 if s < 31 else 0))
        M = mfmas(s)
        R = reads(nxt) if nxt < 32 else []
        p(M[0])
        if nxt < 32 and nxt % 4 == 0:
            m = nxt // 4
            vm.wait('c%d' % m); p('s_barrier')
            if cfg.stamps == 1 and cfg.fine: stamp(p, 30 + m)
            pend += extra_ops[m]
        def take(n):
            for _ in range(n):
                if pend: pend.pop(0)()
        for k in range(4):
            if k > 0: p(M[k])
            for o in R[(k * 6) // 4:((k + 1) * 6) // 4]: p(o)
            if k % 2 == 1 or len(pend) > 8: take(1)
    while pend: pend.pop(0)()

def pass2(p, vm, sched):
    RA = 3
    def reads(s):
        c, ks = s >> 2, s & 3; slot = 4 * (c >> 2); st = slot_set(slot); im = slot_imm(slot); wf = vWF + 4 * (s % 4)
        return ['ds_read_b64_tr_b16 v[%d:%d], v%d offset:%d' % (wf + 2 * rd, wf + 2 * rd + 1, vWA + st, im + (c & 3) * 8192 + (16 * ks + 4 * rd) * 128) for rd in range(2)]
    for s in range(RA):
        for o in reads(s): p(o)
    for s in range(32):
        out = min(RA - 1, 31 - s)
        p('s_waitcnt lgkmcnt(%d)' % (2 * out))
        wf = vWF + 4 * (s % 4)
        if ('bar', s) in sched: p('s_barrier')
        if ('hook', s) in sched: sched[('hook', s)]()
        if cfg.fine == 2 and s % 4 == 0 and s > 0:
            stamp(p, 40 + s // 4);
        items = list(sched.get(s, []))
        h = (len(items) + 1) // 2
        for blk in range(2):
            c = '0' if s == 0 else vr(vQ[blk], 16)
            p('v_mfma_f32_32x32x16_bf16 %s, %s, %s, %s' % (vr(vQ[blk], 16), vr(wf, 4), xf(s, blk), c))
            if blk == 0 and s + RA < 32:
                for o in reads(s + RA): p(o)
            for it in (items[:h] if blk == 0 else items[h:]): emit(p, it)

def dump_regs(p, vm, base_reg, n, slot_index):
    p('s_lshl_b32 s%d, s%d, 2' % (s_t0, s_b)); p('s_add_u32 s%d, s%d, s%d' % (s_t0, s_t0, s_w))
    p('s_mul_i32 s%d, s%d, %d' % (s_t0, s_t0, n * 256)); p('s_add_u32 s%d, s%d, %d' % (s_t0, s_t0, WS_DBG + slot_index * 0x1000000))
    p('v_lshlrev_b32 v27, 4, v%d' % v_lane)
    for r in range(0, n, 4):
        vm.op('buffer_store_dwordx4 %s, v27, s[%d:%d], s%d offen' % (vr(base_reg + r, 4), sDBG, sDBG + 3, s_t0))
        p('s_add_u32 s%d, s%d, 1024' % (s_t0, s_t0))
    vm.wait_all()

def build():
    top = Prog()
    top('s_cmp_ge_u32 s2, 256')
    top('s_cbranch_scc1 L_end')
    top('s_load_dwordx16 s[64:79], s[0:1], 0')
    top('s_load_dwordx2 s[80:81], s[0:1], 64')
    top('s_load_dwordx2 s[82:83], s[0:1], 80')
    top('s_mov_b32 s%d, s2' % s_b)
    top('s_and_b32 s%d, s2, 7' % s_t0)
    top('s_lshr_b32 s%d, s2, 3' % s_t1)
    if cfg.maprow == 0:
        top('s_mov_b32 s%d, s%d' % (s_jj, s_t0))
        top('s_lshr_b32 s%d, s%d, 1' % (s_i, s_t1))
        top('s_and_b32 s%d, s%d, 1' % (s_t2, s_t1))
        top('s_lshl_b32 s%d, s%d, 2' % (s_rot, s_t2)); top('s_add_u32 s%d, s%d, s%d' % (s_rot, s_rot, s_i)); top('s_and_b32 s%d, s%d, 7' % (s_rot, s_rot))
    else:
        top('s_and_b32 s%d, s%d, 1' % (s_i, s_t0)); top('s_lshl_b32 s%d, s%d, 3' % (s_i, s_i)); top('s_and_b32 s%d, s%d, 7' % (s_t2, s_t1)); top('s_add_u32 s%d, s%d, s%d' % (s_i, s_i, s_t2))
        top('s_lshr_b32 s%d, s%d, 1' % (s_t3, s_t0)); top('s_lshl_b32 s%d, s%d, 2' % (s_t3, s_t3)); top('s_lshr_b32 s%d, s%d, 3' % (s_t2, s_t1)); top('s_add_u32 s%d, s%d, s%d' % (s_t3, s_t3, s_t2))
        top('s_lshr_b32 s%d, s%d, 1' % (s_jj, s_t3))
        top('s_lshl_b32 s%d, s%d, 1' % (s_rot, s_t3)); top('s_add_u32 s%d, s%d, s%d' % (s_rot, s_rot, s_i)); top('s_and_b32 s%d, s%d, 7' % (s_rot, s_rot))
        top('s_and_b32 s%d, s%d, 1' % (s_t2, s_t3))
    if not cfg.rot: top('s_mov_b32 s%d, 0' % s_rot)
    top('s_lshl_b32 s%d, s%d, 2' % (s_tb, s_t0)); top('s_and_b32 s%d, s%d, 3' % (s_t3, s_t1)); top('s_add_u32 s%d, s%d, s%d' % (s_tb, s_tb, s_t3))
    top('s_lshr_b32 s%d, s%d, 2' % (s_cb, s_t1))
    top('s_cmp_eq_u32 s%d, 0' % s_t2)
    top('s_cbranch_scc0 L_pathB')
    paths = []
    for br in range(2):
        p, vm, dco, dwq = gen_path(br)
        body(p, vm, br, dco, dwq)
        added = p.fix_hazards()
        errs = p.check_waits()
        if errs:
            for e in errs[:20]: print('WAITERR', e, file=sys.stderr)
            raise SystemExit('wait check failed')
        print('path', 'AB'[br], 'instructions:', sum(1 for i in p.ins if i.op), 'nop states added:', added, file=sys.stderr)
        paths.append(p)
    top.fix_hazards()
    hdr = open(os.path.join(os.path.dirname(os.path.abspath(__file__)), 'header.txt')).read()
    s = hdr
    s += '; @launch grid=(256,1,1) block=(256,1,1) lds=163840\n'
    s += '.amdgcn_target "amdgcn-amd-amdhsa--gfx950"\n.text\n.globl %s\n.p2align 8\n.type %s,@function\n%s:\n' % (KNAME, KNAME, KNAME)
    s += top.text()
    for p in paths: s += p.text()
    s += 'L_end:\n    s_endpgm\n'
    s += '.section .rodata,"a"\n.p2align 6\n.amdhsa_kernel %s\n  .amdhsa_next_free_vgpr 512\n  .amdhsa_next_free_sgpr 102\n  .amdhsa_accum_offset 256\n  .amdhsa_group_segment_fixed_size 0\n  .amdhsa_kernarg_size 88\n  .amdhsa_user_sgpr_count 2\n  .amdhsa_user_sgpr_kernarg_segment_ptr 1\n  .amdhsa_system_sgpr_workgroup_id_x 1\n.end_amdhsa_kernel\n' % KNAME
    return s


MF = 'v_mfma_f32_32x32x16_bf16'
vDO = 10
vOA = 2
vEW = 4
vER = 8
vOG = 18
s_rc, s_r4 = 7, 3

def cvt(p, d, a, b): p('v_cvt_pk_bf16_f32 v%d, v%d, v%d' % (d, a, b))

def wo_setup(p):
    p('v_lshrrev_b32 v27, 3, v%d' % v_lane); p('v_and_b32 v28, 7, v%d' % v_lane)
    p('v_bfe_u32 v29, v%d, 4, 1' % v_lane); p('v_lshlrev_b32 v29, 2, v29'); p('v_xor_b32 v28, v28, v29'); p('v_lshlrev_b32 v28, 4, v28')
    p('s_lshl_b32 s%d, s%d, 7' % (s_t0, s_cb)); p('v_add_u32 v28, s%d, v28' % s_t0)
    p('v_lshl_add_u32 v%d, v27, 10, v28' % vDO)
    for q in range(1, 4): p('v_add_u32 v%d, %d, v%d' % (vDO + q, 7 * q * 1024, vDO))
    p('s_lshl_b32 s%d, s%d, 16' % (s_wobase, s_w)); p('s_lshl_b32 s%d, s%d, 13' % (s_m0o, s_w))
    if cfg.worot:
        p('s_and_b32 s%d, s%d, 3' % (s_r, s_tb))
        p('s_lshr_b32 s%d, s%d, 1' % (s_t0, s_r)); p('s_lshl_b32 s%d, s%d, 18' % (s_t0, s_t0)); p('s_add_u32 s%d, s%d, s%d' % (s_wobase, s_wobase, s_t0))
        p('s_bitcmp1_b32 s%d, 0' % s_r)
        p('s_cselect_b32 s%d, s%d, s%d' % (s_t0, sWOB, sWOA)); p('s_cselect_b32 s%d, s%d, s%d' % (s_t1, sWOA, sWOB))
        p('s_cselect_b32 s%d, s%d, s%d' % (s_t2x, sWOB + 1, sWOA + 1)); p('s_cselect_b32 s%d, s%d, s%d' % (s_t3x, sWOA + 1, sWOB + 1))
        p('s_mov_b32 s%d, s%d' % (sWOA, s_t0)); p('s_mov_b32 s%d, s%d' % (sWOB, s_t1)); p('s_mov_b32 s%d, s%d' % (sWOA + 1, s_t2x)); p('s_mov_b32 s%d, s%d' % (sWOB + 1, s_t3x))
    else:
        p('s_mov_b32 s%d, 0' % s_r)

def dma_wo_ops(p, vm, part):
    if cfg.nowo == 1 or (cfg.nowo == 2 and part == 3):
        def f(): vm.mark('wo%d' % part)
        return [f]
    return dma_wo_ops_real(p, vm, part)

def dma_wo_ops_real(p, vm, part):
    srd_ = sWOA if part < 2 else sWOB
    ops = []
    for grp in range(2):
        def m(grp=grp):
            if part & 1: p('s_xor_b32 s%d, s%d, 262144' % (s_ow, s_wobase))
            else: p('s_mov_b32 s%d, s%d' % (s_ow, s_wobase))
            if grp: p('s_add_u32 s%d, s%d, 32768' % (s_ow, s_ow))
            p('s_add_u32 m0, s%d, %d' % (s_m0o, (part + 1) * SLOT + grp * 4096)); p('s_nop 0')
            vm.op('buffer_load_dwordx4 v%d, s[%d:%d], s%d offen lds' % (vDO, srd_, srd_ + 3, s_ow))
        ops.append(m)
        for q in range(1, 4):
            ops.append(lambda q=q, grp=grp: vm.op('buffer_load_dwordx4 v%d, s[%d:%d], s%d offen offset:%d lds' % (vDO + q, srd_, srd_ + 3, s_ow, q * 1024), 'wo%d' % part if (q == 3 and grp == 1) else None))
    return ops

def softmax16(p, P, F, tmp):
    m, S = tmp, tmp + 2
    p('v_max3_f32 v%d, v%d, v%d, v%d' % (m, P, P + 1, P + 2))
    p('v_max3_f32 v%d, v%d, v%d, v%d' % (m + 1, P + 3, P + 4, P + 5))
    p('v_max3_f32 v%d, v%d, v%d, v%d' % (m, m, P + 6, P + 7))
    p('v_max3_f32 v%d, v%d, v%d, v%d' % (m + 1, m + 1, P + 8, P + 9))
    p('v_max3_f32 v%d, v%d, v%d, v%d' % (m, m, P + 10, P + 11))
    p('v_max3_f32 v%d, v%d, v%d, v%d' % (m + 1, m + 1, P + 12, P + 13))
    p('v_max3_f32 v%d, v%d, v%d, v%d' % (m, m, P + 14, P + 15))
    p('v_max_f32 v%d, v%d, v%d' % (m, m, m + 1))
    p('v_mul_f32 v%d, s%d, v%d' % (m, s_log2e, m))
    for i in range(8):
        p('v_pk_fma_f32 v[%d:%d], v[%d:%d], s[%d:%d], v[%d:%d] op_sel_hi:[1,1,0] neg_lo:[0,0,1] neg_hi:[0,0,1]' % (P + 2 * i, P + 2 * i + 1, P + 2 * i, P + 2 * i + 1, s_log2e, s_log2e + 1, m, m + 1))
    for i in range(16): p('v_exp_f32 v%d, v%d' % (P + i, P + i))
    p('v_pk_add_f32 v[%d:%d], v[%d:%d], v[%d:%d]' % (S, S + 1, P, P + 1, P + 2, P + 3))
    p('v_pk_add_f32 v[%d:%d], v[%d:%d], v[%d:%d]' % (m, m + 1, P + 4, P + 5, P + 6, P + 7))
    p('v_pk_add_f32 v[%d:%d], v[%d:%d], v[%d:%d]' % (S, S + 1, S, S + 1, P + 8, P + 9))
    p('v_pk_add_f32 v[%d:%d], v[%d:%d], v[%d:%d]' % (m, m + 1, m, m + 1, P + 10, P + 11))
    p('v_pk_add_f32 v[%d:%d], v[%d:%d], v[%d:%d]' % (S, S + 1, S, S + 1, P + 12, P + 13))
    p('v_pk_add_f32 v[%d:%d], v[%d:%d], v[%d:%d]' % (m, m + 1, m, m + 1, P + 14, P + 15))
    p('v_pk_add_f32 v[%d:%d], v[%d:%d], v[%d:%d]' % (S, S + 1, S, S + 1, m, m + 1))
    p('v_add_f32 v%d, v%d, v%d' % (S, S, S + 1))
    p('v_rcp_f32 v%d, v%d' % (S, S))
    for i in range(8):
        p('v_pk_mul_f32 v[%d:%d], v[%d:%d], v[%d:%d] op_sel_hi:[1,0]' % (P + 2 * i, P + 2 * i + 1, P + 2 * i, P + 2 * i + 1, S, S + 1))
    for i in range(8): cvt(p, F + i, P + 2 * i, P + 2 * i + 1)

def phi_elu(p, T, n, F, tmp):
    for base in range(0, n // 2, 4):
        prs = range(base, min(base + 4, n // 2))
        for k, i in enumerate(prs):
            p('v_pk_mul_f32 v[%d:%d], v[%d:%d], s[%d:%d]' % (tmp + 2 * k, tmp + 2 * k + 1, T + 2 * i, T + 2 * i + 1, s_log2e, s_log2e + 1))
        for k, i in enumerate(prs):
            p('v_exp_f32 v%d, v%d clamp' % (tmp + 2 * k, tmp + 2 * k)); p('v_exp_f32 v%d, v%d clamp' % (tmp + 2 * k + 1, tmp + 2 * k + 1))
        for k, i in enumerate(prs):
            p('v_max_f32 v%d, 0, v%d' % (T + 2 * i, T + 2 * i)); p('v_max_f32 v%d, 0, v%d' % (T + 2 * i + 1, T + 2 * i + 1))
        for k, i in enumerate(prs):
            p('v_pk_add_f32 v[%d:%d], v[%d:%d], v[%d:%d]' % (T + 2 * i, T + 2 * i + 1, T + 2 * i, T + 2 * i + 1, tmp + 2 * k, tmp + 2 * k + 1))
        for k, i in enumerate(prs):
            p('v_pk_add_f32 v[%d:%d], v[%d:%d], s[%d:%d]' % (T + 2 * i, T + 2 * i + 1, T + 2 * i, T + 2 * i + 1, s_eps, s_eps + 1))
        for k, i in enumerate(prs): cvt(p, F + i, T + 2 * i, T + 2 * i + 1)

ACC = [96, 112]
def vprep(p, VB0, VB1):
    for blk in range(2):
        for i in range(8): cvt(p, VB0 + 8 * blk + i, vV[blk] + 2 * i, vV[blk] + 2 * i + 1)
    for blk in range(2):
        for i in range(8): p('v_cndmask_b32_e64 v%d, v%d, v%d, s[%d:%d]' % (VB1 + 8 * blk + i, vONES, VB0 + 8 * blk + i, s_mask16, s_mask16 + 1))
    for blk in range(2):
        for i in range(8): p('v_cndmask_b32_e64 v%d, v%d, v%d, s[%d:%d]' % (VB0 + 8 * blk + i, VB0 + 8 * blk + i, vONES, s_mask16, s_mask16 + 1))

def insert_at(main, ins):
    out = []; ins = sorted(ins, key=lambda x: x[0]); k = 0
    for idx, m in enumerate(main):
        while k < len(ins) and ins[k][0] <= idx: out.append(ins[k][1]); k += 1
        out.append(m)
    out += [x[1] for x in ins[k:]]
    return out

UNITS = [(0, 0), (0, 1), (1, 0), (1, 1)]
ST = 184
UNITS_K = [(0, 1), (1, 1), (0, 0), (1, 0)]
def feat_k_B(p, vm, side):
    KB, PB, G = 168, 184, 128
    VB0, VB1 = 32, 48
    TB = [64, 80]
    VB = [VB0, VB1]
    U = UNITS_K
    r = Rec()
    for un, (blk, u) in enumerate(U):
        for i in range(4): cvt(r, KB + 4 * un + i, vK[blk] + 8 * u + 2 * i, vK[blk] + 8 * u + 2 * i + 1)
    head = list(r.l)
    r = Rec(); vprep(r, VB0, VB1); vp = list(r.l)
    PM = ['%s %s, %s, %s, 0' % (MF, vr(PB + 16 * un, 16), vr(vWP + 4 * u, 4), vr(KB + 4 * un, 4)) for un, (blk, u) in enumerate(U)]
    stream = head[:6] + [PM[0]] + head[6:10] + [PM[1]] + head[10:14] + [PM[2]] + head[14:16] + vp[:4] + [PM[3]] + vp[4:]
    def TA(un): return '%s %s, %s, %s, 0' % (MF, vr(TB[un % 2], 16), vr(KB + 8 * (un % 2), 4), vr(vSEL, 4))
    def TBm(un): return '%s %s, %s, %s, %s' % (MF, vr(TB[un % 2], 16), vr(KB + 8 * (un % 2) + 4, 4), vr(vSEL + 4, 4), vr(TB[un % 2], 16))
    def CV(un):
        q = Rec()
        for i in range(8): cvt(q, G + i, TB[un % 2] + 2 * i, TB[un % 2] + 2 * i + 1)
        return q.l
    def AA(un):
        blk, u = U[un]; c = '0' if blk == 0 else vr(ACC[u], 16)
        return '%s %s, %s, %s, %s' % (MF, vr(ACC[u], 16), vr(G, 4), vr(VB[u] + 8 * blk, 4), c)
    def AB(un):
        blk, u = U[un]
        return '%s %s, %s, %s, %s' % (MF, vr(ACC[u], 16), vr(G + 4, 4), vr(VB[u] + 8 * blk + 4, 4), vr(ACC[u], 16))
    q = Rec(); exchange_addr(q); ad = q.l
    q = Rec(); exchange_scal(q, 1); sc = q.l
    for un in range(4):
        q = Rec(); softmax16(q, PB + 16 * un, KB + 8 * (un % 2), 136); sm = q.l
        ins = []
        if un >= 1:
            if cfg.mfexp:
                ins += [(17, TA(un - 1)), (21, TBm(un - 1))]
                if un >= 2: ins += [(25, AA(un - 2)), (29, AB(un - 2))]
                ins += [(35 + k, c) for k, c in enumerate(CV(un - 1))]
            else:
                ins += [(2, TA(un - 1)), (10, TBm(un - 1))]
                ins += [(34 + k, c) for k, c in enumerate(CV(un - 1))]
                ins += [(46, AA(un - 1)), (54, AB(un - 1))]
        if un == 2: ins += [(12 + k, x) for k, x in enumerate(ad)]
        if un == 3:
            w0 = 46 if cfg.mfexp else 14
            ins += [(w0 + 2 * k, 'ds_write_b128 v%d, %s offset:%d' % (vEXW, vr(ACC[1] + 4 * k, 4), k * 1024)) for k in range(4)]
            ins += [(4 + k, x) for k, x in enumerate(sc)]
        stream += insert_at(sm, ins)
    merge(p, stream, side, 14 if len(side) <= 8 else 12, start=4)
    tags = ['v_mov_b32 v%d, v%d' % (ST + 4 * k + 3, vT) for k in range(4)]
    RC = 216
    p('s_nop 1'); p(TA(3))
    for t in tags: p(t)
    p(TBm(3))
    if cfg.mfexp: p(AA(2)); p(AB(2))
    vm.wait('wq1', ' lgkmcnt(0)')
    stamp(p, 18)
    p('s_barrier')
    stamp(p, 19)
    for q in range(4): p('ds_read_b128 %s, v%d offset:%d' % (vr(RC + 4 * q, 4), vEXR, q * 1024))
    for c in CV(3): p(c)
    p('s_nop 1'); p(AA(3)); p(AB(3))
    exchange_finish(p, 1)

def feat_k_A(p, side):
    PK, VB0, VB1 = 168, 200, 216
    r = Rec()
    for blk in range(2): phi_elu(r, vK[blk], 16, PK + 8 * blk, 184)
    vprep(r, VB0, VB1)
    VB = [VB0, VB1]
    for k in range(2): r('v_mov_b32 v%d, v%d' % (ST + 4 * k + 3, vT))
    exchange_addr(r)
    for blk in range(2):
        for u in range(2):
            c = '0' if blk == 0 else vr(ACC[u], 16)
            r('%s %s, %s, %s, %s' % (MF, vr(ACC[u], 16), vr(PK + 8 * blk, 4), vr(VB[u] + 8 * blk, 4), c))
            r('%s %s, %s, %s, %s' % (MF, vr(ACC[u], 16), vr(PK + 8 * blk + 4, 4), vr(VB[u] + 8 * blk + 4, 4), vr(ACC[u], 16)))
    merge(p, r.l, side, 10 if len(side) <= 8 else 7, start=2)

FQ = 32
def feat_q_B(p, side, late):
    KB, PB = 168, 184
    r = Rec()
    for un, (blk, u) in enumerate(UNITS):
        for i in range(4): cvt(r, KB + 4 * un + i, vQ[blk] + 8 * u + 2 * i, vQ[blk] + 8 * u + 2 * i + 1)
    head = list(r.l)
    PM = ['%s %s, %s, %s, 0' % (MF, vr(PB + 16 * un, 16), vr(vWP + 4 * u, 4), vr(KB + 4 * un, 4)) for un, (blk, u) in enumerate(UNITS)]
    stream = head[:6] + [PM[0]] + head[6:10] + [PM[1]] + head[10:14] + [PM[2]] + head[14:16] + ['s_nop 3', PM[3]]
    for un in range(4):
        q = Rec(); softmax16(q, PB + 16 * un, FQ + 8 * un, 136); stream += q.l
    n = len(stream)
    stream = insert_at(stream, [(n - cfg.h2lead + k, x) for k, x in enumerate(late)])
    merge(p, stream, side, 9, start=2)

def feat_q_A(p, side, late):
    r = Rec()
    for blk in range(2):
        for u in range(2): phi_elu(r, vQ[blk] + 8 * u, 8, FQ + 4 * (2 * blk + u), 184)
    merge(p, r.l, side, 6, start=1)
    for x in late: emit(p, x)

vEXW, vEXR, vH1S = 28, 29, 30
def exchange_addr(p):
    p('v_lshlrev_b32 v27, 4, v%d' % v_lane)
    p('s_lshl_b32 s%d, s%d, 12' % (s_t0, s_w)); p('s_add_u32 s%d, s%d, %d' % (s_t0, s_t0, (2 if cfg.wosched else 3) * SLOT))
    p('v_add_u32 v%d, s%d, v27' % (vEXW, s_t0))
    p('s_xor_b32 s%d, s%d, 4096' % (s_t0, s_t0))
    p('v_xor_b32 v27, 256, v27')
    p('v_add_u32 v%d, s%d, v27' % (vEXR, s_t0))
    p('v_lshrrev_b32 v%d, 4, v%d' % (vH1S, v_lane)); p('v_lshlrev_b32 v%d, 12, v%d' % (vH1S, vH1S)); p('v_and_b32 v27, 15, v%d' % v_lane); p('v_lshl_add_u32 v%d, v27, 4, v%d' % (vH1S, vH1S))

TZ = 200
def exchange_scal(p, br):
    p('s_lshl_b32 s%d, s%d, 2' % (s_head, s_jj)); p('s_add_u32 s%d, s%d, s%d' % (s_head, s_head, s_w)); p('s_add_u32 s%d, s%d, %d' % (s_head, s_head, 32 * br))
    p('s_lshl_b32 s%d, s%d, 16' % (s_t2, s_head)); p('s_lshl_b32 s%d, s%d, 8' % (s_t1, s_i)); p('s_add_u32 s%d, s%d, s%d' % (s_t2, s_t2, s_t1)); p('s_add_u32 s%d, s%d, %d' % (s_t2, s_t2, WS_INB))

def exchange_finish(p, br):
    nq = 4 if br == 1 else 2
    nh = 2 * nq
    RC = 216
    pos = lambda r: ST + 4 * (r >> 1) + (r & 1)
    p('s_waitcnt lgkmcnt(0)')
    for r in range(4 * nq):
        d = pos(r) if r < nh else TZ + r - nh
        p('v_add_f32 v%d, v%d, v%d' % (d, ACC[0] + r, RC + r))
    nd = 8 if br == 1 else 4
    for r in range(nd): p('v_permlane16_swap_b32 v%d, v%d' % (pos(r), TZ + r))
    for m in range(nd // 2): p('v_cndmask_b32_e64 v%d, v%d, v%d, s[%d:%d]' % (ST + 4 * m + 2, TZ + 2 * m, TZ + 2 * m + 1, s_odd, s_odd + 1))

def exchange(p, vm, br):
    nq = 2
    RC = 216
    src1 = ACC[1] + 8
    for q in range(nq): p('ds_write_b128 v%d, %s offset:%d' % (vEXW, vr(src1 + 4 * q, 4), q * 1024))
    exchange_scal(p, br)
    vm.wait('wq1', ' lgkmcnt(0)')
    stamp(p, 18)
    p('s_barrier')
    stamp(p, 19)
    for q in range(nq): p('ds_read_b128 %s, v%d offset:%d' % (vr(RC + 4 * q, 4), vEXR, q * 1024))
    exchange_finish(p, br)

def hop1_store_ops(p, vm, br):
    nm = 4 if br == 1 else 2
    ops = []
    for m in range(nm):
        def f(m=m):
            vm.op('buffer_store_dwordx4 %s, v%d, s[%d:%d], s%d offen sc1' % (vr(ST + 4 * m, 4), vH1S, sWS, sWS + 3, s_t2))
            if m < nm - 1: p('s_add_u32 s%d, s%d, 16384' % (s_t2, s_t2))
        ops.append(f)
    return ops

def spin_tail(p, name):
    p('s_cbranch_vccz L_%s_ok' % name)
    p('s_sub_u32 s%d, s%d, 1' % (s_spin, s_spin))
    p('s_cmp_gt_i32 s%d, 0' % s_spin)
    p('s_cbranch_scc1 L_%s' % name)
    p.label('L_%s_ok' % name)

def tagcheck(p, regs, t0, t1):
    regs = list(regs)
    p('v_min_u32 v%d, v%d, v%d' % (t0, regs[0], regs[1])); p('v_max_u32 v%d, v%d, v%d' % (t1, regs[0], regs[1]))
    k = 2
    while k + 1 < len(regs):
        p('v_min3_u32 v%d, v%d, v%d, v%d' % (t0, t0, regs[k], regs[k + 1])); p('v_max3_u32 v%d, v%d, v%d, v%d' % (t1, t1, regs[k], regs[k + 1])); k += 2
    if k < len(regs):
        p('v_min_u32 v%d, v%d, v%d' % (t0, t0, regs[k])); p('v_max_u32 v%d, v%d, v%d' % (t1, t1, regs[k]))
    p('v_xor_b32 v%d, v%d, v%d' % (t0, vT, t0)); p('v_xor_b32 v%d, v%d, v%d' % (t1, vT, t1)); p('v_or_b32 v%d, v%d, v%d' % (t0, t0, t1))
    p('v_cmp_ne_u32 vcc, 0, v%d' % t0)

H1 = 184
s_h1a = 98
def hop1_load_ops(p, vm, br, retry=False):
    ops = []
    def addr():
        p('s_lshl_b32 s%d, s%d, 16' % (s_h1a, s_head)); p('s_lshl_b32 s%d, s%d, 12' % (s_t1, s_i)); p('s_add_u32 s%d, s%d, s%d' % (s_h1a, s_h1a, s_t1)); p('s_add_u32 s%d, s%d, %d' % (s_h1a, s_h1a, WS_INB))
        p('v_lshlrev_b32 v27, 4, v%d' % v_lane)
    if not retry: ops.append(addr)
    for n in range(4):
        ops.append(lambda n=n: vm.op('buffer_load_dwordx4 %s, v27, s[%d:%d], s%d offen offset:%d sc1' % (vr(H1 + 4 * n, 4), sWS, sWS + 3, s_h1a, n * 1024), 'h1l' if n == 3 else None))
    return ops

def hop1_reduce(p, vm, br):
    L = 'AB'[br]; LD = H1
    vm.wait('h1l')
    if br == 0:
        p('s_cmp_ge_u32 s%d, 8' % s_i); p('s_cbranch_scc1 L_h1skip')
    p('s_mov_b32 s%d, %d' % (s_spin, cfg.spin))
    tagcheck(p, [LD + 4 * n + 3 for n in range(4)], 28, 29)
    p('s_cbranch_vccz L_h1%s_ok' % L)
    p.label('L_h1%s' % L)
    for f in hop1_load_ops(p, vm, br, retry=True): f()
    vm.wait_all()
    tagcheck(p, [LD + 4 * n + 3 for n in range(4)], 28, 29)
    spin_tail(p, 'h1%s' % L)
    a, b, z, t = 216, 217, 218, 219
    p('v_add_f32 v%d, v%d, v%d' % (a, LD, LD + 4)); p('v_add_f32 v%d, v%d, v%d' % (b, LD + 1, LD + 5)); p('v_add_f32 v%d, v%d, v%d' % (z, LD + 2, LD + 6))
    for n in range(2, 4):
        p('v_add_f32 v%d, v%d, v%d' % (a, a, LD + 4 * n)); p('v_add_f32 v%d, v%d, v%d' % (b, b, LD + 4 * n + 1)); p('v_add_f32 v%d, v%d, v%d' % (z, z, LD + 4 * n + 2))
    p('v_mov_b32 v%d, v%d' % (t, z))
    p('s_lshl_b32 s%d, s%d, 11' % (s_t0, s_head)); p('s_lshl_b32 s%d, s%d, 7' % (s_t1, s_i)); p('s_add_u32 s%d, s%d, s%d' % (s_t0, s_t0, s_t1)); p('s_add_u32 s%d, s%d, %d' % (s_t0, s_t0, WS_OUTK))
    p('v_permlane32_swap_b32 v%d, v%d' % (a, b))
    p('v_permlane32_swap_b32 v%d, v%d' % (z, t))
    p('v_add_f32 v%d, v%d, v%d' % (a, a, b)); p('v_add_f32 v%d, v%d, v%d' % (z, z, t))
    p('v_lshlrev_b32 v27, 4, v%d' % v_lane)
    p('v_mov_b32 v%d, v%d' % (b, a)); p('v_mov_b32 v%d, v%d' % (t, z))
    p('v_mov_b32 v223, v%d' % vT)
    p('s_nop 0')
    p('v_permlane16_swap_b32 v%d, v%d' % (a, b))
    p('v_permlane16_swap_b32 v%d, v%d' % (z, t))
    p('v_add_f32 v%d, v%d, v%d' % (a, a, b)); p('v_add_f32 v%d, v%d, v%d' % (z, z, t))
    p('v_mov_b32 v%d, v%d' % (b, a))
    p('s_nop 0')
    p('v_mov_b32_dpp v%d, v%d quad_perm:[1,1,1,1] row_mask:0xf bank_mask:0xf' % (t, z))
    p('v_permlane32_swap_b32 v%d, v%d' % (a, b))
    p('v_mov_b32_dpp v%d, v%d quad_perm:[0,0,0,0] row_mask:0xf bank_mask:0xf' % (222, z))
    cvt(p, 220, a, b)
    cvt(p, 222, 222, t)
    p('v_mov_b32_dpp v221, v220 row_ror:8 row_mask:0xf bank_mask:0xf')
    p('s_mov_b32 exec_lo, 0xff'); p('s_mov_b32 exec_hi, 0')
    vm.op('buffer_store_dwordx4 v[220:223], v27, s[%d:%d], s%d offen sc1' % (sWS, sWS + 3, s_t0))
    p('s_mov_b64 exec, -1')
    if br == 0: p.label('L_h1skip')

KVA = 216
H2 = 64
s_h2a, s_h2b = 100, 101
s_hi8 = 98
def hop2_load_ops(p, vm, br, retry=False):
    nm = 4 if br == 1 else 2
    ops = []
    def addr():
        p('s_lshl_b32 s%d, s%d, 11' % (s_h2a, s_head)); p('s_add_u32 s%d, s%d, %d' % (s_h2a, s_h2a, WS_OUTK)); p('s_xor_b32 s%d, s%d, 2048' % (s_h2b, s_h2a))
        p('s_mov_b32 s%d, 0xff00ff00' % s_hi8); p('s_mov_b32 s%d, 0xff00ff00' % (s_hi8 + 1))
    def addr2():
        p('v_lshrrev_b32 v31, 4, v%d' % v_lane); p('v_lshlrev_b32 v31, 7, v31'); p('v_and_b32 v30, 7, v%d' % v_lane); p('v_lshl_add_u32 v31, v30, 4, v31')
    if not retry: ops += [addr, addr2]
    for u in range(2):
        for m in range(nm):
            r = H2 + 16 * u + 4 * m
            ops.append(lambda r=r, u=u, m=m: vm.op('buffer_load_dwordx4 %s, v31, s[%d:%d], s%d offen offset:%d sc1' % (vr(r, 4), sWS, sWS + 3, s_h2a if u == 0 else s_h2b, m * 512), 'h2l' if (u == 1 and m == nm - 1) else None))
    return ops

def hop2_gather(p, vm, br):
    L = 'AB'[br]; nm = 4 if br == 1 else 2
    tags = [H2 + 16 * u + 4 * m + 3 for u in range(2) for m in range(nm)]
    p('s_mov_b32 s%d, %d' % (s_spin, cfg.spin))
    vm.wait('h2l')
    tagcheck(p, tags, 28, 29)
    p('s_cbranch_vccz L_h2%s_ok' % L)
    p.label('L_h2%s' % L)
    for f in hop2_load_ops(p, vm, br, retry=True): f()
    vm.wait_all()
    tagcheck(p, tags, 28, 29)
    spin_tail(p, 'h2%s' % L)
    for u in range(2):
        for m in range(nm): p('v_cndmask_b32_e64 v%d, v%d, v%d, s[%d:%d]' % (KVA + 8 * u + m, H2 + 16 * u + 4 * m, H2 + 16 * u + 4 * m + 1, s_hi8, s_hi8 + 1))
        for m in range(nm): p('v_mov_b32 v%d, v%d' % (KVA + 8 * u + nm + m, H2 + 16 * u + 4 * m + 2))
    for u in range(2):
        for m in range(nm): p('v_permlane16_swap_b32 v%d, v%d' % (KVA + 8 * u + m, KVA + 8 * u + nm + m))

OF = 232
def o_addr(p):
    p('s_lshl_b32 s%d, s%d, 2' % (s_t0, s_i)); p('s_lshl_b32 s%d, s%d, 1' % (s_t1, s_th)); p('s_add_u32 s%d, s%d, s%d' % (s_t0, s_t0, s_t1))
    p('s_lshl_b32 s%d, s%d, 16' % (s_t0, s_t0)); p('s_lshl_b32 s%d, s%d, 10' % (s_t1, s_head)); p('s_add_u32 s%d, s%d, s%d' % (s_t0, s_t0, s_t1)); p('s_add_u32 s%d, s%d, %d' % (s_t0, s_t0, WS_O))
    p('s_xor_b32 s%d, s%d, 1024' % (s_t1, s_t0))
    p('s_add_u32 s%d, s%d, 65536' % (s_t2, s_t0)); p('s_add_u32 s%d, s%d, 65536' % (s_t3, s_t1))

def poison_ops(p, vm, br):
    def a():
        p('s_lshl_b32 s%d, s%d, 2' % (s_head, s_jj)); p('s_add_u32 s%d, s%d, s%d' % (s_head, s_head, s_w)); p('s_add_u32 s%d, s%d, %d' % (s_head, s_head, 32 * br))
        o_addr(p); p('v_lshlrev_b32 v27, 4, v%d' % v_lane)
        for k in range(4): p('v_mov_b32 v%d, -1' % (248 + k))
    ops = [a]
    for k, sr_ in enumerate((s_t0, s_t1, s_t2, s_t3)):
        ops.append(lambda k=k, sr_=sr_: vm.op('buffer_store_dwordx4 v[248:251], v27, s[%d:%d], s%d offen sc1' % (sWS, sWS + 3, sr_), 'poison' if k == 3 else None))
    def allp():
        for f in ops: f()
    return allp

def o_warm_ops(p, vm):
    def a():
        o_addr(p); p('v_lshlrev_b32 v27, 4, v%d' % v_lane)
    ops = [a]
    for k, sr_ in enumerate((s_t0, s_t1, s_t2, s_t3)):
        ops.append(lambda k=k, sr_=sr_: vm.op('buffer_load_dwordx4 v[%d:%d], v27, s[%d:%d], s%d offen %s' % (232 + 4 * k, 235 + 4 * k, sWS, sWS + 3, sr_, cfg.owarmfl)))
    return ops

def o_phase(p, vm, br):
    NB = [64, 80, 96, 112]
    for un, (blk, u) in enumerate(UNITS):
        if br == 1:
            p('%s %s, %s, %s, 0' % (MF, vr(NB[un], 16), vr(KVA + 8 * u, 4), vr(FQ + 8 * un, 4)))
            p('%s %s, %s, %s, %s' % (MF, vr(NB[un], 16), vr(KVA + 8 * u + 4, 4), vr(FQ + 8 * un + 4, 4), vr(NB[un], 16)))
        else:
            p('%s %s, %s, %s, 0' % (MF, vr(NB[un], 16), vr(KVA + 8 * u, 4), vr(FQ + 4 * un, 4)))
        if un == 0:
            if cfg.oalias:
                p('s_lshl_b32 s%d, s%d, 16' % (s_t0, s_head)); p('s_lshl_b32 s%d, s%d, 12' % (s_t1, s_i)); p('s_add_u32 s%d, s%d, s%d' % (s_t0, s_t0, s_t1)); p('s_add_u32 s%d, s%d, %d' % (s_t0, s_t0, WS_INB))
                p('s_add_u32 s%d, s%d, 1024' % (s_t1, s_t0)); p('s_add_u32 s%d, s%d, 2048' % (s_t2, s_t0)); p('s_add_u32 s%d, s%d, 3072' % (s_t3, s_t0))
            else:
                p('s_lshl_b32 s%d, s%d, 2' % (s_t0, s_i)); p('s_lshl_b32 s%d, s%d, 1' % (s_t1, s_th)); p('s_add_u32 s%d, s%d, s%d' % (s_t0, s_t0, s_t1))
                p('s_lshl_b32 s%d, s%d, 16' % (s_t0, s_t0)); p('s_lshl_b32 s%d, s%d, 10' % (s_t1, s_head)); p('s_add_u32 s%d, s%d, s%d' % (s_t0, s_t0, s_t1)); p('s_add_u32 s%d, s%d, %d' % (s_t0, s_t0, WS_O))
                p('s_xor_b32 s%d, s%d, 1024' % (s_t1, s_t0))
                p('s_add_u32 s%d, s%d, 65536' % (s_t2, s_t0)); p('s_add_u32 s%d, s%d, 65536' % (s_t3, s_t1))
            p('v_lshlrev_b32 v27, 4, v%d' % v_lane)
    soffs = {(0, 0): s_t0, (0, 1): s_t1, (1, 0): s_t2, (1, 1): s_t3}
    for un, (blk, u) in enumerate(UNITS):
        N = NB[un]; num = N; den = N + 8
        p('v_add_f32 v%d, s%d, v%d' % (den, s_eps, den))
        p('v_rcp_f32 v%d, v%d' % (den, den))
        for i in range(4):
            p('v_pk_mul_f32 v[%d:%d], v[%d:%d], v[%d:%d] op_sel_hi:[1,0]' % (num + 2 * i, num + 2 * i + 1, num + 2 * i, num + 2 * i + 1, den, den + 1))
        for i in range(4): cvt(p, OF + 4 * un + i, num + 2 * i, num + 2 * i + 1)
        vm.op('buffer_store_dwordx4 %s, v27, s[%d:%d], s%d offen sc1' % (vr(OF + 4 * un, 4), sWS, sWS + 3, soffs[(blk, u)]), 'ost')
    p('s_lshl_b32 s%d, s%d, 1' % (s_t0, s_i)); p('s_add_u32 s%d, s%d, s%d' % (s_t0, s_t0, s_th)); p('s_lshl_b32 s%d, s%d, 5' % (s_t0, s_t0))
    p('s_lshl_b32 s%d, s%d, 1' % (s_t1, s_jj)); p('s_add_u32 s%d, s%d, s%d' % (s_t0, s_t0, s_t1)); p('s_add_u32 s%d, s%d, s%d' % (s_t0, s_t0, s_hp))
    p('s_add_u32 s%d, s%d, %d' % (s_t0, s_t0, 16 * br)); p('s_lshl_b32 s%d, s%d, 7' % (s_t0, s_t0)); p('s_add_u32 s%d, s%d, %d' % (s_h2a, s_t0, WS_FLAG))

def o_flag(p, vm):
    p('v_mov_b32 v27, 0')
    vm.wait('ost')
    p('s_mov_b64 exec, 1')
    vm.op('buffer_store_dword v%d, v27, s[%d:%d], s%d offen sc1' % (vT, sWS, sWS + 3, s_h2a))
    p('s_mov_b64 exec, -1')

def gate_load_ops(p, vm):
    X, Gw = GX, GW
    def a0():
        p('s_lshl_b32 s%d, s%d, 7' % (s_t0, s_i)); p('s_lshl_b32 s%d, s%d, 4' % (s_t1, s_jj)); p('s_add_u32 s%d, s%d, s%d' % (s_t0, s_t0, s_t1))
        p('s_lshl_b32 s%d, s%d, 2' % (s_t1, s_w)); p('s_add_u32 s%d, s%d, s%d' % (s_t0, s_t0, s_t1))
        p('s_lshl_b32 s%d, s%d, 10' % (s_t2, s_t0))
    def a1():
        p('s_lshr_b32 s%d, s%d, 2' % (s_t3, s_t0)); p('s_lshl_b32 s%d, s%d, 7' % (s_t3, s_t3)); p('s_add_u32 s%d, s%d, %d' % (s_b + 1, s_t3, WS_G))
        p('v_and_b32 v27, 15, v%d' % v_lane); p('v_lshlrev_b32 v27, 4, v27')
    def a2():
        p('v_lshrrev_b32 v28, 4, v%d' % v_lane); p('v_lshl_add_u32 v28, v28, 10, v27')
    ops = [a0, a1, a2]
    for q in range(4):
        ops.append(lambda q=q: vm.op('buffer_load_dwordx4 %s, v28, s[%d:%d], s%d offen offset:%d' % (vr(X + 4 * q, 4), sX, sX + 3, s_t2, q * 256)))
    for q in range(4):
        ops.append(lambda q=q: vm.op('buffer_load_dwordx4 %s, v27, s[%d:%d], 0 offen offset:%d' % (vr(Gw + 4 * q, 4), sMISC, sMISC + 3, q * 256), 'gate' if q == 3 else None))
    return ops

def gate_finish(p, vm):
    X, Gw = GX, GW
    vm.wait('gate')
    acc = 200
    p('v_mov_b32 v%d, 0' % acc); p('v_mov_b32 v%d, 0' % (acc + 1))
    for k in range(16):
        p('v_lshlrev_b32 v202, 16, v%d' % (X + k)); p('v_lshlrev_b32 v203, 16, v%d' % (Gw + k))
        p('v_and_b32 v204, 0xffff0000, v%d' % (X + k)); p('v_and_b32 v205, 0xffff0000, v%d' % (Gw + k))
        p('v_fmac_f32 v%d, v202, v203' % acc); p('v_fmac_f32 v%d, v204, v205' % (acc + 1))
    p('v_add_f32 v%d, v%d, v%d' % (acc, acc, acc + 1))
    for sh in (8, 4, 2, 1):
        p('v_add_f32_dpp v%d, v%d, v%d row_ror:%d row_mask:0xf bank_mask:0xf' % (acc, acc, acc, sh))
    p('v_mul_f32 v%d, s%d, v%d' % (acc, s_log2e, acc))
    p('v_exp_f32_e64 v%d, -v%d' % (acc, acc))
    p('v_add_f32 v%d, 1.0, v%d' % (acc, acc))
    p('v_rcp_f32 v%d, v%d' % (acc, acc))
    p('v_mov_b32 v%d, v%d' % (acc + 1, vT))
    p('v_lshrrev_b32 v27, 4, v%d' % v_lane); p('v_lshlrev_b32 v27, 3, v27')
    p('s_mov_b32 exec_lo, 0x00010001'); p('s_mov_b32 exec_hi, 0x00010001')
    vm.op('buffer_store_dwordx2 v[%d:%d], v27, s[%d:%d], s%d offen sc1' % (acc, acc + 1, sWS, sWS + 3, s_b + 1))
    p('s_mov_b64 exec, -1')

def p3_setup(p):
    p('v_lshrrev_b32 v27, 5, v%d' % v_lane); p('v_lshlrev_b32 v27, 2, v27')
    p('v_bfe_u32 v28, v%d, 2, 2' % v_lane); p('v_add_u32 v27, v27, v28'); p('v_lshlrev_b32 v27, 7, v27')
    p('v_bfe_u32 v29, v%d, 4, 1' % v_lane); p('v_lshl_add_u32 v27, v29, 5, v27')
    p('v_and_b32 v29, 3, v%d' % v_lane); p('v_lshl_add_u32 v27, v29, 3, v27')
    if not cfg.two:
        p('s_and_b32 s%d, s%d, 1' % (s_t0, s_r)); p('s_xor_b32 s%d, s%d, s%d' % (s_t0, s_t0, s_hp))
        p('s_lshl_b32 s%d, s%d, 16' % (s_t0, s_t0)); p('s_add_u32 s%d, s%d, %d' % (s_t0, s_t0, SLOT)); p('v_add_u32 v27, s%d, v27' % s_t0)
    p('v_lshrrev_b32 v28, 1, v28')
    p('v_lshl_add_u32 v%d, v28, 6, v27' % vOA)
    p('v_xor_b32 v28, 1, v28'); p('v_lshl_add_u32 v%d, v28, 6, v27' % (vOA + 1))
    p('v_and_b32 v27, 31, v%d' % v_lane)
    p('s_lshl_b32 s%d, s%d, 14' % (s_t0, s_hp)); p('s_lshl_b32 s%d, s%d, 13' % (s_t1, s_th)); p('s_add_u32 s%d, s%d, s%d' % (s_t0, s_t0, s_t1))
    p('v_lshlrev_b32 v28, 8, v27'); p('v_add_u32 v28, s%d, v28' % s_t0)
    p('v_and_b32 v29, 7, v27'); p('v_lshrrev_b32 v27, 5, v%d' % v_lane); p('v_xor_b32 v29, v29, v27')
    for q in range(4):
        p('v_xor_b32 v27, %d, v29' % (2 * q)); p('v_lshl_add_u32 v%d, v27, 4, v28' % (vEW + q))
    p('v_lshrrev_b32 v27, 3, v%d' % v_lane); p('v_and_b32 v28, 7, v%d' % v_lane); p('v_lshlrev_b32 v28, 1, v28')
    p('s_lshl_b32 s%d, s%d, 12' % (s_t0, s_w))
    p('v_lshlrev_b32 v29, 8, v27'); p('v_add_u32 v29, s%d, v29' % s_t0)
    for x in range(2):
        p('v_or_b32 v30, %d, v28' % x); p('v_xor_b32 v30, v30, v27'); p('v_lshl_add_u32 v%d, v30, 4, v29' % (vER + x))
    p('v_and_b32 v28, 7, v%d' % v_lane); p('v_lshlrev_b32 v28, 4, v28'); p('v_lshl_add_u32 v14, v27, 10, v28')
    p('v_and_b32 v15, %d, v%d' % (7 if cfg.two else 15, v_lane)); p('v_lshlrev_b32 v15, 7, v15')
    p('v_lshlrev_b32 v16, 4, v%d' % v_lane)
    p('v_and_b32 v28, 31, v%d' % v_lane); p('v_lshrrev_b32 v29, 2, v28'); p('v_lshlrev_b32 v29, 7, v29'); p('v_and_b32 v28, 3, v28'); p('v_lshl_add_u32 v17, v28, 3, v29')

s_fl, s_oa, s_ga, s_out0, s_out1 = 47, 48, 49, 50, 51
def p3_scalars(p):
    p('s_lshl_b32 s%d, s%d, 1' % (s_t0, s_tb)); p('s_add_u32 s%d, s%d, s%d' % (s_t0, s_t0, s_hp)); p('s_lshl_b32 s%d, s%d, 11' % (s_t0, s_t0)); p('s_add_u32 s%d, s%d, %d' % (s_fl, s_t0, WS_FLAG))
    p('s_lshl_b32 s%d, s%d, 1' % (s_t0, s_tb)); p('s_add_u32 s%d, s%d, s%d' % (s_t0, s_t0, s_th)); p('s_lshl_b32 s%d, s%d, 16' % (s_t1, s_t0))
    p('s_lshl_b32 s%d, s%d, 15' % (s_t2, s_hp)); p('s_add_u32 s%d, s%d, s%d' % (s_t1, s_t1, s_t2)); p('s_add_u32 s%d, s%d, %d' % (s_oa, s_t1, WS_O))
    p('s_lshl_b32 s%d, s%d, 10' % (s_t0, s_t0)); p('s_add_u32 s%d, s%d, %d' % (s_ga, s_t0, WS_G))
    if cfg.oalias:
        p('s_and_b32 s%d, s%d, 1' % (s_t0, s_tb)); p('s_lshl_b32 s%d, s%d, 5' % (s_t1, s_hp)); p('s_add_u32 s%d, s%d, s%d' % (s_t1, s_t1, s_t0)); p('s_lshl_b32 s%d, s%d, 16' % (s_t1, s_t1))
        p('s_lshl_b32 s%d, s%d, 10' % (s_t0, s_t0)); p('s_add_u32 s%d, s%d, s%d' % (s_t1, s_t1, s_t0))
        p('s_lshr_b32 s%d, s%d, 1' % (s_t0, s_tb)); p('s_lshl_b32 s%d, s%d, 12' % (s_t0, s_t0)); p('s_add_u32 s%d, s%d, s%d' % (s_t1, s_t1, s_t0))
        p('s_lshl_b32 s%d, s%d, 11' % (s_t0, s_th)); p('s_add_u32 s%d, s%d, s%d' % (s_t1, s_t1, s_t0)); p('s_add_u32 s%d, s%d, %d' % (s_oa, s_t1, WS_INB))
    p('s_lshl_b32 s%d, s%d, 6' % (s_t0, s_tb)); p('s_lshl_b32 s%d, s%d, 4' % (s_t1, s_w)); p('s_add_u32 s%d, s%d, s%d' % (s_t0, s_t0, s_t1)); p('s_lshl_b32 s%d, s%d, 10' % (s_t0, s_t0))
    p('s_lshl_b32 s%d, s%d, 7' % (s_t1, s_cb)); p('s_add_u32 s%d, s%d, s%d' % (s_out0, s_t0, s_t1)); p('s_add_u32 s%d, s%d, 8192' % (s_out1, s_out0))
    if cfg.orot: p('s_mov_b32 s%d, s%d' % (s_rc, s_cb))
    else: p('s_mov_b32 s%d, 0' % s_rc)
    p('s_lshr_b32 s%d, s%d, 1' % (s_r4, s_r)); p('s_lshl_b32 s%d, s%d, 2' % (s_r4, s_r4))

s_oa1, s_fl1, s_rb0, s_rb1, s_kx4 = 52, 60, 61, 89, 96
def p3_scalars2(p):
    p('s_lshr_b32 s%d, s%d, 2' % (s_t0, s_cb)); p('s_xor_b32 s%d, s%d, s%d' % (s_t0, s_t0, s_hp)); p('s_and_b32 s%d, s%d, 1' % (s_t0, s_t0))
    p('s_lshl_b32 s%d, s%d, 2' % (s_kx4, s_t0))
    p('s_lshr_b32 s%d, s%d, 1' % (s_t1, s_r)); p('s_xor_b32 s%d, s%d, s%d' % (s_t0, s_t0, s_t1)); p('s_lshl_b32 s%d, s%d, 10' % (s_t0, s_t0))
    p('s_lshl_b32 s%d, s%d, 12' % (s_t1, s_tb)); p('s_add_u32 s%d, s%d, s%d' % (s_t0, s_t0, s_t1)); p('s_add_u32 s%d, s%d, %d' % (s_fl, s_t0, WS_FLAG)); p('s_add_u32 s%d, s%d, 2048' % (s_fl1, s_fl))
    if cfg.oalias:
        p('s_and_b32 s%d, s%d, 1' % (s_t0, s_tb)); p('s_lshl_b32 s%d, s%d, 16' % (s_t1, s_t0))
        p('s_lshl_b32 s%d, s%d, 10' % (s_t0, s_t0)); p('s_add_u32 s%d, s%d, s%d' % (s_t1, s_t1, s_t0))
        p('s_lshr_b32 s%d, s%d, 1' % (s_t0, s_tb)); p('s_lshl_b32 s%d, s%d, 12' % (s_t0, s_t0)); p('s_add_u32 s%d, s%d, s%d' % (s_t1, s_t1, s_t0))
        p('s_lshl_b32 s%d, s%d, 11' % (s_t0, s_th)); p('s_add_u32 s%d, s%d, s%d' % (s_t1, s_t1, s_t0)); p('s_add_u32 s%d, s%d, %d' % (s_oa, s_t1, WS_INB))
        p('s_add_u32 s%d, s%d, %d' % (s_oa1, s_oa, 32 * 65536))
    else:
        p('s_lshl_b32 s%d, s%d, 1' % (s_t0, s_tb)); p('s_add_u32 s%d, s%d, s%d' % (s_t0, s_t0, s_th)); p('s_lshl_b32 s%d, s%d, 16' % (s_t1, s_t0)); p('s_add_u32 s%d, s%d, %d' % (s_oa, s_t1, WS_O))
        p('s_add_u32 s%d, s%d, 32768' % (s_oa1, s_oa))
    p('s_and_b32 s%d, s%d, 1' % (s_t0, s_r)); p('s_lshl_b32 s%d, s%d, 16' % (s_t0, s_t0)); p('s_add_u32 s%d, s%d, %d' % (s_rb0, s_t0, SLOT))
    p('s_xor_b32 s%d, s%d, 65536' % (s_t0, s_t0)); p('s_add_u32 s%d, s%d, %d' % (s_rb1, s_t0, SLOT))

def p3two(p, vm, br):
    L = 'AB'[br]
    OA = [[64, 80], [96, 112]]
    GV = 152
    LA = cfg.ola2
    vm.op('buffer_load_dwordx2 v[%d:%d], v17, s[%d:%d], s%d offen sc1' % (GV, GV + 1, sWS, sWS + 3, s_ga), 'g')
    p('s_mov_b32 s%d, %d' % (s_spin, cfg.spin))
    p.label('L_fl%s' % L)
    vm.op('buffer_load_dword v28, v15, s[%d:%d], s%d offen sc1' % (sWS, sWS + 3, s_fl))
    vm.wait_all()
    p('v_cmp_ne_u32 vcc, v28, v%d' % vT)
    spin_tail(p, 'fl%s' % L)
    stamp(p, 15)
    def lam(dst, g):
        p('s_add_u32 s%d, s%d, %d' % (dst, s_cb, g)); p('s_and_b32 s%d, s%d, 3' % (dst, dst)); p('s_add_u32 s%d, s%d, s%d' % (dst, dst, s_kx4))
    def oload(n):
        ph, h = n >> 4, n & 15
        g, q = h >> 2, h & 3
        if q == 0:
            lam(s_t2, g)
            p('s_add_u32 s%d, s%d, s%d' % (s_t2, s_t2, s_r4)); p('s_and_b32 s%d, s%d, 7' % (s_t2, s_t2)); p('s_lshl_b32 s%d, s%d, %d' % (s_t2, s_t2, 18 if cfg.oalias else 12))
            p('s_add_u32 s%d, s%d, s%d' % (s_t1, s_oa1 if ph else s_oa, s_t2))
        if cfg.oalias:
            if q == 1: p('s_xor_b32 s%d, s%d, 1024' % (s_t2, s_t1))
            if q == 2: p('s_add_u32 s%d, s%d, 131072' % (s_t1, s_t1))
            if q == 3: p('s_add_u32 s%d, s%d, 131072' % (s_t2, s_t2))
            vm.op('buffer_load_dwordx4 %s, v16, s[%d:%d], s%d offen sc1' % (ar(4 * n, 4), sWS, sWS + 3, s_t1 if q % 2 == 0 else s_t2), 'o%d' % n)
        else:
            vm.op('buffer_load_dwordx4 %s, v16, s[%d:%d], s%d offen offset:%d sc1' % (ar(4 * n, 4), sWS, sWS + 3, s_t1, q * 1024), 'o%d' % n)
    def gaddr(n):
        ph, g = n >> 4, (n & 15) >> 2
        d = vOG + 2 * ((n >> 2) & 1)
        q = Rec();
        q('s_add_u32 s%d, s%d, %d' % (s_t0, s_cb, g)); q('s_and_b32 s%d, s%d, 3' % (s_t0, s_t0)); q('s_add_u32 s%d, s%d, s%d' % (s_t0, s_t0, s_kx4))
        q('s_lshl_b32 s%d, s%d, 13' % (s_t0, s_t0)); q('s_add_u32 s%d, s%d, s%d' % (s_t0, s_t0, s_rb1 if ph else s_rb0))
        q('v_add_u32 v%d, s%d, v%d' % (d, s_t0, vOA)); q('v_add_u32 v%d, s%d, v%d' % (d + 1, s_t0, vOA + 1))
        return q.l
    def reads(n):
        wf = vWF + 8 * (n % 3)
        pre = gaddr(n) if (n & 3) == 0 else []
        return pre + ['ds_read_b64_tr_b16 v[%d:%d], v%d offset:%d' % (wf + 4 * ct + 2 * rd, wf + 4 * ct + 2 * rd + 1, vOG + 2 * ((n >> 2) & 1) + ct, (n & 3) * 2048 + rd * 1024) for ct in range(2) for rd in range(2)]
    for n in range(LA): oload(n)
    vm.op('buffer_load_dword v29, v15, s[%d:%d], s%d offen sc1' % (sWS, sWS + 3, s_fl1), 'pb')
    for n in range(2):
        for o in reads(n): p(o)
    p('s_mov_b32 s%d, %d' % (s_spin, cfg.spin))
    p('v_cmp_ne_u32 vcc, v%d, v%d' % (GV + 1, vT))
    p('s_cbranch_vccz L_g%s_ok' % L)
    p.label('L_g%s' % L)
    p('buffer_load_dwordx2 v[%d:%d], v17, s[%d:%d], s%d offen sc1' % (GV, GV + 1, sWS, sWS + 3, s_ga))
    p('s_waitcnt vmcnt(0)')
    p('v_cmp_ne_u32 vcc, v%d, v%d' % (GV + 1, vT))
    spin_tail(p, 'g%s' % L)
    p('v_sub_f32 v%d, 1.0, v%d' % (GV + 1, GV))
    nxt = LA
    CHK = cfg.pbstep
    for n in range(32):
        ph = n >> 4
        wf = vWF + 8 * (n % 3)
        if n == CHK:
            vm.wait('pb')
            p('s_mov_b32 s%d, %d' % (s_spin, cfg.spin))
            p('v_cmp_ne_u32 vcc, v29, v%d' % vT)
            p('s_cbranch_vccz L_fb%s_ok' % L)
            p.label('L_fb%s' % L)
            p('buffer_load_dword v29, v15, s[%d:%d], s%d offen sc1' % (sWS, sWS + 3, s_fl1))
            p('s_waitcnt vmcnt(0)')
            p('v_cmp_ne_u32 vcc, v29, v%d' % vT)
            spin_tail(p, 'fb%s' % L)
            if cfg.fine == 4: stamp(p, 44)
        vm.wait('o%d' % n, ' lgkmcnt(%d)' % (4 if n < 31 else 0))
        R = reads(n + 2) if n + 2 < 32 else []
        for ct in range(2):
            c = '0' if (n & 15) == 0 else vr(OA[ph][ct], 16)
            p('%s %s, %s, %s, %s' % (MF, vr(OA[ph][ct], 16), vr(wf + 4 * ct, 4), ar(4 * n, 4), c))
            k = len(R) - 2
            for o in (R[:k] if ct == 0 else R[k:]): p(o)
            lim = 16 if n < CHK else 32
            want = min(lim, n + 1 + (LA if n < CHK else cfg.olb))
            cnt = 0
            while nxt < want and cnt < (1 if n < CHK else 2 if ct == 0 else 1):
                oload(nxt); nxt += 1; cnt += 1
                if n < CHK: break
    assert nxt == 32, nxt
    stamp(p, 16)
    for ct in range(2):
        for q in range(4):
            for i in range(2 * q, 2 * q + 2):
                a = OA[0][ct] + 2 * i; b = OA[1][ct] + 2 * i
                p('v_pk_mul_f32 v[%d:%d], v[%d:%d], v[%d:%d] op_sel_hi:[1,0]' % (a, a + 1, a, a + 1, GV, GV + 1))
            for i in range(2 * q, 2 * q + 2):
                a = OA[0][ct] + 2 * i; b = OA[1][ct] + 2 * i
                p('v_pk_fma_f32 v[%d:%d], v[%d:%d], v[%d:%d], v[%d:%d] op_sel:[0,1,0] op_sel_hi:[1,1,1]' % (a, a + 1, b, b + 1, GV, GV + 1, a, a + 1))
            p('ds_write_b128 v%d, %s offset:%d' % (vEW + q, vr(OA[0][ct] + 4 * q, 4), 128 * ct))
    p('s_waitcnt lgkmcnt(0)')
    stamp(p, 17)
    p('s_barrier')
    p3_tail(p, vm, L)

def p3_tail(p, vm, L):
    RD = 168
    for a in range(2):
        for brr in range(2):
            for x in range(2):
                p('ds_read_b128 %s, v%d offset:%d' % (vr(RD + 16 * a + 8 * brr + 4 * x, 4), vER + x, a * 2048 + brr * 16384))
    for a in range(2):
        p('s_waitcnt lgkmcnt(%d)' % (4 if a == 0 else 0))
        r = RD + 16 * a
        for i in range(4): p('v_pk_add_f32 v[%d:%d], v[%d:%d], v[%d:%d]' % (r + 2 * i, r + 2 * i + 1, r + 2 * i, r + 2 * i + 1, r + 8 + 2 * i, r + 8 + 2 * i + 1))
        for i in range(4): cvt(p, r + 8 + i, r + 2 * i, r + 2 * i + 1)
        vm.op('buffer_store_dwordx4 %s, v14, s[%d:%d], s%d offen %s' % (vr(r + 8, 4), sOUT, sOUT + 3, s_out0 if a == 0 else s_out1, cfg.outfl))
    p('s_cmp_eq_u32 s%d, 0' % s_b); p('s_cbranch_scc0 L_noep%s' % L)
    p('s_cmp_eq_u32 s%d, 0' % s_w); p('s_cbranch_scc0 L_noep%s' % L)
    p('v_mov_b32 v27, 0'); p('s_mov_b64 exec, 1')
    vm.op('buffer_store_dword v%d, v27, s[%d:%d], 0 offen sc1' % (vT, sWS, sWS + 3))
    p('s_mov_b64 exec, -1')
    p.label('L_noep%s' % L)

def p3(p, vm, br):
    L = 'AB'[br]
    OACC = [64, 80]
    GV = 96
    vm.op('buffer_load_dwordx2 v[%d:%d], v17, s[%d:%d], s%d offen sc1' % (GV, GV + 1, sWS, sWS + 3, s_ga), 'g')
    p('s_mov_b32 s%d, %d' % (s_spin, cfg.spin))
    if cfg.p3e:
        vm.op('buffer_load_dword v28, v15, s[%d:%d], s%d offen sc1' % (sWS, sWS + 3, s_fl), 'poll1')
        for f in dma_wo_ops(p, vm, 3): f()
        vm.wait('poll1')
        p('v_cmp_ne_u32 vcc, v28, v%d' % vT)
        p('s_mov_b32 s%d, 1' % s_fast)
        p('s_cbranch_vccz L_fl%s_ok' % L)
        p('s_mov_b32 s%d, 0' % s_fast)
        p('buffer_load_dword v28, v15, s[%d:%d], s%d offen sc1' % (sWS, sWS + 3, s_fl))
        p('s_waitcnt vmcnt(0)')
        p('s_barrier')
        p('v_cmp_ne_u32 vcc, v28, v%d' % vT)
        p('s_cbranch_vccz L_fl%s_ok' % L)
        p.label('L_fl%s' % L)
        p('buffer_load_dword v28, v15, s[%d:%d], s%d offen sc1' % (sWS, sWS + 3, s_fl))
        p('s_waitcnt vmcnt(0)')
        p('v_cmp_ne_u32 vcc, v28, v%d' % vT)
        spin_tail(p, 'fl%s' % L)
    else:
        p.label('L_fl%s' % L)
        vm.op('buffer_load_dword v28, v15, s[%d:%d], s%d offen sc1' % (sWS, sWS + 3, s_fl))
        vm.wait_all()
        p('v_cmp_ne_u32 vcc, v28, v%d' % vT)
        spin_tail(p, 'fl%s' % L)
    if cfg.fine == 4:
        stamp(p, 44)
        p('v_writelane_b32 v255, s%d, 45' % s_spin)
    if not cfg.wosched and not cfg.earlyb4 and not cfg.wo2p2 and not cfg.p3e: p('s_barrier')
    stamp(p, 15)
    def oload(h):
        g, q = h >> 2, h & 3
        if q == 0:
            p('s_add_u32 s%d, s%d, %d' % (s_t2, s_rc, g)); p('s_and_b32 s%d, s%d, 7' % (s_t2, s_t2))
            p('s_add_u32 s%d, s%d, s%d' % (s_t2, s_t2, s_r4)); p('s_and_b32 s%d, s%d, 7' % (s_t2, s_t2)); p('s_lshl_b32 s%d, s%d, %d' % (s_t2, s_t2, 18 if cfg.oalias else 12))
            p('s_add_u32 s%d, s%d, s%d' % (s_t1, s_oa, s_t2))
        if cfg.oalias:
            if q == 1: p('s_xor_b32 s%d, s%d, 1024' % (s_t2, s_t1))
            if q == 2: p('s_add_u32 s%d, s%d, 131072' % (s_t1, s_t1))
            if q == 3: p('s_add_u32 s%d, s%d, 131072' % (s_t2, s_t2))
            vm.op('buffer_load_dwordx4 %s, v16, s[%d:%d], s%d offen sc1' % (ar(4 * h, 4), sWS, sWS + 3, s_t1 if q % 2 == 0 else s_t2), 'o%d' % h)
        else:
            vm.op('buffer_load_dwordx4 %s, v16, s[%d:%d], s%d offen offset:%d sc1' % (ar(4 * h, 4), sWS, sWS + 3, s_t1, q * 1024), 'o%d' % h)
    LA = cfg.ola
    for h in range(LA): oload(h)
    if cfg.p3e:
        p('s_cmp_eq_u32 s%d, 1' % s_fast); p('s_cbranch_scc0 L_nb%s' % L)
        p('s_waitcnt vmcnt(%d)' % LA)
        p('s_barrier')
        p.label('L_nb%s' % L)
    def gaddr(g):
        d = vOG + 2 * (g & 1)
        return ['s_add_u32 s%d, s%d, %d' % (s_t0, s_rc, g), 's_and_b32 s%d, s%d, 7' % (s_t0, s_t0), 's_lshl_b32 s%d, s%d, 13' % (s_t0, s_t0),
                'v_add_u32 v%d, s%d, v%d' % (d, s_t0, vOA), 'v_add_u32 v%d, s%d, v%d' % (d + 1, s_t0, vOA + 1)]
    def reads(h):
        wf = vWF + 8 * (h % 3); g = h >> 2
        pre = gaddr(g) if (h & 3) == 0 else []
        return pre + ['ds_read_b64_tr_b16 v[%d:%d], v%d offset:%d' % (wf + 4 * ct + 2 * rd, wf + 4 * ct + 2 * rd + 1, vOG + 2 * (g & 1) + ct, (h & 3) * 2048 + rd * 1024) for ct in range(2) for rd in range(2)]
    for h in range(2):
        for o in reads(h): p(o)
    if cfg.fine == 3: stamp(p, 41)
    p('s_mov_b32 s%d, %d' % (s_spin, cfg.spin))
    p('v_cmp_ne_u32 vcc, v%d, v%d' % (GV + 1, vT))
    p('s_cbranch_vccz L_g%s_ok' % L)
    p.label('L_g%s' % L)
    vm2 = VM(p)
    vm2.op('buffer_load_dwordx2 v[%d:%d], v17, s[%d:%d], s%d offen sc1' % (GV, GV + 1, sWS, sWS + 3, s_ga))
    vm2.wait_all()
    p('v_cmp_ne_u32 vcc, v%d, v%d' % (GV + 1, vT))
    spin_tail(p, 'g%s' % L)
    p('v_sub_f32 v%d, 1.0, v%d' % (GV + 1, GV))
    p('s_cmp_eq_u32 s%d, 0' % s_hp)
    p('s_cselect_b64 vcc, 0, -1')
    p('v_cndmask_b32 v%d, v%d, v%d, vcc' % (GV, GV, GV + 1))
    for h in range(32):
        wf = vWF + 8 * (h % 3)
        vm.wait('o%d' % h, ' lgkmcnt(%d)' % (4 if h < 31 else 0))
        if cfg.fine == 3 and h in (0, 8, 16, 24): stamp(p, 42 + h // 8)
        R = reads(h + 2) if h + 2 < 32 else []
        for ct in range(2):
            c = '0' if h == 0 else vr(OACC[ct], 16)
            p('%s %s, %s, %s, %s' % (MF, vr(OACC[ct], 16), vr(wf + 4 * ct, 4), ar(4 * h, 4), c))
            k = len(R) - 2
            for o in (R[:k] if ct == 0 else R[k:]): p(o)
            if ct == 0 and h + LA < 32: oload(h + LA)
    stamp(p, 16)
    for ct in range(2):
        for q in range(4):
            for i in range(2 * q, 2 * q + 2):
                p('v_pk_mul_f32 v[%d:%d], v[%d:%d], v[%d:%d] op_sel_hi:[1,0]' % (OACC[ct] + 2 * i, OACC[ct] + 2 * i + 1, OACC[ct] + 2 * i, OACC[ct] + 2 * i + 1, GV, GV + 1))
            p('ds_write_b128 v%d, %s offset:%d' % (vEW + q, vr(OACC[ct] + 4 * q, 4), 128 * ct))
    p('s_waitcnt lgkmcnt(0)')
    stamp(p, 17)
    p('s_barrier')
    RD = 168
    for a in range(2):
        for brr in range(2):
            for x in range(2):
                p('ds_read_b128 %s, v%d offset:%d' % (vr(RD + 16 * a + 8 * brr + 4 * x, 4), vER + x, a * 2048 + brr * 16384))
    for a in range(2):
        p('s_waitcnt lgkmcnt(%d)' % (4 if a == 0 else 0))
        r = RD + 16 * a
        for i in range(4): p('v_pk_add_f32 v[%d:%d], v[%d:%d], v[%d:%d]' % (r + 2 * i, r + 2 * i + 1, r + 2 * i, r + 2 * i + 1, r + 8 + 2 * i, r + 8 + 2 * i + 1))
        for i in range(4): cvt(p, r + 8 + i, r + 2 * i, r + 2 * i + 1)
        vm.op('buffer_store_dwordx4 %s, v14, s[%d:%d], s%d offen %s' % (vr(r + 8, 4), sOUT, sOUT + 3, s_out0 if a == 0 else s_out1, cfg.outfl))
    p('s_cmp_eq_u32 s%d, 0' % s_b); p('s_cbranch_scc0 L_noep%s' % L)
    p('s_cmp_eq_u32 s%d, 0' % s_w); p('s_cbranch_scc0 L_noep%s' % L)
    p('v_mov_b32 v27, 0'); p('s_mov_b64 exec, 1')
    vm.op('buffer_store_dword v%d, v27, s[%d:%d], 0 offen sc1' % (vT, sWS, sWS + 3))
    p('s_mov_b64 exec, -1')
    p.label('L_noep%s' % L)

def rstamp(p, idx):
    if not cfg.stamps: return
    p('s_memrealtime s[%d:%d]' % (s_stamp, s_stamp + 1))
    p('s_waitcnt lgkmcnt(0)')
    p('v_writelane_b32 v255, s%d, %d' % (s_stamp, idx))

def write_stamps(p, vm):
    if not cfg.stamps: return
    rstamp(p, 12)
    if cfg.stamps == 2:
        L = 'x%d' % len(p.ins)
        p('s_load_dwordx2 s[4:5], s[0:1], 72'); p('s_waitcnt lgkmcnt(0)')
        p('s_mov_b32 s%d, s4' % sDBG); p('s_and_b32 s%d, s5, 0xffff' % (sDBG + 1)); p('s_mov_b32 s%d, 256' % (sDBG + 2)); p('s_mov_b32 s%d, 0x00020000' % (sDBG + 3))
        p('s_cmp_eq_u32 s%d, 0' % s_w); p('s_cbranch_scc0 L_ds2' + L)
        p('v_lshlrev_b32 v27, 2, v%d' % v_lane)
        p('s_cmp_eq_u32 s%d, 8' % s_b); p('s_cbranch_scc0 L_ds1' + L)
        p('s_mov_b64 exec, 0x1fff')
        vm.op('buffer_store_dword v255, v27, s[%d:%d], 0 offen' % (sDBG, sDBG + 3))
        p('s_mov_b64 exec, -1')
        p.label('L_ds1' + L)
        p('s_cmp_eq_u32 s%d, 255' % s_b); p('s_cbranch_scc0 L_ds2' + L)
        p('s_mov_b64 exec, 0x1800')
        vm.op('buffer_store_dword v255, v27, s[%d:%d], 0 offen offset:8' % (sDBG, sDBG + 3))
        p('s_mov_b64 exec, -1')
        p.label('L_ds2' + L)
        return
    p('s_lshl_b32 s%d, s%d, 2' % (s_t0, s_b)); p('s_add_u32 s%d, s%d, s%d' % (s_t0, s_t0, s_w)); p('s_lshl_b32 s%d, s%d, 8' % (s_t0, s_t0)); p('s_add_u32 s%d, s%d, %d' % (s_t0, s_t0, WS_STAMP))
    p('v_lshlrev_b32 v27, 2, v%d' % v_lane)
    vm.op('buffer_store_dword v255, v27, s[%d:%d], s%d offen' % (sDBG, sDBG + 3, s_t0))

def body(p, vm, br, dco, dwq):
    extra = {m: [] for m in range(8)}
    for m in range(6): extra[m] = dco(m + 2)
    if br == 0: extra[4] = extra[4] + gate_load_ops(p, vm)
    extra[6] = dwq(0)
    extra[7] = dwq(1)
    if cfg.poison == 1: poison_ops(p, vm, br)()
    if cfg.poison == 2: extra[7] = extra[7] + [poison_ops(p, vm, br)]
    if cfg.poison == 4: extra[3] = extra[3] + [poison_ops(p, vm, br)]
    pass1(p, vm, br, dco, dwq, extra)
    p('s_barrier')
    if cfg.poison == 3: poison_ops(p, vm, br)()
    stamp(p, 2)
    if cfg.debug == 1: dump_regs(p, vm, vK[0], 64, 0)
    make_tag(p, vm)
    if cfg.lwarm:
        p('s_lshl_b32 s%d, s%d, 1' % (s_t0, s_i)); p('s_add_u32 s%d, s%d, s%d' % (s_t0, s_t0, s_th)); p('s_lshl_b32 s%d, s%d, 5' % (s_t0, s_t0))
        p('s_lshl_b32 s%d, s%d, 1' % (s_t1, s_jj)); p('s_add_u32 s%d, s%d, s%d' % (s_t0, s_t0, s_t1)); p('s_add_u32 s%d, s%d, s%d' % (s_t0, s_t0, s_hp))
        p('s_add_u32 s%d, s%d, %d' % (s_t0, s_t0, 16 * br)); p('s_lshl_b32 s%d, s%d, 7' % (s_t0, s_t0)); p('s_add_u32 s%d, s%d, %d' % (s_t0, s_t0, WS_FLAG))
        p('s_lshl_b32 s%d, s%d, 2' % (s_t1, s_jj)); p('s_add_u32 s%d, s%d, s%d' % (s_t1, s_t1, s_w)); p('s_add_u32 s%d, s%d, %d' % (s_t1, s_t1, 32 * br))
        p('s_lshl_b32 s%d, s%d, 11' % (s_t1, s_t1)); p('s_lshl_b32 s%d, s%d, 7' % (s_t2, s_i)); p('s_add_u32 s%d, s%d, s%d' % (s_t1, s_t1, s_t2)); p('s_add_u32 s%d, s%d, %d' % (s_t1, s_t1, WS_OUTK + 12))
        p('v_not_b32 v28, v%d' % vT); p('v_mov_b32 v27, 0')
        p('s_mov_b64 exec, 1')
        vm.op('buffer_store_dword v28, v27, s[%d:%d], s%d offen sc1' % (sWS, sWS + 3, s_t0))
        vm.op('buffer_store_dword v28, v27, s[%d:%d], s%d offen sc1' % (sWS, sWS + 3, s_t1))
        p('s_mov_b64 exec, -1')
    side = dma_wo_ops(p, vm, 0)
    if cfg.wosched: side = side + dma_wo_ops(p, vm, 2)
    if br == 1:
        feat_k_B(p, vm, side)
        stamp(p, 3)
    else:
        gate_finish(p, vm)
        feat_k_A(p, side)
        stamp(p, 3)
        exchange(p, vm, br)
    if cfg.debug == 2: dump_regs(p, vm, ST, 32, 0)
    stamp(p, 4)
    sched = {}
    sched[('bar', 1)] = True
    st = hop1_store_ops(p, vm, br)
    for k, f in enumerate(st): sched.setdefault(k, []).append(f)
    for k, f in enumerate(dma_wo_ops(p, vm, 1)): sched.setdefault(cfg.wo1step + k, []).append(f)
    if cfg.wo2p2:
        for k, f in enumerate(dma_wo_ops(p, vm, 2)): sched.setdefault(cfg.wo1step + 8 + k, []).append(f)
    hl = hop1_load_ops(p, vm, br)
    for k, f in enumerate(hl): sched.setdefault(min(31, cfg.h1step + k), []).append(f)
    if cfg.owarm:
        ow = o_warm_ops(p, vm)
        def allw():
            for f in ow: f()
        sched.setdefault(cfg.owarm, []).append(allw)
    if cfg.h1red:
        def hook():
            hop1_reduce(p, vm, br)
            stamp(p, 6)
        sched[('hook', cfg.h1red)] = hook
    pass2(p, vm, sched)
    stamp(p, 5)
    if cfg.debug == 1:
        p('s_nop 15'); dump_regs(p, vm, vQ[0], 32, 1)
    if not cfg.h1red:
        hop1_reduce(p, vm, br)
        stamp(p, 6)
    late = hop2_load_ops(p, vm, br)
    if cfg.wo2p2 or cfg.wosched:
        p('s_barrier')
        side = dma_wo_ops(p, vm, 3)
    else:
        side = dma_wo_ops(p, vm, 2)
    if br == 1: feat_q_B(p, side, late)
    else: feat_q_A(p, side, late)
    stamp(p, 7)
    hop2_gather(p, vm, br)
    stamp(p, 8)
    if cfg.debug == 2: dump_regs(p, vm, KVA, 16, 1)
    o_phase(p, vm, br)
    if cfg.fine == 4: stamp(p, 41)
    if cfg.wosched or cfg.wo2p2:
        vm.wait('wo3')
        p('s_barrier')
    elif not cfg.wo2p2:
        p('s_barrier')
    p3_setup(p)
    p3_scalars(p)
    o_flag(p, vm)
    if cfg.fine == 4: stamp(p, 43)
    if not cfg.wo2p2 and not cfg.wosched and not cfg.p3e:
        for f in dma_wo_ops(p, vm, 3): f()
        if cfg.earlyb4:
            vm.wait('wo3')
            p('s_barrier')
    stamp(p, 9)
    if cfg.two:
        p3_scalars2(p)
        p3two(p, vm, br)
    else: p3(p, vm, br)
    stamp(p, 10)
    write_stamps(p, vm)
    p('s_endpgm')

if __name__ == '__main__':
    import argparse
    ap = argparse.ArgumentParser()
    ap.add_argument('-o', default='k.s'); ap.add_argument('--debug', type=int, default=0); ap.add_argument('--rot', type=int, default=1)
    ap.add_argument('--maprow', type=int, default=1); ap.add_argument('--fine', type=int, default=0); ap.add_argument('--olb', type=int, default=14); ap.add_argument('--two', type=int, default=1); ap.add_argument('--ola2', type=int, default=10); ap.add_argument('--pbstep', type=int, default=8); ap.add_argument('--oalias', type=int, default=0); ap.add_argument('--lwarm', type=int, default=0); ap.add_argument('--poison', type=int, default=0); ap.add_argument('--p3e', type=int, default=0); ap.add_argument('--h1red', type=int, default=0); ap.add_argument('--mfexp', type=int, default=1); ap.add_argument('--outfl', default=''); ap.add_argument('--wosched', type=int, default=0); ap.add_argument('--earlyb4', type=int, default=1); ap.add_argument('--wsoff', type=lambda x: int(x,0), default=0); ap.add_argument('--owarm', type=int, default=0); ap.add_argument('--owarmfl', default=''); ap.add_argument('--wo2p2', type=int, default=0); ap.add_argument('--nowo', type=int, default=0); ap.add_argument('--codepf', type=int, default=1); ap.add_argument('--ola', type=int, default=12); ap.add_argument('--wo1step', type=int, default=4); ap.add_argument('--korder', type=int, default=1); ap.add_argument('--pro3', type=int, default=0); ap.add_argument('--worot', type=int, default=1); ap.add_argument('--orot', type=int, default=1); ap.add_argument('--pretouch', type=int, default=1); ap.add_argument('--h1step', type=int, default=19); ap.add_argument('--h2lead', type=int, default=130); ap.add_argument('--stamps', type=int, default=0)
    a = ap.parse_args()
    cfg.debug = a.debug; cfg.rot = a.rot; cfg.maprow = a.maprow; cfg.h1step = a.h1step; cfg.fine = a.fine; cfg.olb = a.olb; cfg.two = a.two; cfg.ola2 = a.ola2; cfg.pbstep = a.pbstep; cfg.oalias = a.oalias; cfg.lwarm = a.lwarm; cfg.poison = a.poison; cfg.p3e = a.p3e; cfg.h1red = a.h1red; cfg.mfexp = a.mfexp; cfg.outfl = a.outfl; cfg.wosched = a.wosched; cfg.earlyb4 = a.earlyb4; cfg.wsoff = a.wsoff; cfg.owarm = a.owarm; cfg.owarmfl = a.owarmfl; cfg.wo2p2 = a.wo2p2; cfg.nowo = a.nowo; cfg.codepf = a.codepf; cfg.ola = a.ola; cfg.wo1step = a.wo1step; cfg.korder = a.korder; cfg.pro3 = a.pro3; cfg.worot = a.worot; cfg.orot = a.orot; cfg.pretouch = a.pretouch; cfg.h2lead = a.h2lead; cfg.stamps = a.stamps
    open(a.o, 'w').write(build())
```

```python
import sys, os
sys.path.insert(0, os.path.dirname(os.path.abspath(__file__)))
from asmdsl import *

KNAME = "gated_mix__linear_attn_block__linear_kernel_hedgehog__prompt_kernel"

class Cfg:
    debug = 0
    rot = 1
    maprow = 1
    spin = 1 << 20
    fine = 0
    sleep = 0
    pollfl = 'sc1'
    flagfl = 'sc1'
    v7b = 1
    v7 = 1
    wo3step = 1
    olb = 14
    two = 1
    ola2 = 10
    pbstep = 8
    oalias = 1
    lwarm = 0
    poison = 0
    p3e = 0
    h1red = 0
    mfexp = 0
    outfl = ''
    wosched = 0
    earlyb4 = 1
    wsoff = 0
    owarm = 0
    owarmfl = ''
    wo2p2 = 0
    nowo = 0
    codepf = 1
    ola = 8
    wo1step = 6
    korder = 1
    pro3 = 0
    worot = 1
    orot = 1
    pretouch = 1
    h1step = 22
    h2lead = 70
    stamps = 0
cfg = Cfg()

WS_EPOCH = 0x0
WS_G     = 0x1000
WS_FLAG  = 0x20000
WS_OUTK  = 0x100000
WS_OUTZ  = 0x140000
WS_O     = 0x200000
WS_INB   = 0x800000
WS_SIZE  = 0x1000000
WS_DBG   = 0x1000000
WS_STAMP = 0x7000000

sX, sW, sWOA, sWOB, sWS, sOUT, sMISC, sDBG = 8, 12, 16, 20, 24, 28, 32, 36
s_w, s_th, s_hp, s_i, s_jj, s_rot, s_T = 40, 41, 42, 43, 44, 45, 46
s_xbase, s_wbase, s_m0x, s_m0w, s_ox, s_ow, s_t0, s_t1, s_t2, s_t3 = 47, 48, 49, 50, 51, 52, 53, 54, 55, 56
s_tb, s_cb, s_head, s_qbase, s_m0q = 57, 58, 59, 60, 61
s_mask16 = 62
s_log2e = 84
s_eps = 86
s_spin = 88
s_ht = 89
s_stamp = 90
s_b = 92
s_exec = 94
s_wobase, s_m0o = 96, 97
s_qadj, s_q0 = 4, 5
s_t2x, s_t3x = 98, 99
s_r = 6
s_fast = 89
s_odd = 94
KA = 64

v_lane = 1
vXA = 2
vWA = 14
vDX = 17
vDQ = 21
vONES = 25
vT = 26
vtmp = 27
vK = [32, 48]; vV = [64, 80]; vQ = [96, 112]
vWF = 128
vWP = 152
vSEL = 160
vTMP = 168

SLOT = 32768
def slot_set(s): return s // 2
def slot_imm(s): return (s % 2) * SLOT

class VM:
    def __init__(self, p): self.p = p; self.n = 0; self.marks = {}; self.done = 0
    def op(self, text, mark=None):
        self.p(text); self.n += 1
        if mark: self.marks[mark] = self.n
    def mark(self, name): self.marks[name] = self.n
    def wait(self, name, extra=''):
        if self.marks[name] <= self.done:
            if extra: self.p('s_waitcnt' + extra)
            return
        k = self.n - self.marks[name]
        assert 0 <= k <= 63, (name, k)
        self.p('s_waitcnt vmcnt(%d)%s' % (k, extra))
        self.done = self.marks[name]
    def wait_all(self):
        self.p('s_waitcnt vmcnt(0)'); self.done = self.n

def stamp(p, idx):
    if not cfg.stamps: return
    p('s_memtime s[%d:%d]' % (s_stamp, s_stamp + 1))
    p('s_waitcnt lgkmcnt(0)')
    p('v_writelane_b32 v255, s%d, %d' % (s_stamp, idx))


def korder(n): return (2 * (n & 3) + (n >> 2)) if cfg.korder else n

def srd(p, d, ptr, size):
    p('s_mov_b32 s%d, s%d' % (d, ptr)); p('s_and_b32 s%d, s%d, 0xffff' % (d + 1, ptr + 1))
    p('s_mov_b32 s%d, 0x%x' % (d + 2, size)); p('s_mov_b32 s%d, 0x00020000' % (d + 3))

SOFF = 64
WPT = 168
GX, GW = 168, 184

def gen_path(br):
    p = Prog(); vm = VM(p)
    L = 'A' if br == 0 else 'B'
    p.label('L_path' + L)
    if cfg.stamps: p('v_mov_b32 v255, 0')
    stamp(p, 0)
    rstamp(p, 11)
    p('v_lshrrev_b32 v27, 6, v0')
    p('v_and_b32 v%d, 63, v0' % v_lane)
    p('v_readfirstlane_b32 s%d, v27' % s_w)
    p('v_lshrrev_b32 v27, 3, v%d' % v_lane)
    p('v_and_b32 v28, 7, v%d' % v_lane)
    p('v_lshrrev_b32 v29, 4, v%d' % v_lane)
    for q in range(2):
        p('v_add_u32 v30, %d, v29' % (4 * (q & 1)))
        p('v_xor_b32 v30, v28, v30')
        p('v_lshlrev_b32 v30, 4, v30')
        p('v_add_u32 v31, %d, v27' % (7 * q))
        p('v_lshl_add_u32 v%d, v31, 10, v30' % (vDX + q))
    p('v_add_u32 v%d, %d, v%d' % (vDX + 2, 14 * 1024, vDX)); p('v_add_u32 v%d, %d, v%d' % (vDX + 3, 14 * 1024, vDX + 1))
    p('v_and_b32 v30, 1, v29'); p('v_lshlrev_b32 v30, 2, v30'); p('v_xor_b32 v30, v28, v30'); p('v_lshlrev_b32 v30, 4, v30')
    p('v_mul_u32_u24 v31, 3072, v27')
    p('v_add_u32 v%d, v30, v31' % vDQ)
    for q in range(1, 4):
        p('v_add_u32 v%d, %d, v%d' % (vDQ + q, 8 * q * 3072 - 1024 * q, vDQ))
    p('s_and_b32 s%d, s%d, 1' % (s_th, s_w))
    p('s_lshr_b32 s%d, s%d, 1' % (s_hp, s_w))
    p('s_lshl_b32 s%d, s%d, 17' % (s_xbase, s_i))
    p('s_lshl_b32 s%d, s%d, 15' % (s_t0, s_w))
    p('s_add_u32 s%d, s%d, s%d' % (s_xbase, s_xbase, s_t0))
    p('s_lshl_b32 s%d, s%d, 7' % (s_qbase, s_jj))
    p('s_mul_i32 s%d, s%d, 98304' % (s_t0, s_th))
    p('s_add_u32 s%d, s%d, s%d' % (s_wbase, s_qbase, s_t0))
    p('s_add_u32 s%d, s%d, 1' % (s_t0, s_hp))
    p('s_lshl_b32 s%d, s%d, 10' % (s_t0, s_t0))
    p('s_add_u32 s%d, s%d, s%d' % (s_wbase, s_wbase, s_t0))
    p('s_lshl_b32 s%d, s%d, 12' % (s_m0x, s_w))
    p('s_lshl_b32 s%d, s%d, 13' % (s_m0w, s_hp))
    p('s_lshl_b32 s%d, s%d, 12' % (s_t0, s_th))
    p('s_add_u32 s%d, s%d, s%d' % (s_m0w, s_m0w, s_t0))
    p('s_add_u32 s%d, s%d, 16384' % (s_m0w, s_m0w))
    p('s_lshl_b32 s%d, s%d, 11' % (s_m0q, s_w))
    p('s_mul_i32 s%d, s%d, 49152' % (s_t0, s_w))
    p('s_add_u32 s%d, s%d, s%d' % (s_t0, s_t0, s_qbase))
    p('s_sub_u32 s%d, s%d, s%d' % (s_qadj, s_wbase, s_t0))

    def chunk_offsets(n, dx, dw):
        p('s_add_u32 s%d, s%d, %d' % (s_t0, s_rot, korder(n))); p('s_and_b32 s%d, s%d, 7' % (s_t0, s_t0))
        p('s_lshl_b32 s%d, s%d, 7' % (s_t1, s_t0)); p('s_add_u32 s%d, s%d, s%d' % (dx, s_xbase, s_t1))
        p('s_mul_i32 s%d, s%d, 196608' % (s_t1, s_t0)); p('s_add_u32 s%d, s%d, s%d' % (dw, s_wbase, s_t1))
    def dma_chunk_ops(n):
        slot = (n % 4) * SLOT
        ox = s_ox if n == 0 else SOFF + 2 * n
        ow = s_ow if n == 0 else SOFF + 2 * n + 1
        ops = []
        def x0():
            p('s_add_u32 m0, s%d, %d' % (s_m0x, slot)); p('s_nop 0')
            vm.op('buffer_load_dwordx4 v%d, s[%d:%d], s%d offen lds' % (vDX, sX, sX + 3, ox))
        ops.append(x0)
        for q in range(1, 4):
            ops.append(lambda q=q: vm.op('buffer_load_dwordx4 v%d, s[%d:%d], s%d offen offset:%d lds' % (vDX + q, sX, sX + 3, ox, q * 1024)))
        def w0():
            p('s_add_u32 m0, s%d, %d' % (s_m0w, slot)); p('s_nop 0')
            vm.op('buffer_load_dwordx4 v%d, s[%d:%d], s%d offen lds' % (vDQ, sW, sW + 3, ow))
        ops.append(w0)
        for q in range(1, 4):
            ops.append(lambda q=q: vm.op('buffer_load_dwordx4 v%d, s[%d:%d], s%d offen offset:%d lds' % (vDQ + q, sW, sW + 3, ow, q * 1024), 'c%d' % n if q == 3 else None))
        return ops
    def dma_wq_ops(hf):
        ops = []
        for c in range(4 * hf, 4 * hf + 4):
            def m(c=c):
                if c == 0: p('s_add_u32 s%d, s%d, 0' % (s_ow, s_q0))
                else: p('s_sub_u32 s%d, s%d, s%d' % (s_ow, SOFF + 2 * c + 1, s_qadj))
                p('s_add_u32 m0, s%d, %d' % (s_m0q, (4 * (c >> 2)) * SLOT + (c & 3) * 8192)); p('s_nop 0')
                vm.op('buffer_load_dwordx4 v%d, s[%d:%d], s%d offen lds' % (vDQ, sW, sW + 3, s_ow))
            ops.append(m)
            ops.append(lambda c=c: vm.op('buffer_load_dwordx4 v%d, s[%d:%d], s%d offen offset:1024 lds' % (vDQ + 1, sW, sW + 3, s_ow), 'wq%d' % hf if (c & 3) == 3 else None))
        return ops

    chunk_offsets(0, s_ox, s_ow)
    p('s_sub_u32 s%d, s%d, s%d' % (s_q0, s_ow, s_qadj))
    p('s_waitcnt lgkmcnt(0)')
    srd(p, sX, KA + 0, 2048 * 1024)
    srd(p, sW, KA + (2 if br == 0 else 8), 512 * 3072)
    stamp(p, 20)
    for f in dma_chunk_ops(0): f()
    if cfg.codepf:
        p('s_getpc_b64 s[%d:%d]' % (s_t2x, s_t2x + 1))
        p.label('L_pc%s' % L)
        p('s_sub_u32 s%d, s%d, L_pc%s-%s' % (s_t2x, s_t2x, L, KNAME)); p('s_subb_u32 s%d, s%d, 0' % (s_t2x + 1, s_t2x + 1))
        p('s_lshr_b32 s%d, s%d, 3' % (s_t0, s_b)); p('s_lshl_b32 s%d, s%d, 2' % (s_t0, s_t0)); p('s_add_u32 s%d, s%d, s%d' % (s_t0, s_t0, s_w)); p('s_lshl_b32 s%d, s%d, 9' % (s_t0, s_t0))
        p('v_lshlrev_b32 v27, 7, v%d' % v_lane); p('v_and_b32 v27, 0x1ff, v27')
        p('v_add_u32 v27, s%d, v27' % s_t0)
        p('v_min_u32 v27, L_end-%s, v27' % KNAME)
        p('v_mov_b32 v29, s%d' % (s_t2x + 1))
        p('v_add_co_u32 v28, vcc, s%d, v27' % s_t2x); p('v_addc_co_u32 v29, vcc, 0, v29, vcc')
        p('s_mov_b64 exec, 15')
        vm.op('global_load_dword v239, v[28:29], off')
        p('s_mov_b64 exec, -1')
    if cfg.wsoff:
        p('s_add_u32 s%d, s%d, 0x%x' % (KA + 18, KA + 18, cfg.wsoff)); p('s_addc_u32 s%d, s%d, 0' % (KA + 19, KA + 19))
    srd(p, sWS, KA + 18, WS_SIZE)
    if br == 0: srd(p, sMISC, KA + 14, 1024)
    else:
        srd(p, sMISC, KA + 10, 32 * 512)
        p('s_lshl_b32 s%d, s%d, 11' % (s_t0, s_jj)); p('s_lshl_b32 s%d, s%d, 10' % (s_t1, s_hp)); p('s_add_u32 s%d, s%d, s%d' % (s_t0, s_t0, s_t1))
        p('s_lshl_b32 s%d, s%d, 10' % (s_t1, s_w)); p('s_add_u32 m0, s%d, %d' % (s_t1, 4 * SLOT))
        p('v_lshlrev_b32 v27, 4, v%d' % v_lane)
        vm.op('buffer_load_dwordx4 v27, s[%d:%d], s%d offen lds' % (sMISC, sMISC + 3, s_t0), 'wphi')
    p('v_mov_b32 v28, 0')
    vm.op('buffer_load_dword v%d, v28, s[%d:%d], 0 offen sc1' % (vT, sWS, sWS + 3), 'epoch')
    srd(p, sWOA, KA + 4, 512 * 1024)
    srd(p, sWOB, KA + 12, 512 * 1024)
    srd(p, sOUT, KA + 16, 2048 * 1024)
    if cfg.debug or cfg.stamps: srd(p, sDBG, KA + 18, 0x8000000)
    for n in range(1, 8): chunk_offsets(n, SOFF + 2 * n, SOFF + 2 * n + 1)
    if cfg.pretouch:
        p('s_lshl_b32 s%d, s%d, 18' % (s_t0, s_jj)); p('s_add_u32 s%d, s%d, %d' % (s_t0, s_t0, WS_INB + br * 0x200000))
        vm.op('buffer_load_dword v232, v28, s[%d:%d], s%d offen' % (sWS, sWS + 3, s_t0))
        p('s_lshl_b32 s%d, s%d, 18' % (s_t0, s_i)); p('s_add_u32 s%d, s%d, %d' % (s_t0, s_t0, WS_O))
        vm.op('buffer_load_dword v233, v28, s[%d:%d], s%d offen' % (sWS, sWS + 3, s_t0))
        p('s_lshl_b32 s%d, s%d, 17' % (s_t0, s_tb)); p('s_add_u32 s%d, s%d, %d' % (s_t0, s_t0, WS_O))
        vm.op('buffer_load_dword v234, v28, s[%d:%d], s%d offen' % (sWS, sWS + 3, s_t0))
        vm.op('buffer_load_dword v235, v28, s[%d:%d], 0 offen' % (sWOA, sWOA + 3))
        vm.op('buffer_load_dword v236, v28, s[%d:%d], 0 offen' % (sWOB, sWOB + 3))
        p('s_lshl_b32 s%d, s%d, 16' % (s_t0, s_tb))
        vm.op('buffer_load_dword v237, v28, s[%d:%d], s%d offen' % (sOUT, sOUT + 3, s_t0))
    wo_setup(p)
    p('v_and_b32 v27, 31, v%d' % v_lane)
    p('v_lshrrev_b32 v28, 5, v%d' % v_lane)
    p('v_lshrrev_b32 v29, 1, v27'); p('v_and_b32 v29, 7, v29'); p('v_xor_b32 v29, v28, v29')
    p('s_lshl_b32 s%d, s%d, 13' % (s_t0, s_th))
    p('v_lshlrev_b32 v30, 7, v27'); p('v_add_u32 v30, s%d, v30' % s_t0)
    for ks in range(4):
        p('v_xor_b32 v31, %d, v29' % (2 * ks)); p('v_lshl_add_u32 v%d, v31, 4, v30' % (vXA + ks))
        p('v_add_u32 v%d, 0x10000, v%d' % (vXA + 4 + ks, vXA + ks))
    p('v_lshrrev_b32 v27, 2, v%d' % v_lane); p('v_and_b32 v27, 3, v27')
    p('v_lshl_add_u32 v29, v28, 3, v27')
    p('v_lshlrev_b32 v29, 7, v29')
    p('v_lshrrev_b32 v30, 1, v27'); p('v_xor_b32 v30, s%d, v30' % s_hp); p('v_lshl_add_u32 v29, v30, 6, v29')
    p('v_lshrrev_b32 v30, 4, v%d' % v_lane); p('v_xor_b32 v30, s%d, v30' % s_th); p('v_and_b32 v30, 1, v30'); p('v_lshl_add_u32 v29, v30, 5, v29')
    p('v_and_b32 v30, 3, v%d' % v_lane); p('v_lshl_add_u32 v%d, v30, 3, v29' % vWA)
    p('v_add_u32 v%d, 0x10000, v%d' % (vWA + 1, vWA)); p('v_add_u32 v%d, 0x20000, v%d' % (vWA + 2, vWA))
    p('v_mov_b32 v%d, 0x3f803f80' % vONES)
    p('s_mov_b32 s%d, 0xffff0000' % s_mask16); p('s_mov_b32 s%d, 0xffff0000' % (s_mask16 + 1))
    p('s_mov_b32 s%d, 0x3fb8aa3b' % s_log2e); p('s_mov_b32 s%d, 0x3fb8aa3b' % (s_log2e + 1))
    p('s_mov_b32 s%d, 0x358637bd' % s_eps); p('s_mov_b32 s%d, 0x358637bd' % (s_eps + 1))
    if br == 1:
        p('v_and_b32 v27, 31, v%d' % v_lane)
        p('v_lshrrev_b32 v28, 5, v%d' % v_lane)
        p('v_bfe_u32 v29, v27, 2, 1')
        p('v_cmp_eq_u32 vcc, v28, v29')
        p('v_bfe_u32 v29, v27, 3, 1'); p('v_and_b32 v30, 3, v27'); p('v_lshl_add_u32 v29, v29, 2, v30')
        p('v_and_b32 v30, 1, v29'); p('v_lshlrev_b32 v30, 4, v30'); p('v_mov_b32 v31, 0x3f80'); p('v_lshlrev_b32 v30, v30, v31')
        p('v_cndmask_b32 v30, 0, v30, vcc')
        p('v_lshrrev_b32 v29, 1, v29')
        p('v_bfe_u32 v28, v27, 4, 1')
        p('v_lshl_add_u32 v29, v28, 2, v29')
        for q in range(8):
            p('v_cmp_eq_u32 vcc, %d, v29' % q)
            p('v_cndmask_b32 v%d, 0, v30, vcc' % (vSEL + q))
    p('s_mov_b32 s%d, 0xaaaaaaaa' % s_odd); p('s_mov_b32 s%d, 0xaaaaaaaa' % (s_odd + 1))
    if br == 1:
        p('v_lshrrev_b32 v27, 5, v%d' % v_lane); p('v_lshlrev_b32 v27, 2, v27')
        p('v_bfe_u32 v28, v%d, 2, 2' % v_lane); p('v_add_u32 v27, v27, v28'); p('v_lshlrev_b32 v27, 5, v27')
        p('v_bfe_u32 v28, v%d, 1, 1' % v_lane); p('v_lshl_add_u32 v27, v28, 3, v27')
        p('v_bfe_u32 v28, v%d, 4, 1' % v_lane); p('v_lshl_add_u32 v27, v28, 4, v27')
        p('s_lshl_b32 s%d, s%d, 10' % (s_t0, s_w)); p('s_add_u32 s%d, s%d, %d' % (s_t0, s_t0, 4 * SLOT))
        p('s_lshl_b32 s%d, s%d, 9' % (s_t1, s_th)); p('s_add_u32 s%d, s%d, s%d' % (s_t0, s_t0, s_t1))
        p('v_add_u32 v27, s%d, v27' % s_t0); p('v_xor_b32 v29, 512, v27')
        p('v_bfe_u32 v28, v%d, 2, 1' % v_lane); p('v_lshlrev_b32 v28, 31, v28'); p('v_lshrrev_b32 v30, 16, v28'); p('v_or_b32 v28, v28, v30')
    stamp(p, 21)
    for f in dma_chunk_ops(1): f()
    if br == 1:
        vm.wait('wphi')
        for u in range(2):
            for rd in range(2):
                p('ds_read_b64_tr_b16 v[%d:%d], v%d offset:%d' % (vWP + 4 * u + 2 * rd, vWP + 4 * u + 2 * rd + 1, 27 if u == 0 else 29, rd * 8 * 32))
        p('s_waitcnt lgkmcnt(0)')
        for q in range(8): p('v_xor_b32 v%d, v%d, v28' % (vWP + q, vWP + q))
    return p, vm, dma_chunk_ops, dma_wq_ops

def make_tag(p, vm):
    vm.wait('epoch')
    p('v_readfirstlane_b32 s%d, v%d' % (s_T, vT))
    p('s_mul_i32 s%d, s%d, 0x9e3779b1' % (s_T, s_T)); p('s_add_u32 s%d, s%d, 0x7f4a7c15' % (s_T, s_T))
    p('v_mov_b32 v%d, s%d' % (vT, s_T))

def emit(p, item):
    if callable(item): item()
    else: p(item)

def merge(p, main, side, every, start=0):
    side = list(side); k = 0
    for idx, m in enumerate(main):
        emit(p, m)
        if idx >= start and (idx - start) % every == every - 1 and side:
            emit(p, side.pop(0))
    for x in side: emit(p, x)

class Rec:
    def __init__(self): self.l = []
    def __call__(self, t, tag=None):
        for line in t.split('\n'):
            if line.strip(): self.l.append(line.strip())

def xf(s, blk): return ar((s * 2 + blk) * 4, 4)

def pass1(p, vm, br, dma_chunk_ops, dma_wq_ops, extra_ops):
    def reads(s):
        c, ks = s >> 2, s & 3; slot = c % 4; st = slot_set(slot); im = slot_imm(slot); buf = s % 3
        ops = []
        wf = vWF + 8 * buf
        for part in range(2):
            for rd in range(2):
                ops.append('ds_read_b64_tr_b16 v[%d:%d], v%d offset:%d' % (wf + 4 * part + 2 * rd, wf + 4 * part + 2 * rd + 1, vWA + st, im + 16384 + part * 8192 + (16 * ks + 4 * rd) * 128))
        for blk in range(2):
            ops.append('ds_read_b128 %s, v%d offset:%d' % (xf(s, blk), vXA + st * 4 + ks, im + blk * 4096))
        return ops
    def mfmas(s):
        wf = vWF + 8 * (s % 3); ops = []
        for blk in range(2):
            c = '0' if s == 0 else vr(vK[blk], 16)
            if br == 1: ops.append('v_mfma_f32_32x32x16_bf16 %s, %s, %s, %s' % (vr(vK[blk], 16), vr(wf, 4), xf(s, blk), c))
            else:       ops.append('v_mfma_f32_32x32x16_bf16 %s, %s, %s, %s' % (vr(vK[blk], 16), xf(s, blk), vr(wf, 4), c))
            c = '0' if s == 0 else vr(vV[blk], 16)
            ops.append('v_mfma_f32_32x32x16_bf16 %s, %s, %s, %s' % (vr(vV[blk], 16), xf(s, blk), vr(wf + 4, 4), c))
        return ops
    pend = []
    vm.wait('c0'); p('s_barrier')
    stamp(p, 1)
    pend += extra_ops[0]
    for o in reads(0): p(o)
    for o in reads(1): p(o)
    for s in range(32):
        nxt = s + 2
        p('s_waitcnt lgkmcnt(%d)' % (6 if s < 31 else 0))
        M = mfmas(s)
        R = reads(nxt) if nxt < 32 else []
        p(M[0])
        if nxt < 32 and nxt % 4 == 0:
            m = nxt // 4
            vm.wait('c%d' % m); p('s_barrier')
            if cfg.stamps == 1 and cfg.fine: stamp(p, 30 + m)
            pend += extra_ops[m]
        def take(n):
            for _ in range(n):
                if pend: pend.pop(0)()
        for k in range(4):
            if k > 0: p(M[k])
            for o in R[(k * 6) // 4:((k + 1) * 6) // 4]: p(o)
            if k % 2 == 1 or len(pend) > 8: take(1)
    while pend: pend.pop(0)()

def pass2(p, vm, sched):
    RA = 3
    def reads(s):
        c, ks = s >> 2, s & 3; slot = 4 * (c >> 2); st = slot_set(slot); im = slot_imm(slot); wf = vWF + 4 * (s % 4)
        return ['ds_read_b64_tr_b16 v[%d:%d], v%d offset:%d' % (wf + 2 * rd, wf + 2 * rd + 1, vWA + st, im + (c & 3) * 8192 + (16 * ks + 4 * rd) * 128) for rd in range(2)]
    for s in range(RA):
        for o in reads(s): p(o)
    for s in range(32):
        out = min(RA - 1, 31 - s)
        p('s_waitcnt lgkmcnt(%d)' % (2 * out))
        wf = vWF + 4 * (s % 4)
        if ('bar', s) in sched: p('s_barrier')
        if ('hook', s) in sched: sched[('hook', s)]()
        if cfg.fine == 2 and s % 4 == 0 and s > 0:
            stamp(p, 40 + s // 4);
        items = list(sched.get(s, []))
        h = (len(items) + 1) // 2
        for blk in range(2):
            c = '0' if s == 0 else vr(vQ[blk], 16)
            p('v_mfma_f32_32x32x16_bf16 %s, %s, %s, %s' % (vr(vQ[blk], 16), vr(wf, 4), xf(s, blk), c))
            if blk == 0 and s + RA < 32:
                for o in reads(s + RA): p(o)
            for it in (items[:h] if blk == 0 else items[h:]): emit(p, it)

def dump_regs(p, vm, base_reg, n, slot_index):
    p('s_lshl_b32 s%d, s%d, 2' % (s_t0, s_b)); p('s_add_u32 s%d, s%d, s%d' % (s_t0, s_t0, s_w))
    p('s_mul_i32 s%d, s%d, %d' % (s_t0, s_t0, n * 256)); p('s_add_u32 s%d, s%d, %d' % (s_t0, s_t0, WS_DBG + slot_index * 0x1000000))
    p('v_lshlrev_b32 v27, 4, v%d' % v_lane)
    for r in range(0, n, 4):
        vm.op('buffer_store_dwordx4 %s, v27, s[%d:%d], s%d offen' % (vr(base_reg + r, 4), sDBG, sDBG + 3, s_t0))
        p('s_add_u32 s%d, s%d, 1024' % (s_t0, s_t0))
    vm.wait_all()

def build():
    top = Prog()
    top('s_cmp_ge_u32 s2, 256')
    top('s_cbranch_scc1 L_end')
    top('s_load_dwordx16 s[64:79], s[0:1], 0')
    top('s_load_dwordx2 s[80:81], s[0:1], 64')
    top('s_load_dwordx2 s[82:83], s[0:1], 80')
    top('s_mov_b32 s%d, s2' % s_b)
    top('s_and_b32 s%d, s2, 7' % s_t0)
    top('s_lshr_b32 s%d, s2, 3' % s_t1)
    if cfg.maprow == 0:
        top('s_mov_b32 s%d, s%d' % (s_jj, s_t0))
        top('s_lshr_b32 s%d, s%d, 1' % (s_i, s_t1))
        top('s_and_b32 s%d, s%d, 1' % (s_t2, s_t1))
        top('s_lshl_b32 s%d, s%d, 2' % (s_rot, s_t2)); top('s_add_u32 s%d, s%d, s%d' % (s_rot, s_rot, s_i)); top('s_and_b32 s%d, s%d, 7' % (s_rot, s_rot))
    else:
        top('s_and_b32 s%d, s%d, 1' % (s_i, s_t0)); top('s_lshl_b32 s%d, s%d, 3' % (s_i, s_i)); top('s_and_b32 s%d, s%d, 7' % (s_t2, s_t1)); top('s_add_u32 s%d, s%d, s%d' % (s_i, s_i, s_t2))
        top('s_lshr_b32 s%d, s%d, 1' % (s_t3, s_t0)); top('s_lshl_b32 s%d, s%d, 2' % (s_t3, s_t3)); top('s_lshr_b32 s%d, s%d, 3' % (s_t2, s_t1)); top('s_add_u32 s%d, s%d, s%d' % (s_t3, s_t3, s_t2))
        top('s_lshr_b32 s%d, s%d, 1' % (s_jj, s_t3))
        top('s_lshl_b32 s%d, s%d, 1' % (s_rot, s_t3)); top('s_add_u32 s%d, s%d, s%d' % (s_rot, s_rot, s_i)); top('s_and_b32 s%d, s%d, 7' % (s_rot, s_rot))
        top('s_and_b32 s%d, s%d, 1' % (s_t2, s_t3))
    if not cfg.rot: top('s_mov_b32 s%d, 0' % s_rot)
    top('s_lshl_b32 s%d, s%d, 2' % (s_tb, s_t0)); top('s_and_b32 s%d, s%d, 3' % (s_t3, s_t1)); top('s_add_u32 s%d, s%d, s%d' % (s_tb, s_tb, s_t3))
    top('s_lshr_b32 s%d, s%d, 2' % (s_cb, s_t1))
    top('s_cmp_eq_u32 s%d, 0' % s_t2)
    top('s_cbranch_scc0 L_pathB')
    paths = []
    for br in range(2):
        p, vm, dco, dwq = gen_path(br)
        body(p, vm, br, dco, dwq)
        added = p.fix_hazards()
        errs = p.check_waits()
        if errs:
            for e in errs[:20]: print('WAITERR', e, file=sys.stderr)
            raise SystemExit('wait check failed')
        print('path', 'AB'[br], 'instructions:', sum(1 for i in p.ins if i.op), 'nop states added:', added, file=sys.stderr)
        paths.append(p)
    top.fix_hazards()
    hdr = open(os.path.join(os.path.dirname(os.path.abspath(__file__)), 'header.txt')).read()
    s = hdr
    s += '; @launch grid=(256,1,1) block=(256,1,1) lds=163840\n'
    s += '.amdgcn_target "amdgcn-amd-amdhsa--gfx950"\n.text\n.globl %s\n.p2align 8\n.type %s,@function\n%s:\n' % (KNAME, KNAME, KNAME)
    s += top.text()
    for p in paths: s += p.text()
    s += 'L_end:\n    s_endpgm\n'
    s += '.section .rodata,"a"\n.p2align 6\n.amdhsa_kernel %s\n  .amdhsa_next_free_vgpr 512\n  .amdhsa_next_free_sgpr 102\n  .amdhsa_accum_offset 256\n  .amdhsa_group_segment_fixed_size 0\n  .amdhsa_kernarg_size 88\n  .amdhsa_user_sgpr_count 2\n  .amdhsa_user_sgpr_kernarg_segment_ptr 1\n  .amdhsa_system_sgpr_workgroup_id_x 1\n.end_amdhsa_kernel\n' % KNAME
    return s


MF = 'v_mfma_f32_32x32x16_bf16'
vDO = 10
vOA = 2
vEW = 4
vER = 8
vOG = 18
s_rc, s_r4 = 7, 3

def cvt(p, d, a, b): p('v_cvt_pk_bf16_f32 v%d, v%d, v%d' % (d, a, b))

def wo_setup(p):
    p('v_lshrrev_b32 v27, 3, v%d' % v_lane); p('v_and_b32 v28, 7, v%d' % v_lane)
    p('v_bfe_u32 v29, v%d, 4, 1' % v_lane); p('v_lshlrev_b32 v29, 2, v29'); p('v_xor_b32 v28, v28, v29'); p('v_lshlrev_b32 v28, 4, v28')
    p('s_lshl_b32 s%d, s%d, 7' % (s_t0, s_cb)); p('v_add_u32 v28, s%d, v28' % s_t0)
    p('v_lshl_add_u32 v%d, v27, 10, v28' % vDO)
    for q in range(1, 4): p('v_add_u32 v%d, %d, v%d' % (vDO + q, 7 * q * 1024, vDO))
    p('s_lshl_b32 s%d, s%d, 16' % (s_wobase, s_w)); p('s_lshl_b32 s%d, s%d, 13' % (s_m0o, s_w))
    if cfg.v7:
        p('s_and_b32 s%d, s%d, 3' % (s_r, s_tb))
        p('s_lshr_b32 s%d, s%d, 1' % (s_t0, s_r)); p('s_lshl_b32 s%d, s%d, 18' % (s_t0, s_t0)); p('s_add_u32 s%d, s%d, s%d' % (s_wobase, s_wobase, s_t0))
    elif cfg.worot:
        p('s_and_b32 s%d, s%d, 3' % (s_r, s_tb))
        p('s_lshr_b32 s%d, s%d, 1' % (s_t0, s_r)); p('s_lshl_b32 s%d, s%d, 18' % (s_t0, s_t0)); p('s_add_u32 s%d, s%d, s%d' % (s_wobase, s_wobase, s_t0))
        p('s_bitcmp1_b32 s%d, 0' % s_r)
        p('s_cselect_b32 s%d, s%d, s%d' % (s_t0, sWOB, sWOA)); p('s_cselect_b32 s%d, s%d, s%d' % (s_t1, sWOA, sWOB))
        p('s_cselect_b32 s%d, s%d, s%d' % (s_t2x, sWOB + 1, sWOA + 1)); p('s_cselect_b32 s%d, s%d, s%d' % (s_t3x, sWOA + 1, sWOB + 1))
        p('s_mov_b32 s%d, s%d' % (sWOA, s_t0)); p('s_mov_b32 s%d, s%d' % (sWOB, s_t1)); p('s_mov_b32 s%d, s%d' % (sWOA + 1, s_t2x)); p('s_mov_b32 s%d, s%d' % (sWOB + 1, s_t3x))
    else:
        p('s_mov_b32 s%d, 0' % s_r)

def dma_wo_ops(p, vm, part):
    if cfg.nowo == 1 or (cfg.nowo == 2 and part == 3):
        def f(): vm.mark('wo%d' % part)
        return [f]
    if cfg.v7: return dma_wo_ops_v7(p, vm, part)
    return dma_wo_ops_real(p, vm, part)

def dma_wo_ops_v7(p, vm, t):
    srd_ = {0: sMISC, 1: sWOA, 2: sMISC, 3: sWOB}[t]
    ops = []
    for grp in range(2):
        def m(grp=grp):
            if grp == 0:
                if t in (0, 2):
                    p('s_bitcmp1_b32 s%d, 0' % s_r)
                    a, b = (sWOB, sWOA) if t == 0 else (sWOA, sWOB)
                    p('s_cselect_b32 s%d, s%d, s%d' % (sMISC, a, b)); p('s_cselect_b32 s%d, s%d, s%d' % (sMISC + 1, a + 1, b + 1))
                    if t == 0: p('s_mov_b32 s%d, 0x%x' % (sMISC + 2, 512 * 1024))
                if t == 0: p('s_mov_b32 s%d, s%d' % (s_ow, s_wobase))
                elif t == 3: p('s_xor_b32 s%d, s%d, 262144' % (s_ow, s_wobase))
                else:
                    p('s_and_b32 s%d, s%d, 1' % (s_ow, s_r))
                    if t == 1: p('s_xor_b32 s%d, s%d, 1' % (s_ow, s_ow))
                    p('s_lshl_b32 s%d, s%d, 18' % (s_ow, s_ow)); p('s_xor_b32 s%d, s%d, s%d' % (s_ow, s_ow, s_wobase))
            else: p('s_add_u32 s%d, s%d, 32768' % (s_ow, s_ow))
            p('s_add_u32 m0, s%d, %d' % (s_m0o, (t + 1) * SLOT + grp * 4096)); p('s_nop 0')
            vm.op('buffer_load_dwordx4 v%d, s[%d:%d], s%d offen lds' % (vDO, srd_, srd_ + 3, s_ow))
        ops.append(m)
        for q in range(1, 4):
            ops.append(lambda q=q, grp=grp: vm.op('buffer_load_dwordx4 v%d, s[%d:%d], s%d offen offset:%d lds' % (vDO + q, srd_, srd_ + 3, s_ow, q * 1024), 'wo%d' % t if (q == 3 and grp == 1) else None))
    return ops

def dma_wo_ops_real(p, vm, part):
    srd_ = sWOA if part < 2 else sWOB
    ops = []
    for grp in range(2):
        def m(grp=grp):
            if part & 1: p('s_xor_b32 s%d, s%d, 262144' % (s_ow, s_wobase))
            else: p('s_mov_b32 s%d, s%d' % (s_ow, s_wobase))
            if grp: p('s_add_u32 s%d, s%d, 32768' % (s_ow, s_ow))
            p('s_add_u32 m0, s%d, %d' % (s_m0o, (part + 1) * SLOT + grp * 4096)); p('s_nop 0')
            vm.op('buffer_load_dwordx4 v%d, s[%d:%d], s%d offen lds' % (vDO, srd_, srd_ + 3, s_ow))
        ops.append(m)
        for q in range(1, 4):
            ops.append(lambda q=q, grp=grp: vm.op('buffer_load_dwordx4 v%d, s[%d:%d], s%d offen offset:%d lds' % (vDO + q, srd_, srd_ + 3, s_ow, q * 1024), 'wo%d' % part if (q == 3 and grp == 1) else None))
    return ops

def softmax16(p, P, F, tmp):
    m, S = tmp, tmp + 2
    p('v_max3_f32 v%d, v%d, v%d, v%d' % (m, P, P + 1, P + 2))
    p('v_max3_f32 v%d, v%d, v%d, v%d' % (m + 1, P + 3, P + 4, P + 5))
    p('v_max3_f32 v%d, v%d, v%d, v%d' % (m, m, P + 6, P + 7))
    p('v_max3_f32 v%d, v%d, v%d, v%d' % (m + 1, m + 1, P + 8, P + 9))
    p('v_max3_f32 v%d, v%d, v%d, v%d' % (m, m, P + 10, P + 11))
    p('v_max3_f32 v%d, v%d, v%d, v%d' % (m + 1, m + 1, P + 12, P + 13))
    p('v_max3_f32 v%d, v%d, v%d, v%d' % (m, m, P + 14, P + 15))
    p('v_max_f32 v%d, v%d, v%d' % (m, m, m + 1))
    p('v_mul_f32 v%d, s%d, v%d' % (m, s_log2e, m))
    for i in range(8):
        p('v_pk_fma_f32 v[%d:%d], v[%d:%d], s[%d:%d], v[%d:%d] op_sel_hi:[1,1,0] neg_lo:[0,0,1] neg_hi:[0,0,1]' % (P + 2 * i, P + 2 * i + 1, P + 2 * i, P + 2 * i + 1, s_log2e, s_log2e + 1, m, m + 1))
    for i in range(16): p('v_exp_f32 v%d, v%d' % (P + i, P + i))
    p('v_pk_add_f32 v[%d:%d], v[%d:%d], v[%d:%d]' % (S, S + 1, P, P + 1, P + 2, P + 3))
    p('v_pk_add_f32 v[%d:%d], v[%d:%d], v[%d:%d]' % (m, m + 1, P + 4, P + 5, P + 6, P + 7))
    p('v_pk_add_f32 v[%d:%d], v[%d:%d], v[%d:%d]' % (S, S + 1, S, S + 1, P + 8, P + 9))
    p('v_pk_add_f32 v[%d:%d], v[%d:%d], v[%d:%d]' % (m, m + 1, m, m + 1, P + 10, P + 11))
    p('v_pk_add_f32 v[%d:%d], v[%d:%d], v[%d:%d]' % (S, S + 1, S, S + 1, P + 12, P + 13))
    p('v_pk_add_f32 v[%d:%d], v[%d:%d], v[%d:%d]' % (m, m + 1, m, m + 1, P + 14, P + 15))
    p('v_pk_add_f32 v[%d:%d], v[%d:%d], v[%d:%d]' % (S, S + 1, S, S + 1, m, m + 1))
    p('v_add_f32 v%d, v%d, v%d' % (S, S, S + 1))
    p('v_rcp_f32 v%d, v%d' % (S, S))
    for i in range(8):
        p('v_pk_mul_f32 v[%d:%d], v[%d:%d], v[%d:%d] op_sel_hi:[1,0]' % (P + 2 * i, P + 2 * i + 1, P + 2 * i, P + 2 * i + 1, S, S + 1))
    for i in range(8): cvt(p, F + i, P + 2 * i, P + 2 * i + 1)

def phi_elu(p, T, n, F, tmp):
    for base in range(0, n // 2, 4):
        prs = range(base, min(base + 4, n // 2))
        for k, i in enumerate(prs):
            p('v_pk_mul_f32 v[%d:%d], v[%d:%d], s[%d:%d]' % (tmp + 2 * k, tmp + 2 * k + 1, T + 2 * i, T + 2 * i + 1, s_log2e, s_log2e + 1))
        for k, i in enumerate(prs):
            p('v_exp_f32 v%d, v%d clamp' % (tmp + 2 * k, tmp + 2 * k)); p('v_exp_f32 v%d, v%d clamp' % (tmp + 2 * k + 1, tmp + 2 * k + 1))
        for k, i in enumerate(prs):
            p('v_max_f32 v%d, 0, v%d' % (T + 2 * i, T + 2 * i)); p('v_max_f32 v%d, 0, v%d' % (T + 2 * i + 1, T + 2 * i + 1))
        for k, i in enumerate(prs):
            p('v_pk_add_f32 v[%d:%d], v[%d:%d], v[%d:%d]' % (T + 2 * i, T + 2 * i + 1, T + 2 * i, T + 2 * i + 1, tmp + 2 * k, tmp + 2 * k + 1))
        for k, i in enumerate(prs):
            p('v_pk_add_f32 v[%d:%d], v[%d:%d], s[%d:%d]' % (T + 2 * i, T + 2 * i + 1, T + 2 * i, T + 2 * i + 1, s_eps, s_eps + 1))
        for k, i in enumerate(prs): cvt(p, F + i, T + 2 * i, T + 2 * i + 1)

ACC = [96, 112]
def vprep(p, VB0, VB1):
    for blk in range(2):
        for i in range(8): cvt(p, VB0 + 8 * blk + i, vV[blk] + 2 * i, vV[blk] + 2 * i + 1)
    for blk in range(2):
        for i in range(8): p('v_cndmask_b32_e64 v%d, v%d, v%d, s[%d:%d]' % (VB1 + 8 * blk + i, vONES, VB0 + 8 * blk + i, s_mask16, s_mask16 + 1))
    for blk in range(2):
        for i in range(8): p('v_cndmask_b32_e64 v%d, v%d, v%d, s[%d:%d]' % (VB0 + 8 * blk + i, VB0 + 8 * blk + i, vONES, s_mask16, s_mask16 + 1))

def insert_at(main, ins):
    out = []; ins = sorted(ins, key=lambda x: x[0]); k = 0
    for idx, m in enumerate(main):
        while k < len(ins) and ins[k][0] <= idx: out.append(ins[k][1]); k += 1
        out.append(m)
    out += [x[1] for x in ins[k:]]
    return out

UNITS = [(0, 0), (0, 1), (1, 0), (1, 1)]
ST = 184
UNITS_K = [(0, 1), (1, 1), (0, 0), (1, 0)]
def feat_k_B(p, vm, side):
    KB, PB, G = 168, 184, 128
    VB0, VB1 = 32, 48
    TB = [64, 80]
    VB = [VB0, VB1]
    U = UNITS_K
    r = Rec()
    for un, (blk, u) in enumerate(U):
        for i in range(4): cvt(r, KB + 4 * un + i, vK[blk] + 8 * u + 2 * i, vK[blk] + 8 * u + 2 * i + 1)
    head = list(r.l)
    r = Rec(); vprep(r, VB0, VB1); vp = list(r.l)
    PM = ['%s %s, %s, %s, 0' % (MF, vr(PB + 16 * un, 16), vr(vWP + 4 * u, 4), vr(KB + 4 * un, 4)) for un, (blk, u) in enumerate(U)]
    stream = head[:6] + [PM[0]] + head[6:10] + [PM[1]] + head[10:14] + [PM[2]] + head[14:16] + vp[:4] + [PM[3]] + vp[4:]
    def TA(un): return '%s %s, %s, %s, 0' % (MF, vr(TB[un % 2], 16), vr(KB + 8 * (un % 2), 4), vr(vSEL, 4))
    def TBm(un): return '%s %s, %s, %s, %s' % (MF, vr(TB[un % 2], 16), vr(KB + 8 * (un % 2) + 4, 4), vr(vSEL + 4, 4), vr(TB[un % 2], 16))
    def CV(un):
        q = Rec()
        for i in range(8): cvt(q, G + i, TB[un % 2] + 2 * i, TB[un % 2] + 2 * i + 1)
        return q.l
    def AA(un):
        blk, u = U[un]; c = '0' if blk == 0 else vr(ACC[u], 16)
        return '%s %s, %s, %s, %s' % (MF, vr(ACC[u], 16), vr(G, 4), vr(VB[u] + 8 * blk, 4), c)
    def AB(un):
        blk, u = U[un]
        return '%s %s, %s, %s, %s' % (MF, vr(ACC[u], 16), vr(G + 4, 4), vr(VB[u] + 8 * blk + 4, 4), vr(ACC[u], 16))
    q = Rec(); exchange_addr(q); ad = q.l
    q = Rec(); exchange_scal(q, 1); sc = q.l
    for un in range(4):
        q = Rec(); softmax16(q, PB + 16 * un, KB + 8 * (un % 2), 136); sm = q.l
        ins = []
        if un >= 1:
            if cfg.mfexp:
                ins += [(17, TA(un - 1)), (21, TBm(un - 1))]
                if un >= 2: ins += [(25, AA(un - 2)), (29, AB(un - 2))]
                ins += [(35 + k, c) for k, c in enumerate(CV(un - 1))]
            else:
                ins += [(2, TA(un - 1)), (10, TBm(un - 1))]
                ins += [(34 + k, c) for k, c in enumerate(CV(un - 1))]
                ins += [(46, AA(un - 1)), (54, AB(un - 1))]
        if un == 2: ins += [(12 + k, x) for k, x in enumerate(ad)]
        if un == 3:
            w0 = 46 if cfg.mfexp else 14
            ins += [(w0 + 2 * k, 'ds_write_b128 v%d, %s offset:%d' % (vEXW, vr(ACC[1] + 4 * k, 4), k * 1024)) for k in range(4)]
            ins += [(4 + k, x) for k, x in enumerate(sc)]
        stream += insert_at(sm, ins)
    merge(p, stream, side, 14 if len(side) <= 8 else 12, start=4)
    tags = ['v_mov_b32 v%d, v%d' % (ST + 4 * k + 3, vT) for k in range(4)]
    RC = 216
    p('s_nop 1'); p(TA(3))
    for t in tags: p(t)
    p(TBm(3))
    if cfg.mfexp: p(AA(2)); p(AB(2))
    vm.wait('wq1', ' lgkmcnt(0)')
    stamp(p, 18)
    p('s_barrier')
    stamp(p, 19)
    for q in range(4): p('ds_read_b128 %s, v%d offset:%d' % (vr(RC + 4 * q, 4), vEXR, q * 1024))
    for c in CV(3): p(c)
    p('s_nop 1'); p(AA(3)); p(AB(3))
    exchange_finish(p, 1)

def feat_k_A(p, side):
    PK, VB0, VB1 = 168, 200, 216
    r = Rec()
    for blk in range(2): phi_elu(r, vK[blk], 16, PK + 8 * blk, 184)
    vprep(r, VB0, VB1)
    VB = [VB0, VB1]
    for k in range(2): r('v_mov_b32 v%d, v%d' % (ST + 4 * k + 3, vT))
    exchange_addr(r)
    for blk in range(2):
        for u in range(2):
            c = '0' if blk == 0 else vr(ACC[u], 16)
            r('%s %s, %s, %s, %s' % (MF, vr(ACC[u], 16), vr(PK + 8 * blk, 4), vr(VB[u] + 8 * blk, 4), c))
            r('%s %s, %s, %s, %s' % (MF, vr(ACC[u], 16), vr(PK + 8 * blk + 4, 4), vr(VB[u] + 8 * blk + 4, 4), vr(ACC[u], 16)))
    merge(p, r.l, side, 10 if len(side) <= 8 else 7, start=2)

FQ = 32
def feat_q_B(p, side, late):
    KB, PB = 168, 184
    r = Rec()
    for un, (blk, u) in enumerate(UNITS):
        for i in range(4): cvt(r, KB + 4 * un + i, vQ[blk] + 8 * u + 2 * i, vQ[blk] + 8 * u + 2 * i + 1)
    head = list(r.l)
    PM = ['%s %s, %s, %s, 0' % (MF, vr(PB + 16 * un, 16), vr(vWP + 4 * u, 4), vr(KB + 4 * un, 4)) for un, (blk, u) in enumerate(UNITS)]
    stream = head[:6] + [PM[0]] + head[6:10] + [PM[1]] + head[10:14] + [PM[2]] + head[14:16] + ['s_nop 3', PM[3]]
    for un in range(4):
        q = Rec(); softmax16(q, PB + 16 * un, FQ + 8 * un, 136); stream += q.l
    n = len(stream)
    stream = insert_at(stream, [(n - cfg.h2lead + k, x) for k, x in enumerate(late)])
    merge(p, stream, side, 9, start=2)

def feat_q_A(p, side, late):
    r = Rec()
    for blk in range(2):
        for u in range(2): phi_elu(r, vQ[blk] + 8 * u, 8, FQ + 4 * (2 * blk + u), 184)
    merge(p, r.l, side, 6, start=1)
    for x in late: emit(p, x)

vEXW, vEXR, vH1S = 28, 29, 30
def exchange_addr(p):
    p('v_lshlrev_b32 v27, 4, v%d' % v_lane)
    p('s_lshl_b32 s%d, s%d, 12' % (s_t0, s_w)); p('s_add_u32 s%d, s%d, %d' % (s_t0, s_t0, (2 if cfg.wosched else 3) * SLOT))
    p('v_add_u32 v%d, s%d, v27' % (vEXW, s_t0))
    p('s_xor_b32 s%d, s%d, 4096' % (s_t0, s_t0))
    p('v_xor_b32 v27, 256, v27')
    p('v_add_u32 v%d, s%d, v27' % (vEXR, s_t0))
    p('v_lshrrev_b32 v%d, 4, v%d' % (vH1S, v_lane)); p('v_lshlrev_b32 v%d, 12, v%d' % (vH1S, vH1S)); p('v_and_b32 v27, 15, v%d' % v_lane); p('v_lshl_add_u32 v%d, v27, 4, v%d' % (vH1S, vH1S))

TZ = 200
def exchange_scal(p, br):
    p('s_lshl_b32 s%d, s%d, 2' % (s_head, s_jj)); p('s_add_u32 s%d, s%d, s%d' % (s_head, s_head, s_w)); p('s_add_u32 s%d, s%d, %d' % (s_head, s_head, 32 * br))
    p('s_lshl_b32 s%d, s%d, 16' % (s_t2, s_head)); p('s_lshl_b32 s%d, s%d, 8' % (s_t1, s_i)); p('s_add_u32 s%d, s%d, s%d' % (s_t2, s_t2, s_t1)); p('s_add_u32 s%d, s%d, %d' % (s_t2, s_t2, WS_INB))

def exchange_finish(p, br):
    nq = 4 if br == 1 else 2
    nh = 2 * nq
    RC = 216
    pos = lambda r: ST + 4 * (r >> 1) + (r & 1)
    p('s_waitcnt lgkmcnt(0)')
    for r in range(4 * nq):
        d = pos(r) if r < nh else TZ + r - nh
        p('v_add_f32 v%d, v%d, v%d' % (d, ACC[0] + r, RC + r))
    nd = 8 if br == 1 else 4
    for r in range(nd): p('v_permlane16_swap_b32 v%d, v%d' % (pos(r), TZ + r))
    for m in range(nd // 2): p('v_cndmask_b32_e64 v%d, v%d, v%d, s[%d:%d]' % (ST + 4 * m + 2, TZ + 2 * m, TZ + 2 * m + 1, s_odd, s_odd + 1))

def exchange(p, vm, br):
    nq = 2
    RC = 216
    src1 = ACC[1] + 8
    for q in range(nq): p('ds_write_b128 v%d, %s offset:%d' % (vEXW, vr(src1 + 4 * q, 4), q * 1024))
    exchange_scal(p, br)
    vm.wait('wq1', ' lgkmcnt(0)')
    stamp(p, 18)
    p('s_barrier')
    stamp(p, 19)
    for q in range(nq): p('ds_read_b128 %s, v%d offset:%d' % (vr(RC + 4 * q, 4), vEXR, q * 1024))
    exchange_finish(p, br)

def hop1_store_ops(p, vm, br):
    nm = 4 if br == 1 else 2
    ops = []
    for m in range(nm):
        def f(m=m):
            vm.op('buffer_store_dwordx4 %s, v%d, s[%d:%d], s%d offen sc1' % (vr(ST + 4 * m, 4), vH1S, sWS, sWS + 3, s_t2))
            if m < nm - 1: p('s_add_u32 s%d, s%d, 16384' % (s_t2, s_t2))
        ops.append(f)
    return ops

def spin_tail(p, name):
    p('s_cbranch_vccz L_%s_ok' % name)
    p('s_sub_u32 s%d, s%d, 1' % (s_spin, s_spin))
    p('s_cmp_gt_i32 s%d, 0' % s_spin)
    p('s_cbranch_scc1 L_%s' % name)
    p.label('L_%s_ok' % name)

def tagcheck(p, regs, t0, t1):
    regs = list(regs)
    p('v_min_u32 v%d, v%d, v%d' % (t0, regs[0], regs[1])); p('v_max_u32 v%d, v%d, v%d' % (t1, regs[0], regs[1]))
    k = 2
    while k + 1 < len(regs):
        p('v_min3_u32 v%d, v%d, v%d, v%d' % (t0, t0, regs[k], regs[k + 1])); p('v_max3_u32 v%d, v%d, v%d, v%d' % (t1, t1, regs[k], regs[k + 1])); k += 2
    if k < len(regs):
        p('v_min_u32 v%d, v%d, v%d' % (t0, t0, regs[k])); p('v_max_u32 v%d, v%d, v%d' % (t1, t1, regs[k]))
    p('v_xor_b32 v%d, v%d, v%d' % (t0, vT, t0)); p('v_xor_b32 v%d, v%d, v%d' % (t1, vT, t1)); p('v_or_b32 v%d, v%d, v%d' % (t0, t0, t1))
    p('v_cmp_ne_u32 vcc, 0, v%d' % t0)

H1 = 184
s_h1a = 98
def hop1_load_ops(p, vm, br, retry=False):
    ops = []
    def addr():
        p('s_lshl_b32 s%d, s%d, 16' % (s_h1a, s_head)); p('s_lshl_b32 s%d, s%d, 12' % (s_t1, s_i)); p('s_add_u32 s%d, s%d, s%d' % (s_h1a, s_h1a, s_t1)); p('s_add_u32 s%d, s%d, %d' % (s_h1a, s_h1a, WS_INB))
        p('v_lshlrev_b32 v27, 4, v%d' % v_lane)
    if not retry: ops.append(addr)
    for n in range(4):
        ops.append(lambda n=n: vm.op('buffer_load_dwordx4 %s, v27, s[%d:%d], s%d offen offset:%d sc1' % (vr(H1 + 4 * n, 4), sWS, sWS + 3, s_h1a, n * 1024), 'h1l' if n == 3 else None))
    return ops

def hop1_reduce(p, vm, br):
    L = 'AB'[br]; LD = H1
    vm.wait('h1l')
    if br == 0:
        p('s_cmp_ge_u32 s%d, 8' % s_i); p('s_cbranch_scc1 L_h1skip')
    p('s_mov_b32 s%d, %d' % (s_spin, cfg.spin))
    tagcheck(p, [LD + 4 * n + 3 for n in range(4)], 28, 29)
    p('s_cbranch_vccz L_h1%s_ok' % L)
    p.label('L_h1%s' % L)
    for f in hop1_load_ops(p, vm, br, retry=True): f()
    vm.wait_all()
    tagcheck(p, [LD + 4 * n + 3 for n in range(4)], 28, 29)
    spin_tail(p, 'h1%s' % L)
    a, b, z, t = 216, 217, 218, 219
    p('v_add_f32 v%d, v%d, v%d' % (a, LD, LD + 4)); p('v_add_f32 v%d, v%d, v%d' % (b, LD + 1, LD + 5)); p('v_add_f32 v%d, v%d, v%d' % (z, LD + 2, LD + 6))
    for n in range(2, 4):
        p('v_add_f32 v%d, v%d, v%d' % (a, a, LD + 4 * n)); p('v_add_f32 v%d, v%d, v%d' % (b, b, LD + 4 * n + 1)); p('v_add_f32 v%d, v%d, v%d' % (z, z, LD + 4 * n + 2))
    p('v_mov_b32 v%d, v%d' % (t, z))
    p('s_lshl_b32 s%d, s%d, 11' % (s_t0, s_head)); p('s_lshl_b32 s%d, s%d, 7' % (s_t1, s_i)); p('s_add_u32 s%d, s%d, s%d' % (s_t0, s_t0, s_t1)); p('s_add_u32 s%d, s%d, %d' % (s_t0, s_t0, WS_OUTK))
    p('v_permlane32_swap_b32 v%d, v%d' % (a, b))
    p('v_permlane32_swap_b32 v%d, v%d' % (z, t))
    p('v_add_f32 v%d, v%d, v%d' % (a, a, b)); p('v_add_f32 v%d, v%d, v%d' % (z, z, t))
    p('v_lshlrev_b32 v27, 4, v%d' % v_lane)
    p('v_mov_b32 v%d, v%d' % (b, a)); p('v_mov_b32 v%d, v%d' % (t, z))
    p('v_mov_b32 v223, v%d' % vT)
    p('s_nop 0')
    p('v_permlane16_swap_b32 v%d, v%d' % (a, b))
    p('v_permlane16_swap_b32 v%d, v%d' % (z, t))
    p('v_add_f32 v%d, v%d, v%d' % (a, a, b)); p('v_add_f32 v%d, v%d, v%d' % (z, z, t))
    p('v_mov_b32 v%d, v%d' % (b, a))
    p('s_nop 0')
    p('v_mov_b32_dpp v%d, v%d quad_perm:[1,1,1,1] row_mask:0xf bank_mask:0xf' % (t, z))
    p('v_permlane32_swap_b32 v%d, v%d' % (a, b))
    p('v_mov_b32_dpp v%d, v%d quad_perm:[0,0,0,0] row_mask:0xf bank_mask:0xf' % (222, z))
    cvt(p, 220, a, b)
    cvt(p, 222, 222, t)
    p('v_mov_b32_dpp v221, v220 row_ror:8 row_mask:0xf bank_mask:0xf')
    p('s_mov_b32 exec_lo, 0xff'); p('s_mov_b32 exec_hi, 0')
    vm.op('buffer_store_dwordx4 v[220:223], v27, s[%d:%d], s%d offen sc1' % (sWS, sWS + 3, s_t0))
    p('s_mov_b64 exec, -1')
    if br == 0: p.label('L_h1skip')

KVA = 216
H2 = 64
s_h2a, s_h2b = 100, 101
s_hi8 = 98
def hop2_load_ops(p, vm, br, retry=False):
    nm = 4 if br == 1 else 2
    ops = []
    def addr():
        p('s_lshl_b32 s%d, s%d, 11' % (s_h2a, s_head)); p('s_add_u32 s%d, s%d, %d' % (s_h2a, s_h2a, WS_OUTK)); p('s_xor_b32 s%d, s%d, 2048' % (s_h2b, s_h2a))
        p('s_mov_b32 s%d, 0xff00ff00' % s_hi8); p('s_mov_b32 s%d, 0xff00ff00' % (s_hi8 + 1))
    def addr2():
        p('v_lshrrev_b32 v31, 4, v%d' % v_lane); p('v_lshlrev_b32 v31, 7, v31'); p('v_and_b32 v30, 7, v%d' % v_lane); p('v_lshl_add_u32 v31, v30, 4, v31')
    if not retry: ops += [addr, addr2]
    for u in range(2):
        for m in range(nm):
            r = H2 + 16 * u + 4 * m
            ops.append(lambda r=r, u=u, m=m: vm.op('buffer_load_dwordx4 %s, v31, s[%d:%d], s%d offen offset:%d sc1' % (vr(r, 4), sWS, sWS + 3, s_h2a if u == 0 else s_h2b, m * 512), 'h2l' if (u == 1 and m == nm - 1) else None))
    return ops

def hop2_gather(p, vm, br):
    L = 'AB'[br]; nm = 4 if br == 1 else 2
    tags = [H2 + 16 * u + 4 * m + 3 for u in range(2) for m in range(nm)]
    p('s_mov_b32 s%d, %d' % (s_spin, cfg.spin))
    vm.wait('h2l')
    tagcheck(p, tags, 28, 29)
    p('s_cbranch_vccz L_h2%s_ok' % L)
    p.label('L_h2%s' % L)
    for f in hop2_load_ops(p, vm, br, retry=True): f()
    vm.wait_all()
    tagcheck(p, tags, 28, 29)
    spin_tail(p, 'h2%s' % L)
    for u in range(2):
        for m in range(nm): p('v_cndmask_b32_e64 v%d, v%d, v%d, s[%d:%d]' % (KVA + 8 * u + m, H2 + 16 * u + 4 * m, H2 + 16 * u + 4 * m + 1, s_hi8, s_hi8 + 1))
        for m in range(nm): p('v_mov_b32 v%d, v%d' % (KVA + 8 * u + nm + m, H2 + 16 * u + 4 * m + 2))
    for u in range(2):
        for m in range(nm): p('v_permlane16_swap_b32 v%d, v%d' % (KVA + 8 * u + m, KVA + 8 * u + nm + m))

OF = 232
def o_addr(p):
    p('s_lshl_b32 s%d, s%d, 2' % (s_t0, s_i)); p('s_lshl_b32 s%d, s%d, 1' % (s_t1, s_th)); p('s_add_u32 s%d, s%d, s%d' % (s_t0, s_t0, s_t1))
    p('s_lshl_b32 s%d, s%d, 16' % (s_t0, s_t0)); p('s_lshl_b32 s%d, s%d, 10' % (s_t1, s_head)); p('s_add_u32 s%d, s%d, s%d' % (s_t0, s_t0, s_t1)); p('s_add_u32 s%d, s%d, %d' % (s_t0, s_t0, WS_O))
    p('s_xor_b32 s%d, s%d, 1024' % (s_t1, s_t0))
    p('s_add_u32 s%d, s%d, 65536' % (s_t2, s_t0)); p('s_add_u32 s%d, s%d, 65536' % (s_t3, s_t1))

def poison_ops(p, vm, br):
    def a():
        p('s_lshl_b32 s%d, s%d, 2' % (s_head, s_jj)); p('s_add_u32 s%d, s%d, s%d' % (s_head, s_head, s_w)); p('s_add_u32 s%d, s%d, %d' % (s_head, s_head, 32 * br))
        o_addr(p); p('v_lshlrev_b32 v27, 4, v%d' % v_lane)
        for k in range(4): p('v_mov_b32 v%d, -1' % (248 + k))
    ops = [a]
    for k, sr_ in enumerate((s_t0, s_t1, s_t2, s_t3)):
        ops.append(lambda k=k, sr_=sr_: vm.op('buffer_store_dwordx4 v[248:251], v27, s[%d:%d], s%d offen sc1' % (sWS, sWS + 3, sr_), 'poison' if k == 3 else None))
    def allp():
        for f in ops: f()
    return allp

def o_warm_ops(p, vm):
    def a():
        o_addr(p); p('v_lshlrev_b32 v27, 4, v%d' % v_lane)
    ops = [a]
    for k, sr_ in enumerate((s_t0, s_t1, s_t2, s_t3)):
        ops.append(lambda k=k, sr_=sr_: vm.op('buffer_load_dwordx4 v[%d:%d], v27, s[%d:%d], s%d offen %s' % (232 + 4 * k, 235 + 4 * k, sWS, sWS + 3, sr_, cfg.owarmfl)))
    return ops

def o_phase(p, vm, br):
    NB = [64, 80, 96, 112]
    for un, (blk, u) in enumerate(UNITS):
        if br == 1:
            p('%s %s, %s, %s, 0' % (MF, vr(NB[un], 16), vr(KVA + 8 * u, 4), vr(FQ + 8 * un, 4)))
            p('%s %s, %s, %s, %s' % (MF, vr(NB[un], 16), vr(KVA + 8 * u + 4, 4), vr(FQ + 8 * un + 4, 4), vr(NB[un], 16)))
        else:
            p('%s %s, %s, %s, 0' % (MF, vr(NB[un], 16), vr(KVA + 8 * u, 4), vr(FQ + 4 * un, 4)))
        if un == 0:
            if cfg.oalias:
                p('s_lshl_b32 s%d, s%d, 16' % (s_t0, s_head)); p('s_lshl_b32 s%d, s%d, 12' % (s_t1, s_i)); p('s_add_u32 s%d, s%d, s%d' % (s_t0, s_t0, s_t1)); p('s_add_u32 s%d, s%d, %d' % (s_t0, s_t0, WS_INB))
                p('s_add_u32 s%d, s%d, 1024' % (s_t1, s_t0)); p('s_add_u32 s%d, s%d, 2048' % (s_t2, s_t0)); p('s_add_u32 s%d, s%d, 3072' % (s_t3, s_t0))
            else:
                p('s_lshl_b32 s%d, s%d, 2' % (s_t0, s_i)); p('s_lshl_b32 s%d, s%d, 1' % (s_t1, s_th)); p('s_add_u32 s%d, s%d, s%d' % (s_t0, s_t0, s_t1))
                p('s_lshl_b32 s%d, s%d, 16' % (s_t0, s_t0)); p('s_lshl_b32 s%d, s%d, 10' % (s_t1, s_head)); p('s_add_u32 s%d, s%d, s%d' % (s_t0, s_t0, s_t1)); p('s_add_u32 s%d, s%d, %d' % (s_t0, s_t0, WS_O))
                p('s_xor_b32 s%d, s%d, 1024' % (s_t1, s_t0))
                p('s_add_u32 s%d, s%d, 65536' % (s_t2, s_t0)); p('s_add_u32 s%d, s%d, 65536' % (s_t3, s_t1))
            p('v_lshlrev_b32 v27, 4, v%d' % v_lane)
    soffs = {(0, 0): s_t0, (0, 1): s_t1, (1, 0): s_t2, (1, 1): s_t3}
    for un, (blk, u) in enumerate(UNITS):
        N = NB[un]; num = N; den = N + 8
        p('v_add_f32 v%d, s%d, v%d' % (den, s_eps, den))
        p('v_rcp_f32 v%d, v%d' % (den, den))
        for i in range(4):
            p('v_pk_mul_f32 v[%d:%d], v[%d:%d], v[%d:%d] op_sel_hi:[1,0]' % (num + 2 * i, num + 2 * i + 1, num + 2 * i, num + 2 * i + 1, den, den + 1))
        for i in range(4): cvt(p, OF + 4 * un + i, num + 2 * i, num + 2 * i + 1)
        vm.op('buffer_store_dwordx4 %s, v27, s[%d:%d], s%d offen sc1' % (vr(OF + 4 * un, 4), sWS, sWS + 3, soffs[(blk, u)]), 'ost')
    p('s_lshl_b32 s%d, s%d, 1' % (s_t0, s_i)); p('s_add_u32 s%d, s%d, s%d' % (s_t0, s_t0, s_th)); p('s_lshl_b32 s%d, s%d, 5' % (s_t0, s_t0))
    p('s_lshl_b32 s%d, s%d, 1' % (s_t1, s_jj)); p('s_add_u32 s%d, s%d, s%d' % (s_t0, s_t0, s_t1)); p('s_add_u32 s%d, s%d, s%d' % (s_t0, s_t0, s_hp))
    p('s_add_u32 s%d, s%d, %d' % (s_t0, s_t0, 16 * br)); p('s_lshl_b32 s%d, s%d, 7' % (s_t0, s_t0)); p('s_add_u32 s%d, s%d, %d' % (s_h2a, s_t0, WS_FLAG))

def o_flag(p, vm):
    p('v_mov_b32 v27, 0')
    vm.wait('ost')
    p('s_mov_b64 exec, 1')
    vm.op('buffer_store_dword v%d, v27, s[%d:%d], s%d offen %s' % (vT, sWS, sWS + 3, s_h2a, cfg.flagfl))
    p('s_mov_b64 exec, -1')

def gate_load_ops(p, vm):
    X, Gw = GX, GW
    def a0():
        p('s_lshl_b32 s%d, s%d, 7' % (s_t0, s_i)); p('s_lshl_b32 s%d, s%d, 4' % (s_t1, s_jj)); p('s_add_u32 s%d, s%d, s%d' % (s_t0, s_t0, s_t1))
        p('s_lshl_b32 s%d, s%d, 2' % (s_t1, s_w)); p('s_add_u32 s%d, s%d, s%d' % (s_t0, s_t0, s_t1))
        p('s_lshl_b32 s%d, s%d, 10' % (s_t2, s_t0))
    def a1():
        p('s_lshr_b32 s%d, s%d, 2' % (s_t3, s_t0)); p('s_lshl_b32 s%d, s%d, 7' % (s_t3, s_t3)); p('s_add_u32 s%d, s%d, %d' % (s_b + 1, s_t3, WS_G))
        p('v_and_b32 v27, 15, v%d' % v_lane); p('v_lshlrev_b32 v27, 4, v27')
    def a2():
        p('v_lshrrev_b32 v28, 4, v%d' % v_lane); p('v_lshl_add_u32 v28, v28, 10, v27')
    ops = [a0, a1, a2]
    for q in range(4):
        ops.append(lambda q=q: vm.op('buffer_load_dwordx4 %s, v28, s[%d:%d], s%d offen offset:%d' % (vr(X + 4 * q, 4), sX, sX + 3, s_t2, q * 256)))
    for q in range(4):
        ops.append(lambda q=q: vm.op('buffer_load_dwordx4 %s, v27, s[%d:%d], 0 offen offset:%d' % (vr(Gw + 4 * q, 4), sMISC, sMISC + 3, q * 256), 'gate' if q == 3 else None))
    return ops

def gate_finish(p, vm):
    X, Gw = GX, GW
    vm.wait('gate')
    acc = 200
    p('v_mov_b32 v%d, 0' % acc); p('v_mov_b32 v%d, 0' % (acc + 1))
    for k in range(16):
        p('v_lshlrev_b32 v202, 16, v%d' % (X + k)); p('v_lshlrev_b32 v203, 16, v%d' % (Gw + k))
        p('v_and_b32 v204, 0xffff0000, v%d' % (X + k)); p('v_and_b32 v205, 0xffff0000, v%d' % (Gw + k))
        p('v_fmac_f32 v%d, v202, v203' % acc); p('v_fmac_f32 v%d, v204, v205' % (acc + 1))
    p('v_add_f32 v%d, v%d, v%d' % (acc, acc, acc + 1))
    for sh in (8, 4, 2, 1):
        p('v_add_f32_dpp v%d, v%d, v%d row_ror:%d row_mask:0xf bank_mask:0xf' % (acc, acc, acc, sh))
    p('v_mul_f32 v%d, s%d, v%d' % (acc, s_log2e, acc))
    p('v_exp_f32_e64 v%d, -v%d' % (acc, acc))
    p('v_add_f32 v%d, 1.0, v%d' % (acc, acc))
    p('v_rcp_f32 v%d, v%d' % (acc, acc))
    p('v_mov_b32 v%d, v%d' % (acc + 1, vT))
    p('v_lshrrev_b32 v27, 4, v%d' % v_lane); p('v_lshlrev_b32 v27, 3, v27')
    p('s_mov_b32 exec_lo, 0x00010001'); p('s_mov_b32 exec_hi, 0x00010001')
    vm.op('buffer_store_dwordx2 v[%d:%d], v27, s[%d:%d], s%d offen sc1' % (acc, acc + 1, sWS, sWS + 3, s_b + 1))
    p('s_mov_b64 exec, -1')

def p3_setup(p):
    p('v_lshrrev_b32 v27, 5, v%d' % v_lane); p('v_lshlrev_b32 v27, 2, v27')
    p('v_bfe_u32 v28, v%d, 2, 2' % v_lane); p('v_add_u32 v27, v27, v28'); p('v_lshlrev_b32 v27, 7, v27')
    p('v_bfe_u32 v29, v%d, 4, 1' % v_lane); p('v_lshl_add_u32 v27, v29, 5, v27')
    p('v_and_b32 v29, 3, v%d' % v_lane); p('v_lshl_add_u32 v27, v29, 3, v27')
    if not cfg.two:
        p('s_and_b32 s%d, s%d, 1' % (s_t0, s_r)); p('s_xor_b32 s%d, s%d, s%d' % (s_t0, s_t0, s_hp))
        p('s_lshl_b32 s%d, s%d, 16' % (s_t0, s_t0)); p('s_add_u32 s%d, s%d, %d' % (s_t0, s_t0, SLOT)); p('v_add_u32 v27, s%d, v27' % s_t0)
    p('v_lshrrev_b32 v28, 1, v28')
    p('v_lshl_add_u32 v%d, v28, 6, v27' % vOA)
    p('v_xor_b32 v28, 1, v28'); p('v_lshl_add_u32 v%d, v28, 6, v27' % (vOA + 1))
    p('v_and_b32 v27, 31, v%d' % v_lane)
    p('s_lshl_b32 s%d, s%d, 14' % (s_t0, s_hp)); p('s_lshl_b32 s%d, s%d, 13' % (s_t1, s_th)); p('s_add_u32 s%d, s%d, s%d' % (s_t0, s_t0, s_t1))
    p('v_lshlrev_b32 v28, 8, v27'); p('v_add_u32 v28, s%d, v28' % s_t0)
    p('v_and_b32 v29, 7, v27'); p('v_lshrrev_b32 v27, 5, v%d' % v_lane); p('v_xor_b32 v29, v29, v27')
    for q in range(4):
        p('v_xor_b32 v27, %d, v29' % (2 * q)); p('v_lshl_add_u32 v%d, v27, 4, v28' % (vEW + q))
    p('v_lshrrev_b32 v27, 3, v%d' % v_lane); p('v_and_b32 v28, 7, v%d' % v_lane); p('v_lshlrev_b32 v28, 1, v28')
    p('s_lshl_b32 s%d, s%d, 12' % (s_t0, s_w))
    p('v_lshlrev_b32 v29, 8, v27'); p('v_add_u32 v29, s%d, v29' % s_t0)
    for x in range(2):
        p('v_or_b32 v30, %d, v28' % x); p('v_xor_b32 v30, v30, v27'); p('v_lshl_add_u32 v%d, v30, 4, v29' % (vER + x))
    p('v_and_b32 v28, 7, v%d' % v_lane); p('v_lshlrev_b32 v28, 4, v28'); p('v_lshl_add_u32 v14, v27, 10, v28')
    p('v_and_b32 v15, %d, v%d' % (7 if cfg.two else 15, v_lane)); p('v_lshlrev_b32 v15, 7, v15')
    p('v_lshlrev_b32 v16, 4, v%d' % v_lane)
    p('v_and_b32 v28, 31, v%d' % v_lane); p('v_lshrrev_b32 v29, 2, v28'); p('v_lshlrev_b32 v29, 7, v29'); p('v_and_b32 v28, 3, v28'); p('v_lshl_add_u32 v17, v28, 3, v29')

s_fl, s_oa, s_ga, s_out0, s_out1 = 47, 48, 49, 50, 51
def p3_scalars(p):
    p('s_lshl_b32 s%d, s%d, 1' % (s_t0, s_tb)); p('s_add_u32 s%d, s%d, s%d' % (s_t0, s_t0, s_hp)); p('s_lshl_b32 s%d, s%d, 11' % (s_t0, s_t0)); p('s_add_u32 s%d, s%d, %d' % (s_fl, s_t0, WS_FLAG))
    p('s_lshl_b32 s%d, s%d, 1' % (s_t0, s_tb)); p('s_add_u32 s%d, s%d, s%d' % (s_t0, s_t0, s_th)); p('s_lshl_b32 s%d, s%d, 16' % (s_t1, s_t0))
    p('s_lshl_b32 s%d, s%d, 15' % (s_t2, s_hp)); p('s_add_u32 s%d, s%d, s%d' % (s_t1, s_t1, s_t2)); p('s_add_u32 s%d, s%d, %d' % (s_oa, s_t1, WS_O))
    p('s_lshl_b32 s%d, s%d, 10' % (s_t0, s_t0)); p('s_add_u32 s%d, s%d, %d' % (s_ga, s_t0, WS_G))
    if cfg.oalias:
        p('s_and_b32 s%d, s%d, 1' % (s_t0, s_tb)); p('s_lshl_b32 s%d, s%d, 5' % (s_t1, s_hp)); p('s_add_u32 s%d, s%d, s%d' % (s_t1, s_t1, s_t0)); p('s_lshl_b32 s%d, s%d, 16' % (s_t1, s_t1))
        p('s_lshl_b32 s%d, s%d, 10' % (s_t0, s_t0)); p('s_add_u32 s%d, s%d, s%d' % (s_t1, s_t1, s_t0))
        p('s_lshr_b32 s%d, s%d, 1' % (s_t0, s_tb)); p('s_lshl_b32 s%d, s%d, 12' % (s_t0, s_t0)); p('s_add_u32 s%d, s%d, s%d' % (s_t1, s_t1, s_t0))
        p('s_lshl_b32 s%d, s%d, 11' % (s_t0, s_th)); p('s_add_u32 s%d, s%d, s%d' % (s_t1, s_t1, s_t0)); p('s_add_u32 s%d, s%d, %d' % (s_oa, s_t1, WS_INB))
    p('s_lshl_b32 s%d, s%d, 6' % (s_t0, s_tb)); p('s_lshl_b32 s%d, s%d, 4' % (s_t1, s_w)); p('s_add_u32 s%d, s%d, s%d' % (s_t0, s_t0, s_t1)); p('s_lshl_b32 s%d, s%d, 10' % (s_t0, s_t0))
    p('s_lshl_b32 s%d, s%d, 7' % (s_t1, s_cb)); p('s_add_u32 s%d, s%d, s%d' % (s_out0, s_t0, s_t1)); p('s_add_u32 s%d, s%d, 8192' % (s_out1, s_out0))
    if cfg.orot: p('s_mov_b32 s%d, s%d' % (s_rc, s_cb))
    else: p('s_mov_b32 s%d, 0' % s_rc)
    p('s_lshr_b32 s%d, s%d, 1' % (s_r4, s_r)); p('s_lshl_b32 s%d, s%d, 2' % (s_r4, s_r4))

s_oa1, s_fl1, s_rb0, s_rb1, s_kx4 = 52, 60, 61, 89, 96
def p3_scalars2(p):
    p('s_lshr_b32 s%d, s%d, 2' % (s_t0, s_cb)); p('s_xor_b32 s%d, s%d, s%d' % (s_t0, s_t0, s_hp)); p('s_and_b32 s%d, s%d, 1' % (s_t0, s_t0))
    p('s_lshl_b32 s%d, s%d, 2' % (s_kx4, s_t0))
    p('s_lshr_b32 s%d, s%d, 1' % (s_t1, s_r)); p('s_xor_b32 s%d, s%d, s%d' % (s_t0, s_t0, s_t1)); p('s_lshl_b32 s%d, s%d, 10' % (s_t0, s_t0))
    p('s_lshl_b32 s%d, s%d, 12' % (s_t1, s_tb)); p('s_add_u32 s%d, s%d, s%d' % (s_t0, s_t0, s_t1)); p('s_add_u32 s%d, s%d, %d' % (s_fl, s_t0, WS_FLAG)); p('s_add_u32 s%d, s%d, 2048' % (s_fl1, s_fl))
    if cfg.oalias:
        p('s_and_b32 s%d, s%d, 1' % (s_t0, s_tb)); p('s_lshl_b32 s%d, s%d, 16' % (s_t1, s_t0))
        p('s_lshl_b32 s%d, s%d, 10' % (s_t0, s_t0)); p('s_add_u32 s%d, s%d, s%d' % (s_t1, s_t1, s_t0))
        p('s_lshr_b32 s%d, s%d, 1' % (s_t0, s_tb)); p('s_lshl_b32 s%d, s%d, 12' % (s_t0, s_t0)); p('s_add_u32 s%d, s%d, s%d' % (s_t1, s_t1, s_t0))
        p('s_lshl_b32 s%d, s%d, 11' % (s_t0, s_th)); p('s_add_u32 s%d, s%d, s%d' % (s_t1, s_t1, s_t0)); p('s_add_u32 s%d, s%d, %d' % (s_oa, s_t1, WS_INB))
        p('s_add_u32 s%d, s%d, %d' % (s_oa1, s_oa, 32 * 65536))
    else:
        p('s_lshl_b32 s%d, s%d, 1' % (s_t0, s_tb)); p('s_add_u32 s%d, s%d, s%d' % (s_t0, s_t0, s_th)); p('s_lshl_b32 s%d, s%d, 16' % (s_t1, s_t0)); p('s_add_u32 s%d, s%d, %d' % (s_oa, s_t1, WS_O))
        p('s_add_u32 s%d, s%d, 32768' % (s_oa1, s_oa))
    p('s_and_b32 s%d, s%d, 1' % (s_t0, s_r)); p('s_lshl_b32 s%d, s%d, 16' % (s_t0, s_t0)); p('s_add_u32 s%d, s%d, %d' % (s_rb0, s_t0, SLOT))
    p('s_xor_b32 s%d, s%d, 65536' % (s_t0, s_t0)); p('s_add_u32 s%d, s%d, %d' % (s_rb1, s_t0, SLOT))

def p3two(p, vm, br):
    L = 'AB'[br]
    OA = [[64, 80], [96, 112]]
    GV = 152
    LA = cfg.ola2
    vm.op('buffer_load_dwordx2 v[%d:%d], v17, s[%d:%d], s%d offen sc1' % (GV, GV + 1, sWS, sWS + 3, s_ga), 'g')
    p('s_mov_b32 s%d, %d' % (s_spin, cfg.spin))
    p.label('L_fl%s' % L)
    vm.op('buffer_load_dword v28, v15, s[%d:%d], s%d offen sc1' % (sWS, sWS + 3, s_fl))
    vm.wait_all()
    p('v_cmp_ne_u32 vcc, v28, v%d' % vT)
    spin_tail(p, 'fl%s' % L)
    stamp(p, 15)
    def lam(dst, g):
        p('s_add_u32 s%d, s%d, %d' % (dst, s_cb, g)); p('s_and_b32 s%d, s%d, 3' % (dst, dst)); p('s_add_u32 s%d, s%d, s%d' % (dst, dst, s_kx4))
    def oload(n):
        ph, h = n >> 4, n & 15
        g, q = h >> 2, h & 3
        if q == 0:
            lam(s_t2, g)
            p('s_add_u32 s%d, s%d, s%d' % (s_t2, s_t2, s_r4)); p('s_and_b32 s%d, s%d, 7' % (s_t2, s_t2)); p('s_lshl_b32 s%d, s%d, %d' % (s_t2, s_t2, 18 if cfg.oalias else 12))
            p('s_add_u32 s%d, s%d, s%d' % (s_t1, s_oa1 if ph else s_oa, s_t2))
        if cfg.oalias:
            if q == 1: p('s_xor_b32 s%d, s%d, 1024' % (s_t2, s_t1))
            if q == 2: p('s_add_u32 s%d, s%d, 131072' % (s_t1, s_t1))
            if q == 3: p('s_add_u32 s%d, s%d, 131072' % (s_t2, s_t2))
            vm.op('buffer_load_dwordx4 %s, v16, s[%d:%d], s%d offen sc1' % (ar(4 * n, 4), sWS, sWS + 3, s_t1 if q % 2 == 0 else s_t2), 'o%d' % n)
        else:
            vm.op('buffer_load_dwordx4 %s, v16, s[%d:%d], s%d offen offset:%d sc1' % (ar(4 * n, 4), sWS, sWS + 3, s_t1, q * 1024), 'o%d' % n)
    def gaddr(n):
        ph, g = n >> 4, (n & 15) >> 2
        d = vOG + 2 * ((n >> 2) & 1)
        q = Rec();
        q('s_add_u32 s%d, s%d, %d' % (s_t0, s_cb, g)); q('s_and_b32 s%d, s%d, 3' % (s_t0, s_t0)); q('s_add_u32 s%d, s%d, s%d' % (s_t0, s_t0, s_kx4))
        q('s_lshl_b32 s%d, s%d, 13' % (s_t0, s_t0)); q('s_add_u32 s%d, s%d, s%d' % (s_t0, s_t0, s_rb1 if ph else s_rb0))
        q('v_add_u32 v%d, s%d, v%d' % (d, s_t0, vOA)); q('v_add_u32 v%d, s%d, v%d' % (d + 1, s_t0, vOA + 1))
        return q.l
    def reads(n):
        wf = vWF + 8 * (n % 3)
        pre = gaddr(n) if (n & 3) == 0 else []
        return pre + ['ds_read_b64_tr_b16 v[%d:%d], v%d offset:%d' % (wf + 4 * ct + 2 * rd, wf + 4 * ct + 2 * rd + 1, vOG + 2 * ((n >> 2) & 1) + ct, (n & 3) * 2048 + rd * 1024) for ct in range(2) for rd in range(2)]
    for n in range(LA): oload(n)
    vm.op('buffer_load_dword v29, v15, s[%d:%d], s%d offen sc1' % (sWS, sWS + 3, s_fl1), 'pb')
    for n in range(2):
        for o in reads(n): p(o)
    p('s_mov_b32 s%d, %d' % (s_spin, cfg.spin))
    p('v_cmp_ne_u32 vcc, v%d, v%d' % (GV + 1, vT))
    p('s_cbranch_vccz L_g%s_ok' % L)
    p.label('L_g%s' % L)
    p('buffer_load_dwordx2 v[%d:%d], v17, s[%d:%d], s%d offen sc1' % (GV, GV + 1, sWS, sWS + 3, s_ga))
    p('s_waitcnt vmcnt(0)')
    p('v_cmp_ne_u32 vcc, v%d, v%d' % (GV + 1, vT))
    spin_tail(p, 'g%s' % L)
    p('v_sub_f32 v%d, 1.0, v%d' % (GV + 1, GV))
    nxt = LA
    CHK = cfg.pbstep
    for n in range(32):
        ph = n >> 4
        wf = vWF + 8 * (n % 3)
        if n == CHK:
            vm.wait('pb')
            p('s_mov_b32 s%d, %d' % (s_spin, cfg.spin))
            p('v_cmp_ne_u32 vcc, v29, v%d' % vT)
            p('s_cbranch_vccz L_fb%s_ok' % L)
            p.label('L_fb%s' % L)
            p('buffer_load_dword v29, v15, s[%d:%d], s%d offen sc1' % (sWS, sWS + 3, s_fl1))
            p('s_waitcnt vmcnt(0)')
            p('v_cmp_ne_u32 vcc, v29, v%d' % vT)
            spin_tail(p, 'fb%s' % L)
            if cfg.fine == 4: stamp(p, 44)
        vm.wait('o%d' % n, ' lgkmcnt(%d)' % (4 if n < 31 else 0))
        R = reads(n + 2) if n + 2 < 32 else []
        for ct in range(2):
            c = '0' if (n & 15) == 0 else vr(OA[ph][ct], 16)
            p('%s %s, %s, %s, %s' % (MF, vr(OA[ph][ct], 16), vr(wf + 4 * ct, 4), ar(4 * n, 4), c))
            k = len(R) - 2
            for o in (R[:k] if ct == 0 else R[k:]): p(o)
            lim = 16 if n < CHK else 32
            want = min(lim, n + 1 + (LA if n < CHK else cfg.olb))
            cnt = 0
            while nxt < want and cnt < (1 if n < CHK else 2 if ct == 0 else 1):
                oload(nxt); nxt += 1; cnt += 1
                if n < CHK: break
    assert nxt == 32, nxt
    stamp(p, 16)
    for ct in range(2):
        for q in range(4):
            for i in range(2 * q, 2 * q + 2):
                a = OA[0][ct] + 2 * i; b = OA[1][ct] + 2 * i
                p('v_pk_mul_f32 v[%d:%d], v[%d:%d], v[%d:%d] op_sel_hi:[1,0]' % (a, a + 1, a, a + 1, GV, GV + 1))
            for i in range(2 * q, 2 * q + 2):
                a = OA[0][ct] + 2 * i; b = OA[1][ct] + 2 * i
                p('v_pk_fma_f32 v[%d:%d], v[%d:%d], v[%d:%d], v[%d:%d] op_sel:[0,1,0] op_sel_hi:[1,1,1]' % (a, a + 1, b, b + 1, GV, GV + 1, a, a + 1))
            p('ds_write_b128 v%d, %s offset:%d' % (vEW + q, vr(OA[0][ct] + 4 * q, 4), 128 * ct))
    p('s_waitcnt lgkmcnt(0)')
    stamp(p, 17)
    p('s_barrier')
    p3_tail(p, vm, L)

def p3_tail(p, vm, L):
    RD = 168
    for a in range(2):
        for brr in range(2):
            for x in range(2):
                p('ds_read_b128 %s, v%d offset:%d' % (vr(RD + 16 * a + 8 * brr + 4 * x, 4), vER + x, a * 2048 + brr * 16384))
    for a in range(2):
        p('s_waitcnt lgkmcnt(%d)' % (4 if a == 0 else 0))
        r = RD + 16 * a
        for i in range(4): p('v_pk_add_f32 v[%d:%d], v[%d:%d], v[%d:%d]' % (r + 2 * i, r + 2 * i + 1, r + 2 * i, r + 2 * i + 1, r + 8 + 2 * i, r + 8 + 2 * i + 1))
        for i in range(4): cvt(p, r + 8 + i, r + 2 * i, r + 2 * i + 1)
        vm.op('buffer_store_dwordx4 %s, v14, s[%d:%d], s%d offen %s' % (vr(r + 8, 4), sOUT, sOUT + 3, s_out0 if a == 0 else s_out1, cfg.outfl))
    p('s_cmp_eq_u32 s%d, 0' % s_b); p('s_cbranch_scc0 L_noep%s' % L)
    p('s_cmp_eq_u32 s%d, 0' % s_w); p('s_cbranch_scc0 L_noep%s' % L)
    p('v_mov_b32 v27, 0'); p('s_mov_b64 exec, 1')
    vm.op('buffer_store_dword v%d, v27, s[%d:%d], 0 offen sc1' % (vT, sWS, sWS + 3))
    p('s_mov_b64 exec, -1')
    p.label('L_noep%s' % L)

def p3(p, vm, br):
    L = 'AB'[br]
    OACC = [64, 80]
    GV = 96
    vm.op('buffer_load_dwordx2 v[%d:%d], v17, s[%d:%d], s%d offen sc1' % (GV, GV + 1, sWS, sWS + 3, s_ga), 'g')
    p('s_mov_b32 s%d, %d' % (s_spin, cfg.spin))
    if cfg.p3e:
        vm.op('buffer_load_dword v28, v15, s[%d:%d], s%d offen sc1' % (sWS, sWS + 3, s_fl), 'poll1')
        for f in dma_wo_ops(p, vm, 3): f()
        vm.wait('poll1')
        p('v_cmp_ne_u32 vcc, v28, v%d' % vT)
        p('s_mov_b32 s%d, 1' % s_fast)
        p('s_cbranch_vccz L_fl%s_ok' % L)
        p('s_mov_b32 s%d, 0' % s_fast)
        p('buffer_load_dword v28, v15, s[%d:%d], s%d offen sc1' % (sWS, sWS + 3, s_fl))
        p('s_waitcnt vmcnt(0)')
        p('s_barrier')
        p('v_cmp_ne_u32 vcc, v28, v%d' % vT)
        p('s_cbranch_vccz L_fl%s_ok' % L)
        p.label('L_fl%s' % L)
        p('buffer_load_dword v28, v15, s[%d:%d], s%d offen sc1' % (sWS, sWS + 3, s_fl))
        p('s_waitcnt vmcnt(0)')
        p('v_cmp_ne_u32 vcc, v28, v%d' % vT)
        spin_tail(p, 'fl%s' % L)
    else:
        p.label('L_fl%s' % L)
        vm.op('buffer_load_dword v28, v15, s[%d:%d], s%d offen %s' % (sWS, sWS + 3, s_fl, cfg.pollfl))
        vm.wait_all()
        p('v_cmp_ne_u32 vcc, v28, v%d' % vT)
        if cfg.sleep:
            p('s_cbranch_vccz L_fl%s_ok' % L)
            p('s_sleep %d' % cfg.sleep)
        spin_tail(p, 'fl%s' % L)
    if cfg.fine == 4:
        stamp(p, 44)
        p('v_writelane_b32 v255, s%d, 45' % s_spin)
    if not cfg.wosched and not cfg.earlyb4 and not cfg.wo2p2 and not cfg.p3e: p('s_barrier')
    stamp(p, 15)
    def oload(h):
        g, q = h >> 2, h & 3
        if q == 0:
            p('s_add_u32 s%d, s%d, %d' % (s_t2, s_rc, g)); p('s_and_b32 s%d, s%d, 7' % (s_t2, s_t2))
            p('s_add_u32 s%d, s%d, s%d' % (s_t2, s_t2, s_r4)); p('s_and_b32 s%d, s%d, 7' % (s_t2, s_t2)); p('s_lshl_b32 s%d, s%d, %d' % (s_t2, s_t2, 18 if cfg.oalias else 12))
            p('s_add_u32 s%d, s%d, s%d' % (s_t1, s_oa, s_t2))
        if cfg.oalias:
            if q == 1: p('s_xor_b32 s%d, s%d, 1024' % (s_t2, s_t1))
            if q == 2: p('s_add_u32 s%d, s%d, 131072' % (s_t1, s_t1))
            if q == 3: p('s_add_u32 s%d, s%d, 131072' % (s_t2, s_t2))
            vm.op('buffer_load_dwordx4 %s, v16, s[%d:%d], s%d offen sc1' % (ar(4 * h, 4), sWS, sWS + 3, s_t1 if q % 2 == 0 else s_t2), 'o%d' % h)
        else:
            vm.op('buffer_load_dwordx4 %s, v16, s[%d:%d], s%d offen offset:%d sc1' % (ar(4 * h, 4), sWS, sWS + 3, s_t1, q * 1024), 'o%d' % h)
    LA = cfg.ola
    for h in range(LA): oload(h)
    if cfg.p3e:
        p('s_cmp_eq_u32 s%d, 1' % s_fast); p('s_cbranch_scc0 L_nb%s' % L)
        p('s_waitcnt vmcnt(%d)' % LA)
        p('s_barrier')
        p.label('L_nb%s' % L)
    def gaddr(g):
        d = vOG + 2 * (g & 1)
        return ['s_add_u32 s%d, s%d, %d' % (s_t0, s_rc, g), 's_and_b32 s%d, s%d, 7' % (s_t0, s_t0), 's_lshl_b32 s%d, s%d, 13' % (s_t0, s_t0),
                'v_add_u32 v%d, s%d, v%d' % (d, s_t0, vOA), 'v_add_u32 v%d, s%d, v%d' % (d + 1, s_t0, vOA + 1)]
    def reads(h):
        wf = vWF + 8 * (h % 3); g = h >> 2
        pre = gaddr(g) if (h & 3) == 0 else []
        return pre + ['ds_read_b64_tr_b16 v[%d:%d], v%d offset:%d' % (wf + 4 * ct + 2 * rd, wf + 4 * ct + 2 * rd + 1, vOG + 2 * (g & 1) + ct, (h & 3) * 2048 + rd * 1024) for ct in range(2) for rd in range(2)]
    for h in range(2):
        for o in reads(h): p(o)
    if cfg.fine == 3: stamp(p, 41)
    p('s_mov_b32 s%d, %d' % (s_spin, cfg.spin))
    p('v_cmp_ne_u32 vcc, v%d, v%d' % (GV + 1, vT))
    p('s_cbranch_vccz L_g%s_ok' % L)
    p.label('L_g%s' % L)
    vm2 = VM(p)
    vm2.op('buffer_load_dwordx2 v[%d:%d], v17, s[%d:%d], s%d offen sc1' % (GV, GV + 1, sWS, sWS + 3, s_ga))
    vm2.wait_all()
    p('v_cmp_ne_u32 vcc, v%d, v%d' % (GV + 1, vT))
    spin_tail(p, 'g%s' % L)
    p('v_sub_f32 v%d, 1.0, v%d' % (GV + 1, GV))
    p('s_cmp_eq_u32 s%d, 0' % s_hp)
    p('s_cselect_b64 vcc, 0, -1')
    p('v_cndmask_b32 v%d, v%d, v%d, vcc' % (GV, GV, GV + 1))
    for h in range(32):
        wf = vWF + 8 * (h % 3)
        vm.wait('o%d' % h, ' lgkmcnt(%d)' % (4 if h < 31 else 0))
        if cfg.fine == 3 and h in (0, 8, 16, 24): stamp(p, 42 + h // 8)
        R = reads(h + 2) if h + 2 < 32 else []
        for ct in range(2):
            c = '0' if h == 0 else vr(OACC[ct], 16)
            p('%s %s, %s, %s, %s' % (MF, vr(OACC[ct], 16), vr(wf + 4 * ct, 4), ar(4 * h, 4), c))
            k = len(R) - 2
            for o in (R[:k] if ct == 0 else R[k:]): p(o)
            if ct == 0 and h + LA < 32: oload(h + LA)
    stamp(p, 16)
    for ct in range(2):
        for q in range(4):
            for i in range(2 * q, 2 * q + 2):
                p('v_pk_mul_f32 v[%d:%d], v[%d:%d], v[%d:%d] op_sel_hi:[1,0]' % (OACC[ct] + 2 * i, OACC[ct] + 2 * i + 1, OACC[ct] + 2 * i, OACC[ct] + 2 * i + 1, GV, GV + 1))
            p('ds_write_b128 v%d, %s offset:%d' % (vEW + q, vr(OACC[ct] + 4 * q, 4), 128 * ct))
    p('s_waitcnt lgkmcnt(0)')
    stamp(p, 17)
    p('s_barrier')
    RD = 168
    for a in range(2):
        for brr in range(2):
            for x in range(2):
                p('ds_read_b128 %s, v%d offset:%d' % (vr(RD + 16 * a + 8 * brr + 4 * x, 4), vER + x, a * 2048 + brr * 16384))
    for a in range(2):
        p('s_waitcnt lgkmcnt(%d)' % (4 if a == 0 else 0))
        r = RD + 16 * a
        for i in range(4): p('v_pk_add_f32 v[%d:%d], v[%d:%d], v[%d:%d]' % (r + 2 * i, r + 2 * i + 1, r + 2 * i, r + 2 * i + 1, r + 8 + 2 * i, r + 8 + 2 * i + 1))
        for i in range(4): cvt(p, r + 8 + i, r + 2 * i, r + 2 * i + 1)
        vm.op('buffer_store_dwordx4 %s, v14, s[%d:%d], s%d offen %s' % (vr(r + 8, 4), sOUT, sOUT + 3, s_out0 if a == 0 else s_out1, cfg.outfl))
    p('s_cmp_eq_u32 s%d, 0' % s_b); p('s_cbranch_scc0 L_noep%s' % L)
    p('s_cmp_eq_u32 s%d, 0' % s_w); p('s_cbranch_scc0 L_noep%s' % L)
    p('v_mov_b32 v27, 0'); p('s_mov_b64 exec, 1')
    vm.op('buffer_store_dword v%d, v27, s[%d:%d], 0 offen sc1' % (vT, sWS, sWS + 3))
    p('s_mov_b64 exec, -1')
    p.label('L_noep%s' % L)

V7 = dict(vGA=17, vOUT=18, vFL=19, vOL=20, vOG=21)
S7 = dict(fl=64, fl1=65, oa=66, oa1=67, ga=68, out0=69, out1=70, r4=71, kx4=72, rb0=73, rb1=74, flag=75, a=76, b=77, c=78)
def p3_setup7_ops(p, br):
    V, S = V7, S7
    t0, t1, t2, t3 = 248, 249, 250, 251
    L = []
    def add(*lines): L.append(lambda lines=lines: [p(x) for x in lines])
    ln = v_lane
    add('v_lshrrev_b32 v%d, 5, v%d' % (t0, ln), 'v_lshlrev_b32 v%d, 2, v%d' % (t0, t0), 'v_bfe_u32 v%d, v%d, 2, 2' % (t1, ln))
    add('v_add_u32 v%d, v%d, v%d' % (t0, t0, t1), 'v_lshlrev_b32 v%d, 7, v%d' % (t0, t0), 'v_bfe_u32 v%d, v%d, 4, 1' % (t2, ln))
    add('v_lshl_add_u32 v%d, v%d, 5, v%d' % (t0, t2, t0), 'v_and_b32 v%d, 3, v%d' % (t2, ln), 'v_lshl_add_u32 v%d, v%d, 3, v%d' % (t0, t2, t0))
    add('v_lshrrev_b32 v%d, 1, v%d' % (t1, t1), 'v_lshl_add_u32 v%d, v%d, 6, v%d' % (vOA, t1, t0), 'v_xor_b32 v%d, 1, v%d' % (t1, t1))
    add('v_lshl_add_u32 v%d, v%d, 6, v%d' % (vOA + 1, t1, t0), 'v_and_b32 v%d, 31, v%d' % (t0, ln),
        's_lshl_b32 s%d, s%d, 14' % (S['a'], s_hp), 's_lshl_b32 s%d, s%d, 13' % (S['b'], s_th), 's_add_u32 s%d, s%d, s%d' % (S['a'], S['a'], S['b']))
    add('v_lshlrev_b32 v%d, 8, v%d' % (t1, t0), 'v_add_u32 v%d, s%d, v%d' % (t1, S['a'], t1), 'v_and_b32 v%d, 7, v%d' % (t2, t0))
    add('v_lshrrev_b32 v%d, 5, v%d' % (t0, ln), 'v_xor_b32 v%d, v%d, v%d' % (t2, t2, t0))
    for q in range(4): add('v_xor_b32 v%d, %d, v%d' % (t0, 2 * q, t2), 'v_lshl_add_u32 v%d, v%d, 4, v%d' % (vEW + q, t0, t1))
    add('v_lshrrev_b32 v%d, 3, v%d' % (t0, ln), 'v_and_b32 v%d, 7, v%d' % (t1, ln), 'v_lshlrev_b32 v%d, 1, v%d' % (t1, t1), 's_lshl_b32 s%d, s%d, 12' % (S['a'], s_w))
    add('v_lshlrev_b32 v%d, 8, v%d' % (t2, t0), 'v_add_u32 v%d, s%d, v%d' % (t2, S['a'], t2))
    for x in range(2): add('v_or_b32 v%d, %d, v%d' % (t3, x, t1), 'v_xor_b32 v%d, v%d, v%d' % (t3, t3, t0), 'v_lshl_add_u32 v%d, v%d, 4, v%d' % (vER + x, t3, t2))
    add('v_and_b32 v%d, 7, v%d' % (t1, ln), 'v_lshlrev_b32 v%d, 4, v%d' % (t1, t1), 'v_lshl_add_u32 v%d, v%d, 10, v%d' % (V['vOUT'], t0, t1))
    add('v_and_b32 v%d, 7, v%d' % (V['vFL'], ln), 'v_lshlrev_b32 v%d, 7, v%d' % (V['vFL'], V['vFL']), 'v_lshlrev_b32 v%d, 4, v%d' % (V['vOL'], ln))
    add('v_and_b32 v%d, 31, v%d' % (t1, ln), 'v_lshrrev_b32 v%d, 2, v%d' % (t2, t1), 'v_lshlrev_b32 v%d, 7, v%d' % (t2, t2))
    add('v_and_b32 v%d, 3, v%d' % (t1, t1), 'v_lshl_add_u32 v%d, v%d, 3, v%d' % (V['vGA'], t1, t2))
    a, b, c = S['a'], S['b'], S['c']
    add('s_lshl_b32 s%d, s%d, 1' % (a, s_tb), 's_add_u32 s%d, s%d, s%d' % (a, a, s_th), 's_lshl_b32 s%d, s%d, 16' % (b, a), 's_add_u32 s%d, s%d, %d' % (S['oa'], b, WS_O), 's_add_u32 s%d, s%d, 32768' % (S['oa1'], S['oa']),
        's_lshl_b32 s%d, s%d, 10' % (a, a), 's_add_u32 s%d, s%d, %d' % (S['ga'], a, WS_G))
    add('s_lshl_b32 s%d, s%d, 6' % (a, s_tb), 's_lshl_b32 s%d, s%d, 4' % (b, s_w), 's_add_u32 s%d, s%d, s%d' % (a, a, b), 's_lshl_b32 s%d, s%d, 10' % (a, a),
        's_lshl_b32 s%d, s%d, 7' % (b, s_cb), 's_add_u32 s%d, s%d, s%d' % (S['out0'], a, b), 's_add_u32 s%d, s%d, 8192' % (S['out1'], S['out0']))
    add('s_lshr_b32 s%d, s%d, 2' % (a, s_cb), 's_xor_b32 s%d, s%d, s%d' % (a, a, s_hp), 's_and_b32 s%d, s%d, 1' % (a, a), 's_lshl_b32 s%d, s%d, 2' % (S['kx4'], a),
        's_lshr_b32 s%d, s%d, 1' % (b, s_r), 's_lshl_b32 s%d, s%d, 2' % (S['r4'], b), 's_xor_b32 s%d, s%d, s%d' % (c, a, b))
    add('s_lshl_b32 s%d, s%d, 10' % (c, c), 's_lshl_b32 s%d, s%d, 12' % (b, s_tb), 's_add_u32 s%d, s%d, s%d' % (c, c, b), 's_add_u32 s%d, s%d, %d' % (S['fl'], c, WS_FLAG), 's_add_u32 s%d, s%d, 2048' % (S['fl1'], S['fl']))
    add('s_and_b32 s%d, s%d, 1' % (b, s_r), 's_add_u32 s%d, s%d, s%d' % (c, a, b), 's_add_u32 s%d, s%d, 1' % (c, c), 's_lshl_b32 s%d, s%d, 15' % (S['rb0'], c),
        's_lshl_b32 s%d, s%d, 1' % (b, b), 's_sub_u32 s%d, 3, s%d' % (b, b), 's_cmp_eq_u32 s%d, 1' % a, 's_cselect_b32 s%d, 4, s%d' % (b, b), 's_lshl_b32 s%d, s%d, 15' % (S['rb1'], b))
    add('s_lshl_b32 s%d, s%d, 1' % (a, s_i), 's_add_u32 s%d, s%d, s%d' % (a, a, s_th), 's_lshl_b32 s%d, s%d, 5' % (a, a), 's_lshl_b32 s%d, s%d, 1' % (b, s_jj), 's_add_u32 s%d, s%d, s%d' % (a, a, b),
        's_add_u32 s%d, s%d, s%d' % (a, a, s_hp), 's_add_u32 s%d, s%d, %d' % (a, a, 16 * br), 's_lshl_b32 s%d, s%d, 7' % (a, a), 's_add_u32 s%d, s%d, %d' % (S['flag'], a, WS_FLAG))
    return L

GV7 = 152
def early_poll_ops(p, vm):
    V, S = V7, S7
    return [lambda: vm.op('buffer_load_dwordx2 v[%d:%d], v%d, s[%d:%d], s%d offen sc1' % (GV7, GV7 + 1, V['vGA'], sWS, sWS + 3, S['ga']), 'g'),
            lambda: vm.op('buffer_load_dword v154, v%d, s[%d:%d], s%d offen sc1' % (V['vFL'], sWS, sWS + 3, S['fl']), 'pa')]

def tail7(p, vm, br):
    L = 'AB'[br]; V, S = V7, S7
    OA = [[64, 80], [96, 112]]
    GV = GV7
    LA = cfg.ola2
    vOGx = V['vOG']
    def flag_store():
        p('v_mov_b32 v27, 0'); p('s_mov_b64 exec, 1')
        vm.op('buffer_store_dword v%d, v27, s[%d:%d], s%d offen sc1' % (vT, sWS, sWS + 3, S['flag']))
        p('s_mov_b64 exec, -1')
    p('s_barrier')
    def spin(reg, sfl, name):
        p('s_mov_b32 s%d, %d' % (s_spin, cfg.spin))
        p('v_cmp_ne_u32 vcc, v%d, v%d' % (reg, vT))
        p('s_cbranch_vccz L_%s_ok' % name)
        p.label('L_%s' % name)
        p('buffer_load_dword v%d, v%d, s[%d:%d], s%d offen sc1' % (reg, V['vFL'], sWS, sWS + 3, sfl))
        p('s_waitcnt vmcnt(0)')
        p('v_cmp_ne_u32 vcc, v%d, v%d' % (reg, vT))
        spin_tail(p, name)
    if br == 0 or cfg.v7b:
        if cfg.v7b == 2:
            for f in early_poll_ops(p, vm): f()
            vm.wait('ost'); flag_store()
            stamp(p, 9)
            vm.wait('pa')
        else:
            vm.wait('ost'); flag_store()
            stamp(p, 9)
            for f in early_poll_ops(p, vm): f()
            vm.wait('pa')
    else:
        vm.wait('pa')
    spin(154, S['fl'], 'fa%s' % L)
    stamp(p, 15)
    def oload(n):
        ph, h = n >> 4, n & 15
        g, q = h >> 2, h & 3
        if q == 0:
            p('s_add_u32 s%d, s%d, %d' % (s_t2, s_cb, g)); p('s_and_b32 s%d, s%d, 3' % (s_t2, s_t2)); p('s_add_u32 s%d, s%d, s%d' % (s_t2, s_t2, S['kx4']))
            p('s_add_u32 s%d, s%d, s%d' % (s_t2, s_t2, S['r4'])); p('s_and_b32 s%d, s%d, 7' % (s_t2, s_t2)); p('s_lshl_b32 s%d, s%d, 12' % (s_t2, s_t2))
            p('s_add_u32 s%d, s%d, s%d' % (s_t1, S['oa1'] if ph else S['oa'], s_t2))
        vm.op('buffer_load_dwordx4 %s, v%d, s[%d:%d], s%d offen offset:%d sc1' % (ar(4 * n, 4), V['vOL'], sWS, sWS + 3, s_t1, q * 1024), 'o%d' % n)
    def gaddr(n):
        ph, g = n >> 4, (n & 15) >> 2
        d = vOGx + 2 * ((n >> 2) & 1)
        return ['s_add_u32 s%d, s%d, %d' % (s_t0, s_cb, g), 's_and_b32 s%d, s%d, 3' % (s_t0, s_t0), 's_lshl_b32 s%d, s%d, 13' % (s_t0, s_t0),
                's_add_u32 s%d, s%d, s%d' % (s_t0, s_t0, S['rb1'] if ph else S['rb0']),
                'v_add_u32 v%d, s%d, v%d' % (d, s_t0, vOA), 'v_add_u32 v%d, s%d, v%d' % (d + 1, s_t0, vOA + 1)]
    def reads(n):
        wf = vWF + 8 * (n % 3)
        pre = gaddr(n) if (n & 3) == 0 else []
        return pre + ['ds_read_b64_tr_b16 v[%d:%d], v%d offset:%d' % (wf + 4 * ct + 2 * rd, wf + 4 * ct + 2 * rd + 1, vOGx + 2 * ((n >> 2) & 1) + ct, (n & 3) * 2048 + rd * 1024) for ct in range(2) for rd in range(2)]
    for n in range(LA): oload(n)
    for n in range(2):
        for o in reads(n): p(o)
    nxt = LA
    CHK = cfg.pbstep
    wo3 = dma_wo_ops(p, vm, 3)
    for n in range(32):
        ph = n >> 4
        wf = vWF + 8 * (n % 3)
        if n == CHK:
            vm.wait('pb')
            spin(155, S['fl1'], 'fb%s' % L)
            if cfg.fine == 4: stamp(p, 44)
        if n == 14:
            vm.wait('wo3', ' lgkmcnt(4)')
            p('s_barrier')
        vm.wait('o%d' % n, ' lgkmcnt(%d)' % (4 if n < 31 else 0))
        if n == 0:
            if br == 1 and not cfg.v7b:
                flag_store()
                stamp(p, 9)
            vm.op('buffer_load_dword v155, v%d, s[%d:%d], s%d offen sc1' % (V['vFL'], sWS, sWS + 3, S['fl1']), 'pb')
        R = reads(n + 2) if n + 2 < 32 else []
        for ct in range(2):
            c = '0' if (n & 15) == 0 else vr(OA[ph][ct], 16)
            p('%s %s, %s, %s, %s' % (MF, vr(OA[ph][ct], 16), vr(wf + 4 * ct, 4), ar(4 * n, 4), c))
            k = len(R) - 2
            for o in (R[:k] if ct == 0 else R[k:]): p(o)
            if ct == 1 and wo3 and n >= cfg.wo3step: wo3.pop(0)()
            lim = 16 if n < CHK else 32
            want = min(lim, n + 1 + (LA if n < CHK else cfg.olb))
            cnt = 0
            while nxt < want and cnt < (1 if n < CHK else 2 if ct == 0 else 1):
                oload(nxt); nxt += 1; cnt += 1
                if n < CHK: break
    assert nxt == 32 and not wo3, (nxt, len(wo3))
    stamp(p, 16)
    p('s_mov_b32 s%d, %d' % (s_spin, cfg.spin))
    p('v_cmp_ne_u32 vcc, v%d, v%d' % (GV + 1, vT))
    p('s_cbranch_vccz L_g%s_ok' % L)
    p.label('L_g%s' % L)
    p('buffer_load_dwordx2 v[%d:%d], v%d, s[%d:%d], s%d offen sc1' % (GV, GV + 1, V['vGA'], sWS, sWS + 3, S['ga']))
    p('s_waitcnt vmcnt(0)')
    p('v_cmp_ne_u32 vcc, v%d, v%d' % (GV + 1, vT))
    spin_tail(p, 'g%s' % L)
    p('v_sub_f32 v%d, 1.0, v%d' % (GV + 1, GV))
    for ct in range(2):
        for q in range(4):
            for i in range(2 * q, 2 * q + 2):
                a = OA[0][ct] + 2 * i
                p('v_pk_mul_f32 v[%d:%d], v[%d:%d], v[%d:%d] op_sel_hi:[1,0]' % (a, a + 1, a, a + 1, GV, GV + 1))
            for i in range(2 * q, 2 * q + 2):
                a = OA[0][ct] + 2 * i; b = OA[1][ct] + 2 * i
                p('v_pk_fma_f32 v[%d:%d], v[%d:%d], v[%d:%d], v[%d:%d] op_sel:[0,1,0] op_sel_hi:[1,1,1]' % (a, a + 1, b, b + 1, GV, GV + 1, a, a + 1))
            p('ds_write_b128 v%d, %s offset:%d' % (vEW + q, vr(OA[0][ct] + 4 * q, 4), 128 * ct))
    p('s_waitcnt lgkmcnt(0)')
    stamp(p, 17)
    p('s_barrier')
    RD = 168
    for a in range(2):
        for brr in range(2):
            for x in range(2):
                p('ds_read_b128 %s, v%d offset:%d' % (vr(RD + 16 * a + 8 * brr + 4 * x, 4), vER + x, a * 2048 + brr * 16384))
    for a in range(2):
        p('s_waitcnt lgkmcnt(%d)' % (4 if a == 0 else 0))
        r = RD + 16 * a
        for i in range(4): p('v_pk_add_f32 v[%d:%d], v[%d:%d], v[%d:%d]' % (r + 2 * i, r + 2 * i + 1, r + 2 * i, r + 2 * i + 1, r + 8 + 2 * i, r + 8 + 2 * i + 1))
        for i in range(4): cvt(p, r + 8 + i, r + 2 * i, r + 2 * i + 1)
        vm.op('buffer_store_dwordx4 %s, v%d, s[%d:%d], s%d offen %s' % (vr(r + 8, 4), V['vOUT'], sOUT, sOUT + 3, S['out0'] if a == 0 else S['out1'], cfg.outfl))
    p('s_cmp_eq_u32 s%d, 0' % s_b); p('s_cbranch_scc0 L_noep%s' % L)
    p('s_cmp_eq_u32 s%d, 0' % s_w); p('s_cbranch_scc0 L_noep%s' % L)
    p('v_mov_b32 v27, 0'); p('s_mov_b64 exec, 1')
    vm.op('buffer_store_dword v%d, v27, s[%d:%d], 0 offen sc1' % (vT, sWS, sWS + 3))
    p('s_mov_b64 exec, -1')
    p.label('L_noep%s' % L)

def rstamp(p, idx):
    if not cfg.stamps: return
    p('s_memrealtime s[%d:%d]' % (s_stamp, s_stamp + 1))
    p('s_waitcnt lgkmcnt(0)')
    p('v_writelane_b32 v255, s%d, %d' % (s_stamp, idx))

def write_stamps(p, vm):
    if not cfg.stamps: return
    rstamp(p, 12)
    if cfg.stamps == 2:
        L = 'x%d' % len(p.ins)
        p('s_load_dwordx2 s[4:5], s[0:1], 72'); p('s_waitcnt lgkmcnt(0)')
        p('s_mov_b32 s%d, s4' % sDBG); p('s_and_b32 s%d, s5, 0xffff' % (sDBG + 1)); p('s_mov_b32 s%d, 256' % (sDBG + 2)); p('s_mov_b32 s%d, 0x00020000' % (sDBG + 3))
        p('s_cmp_eq_u32 s%d, 0' % s_w); p('s_cbranch_scc0 L_ds2' + L)
        p('v_lshlrev_b32 v27, 2, v%d' % v_lane)
        p('s_cmp_eq_u32 s%d, 8' % s_b); p('s_cbranch_scc0 L_ds1' + L)
        p('s_mov_b64 exec, 0x1fff')
        vm.op('buffer_store_dword v255, v27, s[%d:%d], 0 offen' % (sDBG, sDBG + 3))
        p('s_mov_b64 exec, -1')
        p.label('L_ds1' + L)
        p('s_cmp_eq_u32 s%d, 255' % s_b); p('s_cbranch_scc0 L_ds2' + L)
        p('s_mov_b64 exec, 0x1800')
        vm.op('buffer_store_dword v255, v27, s[%d:%d], 0 offen offset:8' % (sDBG, sDBG + 3))
        p('s_mov_b64 exec, -1')
        p.label('L_ds2' + L)
        return
    p('s_lshl_b32 s%d, s%d, 2' % (s_t0, s_b)); p('s_add_u32 s%d, s%d, s%d' % (s_t0, s_t0, s_w)); p('s_lshl_b32 s%d, s%d, 8' % (s_t0, s_t0)); p('s_add_u32 s%d, s%d, %d' % (s_t0, s_t0, WS_STAMP))
    p('v_lshlrev_b32 v27, 2, v%d' % v_lane)
    vm.op('buffer_store_dword v255, v27, s[%d:%d], s%d offen' % (sDBG, sDBG + 3, s_t0))

def body(p, vm, br, dco, dwq):
    extra = {m: [] for m in range(8)}
    for m in range(6): extra[m] = dco(m + 2)
    if br == 0: extra[4] = extra[4] + gate_load_ops(p, vm)
    extra[6] = dwq(0)
    extra[7] = dwq(1)
    if cfg.poison == 1: poison_ops(p, vm, br)()
    if cfg.poison == 2: extra[7] = extra[7] + [poison_ops(p, vm, br)]
    if cfg.poison == 4: extra[3] = extra[3] + [poison_ops(p, vm, br)]
    pass1(p, vm, br, dco, dwq, extra)
    p('s_barrier')
    if cfg.poison == 3: poison_ops(p, vm, br)()
    stamp(p, 2)
    if cfg.debug == 1: dump_regs(p, vm, vK[0], 64, 0)
    make_tag(p, vm)
    if cfg.lwarm:
        p('s_lshl_b32 s%d, s%d, 1' % (s_t0, s_i)); p('s_add_u32 s%d, s%d, s%d' % (s_t0, s_t0, s_th)); p('s_lshl_b32 s%d, s%d, 5' % (s_t0, s_t0))
        p('s_lshl_b32 s%d, s%d, 1' % (s_t1, s_jj)); p('s_add_u32 s%d, s%d, s%d' % (s_t0, s_t0, s_t1)); p('s_add_u32 s%d, s%d, s%d' % (s_t0, s_t0, s_hp))
        p('s_add_u32 s%d, s%d, %d' % (s_t0, s_t0, 16 * br)); p('s_lshl_b32 s%d, s%d, 7' % (s_t0, s_t0)); p('s_add_u32 s%d, s%d, %d' % (s_t0, s_t0, WS_FLAG))
        p('s_lshl_b32 s%d, s%d, 2' % (s_t1, s_jj)); p('s_add_u32 s%d, s%d, s%d' % (s_t1, s_t1, s_w)); p('s_add_u32 s%d, s%d, %d' % (s_t1, s_t1, 32 * br))
        p('s_lshl_b32 s%d, s%d, 11' % (s_t1, s_t1)); p('s_lshl_b32 s%d, s%d, 7' % (s_t2, s_i)); p('s_add_u32 s%d, s%d, s%d' % (s_t1, s_t1, s_t2)); p('s_add_u32 s%d, s%d, %d' % (s_t1, s_t1, WS_OUTK + 12))
        p('v_not_b32 v28, v%d' % vT); p('v_mov_b32 v27, 0')
        p('s_mov_b64 exec, 1')
        vm.op('buffer_store_dword v28, v27, s[%d:%d], s%d offen sc1' % (sWS, sWS + 3, s_t0))
        vm.op('buffer_store_dword v28, v27, s[%d:%d], s%d offen sc1' % (sWS, sWS + 3, s_t1))
        p('s_mov_b64 exec, -1')
    side = dma_wo_ops(p, vm, 0)
    if cfg.wosched: side = side + dma_wo_ops(p, vm, 2)
    if br == 1:
        feat_k_B(p, vm, side)
        stamp(p, 3)
    else:
        gate_finish(p, vm)
        feat_k_A(p, side)
        stamp(p, 3)
        exchange(p, vm, br)
    if cfg.debug == 2: dump_regs(p, vm, ST, 32, 0)
    stamp(p, 4)
    sched = {}
    sched[('bar', 1)] = True
    st = hop1_store_ops(p, vm, br)
    for k, f in enumerate(st): sched.setdefault(k, []).append(f)
    for k, f in enumerate(dma_wo_ops(p, vm, 1)): sched.setdefault(cfg.wo1step + k, []).append(f)
    if cfg.wo2p2:
        for k, f in enumerate(dma_wo_ops(p, vm, 2)): sched.setdefault(cfg.wo1step + 8 + k, []).append(f)
    hl = hop1_load_ops(p, vm, br)
    for k, f in enumerate(hl): sched.setdefault(min(31, cfg.h1step + k), []).append(f)
    if cfg.owarm:
        ow = o_warm_ops(p, vm)
        def allw():
            for f in ow: f()
        sched.setdefault(cfg.owarm, []).append(allw)
    if cfg.v7:
        for k, f in enumerate(p3_setup7_ops(p, br)): sched.setdefault(4 + k, []).append(f) if 4 + k < 32 else sched.setdefault(31, []).append(f)
    if cfg.h1red:
        def hook():
            hop1_reduce(p, vm, br)
            stamp(p, 6)
        sched[('hook', cfg.h1red)] = hook
    pass2(p, vm, sched)
    stamp(p, 5)
    if cfg.debug == 1:
        p('s_nop 15'); dump_regs(p, vm, vQ[0], 32, 1)
    if not cfg.h1red:
        hop1_reduce(p, vm, br)
        stamp(p, 6)
    late = hop2_load_ops(p, vm, br)
    if cfg.v7 and br == 1 and not cfg.v7b: late = late + early_poll_ops(p, vm)
    if cfg.wo2p2 or cfg.wosched:
        p('s_barrier')
        side = dma_wo_ops(p, vm, 3)
    else:
        side = dma_wo_ops(p, vm, 2)
    if br == 1: feat_q_B(p, side, late)
    else: feat_q_A(p, side, late)
    stamp(p, 7)
    hop2_gather(p, vm, br)
    stamp(p, 8)
    if cfg.debug == 2: dump_regs(p, vm, KVA, 16, 1)
    o_phase(p, vm, br)
    if cfg.fine == 4: stamp(p, 41)
    if cfg.v7:
        tail7(p, vm, br)
        stamp(p, 10)
        write_stamps(p, vm)
        p('s_endpgm')
        return
    if cfg.wosched or cfg.wo2p2:
        vm.wait('wo3')
        p('s_barrier')
    elif not cfg.wo2p2:
        p('s_barrier')
    p3_setup(p)
    p3_scalars(p)
    o_flag(p, vm)
    if cfg.fine == 4: stamp(p, 43)
    if not cfg.wo2p2 and not cfg.wosched and not cfg.p3e:
        for f in dma_wo_ops(p, vm, 3): f()
        if cfg.earlyb4:
            vm.wait('wo3')
            p('s_barrier')
    stamp(p, 9)
    if cfg.two:
        p3_scalars2(p)
        p3two(p, vm, br)
    else: p3(p, vm, br)
    stamp(p, 10)
    write_stamps(p, vm)
    p('s_endpgm')

if __name__ == '__main__':
    import argparse
    ap = argparse.ArgumentParser()
    ap.add_argument('-o', default='k.s'); ap.add_argument('--debug', type=int, default=0); ap.add_argument('--rot', type=int, default=1)
    ap.add_argument('--maprow', type=int, default=1); ap.add_argument('--fine', type=int, default=0); ap.add_argument('--sleep', type=int, default=0); ap.add_argument('--pollfl', default='sc1'); ap.add_argument('--flagfl', default='sc1'); ap.add_argument('--v7b', type=int, default=1); ap.add_argument('--v7', type=int, default=0); ap.add_argument('--wo3step', type=int, default=1); ap.add_argument('--olb', type=int, default=14); ap.add_argument('--two', type=int, default=0); ap.add_argument('--ola2', type=int, default=10); ap.add_argument('--pbstep', type=int, default=8); ap.add_argument('--oalias', type=int, default=0); ap.add_argument('--lwarm', type=int, default=0); ap.add_argument('--poison', type=int, default=0); ap.add_argument('--p3e', type=int, default=0); ap.add_argument('--h1red', type=int, default=0); ap.add_argument('--mfexp', type=int, default=1); ap.add_argument('--outfl', default=''); ap.add_argument('--wosched', type=int, default=0); ap.add_argument('--earlyb4', type=int, default=1); ap.add_argument('--wsoff', type=lambda x: int(x,0), default=0); ap.add_argument('--owarm', type=int, default=0); ap.add_argument('--owarmfl', default=''); ap.add_argument('--wo2p2', type=int, default=0); ap.add_argument('--nowo', type=int, default=0); ap.add_argument('--codepf', type=int, default=1); ap.add_argument('--ola', type=int, default=12); ap.add_argument('--wo1step', type=int, default=4); ap.add_argument('--korder', type=int, default=1); ap.add_argument('--pro3', type=int, default=0); ap.add_argument('--worot', type=int, default=1); ap.add_argument('--orot', type=int, default=1); ap.add_argument('--pretouch', type=int, default=1); ap.add_argument('--h1step', type=int, default=19); ap.add_argument('--h2lead', type=int, default=130); ap.add_argument('--stamps', type=int, default=0)
    a = ap.parse_args()
    cfg.debug = a.debug; cfg.rot = a.rot; cfg.maprow = a.maprow; cfg.h1step = a.h1step; cfg.fine = a.fine; cfg.sleep = a.sleep; cfg.pollfl = a.pollfl; cfg.flagfl = a.flagfl; cfg.v7b = a.v7b; cfg.v7 = a.v7; cfg.wo3step = a.wo3step; cfg.olb = a.olb; cfg.two = a.two; cfg.ola2 = a.ola2; cfg.pbstep = a.pbstep; cfg.oalias = a.oalias; cfg.lwarm = a.lwarm; cfg.poison = a.poison; cfg.p3e = a.p3e; cfg.h1red = a.h1red; cfg.mfexp = a.mfexp; cfg.outfl = a.outfl; cfg.wosched = a.wosched; cfg.earlyb4 = a.earlyb4; cfg.wsoff = a.wsoff; cfg.owarm = a.owarm; cfg.owarmfl = a.owarmfl; cfg.wo2p2 = a.wo2p2; cfg.nowo = a.nowo; cfg.codepf = a.codepf; cfg.ola = a.ola; cfg.wo1step = a.wo1step; cfg.korder = a.korder; cfg.pro3 = a.pro3; cfg.worot = a.worot; cfg.orot = a.orot; cfg.pretouch = a.pretouch; cfg.h2lead = a.h2lead; cfg.stamps = a.stamps
    open(a.o, 'w').write(build())
```

```python
import sys, os
sys.path.insert(0, os.path.dirname(os.path.abspath(__file__)))
from asmdsl import *

KNAME = "gated_mix__linear_attn_block__linear_kernel_hedgehog__prompt_kernel"

class Cfg:
    debug = 0
    rot = 1
    maprow = 1
    spin = 1 << 20
    fine = 0
    shared = 1
    sleep = 0
    pollfl = 'sc1'
    flagfl = 'sc1'
    v7b = 1
    v7 = 1
    wo3step = 1
    olb = 14
    two = 1
    ola2 = 10
    pbstep = 8
    oalias = 1
    lwarm = 0
    poison = 0
    p3e = 0
    h1red = 0
    mfexp = 0
    outfl = ''
    wosched = 0
    earlyb4 = 1
    wsoff = 0
    owarm = 0
    owarmfl = ''
    wo2p2 = 0
    nowo = 0
    codepf = 1
    ola = 8
    wo1step = 6
    korder = 1
    pro3 = 0
    worot = 1
    orot = 1
    pretouch = 1
    h1step = 22
    h2lead = 70
    stamps = 0
cfg = Cfg()

WS_EPOCH = 0x0
WS_G     = 0x1000
WS_FLAG  = 0x20000
WS_OUTK  = 0x100000
WS_OUTZ  = 0x140000
WS_O     = 0x200000
WS_INB   = 0x800000
WS_SIZE  = 0x1000000
WS_DBG   = 0x1000000
WS_STAMP = 0x7000000

sX, sW, sWOA, sWOB, sWS, sOUT, sMISC, sDBG = 8, 12, 16, 20, 24, 28, 32, 36
s_w, s_th, s_hp, s_i, s_jj, s_rot, s_T = 40, 41, 42, 43, 44, 45, 46
s_xbase, s_wbase, s_m0x, s_m0w, s_ox, s_ow, s_t0, s_t1, s_t2, s_t3 = 47, 48, 49, 50, 51, 52, 53, 54, 55, 56
s_tb, s_cb, s_head, s_qbase, s_m0q = 57, 58, 59, 60, 61
s_mask16 = 62
s_log2e = 84
s_eps = 86
s_spin = 88
s_ht = 89
s_stamp = 90
s_b = 92
s_exec = 94
s_wobase, s_m0o = 96, 97
s_qadj, s_q0 = 4, 5
s_t2x, s_t3x = 98, 99
s_r = 6
s_br = 3
s_fast = 89
s_odd = 94
KA = 64

v_lane = 1
vXA = 2
vWA = 14
vDX = 17
vDQ = 21
vONES = 25
vT = 26
vtmp = 27
vK = [32, 48]; vV = [64, 80]; vQ = [96, 112]
vWF = 128
vWP = 152
vSEL = 160
vTMP = 168

SLOT = 32768
def slot_set(s): return s // 2
def slot_imm(s): return (s % 2) * SLOT

class VM:
    def __init__(self, p): self.p = p; self.n = 0; self.marks = {}; self.done = 0
    def op(self, text, mark=None):
        self.p(text); self.n += 1
        if mark: self.marks[mark] = self.n
    def mark(self, name): self.marks[name] = self.n
    def wait(self, name, extra=''):
        if self.marks[name] <= self.done:
            if extra: self.p('s_waitcnt' + extra)
            return
        k = self.n - self.marks[name]
        assert 0 <= k <= 63, (name, k)
        self.p('s_waitcnt vmcnt(%d)%s' % (k, extra))
        self.done = self.marks[name]
    def wait_all(self):
        self.p('s_waitcnt vmcnt(0)'); self.done = self.n

def stamp(p, idx):
    if not cfg.stamps: return
    p('s_memtime s[%d:%d]' % (s_stamp, s_stamp + 1))
    p('s_waitcnt lgkmcnt(0)')
    p('v_writelane_b32 v255, s%d, %d' % (s_stamp, idx))


def korder(n): return (2 * (n & 3) + (n >> 2)) if cfg.korder else n

def srd(p, d, ptr, size):
    p('s_mov_b32 s%d, s%d' % (d, ptr)); p('s_and_b32 s%d, s%d, 0xffff' % (d + 1, ptr + 1))
    p('s_mov_b32 s%d, 0x%x' % (d + 2, size)); p('s_mov_b32 s%d, 0x00020000' % (d + 3))

SOFF = 64
WPT = 168
GX, GW = 168, 184

def gen_path(br):
    p = Prog(); vm = VM(p)
    L = 'A' if br == 0 else 'B'
    if not cfg.shared: p.label('L_path' + L)
    if cfg.stamps: p('v_mov_b32 v255, 0')
    stamp(p, 0)
    rstamp(p, 11)
    p('v_lshrrev_b32 v27, 6, v0')
    p('v_and_b32 v%d, 63, v0' % v_lane)
    p('v_readfirstlane_b32 s%d, v27' % s_w)
    p('v_lshrrev_b32 v27, 3, v%d' % v_lane)
    p('v_and_b32 v28, 7, v%d' % v_lane)
    p('v_lshrrev_b32 v29, 4, v%d' % v_lane)
    for q in range(2):
        p('v_add_u32 v30, %d, v29' % (4 * (q & 1)))
        p('v_xor_b32 v30, v28, v30')
        p('v_lshlrev_b32 v30, 4, v30')
        p('v_add_u32 v31, %d, v27' % (7 * q))
        p('v_lshl_add_u32 v%d, v31, 10, v30' % (vDX + q))
    p('v_add_u32 v%d, %d, v%d' % (vDX + 2, 14 * 1024, vDX)); p('v_add_u32 v%d, %d, v%d' % (vDX + 3, 14 * 1024, vDX + 1))
    p('v_and_b32 v30, 1, v29'); p('v_lshlrev_b32 v30, 2, v30'); p('v_xor_b32 v30, v28, v30'); p('v_lshlrev_b32 v30, 4, v30')
    p('v_mul_u32_u24 v31, 3072, v27')
    p('v_add_u32 v%d, v30, v31' % vDQ)
    for q in range(1, 4):
        p('v_add_u32 v%d, %d, v%d' % (vDQ + q, 8 * q * 3072 - 1024 * q, vDQ))
    p('s_and_b32 s%d, s%d, 1' % (s_th, s_w))
    p('s_lshr_b32 s%d, s%d, 1' % (s_hp, s_w))
    p('s_lshl_b32 s%d, s%d, 17' % (s_xbase, s_i))
    p('s_lshl_b32 s%d, s%d, 15' % (s_t0, s_w))
    p('s_add_u32 s%d, s%d, s%d' % (s_xbase, s_xbase, s_t0))
    p('s_lshl_b32 s%d, s%d, 7' % (s_qbase, s_jj))
    p('s_mul_i32 s%d, s%d, 98304' % (s_t0, s_th))
    p('s_add_u32 s%d, s%d, s%d' % (s_wbase, s_qbase, s_t0))
    p('s_add_u32 s%d, s%d, 1' % (s_t0, s_hp))
    p('s_lshl_b32 s%d, s%d, 10' % (s_t0, s_t0))
    p('s_add_u32 s%d, s%d, s%d' % (s_wbase, s_wbase, s_t0))
    p('s_lshl_b32 s%d, s%d, 12' % (s_m0x, s_w))
    p('s_lshl_b32 s%d, s%d, 13' % (s_m0w, s_hp))
    p('s_lshl_b32 s%d, s%d, 12' % (s_t0, s_th))
    p('s_add_u32 s%d, s%d, s%d' % (s_m0w, s_m0w, s_t0))
    p('s_add_u32 s%d, s%d, 16384' % (s_m0w, s_m0w))
    p('s_lshl_b32 s%d, s%d, 11' % (s_m0q, s_w))
    p('s_mul_i32 s%d, s%d, 49152' % (s_t0, s_w))
    p('s_add_u32 s%d, s%d, s%d' % (s_t0, s_t0, s_qbase))
    p('s_sub_u32 s%d, s%d, s%d' % (s_qadj, s_wbase, s_t0))

    def chunk_offsets(n, dx, dw):
        p('s_add_u32 s%d, s%d, %d' % (s_t0, s_rot, korder(n))); p('s_and_b32 s%d, s%d, 7' % (s_t0, s_t0))
        p('s_lshl_b32 s%d, s%d, 7' % (s_t1, s_t0)); p('s_add_u32 s%d, s%d, s%d' % (dx, s_xbase, s_t1))
        p('s_mul_i32 s%d, s%d, 196608' % (s_t1, s_t0)); p('s_add_u32 s%d, s%d, s%d' % (dw, s_wbase, s_t1))
    def dma_chunk_ops(n):
        slot = (n % 4) * SLOT
        ox = s_ox if n == 0 else SOFF + 2 * n
        ow = s_ow if n == 0 else SOFF + 2 * n + 1
        ops = []
        def x0():
            p('s_add_u32 m0, s%d, %d' % (s_m0x, slot)); p('s_nop 0')
            vm.op('buffer_load_dwordx4 v%d, s[%d:%d], s%d offen lds' % (vDX, sX, sX + 3, ox))
        ops.append(x0)
        for q in range(1, 4):
            ops.append(lambda q=q: vm.op('buffer_load_dwordx4 v%d, s[%d:%d], s%d offen offset:%d lds' % (vDX + q, sX, sX + 3, ox, q * 1024)))
        def w0():
            p('s_add_u32 m0, s%d, %d' % (s_m0w, slot)); p('s_nop 0')
            vm.op('buffer_load_dwordx4 v%d, s[%d:%d], s%d offen lds' % (vDQ, sW, sW + 3, ow))
        ops.append(w0)
        for q in range(1, 4):
            ops.append(lambda q=q: vm.op('buffer_load_dwordx4 v%d, s[%d:%d], s%d offen offset:%d lds' % (vDQ + q, sW, sW + 3, ow, q * 1024), 'c%d' % n if q == 3 else None))
        return ops
    def dma_wq_ops(hf):
        ops = []
        for c in range(4 * hf, 4 * hf + 4):
            def m(c=c):
                if c == 0: p('s_add_u32 s%d, s%d, 0' % (s_ow, s_q0))
                else: p('s_sub_u32 s%d, s%d, s%d' % (s_ow, SOFF + 2 * c + 1, s_qadj))
                p('s_add_u32 m0, s%d, %d' % (s_m0q, (4 * (c >> 2)) * SLOT + (c & 3) * 8192)); p('s_nop 0')
                vm.op('buffer_load_dwordx4 v%d, s[%d:%d], s%d offen lds' % (vDQ, sW, sW + 3, s_ow))
            ops.append(m)
            ops.append(lambda c=c: vm.op('buffer_load_dwordx4 v%d, s[%d:%d], s%d offen offset:1024 lds' % (vDQ + 1, sW, sW + 3, s_ow), 'wq%d' % hf if (c & 3) == 3 else None))
        return ops

    chunk_offsets(0, s_ox, s_ow)
    p('s_sub_u32 s%d, s%d, s%d' % (s_q0, s_ow, s_qadj))
    p('s_waitcnt lgkmcnt(0)')
    srd(p, sX, KA + 0, 2048 * 1024)
    if cfg.shared:
        p('s_cmp_eq_u32 s%d, 0' % s_br)
        p('s_cselect_b32 s%d, s%d, s%d' % (sW, KA + 2, KA + 8)); p('s_cselect_b32 s%d, s%d, s%d' % (sW + 1, KA + 3, KA + 9))
        p('s_and_b32 s%d, s%d, 0xffff' % (sW + 1, sW + 1)); p('s_mov_b32 s%d, 0x%x' % (sW + 2, 512 * 3072)); p('s_mov_b32 s%d, 0x00020000' % (sW + 3))
    else:
        srd(p, sW, KA + (2 if br == 0 else 8), 512 * 3072)
    stamp(p, 20)
    for f in dma_chunk_ops(0): f()
    if cfg.codepf:
        p('s_getpc_b64 s[%d:%d]' % (s_t2x, s_t2x + 1))
        LP = 'X' if cfg.shared else L
        p.label('L_pc%s' % LP)
        p('s_sub_u32 s%d, s%d, L_pc%s-%s' % (s_t2x, s_t2x, LP, KNAME)); p('s_subb_u32 s%d, s%d, 0' % (s_t2x + 1, s_t2x + 1))
        p('s_lshr_b32 s%d, s%d, 3' % (s_t0, s_b)); p('s_lshl_b32 s%d, s%d, 2' % (s_t0, s_t0)); p('s_add_u32 s%d, s%d, s%d' % (s_t0, s_t0, s_w)); p('s_lshl_b32 s%d, s%d, 9' % (s_t0, s_t0))
        p('v_lshlrev_b32 v27, 7, v%d' % v_lane); p('v_and_b32 v27, 0x1ff, v27')
        p('v_add_u32 v27, s%d, v27' % s_t0)
        p('v_min_u32 v27, L_end-%s, v27' % KNAME)
        p('v_mov_b32 v29, s%d' % (s_t2x + 1))
        p('v_add_co_u32 v28, vcc, s%d, v27' % s_t2x); p('v_addc_co_u32 v29, vcc, 0, v29, vcc')
        p('s_mov_b64 exec, 15')
        vm.op('global_load_dword v239, v[28:29], off')
        p('s_mov_b64 exec, -1')
    if cfg.shared: p('.SPLIT')
    if cfg.wsoff:
        p('s_add_u32 s%d, s%d, 0x%x' % (KA + 18, KA + 18, cfg.wsoff)); p('s_addc_u32 s%d, s%d, 0' % (KA + 19, KA + 19))
    srd(p, sWS, KA + 18, WS_SIZE)
    if br == 0: srd(p, sMISC, KA + 14, 1024)
    else:
        srd(p, sMISC, KA + 10, 32 * 512)
        p('s_lshl_b32 s%d, s%d, 11' % (s_t0, s_jj)); p('s_lshl_b32 s%d, s%d, 10' % (s_t1, s_hp)); p('s_add_u32 s%d, s%d, s%d' % (s_t0, s_t0, s_t1))
        p('s_lshl_b32 s%d, s%d, 10' % (s_t1, s_w)); p('s_add_u32 m0, s%d, %d' % (s_t1, 4 * SLOT))
        p('v_lshlrev_b32 v27, 4, v%d' % v_lane)
        vm.op('buffer_load_dwordx4 v27, s[%d:%d], s%d offen lds' % (sMISC, sMISC + 3, s_t0), 'wphi')
    p('v_mov_b32 v28, 0')
    vm.op('buffer_load_dword v%d, v28, s[%d:%d], 0 offen sc1' % (vT, sWS, sWS + 3), 'epoch')
    srd(p, sWOA, KA + 4, 512 * 1024)
    srd(p, sWOB, KA + 12, 512 * 1024)
    srd(p, sOUT, KA + 16, 2048 * 1024)
    if cfg.debug or cfg.stamps: srd(p, sDBG, KA + 18, 0x8000000)
    for n in range(1, 8): chunk_offsets(n, SOFF + 2 * n, SOFF + 2 * n + 1)
    if cfg.pretouch:
        p('s_lshl_b32 s%d, s%d, 18' % (s_t0, s_jj)); p('s_add_u32 s%d, s%d, %d' % (s_t0, s_t0, WS_INB + br * 0x200000))
        vm.op('buffer_load_dword v232, v28, s[%d:%d], s%d offen' % (sWS, sWS + 3, s_t0))
        p('s_lshl_b32 s%d, s%d, 18' % (s_t0, s_i)); p('s_add_u32 s%d, s%d, %d' % (s_t0, s_t0, WS_O))
        vm.op('buffer_load_dword v233, v28, s[%d:%d], s%d offen' % (sWS, sWS + 3, s_t0))
        p('s_lshl_b32 s%d, s%d, 17' % (s_t0, s_tb)); p('s_add_u32 s%d, s%d, %d' % (s_t0, s_t0, WS_O))
        vm.op('buffer_load_dword v234, v28, s[%d:%d], s%d offen' % (sWS, sWS + 3, s_t0))
        vm.op('buffer_load_dword v235, v28, s[%d:%d], 0 offen' % (sWOA, sWOA + 3))
        vm.op('buffer_load_dword v236, v28, s[%d:%d], 0 offen' % (sWOB, sWOB + 3))
        p('s_lshl_b32 s%d, s%d, 16' % (s_t0, s_tb))
        vm.op('buffer_load_dword v237, v28, s[%d:%d], s%d offen' % (sOUT, sOUT + 3, s_t0))
    wo_setup(p)
    p('v_and_b32 v27, 31, v%d' % v_lane)
    p('v_lshrrev_b32 v28, 5, v%d' % v_lane)
    p('v_lshrrev_b32 v29, 1, v27'); p('v_and_b32 v29, 7, v29'); p('v_xor_b32 v29, v28, v29')
    p('s_lshl_b32 s%d, s%d, 13' % (s_t0, s_th))
    p('v_lshlrev_b32 v30, 7, v27'); p('v_add_u32 v30, s%d, v30' % s_t0)
    for ks in range(4):
        p('v_xor_b32 v31, %d, v29' % (2 * ks)); p('v_lshl_add_u32 v%d, v31, 4, v30' % (vXA + ks))
        p('v_add_u32 v%d, 0x10000, v%d' % (vXA + 4 + ks, vXA + ks))
    p('v_lshrrev_b32 v27, 2, v%d' % v_lane); p('v_and_b32 v27, 3, v27')
    p('v_lshl_add_u32 v29, v28, 3, v27')
    p('v_lshlrev_b32 v29, 7, v29')
    p('v_lshrrev_b32 v30, 1, v27'); p('v_xor_b32 v30, s%d, v30' % s_hp); p('v_lshl_add_u32 v29, v30, 6, v29')
    p('v_lshrrev_b32 v30, 4, v%d' % v_lane); p('v_xor_b32 v30, s%d, v30' % s_th); p('v_and_b32 v30, 1, v30'); p('v_lshl_add_u32 v29, v30, 5, v29')
    p('v_and_b32 v30, 3, v%d' % v_lane); p('v_lshl_add_u32 v%d, v30, 3, v29' % vWA)
    p('v_add_u32 v%d, 0x10000, v%d' % (vWA + 1, vWA)); p('v_add_u32 v%d, 0x20000, v%d' % (vWA + 2, vWA))
    p('v_mov_b32 v%d, 0x3f803f80' % vONES)
    p('s_mov_b32 s%d, 0xffff0000' % s_mask16); p('s_mov_b32 s%d, 0xffff0000' % (s_mask16 + 1))
    p('s_mov_b32 s%d, 0x3fb8aa3b' % s_log2e); p('s_mov_b32 s%d, 0x3fb8aa3b' % (s_log2e + 1))
    p('s_mov_b32 s%d, 0x358637bd' % s_eps); p('s_mov_b32 s%d, 0x358637bd' % (s_eps + 1))
    if br == 1:
        p('v_and_b32 v27, 31, v%d' % v_lane)
        p('v_lshrrev_b32 v28, 5, v%d' % v_lane)
        p('v_bfe_u32 v29, v27, 2, 1')
        p('v_cmp_eq_u32 vcc, v28, v29')
        p('v_bfe_u32 v29, v27, 3, 1'); p('v_and_b32 v30, 3, v27'); p('v_lshl_add_u32 v29, v29, 2, v30')
        p('v_and_b32 v30, 1, v29'); p('v_lshlrev_b32 v30, 4, v30'); p('v_mov_b32 v31, 0x3f80'); p('v_lshlrev_b32 v30, v30, v31')
        p('v_cndmask_b32 v30, 0, v30, vcc')
        p('v_lshrrev_b32 v29, 1, v29')
        p('v_bfe_u32 v28, v27, 4, 1')
        p('v_lshl_add_u32 v29, v28, 2, v29')
        for q in range(8):
            p('v_cmp_eq_u32 vcc, %d, v29' % q)
            p('v_cndmask_b32 v%d, 0, v30, vcc' % (vSEL + q))
    p('s_mov_b32 s%d, 0xaaaaaaaa' % s_odd); p('s_mov_b32 s%d, 0xaaaaaaaa' % (s_odd + 1))
    if br == 1:
        p('v_lshrrev_b32 v27, 5, v%d' % v_lane); p('v_lshlrev_b32 v27, 2, v27')
        p('v_bfe_u32 v28, v%d, 2, 2' % v_lane); p('v_add_u32 v27, v27, v28'); p('v_lshlrev_b32 v27, 5, v27')
        p('v_bfe_u32 v28, v%d, 1, 1' % v_lane); p('v_lshl_add_u32 v27, v28, 3, v27')
        p('v_bfe_u32 v28, v%d, 4, 1' % v_lane); p('v_lshl_add_u32 v27, v28, 4, v27')
        p('s_lshl_b32 s%d, s%d, 10' % (s_t0, s_w)); p('s_add_u32 s%d, s%d, %d' % (s_t0, s_t0, 4 * SLOT))
        p('s_lshl_b32 s%d, s%d, 9' % (s_t1, s_th)); p('s_add_u32 s%d, s%d, s%d' % (s_t0, s_t0, s_t1))
        p('v_add_u32 v27, s%d, v27' % s_t0); p('v_xor_b32 v29, 512, v27')
        p('v_bfe_u32 v28, v%d, 2, 1' % v_lane); p('v_lshlrev_b32 v28, 31, v28'); p('v_lshrrev_b32 v30, 16, v28'); p('v_or_b32 v28, v28, v30')
    stamp(p, 21)
    for f in dma_chunk_ops(1): f()
    if br == 1:
        vm.wait('wphi')
        for u in range(2):
            for rd in range(2):
                p('ds_read_b64_tr_b16 v[%d:%d], v%d offset:%d' % (vWP + 4 * u + 2 * rd, vWP + 4 * u + 2 * rd + 1, 27 if u == 0 else 29, rd * 8 * 32))
        p('s_waitcnt lgkmcnt(0)')
        for q in range(8): p('v_xor_b32 v%d, v%d, v28' % (vWP + q, vWP + q))
    return p, vm, dma_chunk_ops, dma_wq_ops

def make_tag(p, vm):
    vm.wait('epoch')
    p('v_readfirstlane_b32 s%d, v%d' % (s_T, vT))
    p('s_mul_i32 s%d, s%d, 0x9e3779b1' % (s_T, s_T)); p('s_add_u32 s%d, s%d, 0x7f4a7c15' % (s_T, s_T))
    p('v_mov_b32 v%d, s%d' % (vT, s_T))

def emit(p, item):
    if callable(item): item()
    else: p(item)

def merge(p, main, side, every, start=0):
    side = list(side); k = 0
    for idx, m in enumerate(main):
        emit(p, m)
        if idx >= start and (idx - start) % every == every - 1 and side:
            emit(p, side.pop(0))
    for x in side: emit(p, x)

class Rec:
    def __init__(self): self.l = []
    def __call__(self, t, tag=None):
        for line in t.split('\n'):
            if line.strip(): self.l.append(line.strip())

def xf(s, blk): return ar((s * 2 + blk) * 4, 4)

def pass1(p, vm, br, dma_chunk_ops, dma_wq_ops, extra_ops):
    def reads(s):
        c, ks = s >> 2, s & 3; slot = c % 4; st = slot_set(slot); im = slot_imm(slot); buf = s % 3
        ops = []
        wf = vWF + 8 * buf
        for part in range(2):
            for rd in range(2):
                ops.append('ds_read_b64_tr_b16 v[%d:%d], v%d offset:%d' % (wf + 4 * part + 2 * rd, wf + 4 * part + 2 * rd + 1, vWA + st, im + 16384 + part * 8192 + (16 * ks + 4 * rd) * 128))
        for blk in range(2):
            ops.append('ds_read_b128 %s, v%d offset:%d' % (xf(s, blk), vXA + st * 4 + ks, im + blk * 4096))
        return ops
    def mfmas(s):
        wf = vWF + 8 * (s % 3); ops = []
        for blk in range(2):
            c = '0' if s == 0 else vr(vK[blk], 16)
            if br == 1: ops.append('v_mfma_f32_32x32x16_bf16 %s, %s, %s, %s' % (vr(vK[blk], 16), vr(wf, 4), xf(s, blk), c))
            else:       ops.append('v_mfma_f32_32x32x16_bf16 %s, %s, %s, %s' % (vr(vK[blk], 16), xf(s, blk), vr(wf, 4), c))
            c = '0' if s == 0 else vr(vV[blk], 16)
            ops.append('v_mfma_f32_32x32x16_bf16 %s, %s, %s, %s' % (vr(vV[blk], 16), xf(s, blk), vr(wf + 4, 4), c))
        return ops
    pend = []
    vm.wait('c0'); p('s_barrier')
    stamp(p, 1)
    pend += extra_ops[0]
    for o in reads(0): p(o)
    for o in reads(1): p(o)
    for s in range(32):
        nxt = s + 2
        p('s_waitcnt lgkmcnt(%d)' % (6 if s < 31 else 0))
        M = mfmas(s)
        R = reads(nxt) if nxt < 32 else []
        p(M[0])
        if nxt < 32 and nxt % 4 == 0:
            m = nxt // 4
            vm.wait('c%d' % m); p('s_barrier')
            if cfg.stamps == 1 and cfg.fine: stamp(p, 30 + m)
            pend += extra_ops[m]
        def take(n):
            for _ in range(n):
                if pend: pend.pop(0)()
        for k in range(4):
            if k > 0: p(M[k])
            for o in R[(k * 6) // 4:((k + 1) * 6) // 4]: p(o)
            if k % 2 == 1 or len(pend) > 8: take(1)
    while pend: pend.pop(0)()

def pass2(p, vm, sched):
    RA = 3
    def reads(s):
        c, ks = s >> 2, s & 3; slot = 4 * (c >> 2); st = slot_set(slot); im = slot_imm(slot); wf = vWF + 4 * (s % 4)
        return ['ds_read_b64_tr_b16 v[%d:%d], v%d offset:%d' % (wf + 2 * rd, wf + 2 * rd + 1, vWA + st, im + (c & 3) * 8192 + (16 * ks + 4 * rd) * 128) for rd in range(2)]
    for s in range(RA):
        for o in reads(s): p(o)
    for s in range(32):
        out = min(RA - 1, 31 - s)
        p('s_waitcnt lgkmcnt(%d)' % (2 * out))
        wf = vWF + 4 * (s % 4)
        if ('bar', s) in sched: p('s_barrier')
        if ('hook', s) in sched: sched[('hook', s)]()
        if cfg.fine == 2 and s % 4 == 0 and s > 0:
            stamp(p, 40 + s // 4);
        items = list(sched.get(s, []))
        h = (len(items) + 1) // 2
        for blk in range(2):
            c = '0' if s == 0 else vr(vQ[blk], 16)
            p('v_mfma_f32_32x32x16_bf16 %s, %s, %s, %s' % (vr(vQ[blk], 16), vr(wf, 4), xf(s, blk), c))
            if blk == 0 and s + RA < 32:
                for o in reads(s + RA): p(o)
            for it in (items[:h] if blk == 0 else items[h:]): emit(p, it)

def dump_regs(p, vm, base_reg, n, slot_index):
    p('s_lshl_b32 s%d, s%d, 2' % (s_t0, s_b)); p('s_add_u32 s%d, s%d, s%d' % (s_t0, s_t0, s_w))
    p('s_mul_i32 s%d, s%d, %d' % (s_t0, s_t0, n * 256)); p('s_add_u32 s%d, s%d, %d' % (s_t0, s_t0, WS_DBG + slot_index * 0x1000000))
    p('v_lshlrev_b32 v27, 4, v%d' % v_lane)
    for r in range(0, n, 4):
        vm.op('buffer_store_dwordx4 %s, v27, s[%d:%d], s%d offen' % (vr(base_reg + r, 4), sDBG, sDBG + 3, s_t0))
        p('s_add_u32 s%d, s%d, 1024' % (s_t0, s_t0))
    vm.wait_all()

def build():
    top = Prog()
    top('s_cmp_ge_u32 s2, 256')
    top('s_cbranch_scc1 L_end')
    top('s_load_dwordx16 s[64:79], s[0:1], 0')
    top('s_load_dwordx2 s[80:81], s[0:1], 64')
    top('s_load_dwordx2 s[82:83], s[0:1], 80')
    top('s_mov_b32 s%d, s2' % s_b)
    top('s_and_b32 s%d, s2, 7' % s_t0)
    top('s_lshr_b32 s%d, s2, 3' % s_t1)
    if cfg.maprow == 0:
        top('s_mov_b32 s%d, s%d' % (s_jj, s_t0))
        top('s_lshr_b32 s%d, s%d, 1' % (s_i, s_t1))
        top('s_and_b32 s%d, s%d, 1' % (s_t2, s_t1))
        top('s_lshl_b32 s%d, s%d, 2' % (s_rot, s_t2)); top('s_add_u32 s%d, s%d, s%d' % (s_rot, s_rot, s_i)); top('s_and_b32 s%d, s%d, 7' % (s_rot, s_rot))
    else:
        top('s_and_b32 s%d, s%d, 1' % (s_i, s_t0)); top('s_lshl_b32 s%d, s%d, 3' % (s_i, s_i)); top('s_and_b32 s%d, s%d, 7' % (s_t2, s_t1)); top('s_add_u32 s%d, s%d, s%d' % (s_i, s_i, s_t2))
        top('s_lshr_b32 s%d, s%d, 1' % (s_t3, s_t0)); top('s_lshl_b32 s%d, s%d, 2' % (s_t3, s_t3)); top('s_lshr_b32 s%d, s%d, 3' % (s_t2, s_t1)); top('s_add_u32 s%d, s%d, s%d' % (s_t3, s_t3, s_t2))
        top('s_lshr_b32 s%d, s%d, 1' % (s_jj, s_t3))
        top('s_lshl_b32 s%d, s%d, 1' % (s_rot, s_t3)); top('s_add_u32 s%d, s%d, s%d' % (s_rot, s_rot, s_i)); top('s_and_b32 s%d, s%d, 7' % (s_rot, s_rot))
        top('s_and_b32 s%d, s%d, 1' % (s_t2, s_t3))
    if not cfg.rot: top('s_mov_b32 s%d, 0' % s_rot)
    top('s_lshl_b32 s%d, s%d, 2' % (s_tb, s_t0)); top('s_and_b32 s%d, s%d, 3' % (s_t3, s_t1)); top('s_add_u32 s%d, s%d, s%d' % (s_tb, s_tb, s_t3))
    top('s_lshr_b32 s%d, s%d, 2' % (s_cb, s_t1))
    if cfg.shared: top('s_mov_b32 s%d, s%d' % (s_br, s_t2))
    else:
        top('s_cmp_eq_u32 s%d, 0' % s_t2)
        top('s_cbranch_scc0 L_pathB')
    paths = []
    for br in range(2):
        p, vm, dco, dwq = gen_path(br)
        body(p, vm, br, dco, dwq)
        added = p.fix_hazards()
        errs = p.check_waits()
        if errs:
            for e in errs[:20]: print('WAITERR', e, file=sys.stderr)
            raise SystemExit('wait check failed')
        print('path', 'AB'[br], 'instructions:', sum(1 for i in p.ins if i.op), 'nop states added:', added, file=sys.stderr)
        paths.append(p)
    top.fix_hazards()
    hdr = open(os.path.join(os.path.dirname(os.path.abspath(__file__)), 'header.txt')).read()
    s = hdr
    s += '; @launch grid=(256,1,1) block=(256,1,1) lds=163840\n'
    s += '.amdgcn_target "amdgcn-amd-amdhsa--gfx950"\n.text\n.globl %s\n.p2align 8\n.type %s,@function\n%s:\n' % (KNAME, KNAME, KNAME)
    s += top.text()
    if cfg.shared:
        parts = []
        for p in paths:
            k = [i for i, x in enumerate(p.ins) if x.raw == '.SPLIT'][0]
            a, b = Prog(), Prog(); a.ins = p.ins[:k]; b.ins = p.ins[k + 1:]
            parts.append((a.text(), b.text()))
        assert parts[0][0] == parts[1][0], 'shared prologue differs'
        s += parts[0][0]
        s += '    s_cmp_eq_u32 s%d, 0\n    s_cbranch_scc0 L_pathB\n' % s_br
        s += parts[0][1] + 'L_pathB:\n' + parts[1][1]
    else:
        for p in paths: s += p.text()
    s += 'L_end:\n    s_endpgm\n'
    s += '.section .rodata,"a"\n.p2align 6\n.amdhsa_kernel %s\n  .amdhsa_next_free_vgpr 512\n  .amdhsa_next_free_sgpr 102\n  .amdhsa_accum_offset 256\n  .amdhsa_group_segment_fixed_size 0\n  .amdhsa_kernarg_size 88\n  .amdhsa_user_sgpr_count 2\n  .amdhsa_user_sgpr_kernarg_segment_ptr 1\n  .amdhsa_system_sgpr_workgroup_id_x 1\n.end_amdhsa_kernel\n' % KNAME
    return s


MF = 'v_mfma_f32_32x32x16_bf16'
vDO = 10
vOA = 2
vEW = 4
vER = 8
vOG = 18
s_rc, s_r4 = 7, 3

def cvt(p, d, a, b): p('v_cvt_pk_bf16_f32 v%d, v%d, v%d' % (d, a, b))

def wo_setup(p):
    p('v_lshrrev_b32 v27, 3, v%d' % v_lane); p('v_and_b32 v28, 7, v%d' % v_lane)
    p('v_bfe_u32 v29, v%d, 4, 1' % v_lane); p('v_lshlrev_b32 v29, 2, v29'); p('v_xor_b32 v28, v28, v29'); p('v_lshlrev_b32 v28, 4, v28')
    p('s_lshl_b32 s%d, s%d, 7' % (s_t0, s_cb)); p('v_add_u32 v28, s%d, v28' % s_t0)
    p('v_lshl_add_u32 v%d, v27, 10, v28' % vDO)
    for q in range(1, 4): p('v_add_u32 v%d, %d, v%d' % (vDO + q, 7 * q * 1024, vDO))
    p('s_lshl_b32 s%d, s%d, 16' % (s_wobase, s_w)); p('s_lshl_b32 s%d, s%d, 13' % (s_m0o, s_w))
    if cfg.v7:
        p('s_and_b32 s%d, s%d, 3' % (s_r, s_tb))
        p('s_lshr_b32 s%d, s%d, 1' % (s_t0, s_r)); p('s_lshl_b32 s%d, s%d, 18' % (s_t0, s_t0)); p('s_add_u32 s%d, s%d, s%d' % (s_wobase, s_wobase, s_t0))
    elif cfg.worot:
        p('s_and_b32 s%d, s%d, 3' % (s_r, s_tb))
        p('s_lshr_b32 s%d, s%d, 1' % (s_t0, s_r)); p('s_lshl_b32 s%d, s%d, 18' % (s_t0, s_t0)); p('s_add_u32 s%d, s%d, s%d' % (s_wobase, s_wobase, s_t0))
        p('s_bitcmp1_b32 s%d, 0' % s_r)
        p('s_cselect_b32 s%d, s%d, s%d' % (s_t0, sWOB, sWOA)); p('s_cselect_b32 s%d, s%d, s%d' % (s_t1, sWOA, sWOB))
        p('s_cselect_b32 s%d, s%d, s%d' % (s_t2x, sWOB + 1, sWOA + 1)); p('s_cselect_b32 s%d, s%d, s%d' % (s_t3x, sWOA + 1, sWOB + 1))
        p('s_mov_b32 s%d, s%d' % (sWOA, s_t0)); p('s_mov_b32 s%d, s%d' % (sWOB, s_t1)); p('s_mov_b32 s%d, s%d' % (sWOA + 1, s_t2x)); p('s_mov_b32 s%d, s%d' % (sWOB + 1, s_t3x))
    else:
        p('s_mov_b32 s%d, 0' % s_r)

def dma_wo_ops(p, vm, part):
    if cfg.nowo == 1 or (cfg.nowo == 2 and part == 3):
        def f(): vm.mark('wo%d' % part)
        return [f]
    if cfg.v7: return dma_wo_ops_v7(p, vm, part)
    return dma_wo_ops_real(p, vm, part)

def dma_wo_ops_v7(p, vm, t):
    srd_ = {0: sMISC, 1: sWOA, 2: sMISC, 3: sWOB}[t]
    ops = []
    for grp in range(2):
        def m(grp=grp):
            if grp == 0:
                if t in (0, 2):
                    p('s_bitcmp1_b32 s%d, 0' % s_r)
                    a, b = (sWOB, sWOA) if t == 0 else (sWOA, sWOB)
                    p('s_cselect_b32 s%d, s%d, s%d' % (sMISC, a, b)); p('s_cselect_b32 s%d, s%d, s%d' % (sMISC + 1, a + 1, b + 1))
                    if t == 0: p('s_mov_b32 s%d, 0x%x' % (sMISC + 2, 512 * 1024))
                if t == 0: p('s_mov_b32 s%d, s%d' % (s_ow, s_wobase))
                elif t == 3: p('s_xor_b32 s%d, s%d, 262144' % (s_ow, s_wobase))
                else:
                    p('s_and_b32 s%d, s%d, 1' % (s_ow, s_r))
                    if t == 1: p('s_xor_b32 s%d, s%d, 1' % (s_ow, s_ow))
                    p('s_lshl_b32 s%d, s%d, 18' % (s_ow, s_ow)); p('s_xor_b32 s%d, s%d, s%d' % (s_ow, s_ow, s_wobase))
            else: p('s_add_u32 s%d, s%d, 32768' % (s_ow, s_ow))
            p('s_add_u32 m0, s%d, %d' % (s_m0o, (t + 1) * SLOT + grp * 4096)); p('s_nop 0')
            vm.op('buffer_load_dwordx4 v%d, s[%d:%d], s%d offen lds' % (vDO, srd_, srd_ + 3, s_ow))
        ops.append(m)
        for q in range(1, 4):
            ops.append(lambda q=q, grp=grp: vm.op('buffer_load_dwordx4 v%d, s[%d:%d], s%d offen offset:%d lds' % (vDO + q, srd_, srd_ + 3, s_ow, q * 1024), 'wo%d' % t if (q == 3 and grp == 1) else None))
    return ops

def dma_wo_ops_real(p, vm, part):
    srd_ = sWOA if part < 2 else sWOB
    ops = []
    for grp in range(2):
        def m(grp=grp):
            if part & 1: p('s_xor_b32 s%d, s%d, 262144' % (s_ow, s_wobase))
            else: p('s_mov_b32 s%d, s%d' % (s_ow, s_wobase))
            if grp: p('s_add_u32 s%d, s%d, 32768' % (s_ow, s_ow))
            p('s_add_u32 m0, s%d, %d' % (s_m0o, (part + 1) * SLOT + grp * 4096)); p('s_nop 0')
            vm.op('buffer_load_dwordx4 v%d, s[%d:%d], s%d offen lds' % (vDO, srd_, srd_ + 3, s_ow))
        ops.append(m)
        for q in range(1, 4):
            ops.append(lambda q=q, grp=grp: vm.op('buffer_load_dwordx4 v%d, s[%d:%d], s%d offen offset:%d lds' % (vDO + q, srd_, srd_ + 3, s_ow, q * 1024), 'wo%d' % part if (q == 3 and grp == 1) else None))
    return ops

def softmax16(p, P, F, tmp):
    m, S = tmp, tmp + 2
    p('v_max3_f32 v%d, v%d, v%d, v%d' % (m, P, P + 1, P + 2))
    p('v_max3_f32 v%d, v%d, v%d, v%d' % (m + 1, P + 3, P + 4, P + 5))
    p('v_max3_f32 v%d, v%d, v%d, v%d' % (m, m, P + 6, P + 7))
    p('v_max3_f32 v%d, v%d, v%d, v%d' % (m + 1, m + 1, P + 8, P + 9))
    p('v_max3_f32 v%d, v%d, v%d, v%d' % (m, m, P + 10, P + 11))
    p('v_max3_f32 v%d, v%d, v%d, v%d' % (m + 1, m + 1, P + 12, P + 13))
    p('v_max3_f32 v%d, v%d, v%d, v%d' % (m, m, P + 14, P + 15))
    p('v_max_f32 v%d, v%d, v%d' % (m, m, m + 1))
    p('v_mul_f32 v%d, s%d, v%d' % (m, s_log2e, m))
    for i in range(8):
        p('v_pk_fma_f32 v[%d:%d], v[%d:%d], s[%d:%d], v[%d:%d] op_sel_hi:[1,1,0] neg_lo:[0,0,1] neg_hi:[0,0,1]' % (P + 2 * i, P + 2 * i + 1, P + 2 * i, P + 2 * i + 1, s_log2e, s_log2e + 1, m, m + 1))
    for i in range(16): p('v_exp_f32 v%d, v%d' % (P + i, P + i))
    p('v_pk_add_f32 v[%d:%d], v[%d:%d], v[%d:%d]' % (S, S + 1, P, P + 1, P + 2, P + 3))
    p('v_pk_add_f32 v[%d:%d], v[%d:%d], v[%d:%d]' % (m, m + 1, P + 4, P + 5, P + 6, P + 7))
    p('v_pk_add_f32 v[%d:%d], v[%d:%d], v[%d:%d]' % (S, S + 1, S, S + 1, P + 8, P + 9))
    p('v_pk_add_f32 v[%d:%d], v[%d:%d], v[%d:%d]' % (m, m + 1, m, m + 1, P + 10, P + 11))
    p('v_pk_add_f32 v[%d:%d], v[%d:%d], v[%d:%d]' % (S, S + 1, S, S + 1, P + 12, P + 13))
    p('v_pk_add_f32 v[%d:%d], v[%d:%d], v[%d:%d]' % (m, m + 1, m, m + 1, P + 14, P + 15))
    p('v_pk_add_f32 v[%d:%d], v[%d:%d], v[%d:%d]' % (S, S + 1, S, S + 1, m, m + 1))
    p('v_add_f32 v%d, v%d, v%d' % (S, S, S + 1))
    p('v_rcp_f32 v%d, v%d' % (S, S))
    for i in range(8):
        p('v_pk_mul_f32 v[%d:%d], v[%d:%d], v[%d:%d] op_sel_hi:[1,0]' % (P + 2 * i, P + 2 * i + 1, P + 2 * i, P + 2 * i + 1, S, S + 1))
    for i in range(8): cvt(p, F + i, P + 2 * i, P + 2 * i + 1)

def phi_elu(p, T, n, F, tmp):
    for base in range(0, n // 2, 4):
        prs = range(base, min(base + 4, n // 2))
        for k, i in enumerate(prs):
            p('v_pk_mul_f32 v[%d:%d], v[%d:%d], s[%d:%d]' % (tmp + 2 * k, tmp + 2 * k + 1, T + 2 * i, T + 2 * i + 1, s_log2e, s_log2e + 1))
        for k, i in enumerate(prs):
            p('v_exp_f32 v%d, v%d clamp' % (tmp + 2 * k, tmp + 2 * k)); p('v_exp_f32 v%d, v%d clamp' % (tmp + 2 * k + 1, tmp + 2 * k + 1))
        for k, i in enumerate(prs):
            p('v_max_f32 v%d, 0, v%d' % (T + 2 * i, T + 2 * i)); p('v_max_f32 v%d, 0, v%d' % (T + 2 * i + 1, T + 2 * i + 1))
        for k, i in enumerate(prs):
            p('v_pk_add_f32 v[%d:%d], v[%d:%d], v[%d:%d]' % (T + 2 * i, T + 2 * i + 1, T + 2 * i, T + 2 * i + 1, tmp + 2 * k, tmp + 2 * k + 1))
        for k, i in enumerate(prs):
            p('v_pk_add_f32 v[%d:%d], v[%d:%d], s[%d:%d]' % (T + 2 * i, T + 2 * i + 1, T + 2 * i, T + 2 * i + 1, s_eps, s_eps + 1))
        for k, i in enumerate(prs): cvt(p, F + i, T + 2 * i, T + 2 * i + 1)

ACC = [96, 112]
def vprep(p, VB0, VB1):
    for blk in range(2):
        for i in range(8): cvt(p, VB0 + 8 * blk + i, vV[blk] + 2 * i, vV[blk] + 2 * i + 1)
    for blk in range(2):
        for i in range(8): p('v_cndmask_b32_e64 v%d, v%d, v%d, s[%d:%d]' % (VB1 + 8 * blk + i, vONES, VB0 + 8 * blk + i, s_mask16, s_mask16 + 1))
    for blk in range(2):
        for i in range(8): p('v_cndmask_b32_e64 v%d, v%d, v%d, s[%d:%d]' % (VB0 + 8 * blk + i, VB0 + 8 * blk + i, vONES, s_mask16, s_mask16 + 1))

def insert_at(main, ins):
    out = []; ins = sorted(ins, key=lambda x: x[0]); k = 0
    for idx, m in enumerate(main):
        while k < len(ins) and ins[k][0] <= idx: out.append(ins[k][1]); k += 1
        out.append(m)
    out += [x[1] for x in ins[k:]]
    return out

UNITS = [(0, 0), (0, 1), (1, 0), (1, 1)]
ST = 184
UNITS_K = [(0, 1), (1, 1), (0, 0), (1, 0)]
def feat_k_B(p, vm, side):
    KB, PB, G = 168, 184, 128
    VB0, VB1 = 32, 48
    TB = [64, 80]
    VB = [VB0, VB1]
    U = UNITS_K
    r = Rec()
    for un, (blk, u) in enumerate(U):
        for i in range(4): cvt(r, KB + 4 * un + i, vK[blk] + 8 * u + 2 * i, vK[blk] + 8 * u + 2 * i + 1)
    head = list(r.l)
    r = Rec(); vprep(r, VB0, VB1); vp = list(r.l)
    PM = ['%s %s, %s, %s, 0' % (MF, vr(PB + 16 * un, 16), vr(vWP + 4 * u, 4), vr(KB + 4 * un, 4)) for un, (blk, u) in enumerate(U)]
    stream = head[:6] + [PM[0]] + head[6:10] + [PM[1]] + head[10:14] + [PM[2]] + head[14:16] + vp[:4] + [PM[3]] + vp[4:]
    def TA(un): return '%s %s, %s, %s, 0' % (MF, vr(TB[un % 2], 16), vr(KB + 8 * (un % 2), 4), vr(vSEL, 4))
    def TBm(un): return '%s %s, %s, %s, %s' % (MF, vr(TB[un % 2], 16), vr(KB + 8 * (un % 2) + 4, 4), vr(vSEL + 4, 4), vr(TB[un % 2], 16))
    def CV(un):
        q = Rec()
        for i in range(8): cvt(q, G + i, TB[un % 2] + 2 * i, TB[un % 2] + 2 * i + 1)
        return q.l
    def AA(un):
        blk, u = U[un]; c = '0' if blk == 0 else vr(ACC[u], 16)
        return '%s %s, %s, %s, %s' % (MF, vr(ACC[u], 16), vr(G, 4), vr(VB[u] + 8 * blk, 4), c)
    def AB(un):
        blk, u = U[un]
        return '%s %s, %s, %s, %s' % (MF, vr(ACC[u], 16), vr(G + 4, 4), vr(VB[u] + 8 * blk + 4, 4), vr(ACC[u], 16))
    q = Rec(); exchange_addr(q); ad = q.l
    q = Rec(); exchange_scal(q, 1); sc = q.l
    for un in range(4):
        q = Rec(); softmax16(q, PB + 16 * un, KB + 8 * (un % 2), 136); sm = q.l
        ins = []
        if un >= 1:
            if cfg.mfexp:
                ins += [(17, TA(un - 1)), (21, TBm(un - 1))]
                if un >= 2: ins += [(25, AA(un - 2)), (29, AB(un - 2))]
                ins += [(35 + k, c) for k, c in enumerate(CV(un - 1))]
            else:
                ins += [(2, TA(un - 1)), (10, TBm(un - 1))]
                ins += [(34 + k, c) for k, c in enumerate(CV(un - 1))]
                ins += [(46, AA(un - 1)), (54, AB(un - 1))]
        if un == 2: ins += [(12 + k, x) for k, x in enumerate(ad)]
        if un == 3:
            w0 = 46 if cfg.mfexp else 14
            ins += [(w0 + 2 * k, 'ds_write_b128 v%d, %s offset:%d' % (vEXW, vr(ACC[1] + 4 * k, 4), k * 1024)) for k in range(4)]
            ins += [(4 + k, x) for k, x in enumerate(sc)]
        stream += insert_at(sm, ins)
    merge(p, stream, side, 14 if len(side) <= 8 else 12, start=4)
    tags = ['v_mov_b32 v%d, v%d' % (ST + 4 * k + 3, vT) for k in range(4)]
    RC = 216
    p('s_nop 1'); p(TA(3))
    for t in tags: p(t)
    p(TBm(3))
    if cfg.mfexp: p(AA(2)); p(AB(2))
    vm.wait('wq1', ' lgkmcnt(0)')
    stamp(p, 18)
    p('s_barrier')
    stamp(p, 19)
    for q in range(4): p('ds_read_b128 %s, v%d offset:%d' % (vr(RC + 4 * q, 4), vEXR, q * 1024))
    for c in CV(3): p(c)
    p('s_nop 1'); p(AA(3)); p(AB(3))
    exchange_finish(p, 1)

def feat_k_A(p, side):
    PK, VB0, VB1 = 168, 200, 216
    r = Rec()
    for blk in range(2): phi_elu(r, vK[blk], 16, PK + 8 * blk, 184)
    vprep(r, VB0, VB1)
    VB = [VB0, VB1]
    for k in range(2): r('v_mov_b32 v%d, v%d' % (ST + 4 * k + 3, vT))
    exchange_addr(r)
    for blk in range(2):
        for u in range(2):
            c = '0' if blk == 0 else vr(ACC[u], 16)
            r('%s %s, %s, %s, %s' % (MF, vr(ACC[u], 16), vr(PK + 8 * blk, 4), vr(VB[u] + 8 * blk, 4), c))
            r('%s %s, %s, %s, %s' % (MF, vr(ACC[u], 16), vr(PK + 8 * blk + 4, 4), vr(VB[u] + 8 * blk + 4, 4), vr(ACC[u], 16)))
    merge(p, r.l, side, 10 if len(side) <= 8 else 7, start=2)

FQ = 32
def feat_q_B(p, side, late):
    KB, PB = 168, 184
    r = Rec()
    for un, (blk, u) in enumerate(UNITS):
        for i in range(4): cvt(r, KB + 4 * un + i, vQ[blk] + 8 * u + 2 * i, vQ[blk] + 8 * u + 2 * i + 1)
    head = list(r.l)
    PM = ['%s %s, %s, %s, 0' % (MF, vr(PB + 16 * un, 16), vr(vWP + 4 * u, 4), vr(KB + 4 * un, 4)) for un, (blk, u) in enumerate(UNITS)]
    stream = head[:6] + [PM[0]] + head[6:10] + [PM[1]] + head[10:14] + [PM[2]] + head[14:16] + ['s_nop 3', PM[3]]
    for un in range(4):
        q = Rec(); softmax16(q, PB + 16 * un, FQ + 8 * un, 136); stream += q.l
    n = len(stream)
    stream = insert_at(stream, [(n - cfg.h2lead + k, x) for k, x in enumerate(late)])
    merge(p, stream, side, 9, start=2)

def feat_q_A(p, side, late):
    r = Rec()
    for blk in range(2):
        for u in range(2): phi_elu(r, vQ[blk] + 8 * u, 8, FQ + 4 * (2 * blk + u), 184)
    merge(p, r.l, side, 6, start=1)
    for x in late: emit(p, x)

vEXW, vEXR, vH1S = 28, 29, 30
def exchange_addr(p):
    p('v_lshlrev_b32 v27, 4, v%d' % v_lane)
    p('s_lshl_b32 s%d, s%d, 12' % (s_t0, s_w)); p('s_add_u32 s%d, s%d, %d' % (s_t0, s_t0, (2 if cfg.wosched else 3) * SLOT))
    p('v_add_u32 v%d, s%d, v27' % (vEXW, s_t0))
    p('s_xor_b32 s%d, s%d, 4096' % (s_t0, s_t0))
    p('v_xor_b32 v27, 256, v27')
    p('v_add_u32 v%d, s%d, v27' % (vEXR, s_t0))
    p('v_lshrrev_b32 v%d, 4, v%d' % (vH1S, v_lane)); p('v_lshlrev_b32 v%d, 12, v%d' % (vH1S, vH1S)); p('v_and_b32 v27, 15, v%d' % v_lane); p('v_lshl_add_u32 v%d, v27, 4, v%d' % (vH1S, vH1S))

TZ = 200
def exchange_scal(p, br):
    p('s_lshl_b32 s%d, s%d, 2' % (s_head, s_jj)); p('s_add_u32 s%d, s%d, s%d' % (s_head, s_head, s_w)); p('s_add_u32 s%d, s%d, %d' % (s_head, s_head, 32 * br))
    p('s_lshl_b32 s%d, s%d, 16' % (s_t2, s_head)); p('s_lshl_b32 s%d, s%d, 8' % (s_t1, s_i)); p('s_add_u32 s%d, s%d, s%d' % (s_t2, s_t2, s_t1)); p('s_add_u32 s%d, s%d, %d' % (s_t2, s_t2, WS_INB))

def exchange_finish(p, br):
    nq = 4 if br == 1 else 2
    nh = 2 * nq
    RC = 216
    pos = lambda r: ST + 4 * (r >> 1) + (r & 1)
    p('s_waitcnt lgkmcnt(0)')
    for r in range(4 * nq):
        d = pos(r) if r < nh else TZ + r - nh
        p('v_add_f32 v%d, v%d, v%d' % (d, ACC[0] + r, RC + r))
    nd = 8 if br == 1 else 4
    for r in range(nd): p('v_permlane16_swap_b32 v%d, v%d' % (pos(r), TZ + r))
    for m in range(nd // 2): p('v_cndmask_b32_e64 v%d, v%d, v%d, s[%d:%d]' % (ST + 4 * m + 2, TZ + 2 * m, TZ + 2 * m + 1, s_odd, s_odd + 1))

def exchange(p, vm, br):
    nq = 2
    RC = 216
    src1 = ACC[1] + 8
    for q in range(nq): p('ds_write_b128 v%d, %s offset:%d' % (vEXW, vr(src1 + 4 * q, 4), q * 1024))
    exchange_scal(p, br)
    vm.wait('wq1', ' lgkmcnt(0)')
    stamp(p, 18)
    p('s_barrier')
    stamp(p, 19)
    for q in range(nq): p('ds_read_b128 %s, v%d offset:%d' % (vr(RC + 4 * q, 4), vEXR, q * 1024))
    exchange_finish(p, br)

def hop1_store_ops(p, vm, br):
    nm = 4 if br == 1 else 2
    ops = []
    for m in range(nm):
        def f(m=m):
            vm.op('buffer_store_dwordx4 %s, v%d, s[%d:%d], s%d offen sc1' % (vr(ST + 4 * m, 4), vH1S, sWS, sWS + 3, s_t2))
            if m < nm - 1: p('s_add_u32 s%d, s%d, 16384' % (s_t2, s_t2))
        ops.append(f)
    return ops

def spin_tail(p, name):
    p('s_cbranch_vccz L_%s_ok' % name)
    p('s_sub_u32 s%d, s%d, 1' % (s_spin, s_spin))
    p('s_cmp_gt_i32 s%d, 0' % s_spin)
    p('s_cbranch_scc1 L_%s' % name)
    p.label('L_%s_ok' % name)

def tagcheck(p, regs, t0, t1):
    regs = list(regs)
    p('v_min_u32 v%d, v%d, v%d' % (t0, regs[0], regs[1])); p('v_max_u32 v%d, v%d, v%d' % (t1, regs[0], regs[1]))
    k = 2
    while k + 1 < len(regs):
        p('v_min3_u32 v%d, v%d, v%d, v%d' % (t0, t0, regs[k], regs[k + 1])); p('v_max3_u32 v%d, v%d, v%d, v%d' % (t1, t1, regs[k], regs[k + 1])); k += 2
    if k < len(regs):
        p('v_min_u32 v%d, v%d, v%d' % (t0, t0, regs[k])); p('v_max_u32 v%d, v%d, v%d' % (t1, t1, regs[k]))
    p('v_xor_b32 v%d, v%d, v%d' % (t0, vT, t0)); p('v_xor_b32 v%d, v%d, v%d' % (t1, vT, t1)); p('v_or_b32 v%d, v%d, v%d' % (t0, t0, t1))
    p('v_cmp_ne_u32 vcc, 0, v%d' % t0)

H1 = 184
s_h1a = 98
def hop1_load_ops(p, vm, br, retry=False):
    ops = []
    def addr():
        p('s_lshl_b32 s%d, s%d, 16' % (s_h1a, s_head)); p('s_lshl_b32 s%d, s%d, 12' % (s_t1, s_i)); p('s_add_u32 s%d, s%d, s%d' % (s_h1a, s_h1a, s_t1)); p('s_add_u32 s%d, s%d, %d' % (s_h1a, s_h1a, WS_INB))
        p('v_lshlrev_b32 v27, 4, v%d' % v_lane)
    if not retry: ops.append(addr)
    for n in range(4):
        ops.append(lambda n=n: vm.op('buffer_load_dwordx4 %s, v27, s[%d:%d], s%d offen offset:%d sc1' % (vr(H1 + 4 * n, 4), sWS, sWS + 3, s_h1a, n * 1024), 'h1l' if n == 3 else None))
    return ops

def hop1_reduce(p, vm, br):
    L = 'AB'[br]; LD = H1
    vm.wait('h1l')
    if br == 0:
        p('s_cmp_ge_u32 s%d, 8' % s_i); p('s_cbranch_scc1 L_h1skip')
    p('s_mov_b32 s%d, %d' % (s_spin, cfg.spin))
    tagcheck(p, [LD + 4 * n + 3 for n in range(4)], 28, 29)
    p('s_cbranch_vccz L_h1%s_ok' % L)
    p.label('L_h1%s' % L)
    for f in hop1_load_ops(p, vm, br, retry=True): f()
    vm.wait_all()
    tagcheck(p, [LD + 4 * n + 3 for n in range(4)], 28, 29)
    spin_tail(p, 'h1%s' % L)
    a, b, z, t = 216, 217, 218, 219
    p('v_add_f32 v%d, v%d, v%d' % (a, LD, LD + 4)); p('v_add_f32 v%d, v%d, v%d' % (b, LD + 1, LD + 5)); p('v_add_f32 v%d, v%d, v%d' % (z, LD + 2, LD + 6))
    for n in range(2, 4):
        p('v_add_f32 v%d, v%d, v%d' % (a, a, LD + 4 * n)); p('v_add_f32 v%d, v%d, v%d' % (b, b, LD + 4 * n + 1)); p('v_add_f32 v%d, v%d, v%d' % (z, z, LD + 4 * n + 2))
    p('v_mov_b32 v%d, v%d' % (t, z))
    p('s_lshl_b32 s%d, s%d, 11' % (s_t0, s_head)); p('s_lshl_b32 s%d, s%d, 7' % (s_t1, s_i)); p('s_add_u32 s%d, s%d, s%d' % (s_t0, s_t0, s_t1)); p('s_add_u32 s%d, s%d, %d' % (s_t0, s_t0, WS_OUTK))
    p('v_permlane32_swap_b32 v%d, v%d' % (a, b))
    p('v_permlane32_swap_b32 v%d, v%d' % (z, t))
    p('v_add_f32 v%d, v%d, v%d' % (a, a, b)); p('v_add_f32 v%d, v%d, v%d' % (z, z, t))
    p('v_lshlrev_b32 v27, 4, v%d' % v_lane)
    p('v_mov_b32 v%d, v%d' % (b, a)); p('v_mov_b32 v%d, v%d' % (t, z))
    p('v_mov_b32 v223, v%d' % vT)
    p('s_nop 0')
    p('v_permlane16_swap_b32 v%d, v%d' % (a, b))
    p('v_permlane16_swap_b32 v%d, v%d' % (z, t))
    p('v_add_f32 v%d, v%d, v%d' % (a, a, b)); p('v_add_f32 v%d, v%d, v%d' % (z, z, t))
    p('v_mov_b32 v%d, v%d' % (b, a))
    p('s_nop 0')
    p('v_mov_b32_dpp v%d, v%d quad_perm:[1,1,1,1] row_mask:0xf bank_mask:0xf' % (t, z))
    p('v_permlane32_swap_b32 v%d, v%d' % (a, b))
    p('v_mov_b32_dpp v%d, v%d quad_perm:[0,0,0,0] row_mask:0xf bank_mask:0xf' % (222, z))
    cvt(p, 220, a, b)
    cvt(p, 222, 222, t)
    p('v_mov_b32_dpp v221, v220 row_ror:8 row_mask:0xf bank_mask:0xf')
    p('s_mov_b32 exec_lo, 0xff'); p('s_mov_b32 exec_hi, 0')
    vm.op('buffer_store_dwordx4 v[220:223], v27, s[%d:%d], s%d offen sc1' % (sWS, sWS + 3, s_t0))
    p('s_mov_b64 exec, -1')
    if br == 0: p.label('L_h1skip')

KVA = 216
H2 = 64
s_h2a, s_h2b = 100, 101
s_hi8 = 98
def hop2_load_ops(p, vm, br, retry=False):
    nm = 4 if br == 1 else 2
    ops = []
    def addr():
        p('s_lshl_b32 s%d, s%d, 11' % (s_h2a, s_head)); p('s_add_u32 s%d, s%d, %d' % (s_h2a, s_h2a, WS_OUTK)); p('s_xor_b32 s%d, s%d, 2048' % (s_h2b, s_h2a))
        p('s_mov_b32 s%d, 0xff00ff00' % s_hi8); p('s_mov_b32 s%d, 0xff00ff00' % (s_hi8 + 1))
    def addr2():
        p('v_lshrrev_b32 v31, 4, v%d' % v_lane); p('v_lshlrev_b32 v31, 7, v31'); p('v_and_b32 v30, 7, v%d' % v_lane); p('v_lshl_add_u32 v31, v30, 4, v31')
    if not retry: ops += [addr, addr2]
    for u in range(2):
        for m in range(nm):
            r = H2 + 16 * u + 4 * m
            ops.append(lambda r=r, u=u, m=m: vm.op('buffer_load_dwordx4 %s, v31, s[%d:%d], s%d offen offset:%d sc1' % (vr(r, 4), sWS, sWS + 3, s_h2a if u == 0 else s_h2b, m * 512), 'h2l' if (u == 1 and m == nm - 1) else None))
    return ops

def hop2_gather(p, vm, br):
    L = 'AB'[br]; nm = 4 if br == 1 else 2
    tags = [H2 + 16 * u + 4 * m + 3 for u in range(2) for m in range(nm)]
    p('s_mov_b32 s%d, %d' % (s_spin, cfg.spin))
    vm.wait('h2l')
    tagcheck(p, tags, 28, 29)
    p('s_cbranch_vccz L_h2%s_ok' % L)
    p.label('L_h2%s' % L)
    for f in hop2_load_ops(p, vm, br, retry=True): f()
    vm.wait_all()
    tagcheck(p, tags, 28, 29)
    spin_tail(p, 'h2%s' % L)
    for u in range(2):
        for m in range(nm): p('v_cndmask_b32_e64 v%d, v%d, v%d, s[%d:%d]' % (KVA + 8 * u + m, H2 + 16 * u + 4 * m, H2 + 16 * u + 4 * m + 1, s_hi8, s_hi8 + 1))
        for m in range(nm): p('v_mov_b32 v%d, v%d' % (KVA + 8 * u + nm + m, H2 + 16 * u + 4 * m + 2))
    for u in range(2):
        for m in range(nm): p('v_permlane16_swap_b32 v%d, v%d' % (KVA + 8 * u + m, KVA + 8 * u + nm + m))

OF = 232
def o_addr(p):
    p('s_lshl_b32 s%d, s%d, 2' % (s_t0, s_i)); p('s_lshl_b32 s%d, s%d, 1' % (s_t1, s_th)); p('s_add_u32 s%d, s%d, s%d' % (s_t0, s_t0, s_t1))
    p('s_lshl_b32 s%d, s%d, 16' % (s_t0, s_t0)); p('s_lshl_b32 s%d, s%d, 10' % (s_t1, s_head)); p('s_add_u32 s%d, s%d, s%d' % (s_t0, s_t0, s_t1)); p('s_add_u32 s%d, s%d, %d' % (s_t0, s_t0, WS_O))
    p('s_xor_b32 s%d, s%d, 1024' % (s_t1, s_t0))
    p('s_add_u32 s%d, s%d, 65536' % (s_t2, s_t0)); p('s_add_u32 s%d, s%d, 65536' % (s_t3, s_t1))

def poison_ops(p, vm, br):
    def a():
        p('s_lshl_b32 s%d, s%d, 2' % (s_head, s_jj)); p('s_add_u32 s%d, s%d, s%d' % (s_head, s_head, s_w)); p('s_add_u32 s%d, s%d, %d' % (s_head, s_head, 32 * br))
        o_addr(p); p('v_lshlrev_b32 v27, 4, v%d' % v_lane)
        for k in range(4): p('v_mov_b32 v%d, -1' % (248 + k))
    ops = [a]
    for k, sr_ in enumerate((s_t0, s_t1, s_t2, s_t3)):
        ops.append(lambda k=k, sr_=sr_: vm.op('buffer_store_dwordx4 v[248:251], v27, s[%d:%d], s%d offen sc1' % (sWS, sWS + 3, sr_), 'poison' if k == 3 else None))
    def allp():
        for f in ops: f()
    return allp

def o_warm_ops(p, vm):
    def a():
        o_addr(p); p('v_lshlrev_b32 v27, 4, v%d' % v_lane)
    ops = [a]
    for k, sr_ in enumerate((s_t0, s_t1, s_t2, s_t3)):
        ops.append(lambda k=k, sr_=sr_: vm.op('buffer_load_dwordx4 v[%d:%d], v27, s[%d:%d], s%d offen %s' % (232 + 4 * k, 235 + 4 * k, sWS, sWS + 3, sr_, cfg.owarmfl)))
    return ops

def o_phase(p, vm, br):
    NB = [64, 80, 96, 112]
    for un, (blk, u) in enumerate(UNITS):
        if br == 1:
            p('%s %s, %s, %s, 0' % (MF, vr(NB[un], 16), vr(KVA + 8 * u, 4), vr(FQ + 8 * un, 4)))
            p('%s %s, %s, %s, %s' % (MF, vr(NB[un], 16), vr(KVA + 8 * u + 4, 4), vr(FQ + 8 * un + 4, 4), vr(NB[un], 16)))
        else:
            p('%s %s, %s, %s, 0' % (MF, vr(NB[un], 16), vr(KVA + 8 * u, 4), vr(FQ + 4 * un, 4)))
        if un == 0:
            if cfg.oalias:
                p('s_lshl_b32 s%d, s%d, 16' % (s_t0, s_head)); p('s_lshl_b32 s%d, s%d, 12' % (s_t1, s_i)); p('s_add_u32 s%d, s%d, s%d' % (s_t0, s_t0, s_t1)); p('s_add_u32 s%d, s%d, %d' % (s_t0, s_t0, WS_INB))
                p('s_add_u32 s%d, s%d, 1024' % (s_t1, s_t0)); p('s_add_u32 s%d, s%d, 2048' % (s_t2, s_t0)); p('s_add_u32 s%d, s%d, 3072' % (s_t3, s_t0))
            else:
                p('s_lshl_b32 s%d, s%d, 2' % (s_t0, s_i)); p('s_lshl_b32 s%d, s%d, 1' % (s_t1, s_th)); p('s_add_u32 s%d, s%d, s%d' % (s_t0, s_t0, s_t1))
                p('s_lshl_b32 s%d, s%d, 16' % (s_t0, s_t0)); p('s_lshl_b32 s%d, s%d, 10' % (s_t1, s_head)); p('s_add_u32 s%d, s%d, s%d' % (s_t0, s_t0, s_t1)); p('s_add_u32 s%d, s%d, %d' % (s_t0, s_t0, WS_O))
                p('s_xor_b32 s%d, s%d, 1024' % (s_t1, s_t0))
                p('s_add_u32 s%d, s%d, 65536' % (s_t2, s_t0)); p('s_add_u32 s%d, s%d, 65536' % (s_t3, s_t1))
            p('v_lshlrev_b32 v27, 4, v%d' % v_lane)
    soffs = {(0, 0): s_t0, (0, 1): s_t1, (1, 0): s_t2, (1, 1): s_t3}
    for un, (blk, u) in enumerate(UNITS):
        N = NB[un]; num = N; den = N + 8
        p('v_add_f32 v%d, s%d, v%d' % (den, s_eps, den))
        p('v_rcp_f32 v%d, v%d' % (den, den))
        for i in range(4):
            p('v_pk_mul_f32 v[%d:%d], v[%d:%d], v[%d:%d] op_sel_hi:[1,0]' % (num + 2 * i, num + 2 * i + 1, num + 2 * i, num + 2 * i + 1, den, den + 1))
        for i in range(4): cvt(p, OF + 4 * un + i, num + 2 * i, num + 2 * i + 1)
        vm.op('buffer_store_dwordx4 %s, v27, s[%d:%d], s%d offen sc1' % (vr(OF + 4 * un, 4), sWS, sWS + 3, soffs[(blk, u)]), 'ost')
    p('s_lshl_b32 s%d, s%d, 1' % (s_t0, s_i)); p('s_add_u32 s%d, s%d, s%d' % (s_t0, s_t0, s_th)); p('s_lshl_b32 s%d, s%d, 5' % (s_t0, s_t0))
    p('s_lshl_b32 s%d, s%d, 1' % (s_t1, s_jj)); p('s_add_u32 s%d, s%d, s%d' % (s_t0, s_t0, s_t1)); p('s_add_u32 s%d, s%d, s%d' % (s_t0, s_t0, s_hp))
    p('s_add_u32 s%d, s%d, %d' % (s_t0, s_t0, 16 * br)); p('s_lshl_b32 s%d, s%d, 7' % (s_t0, s_t0)); p('s_add_u32 s%d, s%d, %d' % (s_h2a, s_t0, WS_FLAG))

def o_flag(p, vm):
    p('v_mov_b32 v27, 0')
    vm.wait('ost')
    p('s_mov_b64 exec, 1')
    vm.op('buffer_store_dword v%d, v27, s[%d:%d], s%d offen %s' % (vT, sWS, sWS + 3, s_h2a, cfg.flagfl))
    p('s_mov_b64 exec, -1')

def gate_load_ops(p, vm):
    X, Gw = GX, GW
    def a0():
        p('s_lshl_b32 s%d, s%d, 7' % (s_t0, s_i)); p('s_lshl_b32 s%d, s%d, 4' % (s_t1, s_jj)); p('s_add_u32 s%d, s%d, s%d' % (s_t0, s_t0, s_t1))
        p('s_lshl_b32 s%d, s%d, 2' % (s_t1, s_w)); p('s_add_u32 s%d, s%d, s%d' % (s_t0, s_t0, s_t1))
        p('s_lshl_b32 s%d, s%d, 10' % (s_t2, s_t0))
    def a1():
        p('s_lshr_b32 s%d, s%d, 2' % (s_t3, s_t0)); p('s_lshl_b32 s%d, s%d, 7' % (s_t3, s_t3)); p('s_add_u32 s%d, s%d, %d' % (s_b + 1, s_t3, WS_G))
        p('v_and_b32 v27, 15, v%d' % v_lane); p('v_lshlrev_b32 v27, 4, v27')
    def a2():
        p('v_lshrrev_b32 v28, 4, v%d' % v_lane); p('v_lshl_add_u32 v28, v28, 10, v27')
    ops = [a0, a1, a2]
    for q in range(4):
        ops.append(lambda q=q: vm.op('buffer_load_dwordx4 %s, v28, s[%d:%d], s%d offen offset:%d' % (vr(X + 4 * q, 4), sX, sX + 3, s_t2, q * 256)))
    for q in range(4):
        ops.append(lambda q=q: vm.op('buffer_load_dwordx4 %s, v27, s[%d:%d], 0 offen offset:%d' % (vr(Gw + 4 * q, 4), sMISC, sMISC + 3, q * 256), 'gate' if q == 3 else None))
    return ops

def gate_finish(p, vm):
    X, Gw = GX, GW
    vm.wait('gate')
    acc = 200
    p('v_mov_b32 v%d, 0' % acc); p('v_mov_b32 v%d, 0' % (acc + 1))
    for k in range(16):
        p('v_lshlrev_b32 v202, 16, v%d' % (X + k)); p('v_lshlrev_b32 v203, 16, v%d' % (Gw + k))
        p('v_and_b32 v204, 0xffff0000, v%d' % (X + k)); p('v_and_b32 v205, 0xffff0000, v%d' % (Gw + k))
        p('v_fmac_f32 v%d, v202, v203' % acc); p('v_fmac_f32 v%d, v204, v205' % (acc + 1))
    p('v_add_f32 v%d, v%d, v%d' % (acc, acc, acc + 1))
    for sh in (8, 4, 2, 1):
        p('v_add_f32_dpp v%d, v%d, v%d row_ror:%d row_mask:0xf bank_mask:0xf' % (acc, acc, acc, sh))
    p('v_mul_f32 v%d, s%d, v%d' % (acc, s_log2e, acc))
    p('v_exp_f32_e64 v%d, -v%d' % (acc, acc))
    p('v_add_f32 v%d, 1.0, v%d' % (acc, acc))
    p('v_rcp_f32 v%d, v%d' % (acc, acc))
    p('v_mov_b32 v%d, v%d' % (acc + 1, vT))
    p('v_lshrrev_b32 v27, 4, v%d' % v_lane); p('v_lshlrev_b32 v27, 3, v27')
    p('s_mov_b32 exec_lo, 0x00010001'); p('s_mov_b32 exec_hi, 0x00010001')
    vm.op('buffer_store_dwordx2 v[%d:%d], v27, s[%d:%d], s%d offen sc1' % (acc, acc + 1, sWS, sWS + 3, s_b + 1))
    p('s_mov_b64 exec, -1')

def p3_setup(p):
    p('v_lshrrev_b32 v27, 5, v%d' % v_lane); p('v_lshlrev_b32 v27, 2, v27')
    p('v_bfe_u32 v28, v%d, 2, 2' % v_lane); p('v_add_u32 v27, v27, v28'); p('v_lshlrev_b32 v27, 7, v27')
    p('v_bfe_u32 v29, v%d, 4, 1' % v_lane); p('v_lshl_add_u32 v27, v29, 5, v27')
    p('v_and_b32 v29, 3, v%d' % v_lane); p('v_lshl_add_u32 v27, v29, 3, v27')
    if not cfg.two:
        p('s_and_b32 s%d, s%d, 1' % (s_t0, s_r)); p('s_xor_b32 s%d, s%d, s%d' % (s_t0, s_t0, s_hp))
        p('s_lshl_b32 s%d, s%d, 16' % (s_t0, s_t0)); p('s_add_u32 s%d, s%d, %d' % (s_t0, s_t0, SLOT)); p('v_add_u32 v27, s%d, v27' % s_t0)
    p('v_lshrrev_b32 v28, 1, v28')
    p('v_lshl_add_u32 v%d, v28, 6, v27' % vOA)
    p('v_xor_b32 v28, 1, v28'); p('v_lshl_add_u32 v%d, v28, 6, v27' % (vOA + 1))
    p('v_and_b32 v27, 31, v%d' % v_lane)
    p('s_lshl_b32 s%d, s%d, 14' % (s_t0, s_hp)); p('s_lshl_b32 s%d, s%d, 13' % (s_t1, s_th)); p('s_add_u32 s%d, s%d, s%d' % (s_t0, s_t0, s_t1))
    p('v_lshlrev_b32 v28, 8, v27'); p('v_add_u32 v28, s%d, v28' % s_t0)
    p('v_and_b32 v29, 7, v27'); p('v_lshrrev_b32 v27, 5, v%d' % v_lane); p('v_xor_b32 v29, v29, v27')
    for q in range(4):
        p('v_xor_b32 v27, %d, v29' % (2 * q)); p('v_lshl_add_u32 v%d, v27, 4, v28' % (vEW + q))
    p('v_lshrrev_b32 v27, 3, v%d' % v_lane); p('v_and_b32 v28, 7, v%d' % v_lane); p('v_lshlrev_b32 v28, 1, v28')
    p('s_lshl_b32 s%d, s%d, 12' % (s_t0, s_w))
    p('v_lshlrev_b32 v29, 8, v27'); p('v_add_u32 v29, s%d, v29' % s_t0)
    for x in range(2):
        p('v_or_b32 v30, %d, v28' % x); p('v_xor_b32 v30, v30, v27'); p('v_lshl_add_u32 v%d, v30, 4, v29' % (vER + x))
    p('v_and_b32 v28, 7, v%d' % v_lane); p('v_lshlrev_b32 v28, 4, v28'); p('v_lshl_add_u32 v14, v27, 10, v28')
    p('v_and_b32 v15, %d, v%d' % (7 if cfg.two else 15, v_lane)); p('v_lshlrev_b32 v15, 7, v15')
    p('v_lshlrev_b32 v16, 4, v%d' % v_lane)
    p('v_and_b32 v28, 31, v%d' % v_lane); p('v_lshrrev_b32 v29, 2, v28'); p('v_lshlrev_b32 v29, 7, v29'); p('v_and_b32 v28, 3, v28'); p('v_lshl_add_u32 v17, v28, 3, v29')

s_fl, s_oa, s_ga, s_out0, s_out1 = 47, 48, 49, 50, 51
def p3_scalars(p):
    p('s_lshl_b32 s%d, s%d, 1' % (s_t0, s_tb)); p('s_add_u32 s%d, s%d, s%d' % (s_t0, s_t0, s_hp)); p('s_lshl_b32 s%d, s%d, 11' % (s_t0, s_t0)); p('s_add_u32 s%d, s%d, %d' % (s_fl, s_t0, WS_FLAG))
    p('s_lshl_b32 s%d, s%d, 1' % (s_t0, s_tb)); p('s_add_u32 s%d, s%d, s%d' % (s_t0, s_t0, s_th)); p('s_lshl_b32 s%d, s%d, 16' % (s_t1, s_t0))
    p('s_lshl_b32 s%d, s%d, 15' % (s_t2, s_hp)); p('s_add_u32 s%d, s%d, s%d' % (s_t1, s_t1, s_t2)); p('s_add_u32 s%d, s%d, %d' % (s_oa, s_t1, WS_O))
    p('s_lshl_b32 s%d, s%d, 10' % (s_t0, s_t0)); p('s_add_u32 s%d, s%d, %d' % (s_ga, s_t0, WS_G))
    if cfg.oalias:
        p('s_and_b32 s%d, s%d, 1' % (s_t0, s_tb)); p('s_lshl_b32 s%d, s%d, 5' % (s_t1, s_hp)); p('s_add_u32 s%d, s%d, s%d' % (s_t1, s_t1, s_t0)); p('s_lshl_b32 s%d, s%d, 16' % (s_t1, s_t1))
        p('s_lshl_b32 s%d, s%d, 10' % (s_t0, s_t0)); p('s_add_u32 s%d, s%d, s%d' % (s_t1, s_t1, s_t0))
        p('s_lshr_b32 s%d, s%d, 1' % (s_t0, s_tb)); p('s_lshl_b32 s%d, s%d, 12' % (s_t0, s_t0)); p('s_add_u32 s%d, s%d, s%d' % (s_t1, s_t1, s_t0))
        p('s_lshl_b32 s%d, s%d, 11' % (s_t0, s_th)); p('s_add_u32 s%d, s%d, s%d' % (s_t1, s_t1, s_t0)); p('s_add_u32 s%d, s%d, %d' % (s_oa, s_t1, WS_INB))
    p('s_lshl_b32 s%d, s%d, 6' % (s_t0, s_tb)); p('s_lshl_b32 s%d, s%d, 4' % (s_t1, s_w)); p('s_add_u32 s%d, s%d, s%d' % (s_t0, s_t0, s_t1)); p('s_lshl_b32 s%d, s%d, 10' % (s_t0, s_t0))
    p('s_lshl_b32 s%d, s%d, 7' % (s_t1, s_cb)); p('s_add_u32 s%d, s%d, s%d' % (s_out0, s_t0, s_t1)); p('s_add_u32 s%d, s%d, 8192' % (s_out1, s_out0))
    if cfg.orot: p('s_mov_b32 s%d, s%d' % (s_rc, s_cb))
    else: p('s_mov_b32 s%d, 0' % s_rc)
    p('s_lshr_b32 s%d, s%d, 1' % (s_r4, s_r)); p('s_lshl_b32 s%d, s%d, 2' % (s_r4, s_r4))

s_oa1, s_fl1, s_rb0, s_rb1, s_kx4 = 52, 60, 61, 89, 96
def p3_scalars2(p):
    p('s_lshr_b32 s%d, s%d, 2' % (s_t0, s_cb)); p('s_xor_b32 s%d, s%d, s%d' % (s_t0, s_t0, s_hp)); p('s_and_b32 s%d, s%d, 1' % (s_t0, s_t0))
    p('s_lshl_b32 s%d, s%d, 2' % (s_kx4, s_t0))
    p('s_lshr_b32 s%d, s%d, 1' % (s_t1, s_r)); p('s_xor_b32 s%d, s%d, s%d' % (s_t0, s_t0, s_t1)); p('s_lshl_b32 s%d, s%d, 10' % (s_t0, s_t0))
    p('s_lshl_b32 s%d, s%d, 12' % (s_t1, s_tb)); p('s_add_u32 s%d, s%d, s%d' % (s_t0, s_t0, s_t1)); p('s_add_u32 s%d, s%d, %d' % (s_fl, s_t0, WS_FLAG)); p('s_add_u32 s%d, s%d, 2048' % (s_fl1, s_fl))
    if cfg.oalias:
        p('s_and_b32 s%d, s%d, 1' % (s_t0, s_tb)); p('s_lshl_b32 s%d, s%d, 16' % (s_t1, s_t0))
        p('s_lshl_b32 s%d, s%d, 10' % (s_t0, s_t0)); p('s_add_u32 s%d, s%d, s%d' % (s_t1, s_t1, s_t0))
        p('s_lshr_b32 s%d, s%d, 1' % (s_t0, s_tb)); p('s_lshl_b32 s%d, s%d, 12' % (s_t0, s_t0)); p('s_add_u32 s%d, s%d, s%d' % (s_t1, s_t1, s_t0))
        p('s_lshl_b32 s%d, s%d, 11' % (s_t0, s_th)); p('s_add_u32 s%d, s%d, s%d' % (s_t1, s_t1, s_t0)); p('s_add_u32 s%d, s%d, %d' % (s_oa, s_t1, WS_INB))
        p('s_add_u32 s%d, s%d, %d' % (s_oa1, s_oa, 32 * 65536))
    else:
        p('s_lshl_b32 s%d, s%d, 1' % (s_t0, s_tb)); p('s_add_u32 s%d, s%d, s%d' % (s_t0, s_t0, s_th)); p('s_lshl_b32 s%d, s%d, 16' % (s_t1, s_t0)); p('s_add_u32 s%d, s%d, %d' % (s_oa, s_t1, WS_O))
        p('s_add_u32 s%d, s%d, 32768' % (s_oa1, s_oa))
    p('s_and_b32 s%d, s%d, 1' % (s_t0, s_r)); p('s_lshl_b32 s%d, s%d, 16' % (s_t0, s_t0)); p('s_add_u32 s%d, s%d, %d' % (s_rb0, s_t0, SLOT))
    p('s_xor_b32 s%d, s%d, 65536' % (s_t0, s_t0)); p('s_add_u32 s%d, s%d, %d' % (s_rb1, s_t0, SLOT))

def p3two(p, vm, br):
    L = 'AB'[br]
    OA = [[64, 80], [96, 112]]
    GV = 152
    LA = cfg.ola2
    vm.op('buffer_load_dwordx2 v[%d:%d], v17, s[%d:%d], s%d offen sc1' % (GV, GV + 1, sWS, sWS + 3, s_ga), 'g')
    p('s_mov_b32 s%d, %d' % (s_spin, cfg.spin))
    p.label('L_fl%s' % L)
    vm.op('buffer_load_dword v28, v15, s[%d:%d], s%d offen sc1' % (sWS, sWS + 3, s_fl))
    vm.wait_all()
    p('v_cmp_ne_u32 vcc, v28, v%d' % vT)
    spin_tail(p, 'fl%s' % L)
    stamp(p, 15)
    def lam(dst, g):
        p('s_add_u32 s%d, s%d, %d' % (dst, s_cb, g)); p('s_and_b32 s%d, s%d, 3' % (dst, dst)); p('s_add_u32 s%d, s%d, s%d' % (dst, dst, s_kx4))
    def oload(n):
        ph, h = n >> 4, n & 15
        g, q = h >> 2, h & 3
        if q == 0:
            lam(s_t2, g)
            p('s_add_u32 s%d, s%d, s%d' % (s_t2, s_t2, s_r4)); p('s_and_b32 s%d, s%d, 7' % (s_t2, s_t2)); p('s_lshl_b32 s%d, s%d, %d' % (s_t2, s_t2, 18 if cfg.oalias else 12))
            p('s_add_u32 s%d, s%d, s%d' % (s_t1, s_oa1 if ph else s_oa, s_t2))
        if cfg.oalias:
            if q == 1: p('s_xor_b32 s%d, s%d, 1024' % (s_t2, s_t1))
            if q == 2: p('s_add_u32 s%d, s%d, 131072' % (s_t1, s_t1))
            if q == 3: p('s_add_u32 s%d, s%d, 131072' % (s_t2, s_t2))
            vm.op('buffer_load_dwordx4 %s, v16, s[%d:%d], s%d offen sc1' % (ar(4 * n, 4), sWS, sWS + 3, s_t1 if q % 2 == 0 else s_t2), 'o%d' % n)
        else:
            vm.op('buffer_load_dwordx4 %s, v16, s[%d:%d], s%d offen offset:%d sc1' % (ar(4 * n, 4), sWS, sWS + 3, s_t1, q * 1024), 'o%d' % n)
    def gaddr(n):
        ph, g = n >> 4, (n & 15) >> 2
        d = vOG + 2 * ((n >> 2) & 1)
        q = Rec();
        q('s_add_u32 s%d, s%d, %d' % (s_t0, s_cb, g)); q('s_and_b32 s%d, s%d, 3' % (s_t0, s_t0)); q('s_add_u32 s%d, s%d, s%d' % (s_t0, s_t0, s_kx4))
        q('s_lshl_b32 s%d, s%d, 13' % (s_t0, s_t0)); q('s_add_u32 s%d, s%d, s%d' % (s_t0, s_t0, s_rb1 if ph else s_rb0))
        q('v_add_u32 v%d, s%d, v%d' % (d, s_t0, vOA)); q('v_add_u32 v%d, s%d, v%d' % (d + 1, s_t0, vOA + 1))
        return q.l
    def reads(n):
        wf = vWF + 8 * (n % 3)
        pre = gaddr(n) if (n & 3) == 0 else []
        return pre + ['ds_read_b64_tr_b16 v[%d:%d], v%d offset:%d' % (wf + 4 * ct + 2 * rd, wf + 4 * ct + 2 * rd + 1, vOG + 2 * ((n >> 2) & 1) + ct, (n & 3) * 2048 + rd * 1024) for ct in range(2) for rd in range(2)]
    for n in range(LA): oload(n)
    vm.op('buffer_load_dword v29, v15, s[%d:%d], s%d offen sc1' % (sWS, sWS + 3, s_fl1), 'pb')
    for n in range(2):
        for o in reads(n): p(o)
    p('s_mov_b32 s%d, %d' % (s_spin, cfg.spin))
    p('v_cmp_ne_u32 vcc, v%d, v%d' % (GV + 1, vT))
    p('s_cbranch_vccz L_g%s_ok' % L)
    p.label('L_g%s' % L)
    p('buffer_load_dwordx2 v[%d:%d], v17, s[%d:%d], s%d offen sc1' % (GV, GV + 1, sWS, sWS + 3, s_ga))
    p('s_waitcnt vmcnt(0)')
    p('v_cmp_ne_u32 vcc, v%d, v%d' % (GV + 1, vT))
    spin_tail(p, 'g%s' % L)
    p('v_sub_f32 v%d, 1.0, v%d' % (GV + 1, GV))
    nxt = LA
    CHK = cfg.pbstep
    for n in range(32):
        ph = n >> 4
        wf = vWF + 8 * (n % 3)
        if n == CHK:
            vm.wait('pb')
            p('s_mov_b32 s%d, %d' % (s_spin, cfg.spin))
            p('v_cmp_ne_u32 vcc, v29, v%d' % vT)
            p('s_cbranch_vccz L_fb%s_ok' % L)
            p.label('L_fb%s' % L)
            p('buffer_load_dword v29, v15, s[%d:%d], s%d offen sc1' % (sWS, sWS + 3, s_fl1))
            p('s_waitcnt vmcnt(0)')
            p('v_cmp_ne_u32 vcc, v29, v%d' % vT)
            spin_tail(p, 'fb%s' % L)
            if cfg.fine == 4: stamp(p, 44)
        vm.wait('o%d' % n, ' lgkmcnt(%d)' % (4 if n < 31 else 0))
        R = reads(n + 2) if n + 2 < 32 else []
        for ct in range(2):
            c = '0' if (n & 15) == 0 else vr(OA[ph][ct], 16)
            p('%s %s, %s, %s, %s' % (MF, vr(OA[ph][ct], 16), vr(wf + 4 * ct, 4), ar(4 * n, 4), c))
            k = len(R) - 2
            for o in (R[:k] if ct == 0 else R[k:]): p(o)
            lim = 16 if n < CHK else 32
            want = min(lim, n + 1 + (LA if n < CHK else cfg.olb))
            cnt = 0
            while nxt < want and cnt < (1 if n < CHK else 2 if ct == 0 else 1):
                oload(nxt); nxt += 1; cnt += 1
                if n < CHK: break
    assert nxt == 32, nxt
    stamp(p, 16)
    for ct in range(2):
        for q in range(4):
            for i in range(2 * q, 2 * q + 2):
                a = OA[0][ct] + 2 * i; b = OA[1][ct] + 2 * i
                p('v_pk_mul_f32 v[%d:%d], v[%d:%d], v[%d:%d] op_sel_hi:[1,0]' % (a, a + 1, a, a + 1, GV, GV + 1))
            for i in range(2 * q, 2 * q + 2):
                a = OA[0][ct] + 2 * i; b = OA[1][ct] + 2 * i
                p('v_pk_fma_f32 v[%d:%d], v[%d:%d], v[%d:%d], v[%d:%d] op_sel:[0,1,0] op_sel_hi:[1,1,1]' % (a, a + 1, b, b + 1, GV, GV + 1, a, a + 1))
            p('ds_write_b128 v%d, %s offset:%d' % (vEW + q, vr(OA[0][ct] + 4 * q, 4), 128 * ct))
    p('s_waitcnt lgkmcnt(0)')
    stamp(p, 17)
    p('s_barrier')
    p3_tail(p, vm, L)

def p3_tail(p, vm, L):
    RD = 168
    for a in range(2):
        for brr in range(2):
            for x in range(2):
                p('ds_read_b128 %s, v%d offset:%d' % (vr(RD + 16 * a + 8 * brr + 4 * x, 4), vER + x, a * 2048 + brr * 16384))
    for a in range(2):
        p('s_waitcnt lgkmcnt(%d)' % (4 if a == 0 else 0))
        r = RD + 16 * a
        for i in range(4): p('v_pk_add_f32 v[%d:%d], v[%d:%d], v[%d:%d]' % (r + 2 * i, r + 2 * i + 1, r + 2 * i, r + 2 * i + 1, r + 8 + 2 * i, r + 8 + 2 * i + 1))
        for i in range(4): cvt(p, r + 8 + i, r + 2 * i, r + 2 * i + 1)
        vm.op('buffer_store_dwordx4 %s, v14, s[%d:%d], s%d offen %s' % (vr(r + 8, 4), sOUT, sOUT + 3, s_out0 if a == 0 else s_out1, cfg.outfl))
    p('s_cmp_eq_u32 s%d, 0' % s_b); p('s_cbranch_scc0 L_noep%s' % L)
    p('s_cmp_eq_u32 s%d, 0' % s_w); p('s_cbranch_scc0 L_noep%s' % L)
    p('v_mov_b32 v27, 0'); p('s_mov_b64 exec, 1')
    vm.op('buffer_store_dword v%d, v27, s[%d:%d], 0 offen sc1' % (vT, sWS, sWS + 3))
    p('s_mov_b64 exec, -1')
    p.label('L_noep%s' % L)

def p3(p, vm, br):
    L = 'AB'[br]
    OACC = [64, 80]
    GV = 96
    vm.op('buffer_load_dwordx2 v[%d:%d], v17, s[%d:%d], s%d offen sc1' % (GV, GV + 1, sWS, sWS + 3, s_ga), 'g')
    p('s_mov_b32 s%d, %d' % (s_spin, cfg.spin))
    if cfg.p3e:
        vm.op('buffer_load_dword v28, v15, s[%d:%d], s%d offen sc1' % (sWS, sWS + 3, s_fl), 'poll1')
        for f in dma_wo_ops(p, vm, 3): f()
        vm.wait('poll1')
        p('v_cmp_ne_u32 vcc, v28, v%d' % vT)
        p('s_mov_b32 s%d, 1' % s_fast)
        p('s_cbranch_vccz L_fl%s_ok' % L)
        p('s_mov_b32 s%d, 0' % s_fast)
        p('buffer_load_dword v28, v15, s[%d:%d], s%d offen sc1' % (sWS, sWS + 3, s_fl))
        p('s_waitcnt vmcnt(0)')
        p('s_barrier')
        p('v_cmp_ne_u32 vcc, v28, v%d' % vT)
        p('s_cbranch_vccz L_fl%s_ok' % L)
        p.label('L_fl%s' % L)
        p('buffer_load_dword v28, v15, s[%d:%d], s%d offen sc1' % (sWS, sWS + 3, s_fl))
        p('s_waitcnt vmcnt(0)')
        p('v_cmp_ne_u32 vcc, v28, v%d' % vT)
        spin_tail(p, 'fl%s' % L)
    else:
        p.label('L_fl%s' % L)
        vm.op('buffer_load_dword v28, v15, s[%d:%d], s%d offen %s' % (sWS, sWS + 3, s_fl, cfg.pollfl))
        vm.wait_all()
        p('v_cmp_ne_u32 vcc, v28, v%d' % vT)
        if cfg.sleep:
            p('s_cbranch_vccz L_fl%s_ok' % L)
            p('s_sleep %d' % cfg.sleep)
        spin_tail(p, 'fl%s' % L)
    if cfg.fine == 4:
        stamp(p, 44)
        p('v_writelane_b32 v255, s%d, 45' % s_spin)
    if not cfg.wosched and not cfg.earlyb4 and not cfg.wo2p2 and not cfg.p3e: p('s_barrier')
    stamp(p, 15)
    def oload(h):
        g, q = h >> 2, h & 3
        if q == 0:
            p('s_add_u32 s%d, s%d, %d' % (s_t2, s_rc, g)); p('s_and_b32 s%d, s%d, 7' % (s_t2, s_t2))
            p('s_add_u32 s%d, s%d, s%d' % (s_t2, s_t2, s_r4)); p('s_and_b32 s%d, s%d, 7' % (s_t2, s_t2)); p('s_lshl_b32 s%d, s%d, %d' % (s_t2, s_t2, 18 if cfg.oalias else 12))
            p('s_add_u32 s%d, s%d, s%d' % (s_t1, s_oa, s_t2))
        if cfg.oalias:
            if q == 1: p('s_xor_b32 s%d, s%d, 1024' % (s_t2, s_t1))
            if q == 2: p('s_add_u32 s%d, s%d, 131072' % (s_t1, s_t1))
            if q == 3: p('s_add_u32 s%d, s%d, 131072' % (s_t2, s_t2))
            vm.op('buffer_load_dwordx4 %s, v16, s[%d:%d], s%d offen sc1' % (ar(4 * h, 4), sWS, sWS + 3, s_t1 if q % 2 == 0 else s_t2), 'o%d' % h)
        else:
            vm.op('buffer_load_dwordx4 %s, v16, s[%d:%d], s%d offen offset:%d sc1' % (ar(4 * h, 4), sWS, sWS + 3, s_t1, q * 1024), 'o%d' % h)
    LA = cfg.ola
    for h in range(LA): oload(h)
    if cfg.p3e:
        p('s_cmp_eq_u32 s%d, 1' % s_fast); p('s_cbranch_scc0 L_nb%s' % L)
        p('s_waitcnt vmcnt(%d)' % LA)
        p('s_barrier')
        p.label('L_nb%s' % L)
    def gaddr(g):
        d = vOG + 2 * (g & 1)
        return ['s_add_u32 s%d, s%d, %d' % (s_t0, s_rc, g), 's_and_b32 s%d, s%d, 7' % (s_t0, s_t0), 's_lshl_b32 s%d, s%d, 13' % (s_t0, s_t0),
                'v_add_u32 v%d, s%d, v%d' % (d, s_t0, vOA), 'v_add_u32 v%d, s%d, v%d' % (d + 1, s_t0, vOA + 1)]
    def reads(h):
        wf = vWF + 8 * (h % 3); g = h >> 2
        pre = gaddr(g) if (h & 3) == 0 else []
        return pre + ['ds_read_b64_tr_b16 v[%d:%d], v%d offset:%d' % (wf + 4 * ct + 2 * rd, wf + 4 * ct + 2 * rd + 1, vOG + 2 * (g & 1) + ct, (h & 3) * 2048 + rd * 1024) for ct in range(2) for rd in range(2)]
    for h in range(2):
        for o in reads(h): p(o)
    if cfg.fine == 3: stamp(p, 41)
    p('s_mov_b32 s%d, %d' % (s_spin, cfg.spin))
    p('v_cmp_ne_u32 vcc, v%d, v%d' % (GV + 1, vT))
    p('s_cbranch_vccz L_g%s_ok' % L)
    p.label('L_g%s' % L)
    vm2 = VM(p)
    vm2.op('buffer_load_dwordx2 v[%d:%d], v17, s[%d:%d], s%d offen sc1' % (GV, GV + 1, sWS, sWS + 3, s_ga))
    vm2.wait_all()
    p('v_cmp_ne_u32 vcc, v%d, v%d' % (GV + 1, vT))
    spin_tail(p, 'g%s' % L)
    p('v_sub_f32 v%d, 1.0, v%d' % (GV + 1, GV))
    p('s_cmp_eq_u32 s%d, 0' % s_hp)
    p('s_cselect_b64 vcc, 0, -1')
    p('v_cndmask_b32 v%d, v%d, v%d, vcc' % (GV, GV, GV + 1))
    for h in range(32):
        wf = vWF + 8 * (h % 3)
        vm.wait('o%d' % h, ' lgkmcnt(%d)' % (4 if h < 31 else 0))
        if cfg.fine == 3 and h in (0, 8, 16, 24): stamp(p, 42 + h // 8)
        R = reads(h + 2) if h + 2 < 32 else []
        for ct in range(2):
            c = '0' if h == 0 else vr(OACC[ct], 16)
            p('%s %s, %s, %s, %s' % (MF, vr(OACC[ct], 16), vr(wf + 4 * ct, 4), ar(4 * h, 4), c))
            k = len(R) - 2
            for o in (R[:k] if ct == 0 else R[k:]): p(o)
            if ct == 0 and h + LA < 32: oload(h + LA)
    stamp(p, 16)
    for ct in range(2):
        for q in range(4):
            for i in range(2 * q, 2 * q + 2):
                p('v_pk_mul_f32 v[%d:%d], v[%d:%d], v[%d:%d] op_sel_hi:[1,0]' % (OACC[ct] + 2 * i, OACC[ct] + 2 * i + 1, OACC[ct] + 2 * i, OACC[ct] + 2 * i + 1, GV, GV + 1))
            p('ds_write_b128 v%d, %s offset:%d' % (vEW + q, vr(OACC[ct] + 4 * q, 4), 128 * ct))
    p('s_waitcnt lgkmcnt(0)')
    stamp(p, 17)
    p('s_barrier')
    RD = 168
    for a in range(2):
        for brr in range(2):
            for x in range(2):
                p('ds_read_b128 %s, v%d offset:%d' % (vr(RD + 16 * a + 8 * brr + 4 * x, 4), vER + x, a * 2048 + brr * 16384))
    for a in range(2):
        p('s_waitcnt lgkmcnt(%d)' % (4 if a == 0 else 0))
        r = RD + 16 * a
        for i in range(4): p('v_pk_add_f32 v[%d:%d], v[%d:%d], v[%d:%d]' % (r + 2 * i, r + 2 * i + 1, r + 2 * i, r + 2 * i + 1, r + 8 + 2 * i, r + 8 + 2 * i + 1))
        for i in range(4): cvt(p, r + 8 + i, r + 2 * i, r + 2 * i + 1)
        vm.op('buffer_store_dwordx4 %s, v14, s[%d:%d], s%d offen %s' % (vr(r + 8, 4), sOUT, sOUT + 3, s_out0 if a == 0 else s_out1, cfg.outfl))
    p('s_cmp_eq_u32 s%d, 0' % s_b); p('s_cbranch_scc0 L_noep%s' % L)
    p('s_cmp_eq_u32 s%d, 0' % s_w); p('s_cbranch_scc0 L_noep%s' % L)
    p('v_mov_b32 v27, 0'); p('s_mov_b64 exec, 1')
    vm.op('buffer_store_dword v%d, v27, s[%d:%d], 0 offen sc1' % (vT, sWS, sWS + 3))
    p('s_mov_b64 exec, -1')
    p.label('L_noep%s' % L)

V7 = dict(vGA=17, vOUT=18, vFL=19, vOL=20, vOG=21)
S7 = dict(fl=64, fl1=65, oa=66, oa1=67, ga=68, out0=69, out1=70, r4=71, kx4=72, rb0=73, rb1=74, flag=75, a=76, b=77, c=78)
def p3_setup7_ops(p, br):
    V, S = V7, S7
    t0, t1, t2, t3 = 248, 249, 250, 251
    L = []
    def add(*lines): L.append(lambda lines=lines: [p(x) for x in lines])
    ln = v_lane
    add('v_lshrrev_b32 v%d, 5, v%d' % (t0, ln), 'v_lshlrev_b32 v%d, 2, v%d' % (t0, t0), 'v_bfe_u32 v%d, v%d, 2, 2' % (t1, ln))
    add('v_add_u32 v%d, v%d, v%d' % (t0, t0, t1), 'v_lshlrev_b32 v%d, 7, v%d' % (t0, t0), 'v_bfe_u32 v%d, v%d, 4, 1' % (t2, ln))
    add('v_lshl_add_u32 v%d, v%d, 5, v%d' % (t0, t2, t0), 'v_and_b32 v%d, 3, v%d' % (t2, ln), 'v_lshl_add_u32 v%d, v%d, 3, v%d' % (t0, t2, t0))
    add('v_lshrrev_b32 v%d, 1, v%d' % (t1, t1), 'v_lshl_add_u32 v%d, v%d, 6, v%d' % (vOA, t1, t0), 'v_xor_b32 v%d, 1, v%d' % (t1, t1))
    add('v_lshl_add_u32 v%d, v%d, 6, v%d' % (vOA + 1, t1, t0), 'v_and_b32 v%d, 31, v%d' % (t0, ln),
        's_lshl_b32 s%d, s%d, 14' % (S['a'], s_hp), 's_lshl_b32 s%d, s%d, 13' % (S['b'], s_th), 's_add_u32 s%d, s%d, s%d' % (S['a'], S['a'], S['b']))
    add('v_lshlrev_b32 v%d, 8, v%d' % (t1, t0), 'v_add_u32 v%d, s%d, v%d' % (t1, S['a'], t1), 'v_and_b32 v%d, 7, v%d' % (t2, t0))
    add('v_lshrrev_b32 v%d, 5, v%d' % (t0, ln), 'v_xor_b32 v%d, v%d, v%d' % (t2, t2, t0))
    for q in range(4): add('v_xor_b32 v%d, %d, v%d' % (t0, 2 * q, t2), 'v_lshl_add_u32 v%d, v%d, 4, v%d' % (vEW + q, t0, t1))
    add('v_lshrrev_b32 v%d, 3, v%d' % (t0, ln), 'v_and_b32 v%d, 7, v%d' % (t1, ln), 'v_lshlrev_b32 v%d, 1, v%d' % (t1, t1), 's_lshl_b32 s%d, s%d, 12' % (S['a'], s_w))
    add('v_lshlrev_b32 v%d, 8, v%d' % (t2, t0), 'v_add_u32 v%d, s%d, v%d' % (t2, S['a'], t2))
    for x in range(2): add('v_or_b32 v%d, %d, v%d' % (t3, x, t1), 'v_xor_b32 v%d, v%d, v%d' % (t3, t3, t0), 'v_lshl_add_u32 v%d, v%d, 4, v%d' % (vER + x, t3, t2))
    add('v_and_b32 v%d, 7, v%d' % (t1, ln), 'v_lshlrev_b32 v%d, 4, v%d' % (t1, t1), 'v_lshl_add_u32 v%d, v%d, 10, v%d' % (V['vOUT'], t0, t1))
    add('v_and_b32 v%d, 7, v%d' % (V['vFL'], ln), 'v_lshlrev_b32 v%d, 7, v%d' % (V['vFL'], V['vFL']), 'v_lshlrev_b32 v%d, 4, v%d' % (V['vOL'], ln))
    add('v_and_b32 v%d, 31, v%d' % (t1, ln), 'v_lshrrev_b32 v%d, 2, v%d' % (t2, t1), 'v_lshlrev_b32 v%d, 7, v%d' % (t2, t2))
    add('v_and_b32 v%d, 3, v%d' % (t1, t1), 'v_lshl_add_u32 v%d, v%d, 3, v%d' % (V['vGA'], t1, t2))
    a, b, c = S['a'], S['b'], S['c']
    add('s_lshl_b32 s%d, s%d, 1' % (a, s_tb), 's_add_u32 s%d, s%d, s%d' % (a, a, s_th), 's_lshl_b32 s%d, s%d, 16' % (b, a), 's_add_u32 s%d, s%d, %d' % (S['oa'], b, WS_O), 's_add_u32 s%d, s%d, 32768' % (S['oa1'], S['oa']),
        's_lshl_b32 s%d, s%d, 10' % (a, a), 's_add_u32 s%d, s%d, %d' % (S['ga'], a, WS_G))
    add('s_lshl_b32 s%d, s%d, 6' % (a, s_tb), 's_lshl_b32 s%d, s%d, 4' % (b, s_w), 's_add_u32 s%d, s%d, s%d' % (a, a, b), 's_lshl_b32 s%d, s%d, 10' % (a, a),
        's_lshl_b32 s%d, s%d, 7' % (b, s_cb), 's_add_u32 s%d, s%d, s%d' % (S['out0'], a, b), 's_add_u32 s%d, s%d, 8192' % (S['out1'], S['out0']))
    add('s_lshr_b32 s%d, s%d, 2' % (a, s_cb), 's_xor_b32 s%d, s%d, s%d' % (a, a, s_hp), 's_and_b32 s%d, s%d, 1' % (a, a), 's_lshl_b32 s%d, s%d, 2' % (S['kx4'], a),
        's_lshr_b32 s%d, s%d, 1' % (b, s_r), 's_lshl_b32 s%d, s%d, 2' % (S['r4'], b), 's_xor_b32 s%d, s%d, s%d' % (c, a, b))
    add('s_lshl_b32 s%d, s%d, 10' % (c, c), 's_lshl_b32 s%d, s%d, 12' % (b, s_tb), 's_add_u32 s%d, s%d, s%d' % (c, c, b), 's_add_u32 s%d, s%d, %d' % (S['fl'], c, WS_FLAG), 's_add_u32 s%d, s%d, 2048' % (S['fl1'], S['fl']))
    add('s_and_b32 s%d, s%d, 1' % (b, s_r), 's_add_u32 s%d, s%d, s%d' % (c, a, b), 's_add_u32 s%d, s%d, 1' % (c, c), 's_lshl_b32 s%d, s%d, 15' % (S['rb0'], c),
        's_lshl_b32 s%d, s%d, 1' % (b, b), 's_sub_u32 s%d, 3, s%d' % (b, b), 's_cmp_eq_u32 s%d, 1' % a, 's_cselect_b32 s%d, 4, s%d' % (b, b), 's_lshl_b32 s%d, s%d, 15' % (S['rb1'], b))
    add('s_lshl_b32 s%d, s%d, 1' % (a, s_i), 's_add_u32 s%d, s%d, s%d' % (a, a, s_th), 's_lshl_b32 s%d, s%d, 5' % (a, a), 's_lshl_b32 s%d, s%d, 1' % (b, s_jj), 's_add_u32 s%d, s%d, s%d' % (a, a, b),
        's_add_u32 s%d, s%d, s%d' % (a, a, s_hp), 's_add_u32 s%d, s%d, %d' % (a, a, 16 * br), 's_lshl_b32 s%d, s%d, 7' % (a, a), 's_add_u32 s%d, s%d, %d' % (S['flag'], a, WS_FLAG))
    return L

GV7 = 152
def early_poll_ops(p, vm):
    V, S = V7, S7
    return [lambda: vm.op('buffer_load_dwordx2 v[%d:%d], v%d, s[%d:%d], s%d offen sc1' % (GV7, GV7 + 1, V['vGA'], sWS, sWS + 3, S['ga']), 'g'),
            lambda: vm.op('buffer_load_dword v154, v%d, s[%d:%d], s%d offen sc1' % (V['vFL'], sWS, sWS + 3, S['fl']), 'pa')]

def tail7(p, vm, br):
    L = 'AB'[br]; V, S = V7, S7
    OA = [[64, 80], [96, 112]]
    GV = GV7
    LA = cfg.ola2
    vOGx = V['vOG']
    def flag_store():
        p('v_mov_b32 v27, 0'); p('s_mov_b64 exec, 1')
        vm.op('buffer_store_dword v%d, v27, s[%d:%d], s%d offen sc1' % (vT, sWS, sWS + 3, S['flag']))
        p('s_mov_b64 exec, -1')
    p('s_barrier')
    def spin(reg, sfl, name):
        p('s_mov_b32 s%d, %d' % (s_spin, cfg.spin))
        p('v_cmp_ne_u32 vcc, v%d, v%d' % (reg, vT))
        p('s_cbranch_vccz L_%s_ok' % name)
        p.label('L_%s' % name)
        p('buffer_load_dword v%d, v%d, s[%d:%d], s%d offen sc1' % (reg, V['vFL'], sWS, sWS + 3, sfl))
        p('s_waitcnt vmcnt(0)')
        p('v_cmp_ne_u32 vcc, v%d, v%d' % (reg, vT))
        spin_tail(p, name)
    if br == 0 or cfg.v7b:
        if cfg.v7b == 2:
            for f in early_poll_ops(p, vm): f()
            vm.wait('ost'); flag_store()
            stamp(p, 9)
            vm.wait('pa')
        else:
            vm.wait('ost'); flag_store()
            stamp(p, 9)
            for f in early_poll_ops(p, vm): f()
            vm.wait('pa')
    else:
        vm.wait('pa')
    spin(154, S['fl'], 'fa%s' % L)
    stamp(p, 15)
    def oload(n):
        ph, h = n >> 4, n & 15
        g, q = h >> 2, h & 3
        if q == 0:
            p('s_add_u32 s%d, s%d, %d' % (s_t2, s_cb, g)); p('s_and_b32 s%d, s%d, 3' % (s_t2, s_t2)); p('s_add_u32 s%d, s%d, s%d' % (s_t2, s_t2, S['kx4']))
            p('s_add_u32 s%d, s%d, s%d' % (s_t2, s_t2, S['r4'])); p('s_and_b32 s%d, s%d, 7' % (s_t2, s_t2)); p('s_lshl_b32 s%d, s%d, 12' % (s_t2, s_t2))
            p('s_add_u32 s%d, s%d, s%d' % (s_t1, S['oa1'] if ph else S['oa'], s_t2))
        vm.op('buffer_load_dwordx4 %s, v%d, s[%d:%d], s%d offen offset:%d sc1' % (ar(4 * n, 4), V['vOL'], sWS, sWS + 3, s_t1, q * 1024), 'o%d' % n)
    def gaddr(n):
        ph, g = n >> 4, (n & 15) >> 2
        d = vOGx + 2 * ((n >> 2) & 1)
        return ['s_add_u32 s%d, s%d, %d' % (s_t0, s_cb, g), 's_and_b32 s%d, s%d, 3' % (s_t0, s_t0), 's_lshl_b32 s%d, s%d, 13' % (s_t0, s_t0),
                's_add_u32 s%d, s%d, s%d' % (s_t0, s_t0, S['rb1'] if ph else S['rb0']),
                'v_add_u32 v%d, s%d, v%d' % (d, s_t0, vOA), 'v_add_u32 v%d, s%d, v%d' % (d + 1, s_t0, vOA + 1)]
    def reads(n):
        wf = vWF + 8 * (n % 3)
        pre = gaddr(n) if (n & 3) == 0 else []
        return pre + ['ds_read_b64_tr_b16 v[%d:%d], v%d offset:%d' % (wf + 4 * ct + 2 * rd, wf + 4 * ct + 2 * rd + 1, vOGx + 2 * ((n >> 2) & 1) + ct, (n & 3) * 2048 + rd * 1024) for ct in range(2) for rd in range(2)]
    for n in range(LA): oload(n)
    for n in range(2):
        for o in reads(n): p(o)
    nxt = LA
    CHK = cfg.pbstep
    wo3 = dma_wo_ops(p, vm, 3)
    for n in range(32):
        ph = n >> 4
        wf = vWF + 8 * (n % 3)
        if n == CHK:
            vm.wait('pb')
            spin(155, S['fl1'], 'fb%s' % L)
            if cfg.fine == 4: stamp(p, 44)
        if n == 14:
            vm.wait('wo3', ' lgkmcnt(4)')
            p('s_barrier')
        vm.wait('o%d' % n, ' lgkmcnt(%d)' % (4 if n < 31 else 0))
        if n == 0:
            if br == 1 and not cfg.v7b:
                flag_store()
                stamp(p, 9)
            vm.op('buffer_load_dword v155, v%d, s[%d:%d], s%d offen sc1' % (V['vFL'], sWS, sWS + 3, S['fl1']), 'pb')
        R = reads(n + 2) if n + 2 < 32 else []
        for ct in range(2):
            c = '0' if (n & 15) == 0 else vr(OA[ph][ct], 16)
            p('%s %s, %s, %s, %s' % (MF, vr(OA[ph][ct], 16), vr(wf + 4 * ct, 4), ar(4 * n, 4), c))
            k = len(R) - 2
            for o in (R[:k] if ct == 0 else R[k:]): p(o)
            if ct == 1 and wo3 and n >= cfg.wo3step: wo3.pop(0)()
            lim = 16 if n < CHK else 32
            want = min(lim, n + 1 + (LA if n < CHK else cfg.olb))
            cnt = 0
            while nxt < want and cnt < (1 if n < CHK else 2 if ct == 0 else 1):
                oload(nxt); nxt += 1; cnt += 1
                if n < CHK: break
    assert nxt == 32 and not wo3, (nxt, len(wo3))
    stamp(p, 16)
    p('s_mov_b32 s%d, %d' % (s_spin, cfg.spin))
    p('v_cmp_ne_u32 vcc, v%d, v%d' % (GV + 1, vT))
    p('s_cbranch_vccz L_g%s_ok' % L)
    p.label('L_g%s' % L)
    p('buffer_load_dwordx2 v[%d:%d], v%d, s[%d:%d], s%d offen sc1' % (GV, GV + 1, V['vGA'], sWS, sWS + 3, S['ga']))
    p('s_waitcnt vmcnt(0)')
    p('v_cmp_ne_u32 vcc, v%d, v%d' % (GV + 1, vT))
    spin_tail(p, 'g%s' % L)
    p('v_sub_f32 v%d, 1.0, v%d' % (GV + 1, GV))
    for ct in range(2):
        for q in range(4):
            for i in range(2 * q, 2 * q + 2):
                a = OA[0][ct] + 2 * i
                p('v_pk_mul_f32 v[%d:%d], v[%d:%d], v[%d:%d] op_sel_hi:[1,0]' % (a, a + 1, a, a + 1, GV, GV + 1))
            for i in range(2 * q, 2 * q + 2):
                a = OA[0][ct] + 2 * i; b = OA[1][ct] + 2 * i
                p('v_pk_fma_f32 v[%d:%d], v[%d:%d], v[%d:%d], v[%d:%d] op_sel:[0,1,0] op_sel_hi:[1,1,1]' % (a, a + 1, b, b + 1, GV, GV + 1, a, a + 1))
            p('ds_write_b128 v%d, %s offset:%d' % (vEW + q, vr(OA[0][ct] + 4 * q, 4), 128 * ct))
    p('s_waitcnt lgkmcnt(0)')
    stamp(p, 17)
    p('s_barrier')
    RD = 168
    for a in range(2):
        for brr in range(2):
            for x in range(2):
                p('ds_read_b128 %s, v%d offset:%d' % (vr(RD + 16 * a + 8 * brr + 4 * x, 4), vER + x, a * 2048 + brr * 16384))
    for a in range(2):
        p('s_waitcnt lgkmcnt(%d)' % (4 if a == 0 else 0))
        r = RD + 16 * a
        for i in range(4): p('v_pk_add_f32 v[%d:%d], v[%d:%d], v[%d:%d]' % (r + 2 * i, r + 2 * i + 1, r + 2 * i, r + 2 * i + 1, r + 8 + 2 * i, r + 8 + 2 * i + 1))
        for i in range(4): cvt(p, r + 8 + i, r + 2 * i, r + 2 * i + 1)
        vm.op('buffer_store_dwordx4 %s, v%d, s[%d:%d], s%d offen %s' % (vr(r + 8, 4), V['vOUT'], sOUT, sOUT + 3, S['out0'] if a == 0 else S['out1'], cfg.outfl))
    p('s_cmp_eq_u32 s%d, 0' % s_b); p('s_cbranch_scc0 L_noep%s' % L)
    p('s_cmp_eq_u32 s%d, 0' % s_w); p('s_cbranch_scc0 L_noep%s' % L)
    p('v_mov_b32 v27, 0'); p('s_mov_b64 exec, 1')
    vm.op('buffer_store_dword v%d, v27, s[%d:%d], 0 offen sc1' % (vT, sWS, sWS + 3))
    p('s_mov_b64 exec, -1')
    p.label('L_noep%s' % L)

def rstamp(p, idx):
    if not cfg.stamps: return
    p('s_memrealtime s[%d:%d]' % (s_stamp, s_stamp + 1))
    p('s_waitcnt lgkmcnt(0)')
    p('v_writelane_b32 v255, s%d, %d' % (s_stamp, idx))

def write_stamps(p, vm):
    if not cfg.stamps: return
    rstamp(p, 12)
    if cfg.stamps == 2:
        L = 'x%d' % len(p.ins)
        p('s_load_dwordx2 s[4:5], s[0:1], 72'); p('s_waitcnt lgkmcnt(0)')
        p('s_mov_b32 s%d, s4' % sDBG); p('s_and_b32 s%d, s5, 0xffff' % (sDBG + 1)); p('s_mov_b32 s%d, 256' % (sDBG + 2)); p('s_mov_b32 s%d, 0x00020000' % (sDBG + 3))
        p('s_cmp_eq_u32 s%d, 0' % s_w); p('s_cbranch_scc0 L_ds2' + L)
        p('v_lshlrev_b32 v27, 2, v%d' % v_lane)
        p('s_cmp_eq_u32 s%d, 8' % s_b); p('s_cbranch_scc0 L_ds1' + L)
        p('s_mov_b64 exec, 0x1fff')
        vm.op('buffer_store_dword v255, v27, s[%d:%d], 0 offen' % (sDBG, sDBG + 3))
        p('s_mov_b64 exec, -1')
        p.label('L_ds1' + L)
        p('s_cmp_eq_u32 s%d, 255' % s_b); p('s_cbranch_scc0 L_ds2' + L)
        p('s_mov_b64 exec, 0x1800')
        vm.op('buffer_store_dword v255, v27, s[%d:%d], 0 offen offset:8' % (sDBG, sDBG + 3))
        p('s_mov_b64 exec, -1')
        p.label('L_ds2' + L)
        return
    p('s_lshl_b32 s%d, s%d, 2' % (s_t0, s_b)); p('s_add_u32 s%d, s%d, s%d' % (s_t0, s_t0, s_w)); p('s_lshl_b32 s%d, s%d, 8' % (s_t0, s_t0)); p('s_add_u32 s%d, s%d, %d' % (s_t0, s_t0, WS_STAMP))
    p('v_lshlrev_b32 v27, 2, v%d' % v_lane)
    vm.op('buffer_store_dword v255, v27, s[%d:%d], s%d offen' % (sDBG, sDBG + 3, s_t0))

def body(p, vm, br, dco, dwq):
    extra = {m: [] for m in range(8)}
    for m in range(6): extra[m] = dco(m + 2)
    if br == 0: extra[4] = extra[4] + gate_load_ops(p, vm)
    extra[6] = dwq(0)
    extra[7] = dwq(1)
    if cfg.poison == 1: poison_ops(p, vm, br)()
    if cfg.poison == 2: extra[7] = extra[7] + [poison_ops(p, vm, br)]
    if cfg.poison == 4: extra[3] = extra[3] + [poison_ops(p, vm, br)]
    pass1(p, vm, br, dco, dwq, extra)
    p('s_barrier')
    if cfg.poison == 3: poison_ops(p, vm, br)()
    stamp(p, 2)
    if cfg.debug == 1: dump_regs(p, vm, vK[0], 64, 0)
    make_tag(p, vm)
    if cfg.lwarm:
        p('s_lshl_b32 s%d, s%d, 1' % (s_t0, s_i)); p('s_add_u32 s%d, s%d, s%d' % (s_t0, s_t0, s_th)); p('s_lshl_b32 s%d, s%d, 5' % (s_t0, s_t0))
        p('s_lshl_b32 s%d, s%d, 1' % (s_t1, s_jj)); p('s_add_u32 s%d, s%d, s%d' % (s_t0, s_t0, s_t1)); p('s_add_u32 s%d, s%d, s%d' % (s_t0, s_t0, s_hp))
        p('s_add_u32 s%d, s%d, %d' % (s_t0, s_t0, 16 * br)); p('s_lshl_b32 s%d, s%d, 7' % (s_t0, s_t0)); p('s_add_u32 s%d, s%d, %d' % (s_t0, s_t0, WS_FLAG))
        p('s_lshl_b32 s%d, s%d, 2' % (s_t1, s_jj)); p('s_add_u32 s%d, s%d, s%d' % (s_t1, s_t1, s_w)); p('s_add_u32 s%d, s%d, %d' % (s_t1, s_t1, 32 * br))
        p('s_lshl_b32 s%d, s%d, 11' % (s_t1, s_t1)); p('s_lshl_b32 s%d, s%d, 7' % (s_t2, s_i)); p('s_add_u32 s%d, s%d, s%d' % (s_t1, s_t1, s_t2)); p('s_add_u32 s%d, s%d, %d' % (s_t1, s_t1, WS_OUTK + 12))
        p('v_not_b32 v28, v%d' % vT); p('v_mov_b32 v27, 0')
        p('s_mov_b64 exec, 1')
        vm.op('buffer_store_dword v28, v27, s[%d:%d], s%d offen sc1' % (sWS, sWS + 3, s_t0))
        vm.op('buffer_store_dword v28, v27, s[%d:%d], s%d offen sc1' % (sWS, sWS + 3, s_t1))
        p('s_mov_b64 exec, -1')
    side = dma_wo_ops(p, vm, 0)
    if cfg.wosched: side = side + dma_wo_ops(p, vm, 2)
    if br == 1:
        feat_k_B(p, vm, side)
        stamp(p, 3)
    else:
        gate_finish(p, vm)
        feat_k_A(p, side)
        stamp(p, 3)
        exchange(p, vm, br)
    if cfg.debug == 2: dump_regs(p, vm, ST, 32, 0)
    stamp(p, 4)
    sched = {}
    sched[('bar', 1)] = True
    st = hop1_store_ops(p, vm, br)
    for k, f in enumerate(st): sched.setdefault(k, []).append(f)
    for k, f in enumerate(dma_wo_ops(p, vm, 1)): sched.setdefault(cfg.wo1step + k, []).append(f)
    if cfg.wo2p2:
        for k, f in enumerate(dma_wo_ops(p, vm, 2)): sched.setdefault(cfg.wo1step + 8 + k, []).append(f)
    hl = hop1_load_ops(p, vm, br)
    for k, f in enumerate(hl): sched.setdefault(min(31, cfg.h1step + k), []).append(f)
    if cfg.owarm:
        ow = o_warm_ops(p, vm)
        def allw():
            for f in ow: f()
        sched.setdefault(cfg.owarm, []).append(allw)
    if cfg.v7:
        for k, f in enumerate(p3_setup7_ops(p, br)): sched.setdefault(4 + k, []).append(f) if 4 + k < 32 else sched.setdefault(31, []).append(f)
    if cfg.h1red:
        def hook():
            hop1_reduce(p, vm, br)
            stamp(p, 6)
        sched[('hook', cfg.h1red)] = hook
    pass2(p, vm, sched)
    stamp(p, 5)
    if cfg.debug == 1:
        p('s_nop 15'); dump_regs(p, vm, vQ[0], 32, 1)
    if not cfg.h1red:
        hop1_reduce(p, vm, br)
        stamp(p, 6)
    late = hop2_load_ops(p, vm, br)
    if cfg.v7 and br == 1 and not cfg.v7b: late = late + early_poll_ops(p, vm)
    if cfg.wo2p2 or cfg.wosched:
        p('s_barrier')
        side = dma_wo_ops(p, vm, 3)
    else:
        side = dma_wo_ops(p, vm, 2)
    if br == 1: feat_q_B(p, side, late)
    else: feat_q_A(p, side, late)
    stamp(p, 7)
    hop2_gather(p, vm, br)
    stamp(p, 8)
    if cfg.debug == 2: dump_regs(p, vm, KVA, 16, 1)
    o_phase(p, vm, br)
    if cfg.fine == 4: stamp(p, 41)
    if cfg.v7:
        tail7(p, vm, br)
        stamp(p, 10)
        write_stamps(p, vm)
        p('s_endpgm')
        return
    if cfg.wosched or cfg.wo2p2:
        vm.wait('wo3')
        p('s_barrier')
    elif not cfg.wo2p2:
        p('s_barrier')
    p3_setup(p)
    p3_scalars(p)
    o_flag(p, vm)
    if cfg.fine == 4: stamp(p, 43)
    if not cfg.wo2p2 and not cfg.wosched and not cfg.p3e:
        for f in dma_wo_ops(p, vm, 3): f()
        if cfg.earlyb4:
            vm.wait('wo3')
            p('s_barrier')
    stamp(p, 9)
    if cfg.two:
        p3_scalars2(p)
        p3two(p, vm, br)
    else: p3(p, vm, br)
    stamp(p, 10)
    write_stamps(p, vm)
    p('s_endpgm')

if __name__ == '__main__':
    import argparse
    ap = argparse.ArgumentParser()
    ap.add_argument('-o', default='k.s'); ap.add_argument('--debug', type=int, default=0); ap.add_argument('--rot', type=int, default=1)
    ap.add_argument('--maprow', type=int, default=1); ap.add_argument('--fine', type=int, default=0); ap.add_argument('--shared', type=int, default=1); ap.add_argument('--sleep', type=int, default=0); ap.add_argument('--pollfl', default='sc1'); ap.add_argument('--flagfl', default='sc1'); ap.add_argument('--v7b', type=int, default=1); ap.add_argument('--v7', type=int, default=0); ap.add_argument('--wo3step', type=int, default=1); ap.add_argument('--olb', type=int, default=14); ap.add_argument('--two', type=int, default=0); ap.add_argument('--ola2', type=int, default=10); ap.add_argument('--pbstep', type=int, default=8); ap.add_argument('--oalias', type=int, default=0); ap.add_argument('--lwarm', type=int, default=0); ap.add_argument('--poison', type=int, default=0); ap.add_argument('--p3e', type=int, default=0); ap.add_argument('--h1red', type=int, default=0); ap.add_argument('--mfexp', type=int, default=1); ap.add_argument('--outfl', default=''); ap.add_argument('--wosched', type=int, default=0); ap.add_argument('--earlyb4', type=int, default=1); ap.add_argument('--wsoff', type=lambda x: int(x,0), default=0); ap.add_argument('--owarm', type=int, default=0); ap.add_argument('--owarmfl', default=''); ap.add_argument('--wo2p2', type=int, default=0); ap.add_argument('--nowo', type=int, default=0); ap.add_argument('--codepf', type=int, default=1); ap.add_argument('--ola', type=int, default=12); ap.add_argument('--wo1step', type=int, default=4); ap.add_argument('--korder', type=int, default=1); ap.add_argument('--pro3', type=int, default=0); ap.add_argument('--worot', type=int, default=1); ap.add_argument('--orot', type=int, default=1); ap.add_argument('--pretouch', type=int, default=1); ap.add_argument('--h1step', type=int, default=19); ap.add_argument('--h2lead', type=int, default=130); ap.add_argument('--stamps', type=int, default=0)
    a = ap.parse_args()
    cfg.debug = a.debug; cfg.rot = a.rot; cfg.maprow = a.maprow; cfg.h1step = a.h1step; cfg.fine = a.fine; cfg.shared = a.shared; cfg.sleep = a.sleep; cfg.pollfl = a.pollfl; cfg.flagfl = a.flagfl; cfg.v7b = a.v7b; cfg.v7 = a.v7; cfg.wo3step = a.wo3step; cfg.olb = a.olb; cfg.two = a.two; cfg.ola2 = a.ola2; cfg.pbstep = a.pbstep; cfg.oalias = a.oalias; cfg.lwarm = a.lwarm; cfg.poison = a.poison; cfg.p3e = a.p3e; cfg.h1red = a.h1red; cfg.mfexp = a.mfexp; cfg.outfl = a.outfl; cfg.wosched = a.wosched; cfg.earlyb4 = a.earlyb4; cfg.wsoff = a.wsoff; cfg.owarm = a.owarm; cfg.owarmfl = a.owarmfl; cfg.wo2p2 = a.wo2p2; cfg.nowo = a.nowo; cfg.codepf = a.codepf; cfg.ola = a.ola; cfg.wo1step = a.wo1step; cfg.korder = a.korder; cfg.pro3 = a.pro3; cfg.worot = a.worot; cfg.orot = a.orot; cfg.pretouch = a.pretouch; cfg.h2lead = a.h2lead; cfg.stamps = a.stamps
    open(a.o, 'w').write(build())
```

```python
import sys, os
sys.path.insert(0, os.path.dirname(os.path.abspath(__file__)))
from asmdsl import *

KNAME = "gated_mix__linear_attn_block__linear_kernel_hedgehog__prompt_kernel"

class Cfg:
    debug = 0
    rot = 1
    maprow = 1
    spin = 1 << 20
    fine = 0
    padA = 0
    padB = 0
    shared = 1
    sleep = 0
    pollfl = 'sc1'
    flagfl = 'sc1'
    v7b = 1
    v7 = 1
    wo3step = 1
    olb = 14
    two = 1
    ola2 = 10
    pbstep = 8
    oalias = 1
    lwarm = 0
    poison = 0
    p3e = 0
    h1red = 0
    mfexp = 0
    outfl = ''
    wosched = 0
    earlyb4 = 1
    wsoff = 0
    owarm = 0
    owarmfl = ''
    wo2p2 = 0
    nowo = 0
    codepf = 1
    ola = 8
    wo1step = 6
    korder = 1
    pro3 = 0
    worot = 1
    orot = 1
    pretouch = 1
    h1step = 22
    h2lead = 70
    stamps = 0
cfg = Cfg()

WS_EPOCH = 0x0
WS_G     = 0x1000
WS_FLAG  = 0x20000
WS_OUTK  = 0x100000
WS_OUTZ  = 0x140000
WS_O     = 0x200000
WS_INB   = 0x800000
WS_SIZE  = 0x1000000
WS_DBG   = 0x1000000
WS_STAMP = 0x7000000

sX, sW, sWOA, sWOB, sWS, sOUT, sMISC, sDBG = 8, 12, 16, 20, 24, 28, 32, 36
s_w, s_th, s_hp, s_i, s_jj, s_rot, s_T = 40, 41, 42, 43, 44, 45, 46
s_xbase, s_wbase, s_m0x, s_m0w, s_ox, s_ow, s_t0, s_t1, s_t2, s_t3 = 47, 48, 49, 50, 51, 52, 53, 54, 55, 56
s_tb, s_cb, s_head, s_qbase, s_m0q = 57, 58, 59, 60, 61
s_mask16 = 62
s_log2e = 84
s_eps = 86
s_spin = 88
s_ht = 89
s_stamp = 90
s_b = 92
s_exec = 94
s_wobase, s_m0o = 96, 97
s_qadj, s_q0 = 4, 5
s_t2x, s_t3x = 98, 99
s_r = 6
s_br = 3
s_fast = 89
s_odd = 94
KA = 64

v_lane = 1
vXA = 2
vWA = 14
vDX = 17
vDQ = 21
vONES = 25
vT = 26
vtmp = 27
vK = [32, 48]; vV = [64, 80]; vQ = [96, 112]
vWF = 128
vWP = 152
vSEL = 160
vTMP = 168

SLOT = 32768
def slot_set(s): return s // 2
def slot_imm(s): return (s % 2) * SLOT

class VM:
    def __init__(self, p): self.p = p; self.n = 0; self.marks = {}; self.done = 0
    def op(self, text, mark=None):
        self.p(text); self.n += 1
        if mark: self.marks[mark] = self.n
    def mark(self, name): self.marks[name] = self.n
    def wait(self, name, extra=''):
        if self.marks[name] <= self.done:
            if extra: self.p('s_waitcnt' + extra)
            return
        k = self.n - self.marks[name]
        assert 0 <= k <= 63, (name, k)
        self.p('s_waitcnt vmcnt(%d)%s' % (k, extra))
        self.done = self.marks[name]
    def wait_all(self):
        self.p('s_waitcnt vmcnt(0)'); self.done = self.n

def stamp(p, idx):
    if not cfg.stamps: return
    p('s_memtime s[%d:%d]' % (s_stamp, s_stamp + 1))
    p('s_waitcnt lgkmcnt(0)')
    p('v_writelane_b32 v255, s%d, %d' % (s_stamp, idx))


def korder(n): return (2 * (n & 3) + (n >> 2)) if cfg.korder else n

def srd(p, d, ptr, size):
    p('s_mov_b32 s%d, s%d' % (d, ptr)); p('s_and_b32 s%d, s%d, 0xffff' % (d + 1, ptr + 1))
    p('s_mov_b32 s%d, 0x%x' % (d + 2, size)); p('s_mov_b32 s%d, 0x00020000' % (d + 3))

SOFF = 64
WPT = 168
GX, GW = 168, 184

def gen_path(br):
    p = Prog(); vm = VM(p)
    L = 'A' if br == 0 else 'B'
    if not cfg.shared: p.label('L_path' + L)
    for _ in range(cfg.padA if br == 0 else cfg.padB): p('s_nop 0')
    if cfg.stamps: p('v_mov_b32 v255, 0')
    stamp(p, 0)
    rstamp(p, 11)
    p('v_lshrrev_b32 v27, 6, v0')
    p('v_and_b32 v%d, 63, v0' % v_lane)
    p('v_readfirstlane_b32 s%d, v27' % s_w)
    p('v_lshrrev_b32 v27, 3, v%d' % v_lane)
    p('v_and_b32 v28, 7, v%d' % v_lane)
    p('v_lshrrev_b32 v29, 4, v%d' % v_lane)
    for q in range(2):
        p('v_add_u32 v30, %d, v29' % (4 * (q & 1)))
        p('v_xor_b32 v30, v28, v30')
        p('v_lshlrev_b32 v30, 4, v30')
        p('v_add_u32 v31, %d, v27' % (7 * q))
        p('v_lshl_add_u32 v%d, v31, 10, v30' % (vDX + q))
    p('v_add_u32 v%d, %d, v%d' % (vDX + 2, 14 * 1024, vDX)); p('v_add_u32 v%d, %d, v%d' % (vDX + 3, 14 * 1024, vDX + 1))
    p('v_and_b32 v30, 1, v29'); p('v_lshlrev_b32 v30, 2, v30'); p('v_xor_b32 v30, v28, v30'); p('v_lshlrev_b32 v30, 4, v30')
    p('v_mul_u32_u24 v31, 3072, v27')
    p('v_add_u32 v%d, v30, v31' % vDQ)
    for q in range(1, 4):
        p('v_add_u32 v%d, %d, v%d' % (vDQ + q, 8 * q * 3072 - 1024 * q, vDQ))
    p('s_and_b32 s%d, s%d, 1' % (s_th, s_w))
    p('s_lshr_b32 s%d, s%d, 1' % (s_hp, s_w))
    p('s_lshl_b32 s%d, s%d, 17' % (s_xbase, s_i))
    p('s_lshl_b32 s%d, s%d, 15' % (s_t0, s_w))
    p('s_add_u32 s%d, s%d, s%d' % (s_xbase, s_xbase, s_t0))
    p('s_lshl_b32 s%d, s%d, 7' % (s_qbase, s_jj))
    p('s_mul_i32 s%d, s%d, 98304' % (s_t0, s_th))
    p('s_add_u32 s%d, s%d, s%d' % (s_wbase, s_qbase, s_t0))
    p('s_add_u32 s%d, s%d, 1' % (s_t0, s_hp))
    p('s_lshl_b32 s%d, s%d, 10' % (s_t0, s_t0))
    p('s_add_u32 s%d, s%d, s%d' % (s_wbase, s_wbase, s_t0))
    p('s_lshl_b32 s%d, s%d, 12' % (s_m0x, s_w))
    p('s_lshl_b32 s%d, s%d, 13' % (s_m0w, s_hp))
    p('s_lshl_b32 s%d, s%d, 12' % (s_t0, s_th))
    p('s_add_u32 s%d, s%d, s%d' % (s_m0w, s_m0w, s_t0))
    p('s_add_u32 s%d, s%d, 16384' % (s_m0w, s_m0w))
    p('s_lshl_b32 s%d, s%d, 11' % (s_m0q, s_w))
    p('s_mul_i32 s%d, s%d, 49152' % (s_t0, s_w))
    p('s_add_u32 s%d, s%d, s%d' % (s_t0, s_t0, s_qbase))
    p('s_sub_u32 s%d, s%d, s%d' % (s_qadj, s_wbase, s_t0))

    def chunk_offsets(n, dx, dw):
        p('s_add_u32 s%d, s%d, %d' % (s_t0, s_rot, korder(n))); p('s_and_b32 s%d, s%d, 7' % (s_t0, s_t0))
        p('s_lshl_b32 s%d, s%d, 7' % (s_t1, s_t0)); p('s_add_u32 s%d, s%d, s%d' % (dx, s_xbase, s_t1))
        p('s_mul_i32 s%d, s%d, 196608' % (s_t1, s_t0)); p('s_add_u32 s%d, s%d, s%d' % (dw, s_wbase, s_t1))
    def dma_chunk_ops(n):
        slot = (n % 4) * SLOT
        ox = s_ox if n == 0 else SOFF + 2 * n
        ow = s_ow if n == 0 else SOFF + 2 * n + 1
        ops = []
        def x0():
            p('s_add_u32 m0, s%d, %d' % (s_m0x, slot)); p('s_nop 0')
            vm.op('buffer_load_dwordx4 v%d, s[%d:%d], s%d offen lds' % (vDX, sX, sX + 3, ox))
        ops.append(x0)
        for q in range(1, 4):
            ops.append(lambda q=q: vm.op('buffer_load_dwordx4 v%d, s[%d:%d], s%d offen offset:%d lds' % (vDX + q, sX, sX + 3, ox, q * 1024)))
        def w0():
            p('s_add_u32 m0, s%d, %d' % (s_m0w, slot)); p('s_nop 0')
            vm.op('buffer_load_dwordx4 v%d, s[%d:%d], s%d offen lds' % (vDQ, sW, sW + 3, ow))
        ops.append(w0)
        for q in range(1, 4):
            ops.append(lambda q=q: vm.op('buffer_load_dwordx4 v%d, s[%d:%d], s%d offen offset:%d lds' % (vDQ + q, sW, sW + 3, ow, q * 1024), 'c%d' % n if q == 3 else None))
        return ops
    def dma_wq_ops(hf):
        ops = []
        for c in range(4 * hf, 4 * hf + 4):
            def m(c=c):
                if c == 0: p('s_add_u32 s%d, s%d, 0' % (s_ow, s_q0))
                else: p('s_sub_u32 s%d, s%d, s%d' % (s_ow, SOFF + 2 * c + 1, s_qadj))
                p('s_add_u32 m0, s%d, %d' % (s_m0q, (4 * (c >> 2)) * SLOT + (c & 3) * 8192)); p('s_nop 0')
                vm.op('buffer_load_dwordx4 v%d, s[%d:%d], s%d offen lds' % (vDQ, sW, sW + 3, s_ow))
            ops.append(m)
            ops.append(lambda c=c: vm.op('buffer_load_dwordx4 v%d, s[%d:%d], s%d offen offset:1024 lds' % (vDQ + 1, sW, sW + 3, s_ow), 'wq%d' % hf if (c & 3) == 3 else None))
        return ops

    chunk_offsets(0, s_ox, s_ow)
    p('s_sub_u32 s%d, s%d, s%d' % (s_q0, s_ow, s_qadj))
    p('s_waitcnt lgkmcnt(0)')
    srd(p, sX, KA + 0, 2048 * 1024)
    if cfg.shared:
        p('s_cmp_eq_u32 s%d, 0' % s_br)
        p('s_cselect_b32 s%d, s%d, s%d' % (sW, KA + 2, KA + 8)); p('s_cselect_b32 s%d, s%d, s%d' % (sW + 1, KA + 3, KA + 9))
        p('s_and_b32 s%d, s%d, 0xffff' % (sW + 1, sW + 1)); p('s_mov_b32 s%d, 0x%x' % (sW + 2, 512 * 3072)); p('s_mov_b32 s%d, 0x00020000' % (sW + 3))
    else:
        srd(p, sW, KA + (2 if br == 0 else 8), 512 * 3072)
    stamp(p, 20)
    for f in dma_chunk_ops(0): f()
    if cfg.codepf:
        p('s_getpc_b64 s[%d:%d]' % (s_t2x, s_t2x + 1))
        LP = 'X' if cfg.shared else L
        p.label('L_pc%s' % LP)
        p('s_sub_u32 s%d, s%d, L_pc%s-%s' % (s_t2x, s_t2x, LP, KNAME)); p('s_subb_u32 s%d, s%d, 0' % (s_t2x + 1, s_t2x + 1))
        p('s_lshr_b32 s%d, s%d, 3' % (s_t0, s_b)); p('s_lshl_b32 s%d, s%d, 2' % (s_t0, s_t0)); p('s_add_u32 s%d, s%d, s%d' % (s_t0, s_t0, s_w)); p('s_lshl_b32 s%d, s%d, 9' % (s_t0, s_t0))
        p('v_lshlrev_b32 v27, 7, v%d' % v_lane); p('v_and_b32 v27, 0x1ff, v27')
        p('v_add_u32 v27, s%d, v27' % s_t0)
        p('v_min_u32 v27, L_end-%s, v27' % KNAME)
        p('v_mov_b32 v29, s%d' % (s_t2x + 1))
        p('v_add_co_u32 v28, vcc, s%d, v27' % s_t2x); p('v_addc_co_u32 v29, vcc, 0, v29, vcc')
        p('s_mov_b64 exec, 15')
        vm.op('global_load_dword v239, v[28:29], off')
        p('s_mov_b64 exec, -1')
    if cfg.shared: p('.SPLIT')
    if cfg.wsoff:
        p('s_add_u32 s%d, s%d, 0x%x' % (KA + 18, KA + 18, cfg.wsoff)); p('s_addc_u32 s%d, s%d, 0' % (KA + 19, KA + 19))
    srd(p, sWS, KA + 18, WS_SIZE)
    if br == 0: srd(p, sMISC, KA + 14, 1024)
    else:
        srd(p, sMISC, KA + 10, 32 * 512)
        p('s_lshl_b32 s%d, s%d, 11' % (s_t0, s_jj)); p('s_lshl_b32 s%d, s%d, 10' % (s_t1, s_hp)); p('s_add_u32 s%d, s%d, s%d' % (s_t0, s_t0, s_t1))
        p('s_lshl_b32 s%d, s%d, 10' % (s_t1, s_w)); p('s_add_u32 m0, s%d, %d' % (s_t1, 4 * SLOT))
        p('v_lshlrev_b32 v27, 4, v%d' % v_lane)
        vm.op('buffer_load_dwordx4 v27, s[%d:%d], s%d offen lds' % (sMISC, sMISC + 3, s_t0), 'wphi')
    p('v_mov_b32 v28, 0')
    vm.op('buffer_load_dword v%d, v28, s[%d:%d], 0 offen sc1' % (vT, sWS, sWS + 3), 'epoch')
    srd(p, sWOA, KA + 4, 512 * 1024)
    srd(p, sWOB, KA + 12, 512 * 1024)
    srd(p, sOUT, KA + 16, 2048 * 1024)
    if cfg.debug or cfg.stamps: srd(p, sDBG, KA + 18, 0x8000000)
    for n in range(1, 8): chunk_offsets(n, SOFF + 2 * n, SOFF + 2 * n + 1)
    if cfg.pretouch:
        p('s_lshl_b32 s%d, s%d, 18' % (s_t0, s_jj)); p('s_add_u32 s%d, s%d, %d' % (s_t0, s_t0, WS_INB + br * 0x200000))
        vm.op('buffer_load_dword v232, v28, s[%d:%d], s%d offen' % (sWS, sWS + 3, s_t0))
        p('s_lshl_b32 s%d, s%d, 18' % (s_t0, s_i)); p('s_add_u32 s%d, s%d, %d' % (s_t0, s_t0, WS_O))
        vm.op('buffer_load_dword v233, v28, s[%d:%d], s%d offen' % (sWS, sWS + 3, s_t0))
        p('s_lshl_b32 s%d, s%d, 17' % (s_t0, s_tb)); p('s_add_u32 s%d, s%d, %d' % (s_t0, s_t0, WS_O))
        vm.op('buffer_load_dword v234, v28, s[%d:%d], s%d offen' % (sWS, sWS + 3, s_t0))
        vm.op('buffer_load_dword v235, v28, s[%d:%d], 0 offen' % (sWOA, sWOA + 3))
        vm.op('buffer_load_dword v236, v28, s[%d:%d], 0 offen' % (sWOB, sWOB + 3))
        p('s_lshl_b32 s%d, s%d, 16' % (s_t0, s_tb))
        vm.op('buffer_load_dword v237, v28, s[%d:%d], s%d offen' % (sOUT, sOUT + 3, s_t0))
    wo_setup(p)
    p('v_and_b32 v27, 31, v%d' % v_lane)
    p('v_lshrrev_b32 v28, 5, v%d' % v_lane)
    p('v_lshrrev_b32 v29, 1, v27'); p('v_and_b32 v29, 7, v29'); p('v_xor_b32 v29, v28, v29')
    p('s_lshl_b32 s%d, s%d, 13' % (s_t0, s_th))
    p('v_lshlrev_b32 v30, 7, v27'); p('v_add_u32 v30, s%d, v30' % s_t0)
    for ks in range(4):
        p('v_xor_b32 v31, %d, v29' % (2 * ks)); p('v_lshl_add_u32 v%d, v31, 4, v30' % (vXA + ks))
        p('v_add_u32 v%d, 0x10000, v%d' % (vXA + 4 + ks, vXA + ks))
    p('v_lshrrev_b32 v27, 2, v%d' % v_lane); p('v_and_b32 v27, 3, v27')
    p('v_lshl_add_u32 v29, v28, 3, v27')
    p('v_lshlrev_b32 v29, 7, v29')
    p('v_lshrrev_b32 v30, 1, v27'); p('v_xor_b32 v30, s%d, v30' % s_hp); p('v_lshl_add_u32 v29, v30, 6, v29')
    p('v_lshrrev_b32 v30, 4, v%d' % v_lane); p('v_xor_b32 v30, s%d, v30' % s_th); p('v_and_b32 v30, 1, v30'); p('v_lshl_add_u32 v29, v30, 5, v29')
    p('v_and_b32 v30, 3, v%d' % v_lane); p('v_lshl_add_u32 v%d, v30, 3, v29' % vWA)
    p('v_add_u32 v%d, 0x10000, v%d' % (vWA + 1, vWA)); p('v_add_u32 v%d, 0x20000, v%d' % (vWA + 2, vWA))
    p('v_mov_b32 v%d, 0x3f803f80' % vONES)
    p('s_mov_b32 s%d, 0xffff0000' % s_mask16); p('s_mov_b32 s%d, 0xffff0000' % (s_mask16 + 1))
    p('s_mov_b32 s%d, 0x3fb8aa3b' % s_log2e); p('s_mov_b32 s%d, 0x3fb8aa3b' % (s_log2e + 1))
    p('s_mov_b32 s%d, 0x358637bd' % s_eps); p('s_mov_b32 s%d, 0x358637bd' % (s_eps + 1))
    if br == 1:
        p('v_and_b32 v27, 31, v%d' % v_lane)
        p('v_lshrrev_b32 v28, 5, v%d' % v_lane)
        p('v_bfe_u32 v29, v27, 2, 1')
        p('v_cmp_eq_u32 vcc, v28, v29')
        p('v_bfe_u32 v29, v27, 3, 1'); p('v_and_b32 v30, 3, v27'); p('v_lshl_add_u32 v29, v29, 2, v30')
        p('v_and_b32 v30, 1, v29'); p('v_lshlrev_b32 v30, 4, v30'); p('v_mov_b32 v31, 0x3f80'); p('v_lshlrev_b32 v30, v30, v31')
        p('v_cndmask_b32 v30, 0, v30, vcc')
        p('v_lshrrev_b32 v29, 1, v29')
        p('v_bfe_u32 v28, v27, 4, 1')
        p('v_lshl_add_u32 v29, v28, 2, v29')
        for q in range(8):
            p('v_cmp_eq_u32 vcc, %d, v29' % q)
            p('v_cndmask_b32 v%d, 0, v30, vcc' % (vSEL + q))
    p('s_mov_b32 s%d, 0xaaaaaaaa' % s_odd); p('s_mov_b32 s%d, 0xaaaaaaaa' % (s_odd + 1))
    if br == 1:
        p('v_lshrrev_b32 v27, 5, v%d' % v_lane); p('v_lshlrev_b32 v27, 2, v27')
        p('v_bfe_u32 v28, v%d, 2, 2' % v_lane); p('v_add_u32 v27, v27, v28'); p('v_lshlrev_b32 v27, 5, v27')
        p('v_bfe_u32 v28, v%d, 1, 1' % v_lane); p('v_lshl_add_u32 v27, v28, 3, v27')
        p('v_bfe_u32 v28, v%d, 4, 1' % v_lane); p('v_lshl_add_u32 v27, v28, 4, v27')
        p('s_lshl_b32 s%d, s%d, 10' % (s_t0, s_w)); p('s_add_u32 s%d, s%d, %d' % (s_t0, s_t0, 4 * SLOT))
        p('s_lshl_b32 s%d, s%d, 9' % (s_t1, s_th)); p('s_add_u32 s%d, s%d, s%d' % (s_t0, s_t0, s_t1))
        p('v_add_u32 v27, s%d, v27' % s_t0); p('v_xor_b32 v29, 512, v27')
        p('v_bfe_u32 v28, v%d, 2, 1' % v_lane); p('v_lshlrev_b32 v28, 31, v28'); p('v_lshrrev_b32 v30, 16, v28'); p('v_or_b32 v28, v28, v30')
    stamp(p, 21)
    for f in dma_chunk_ops(1): f()
    if br == 1:
        vm.wait('wphi')
        for u in range(2):
            for rd in range(2):
                p('ds_read_b64_tr_b16 v[%d:%d], v%d offset:%d' % (vWP + 4 * u + 2 * rd, vWP + 4 * u + 2 * rd + 1, 27 if u == 0 else 29, rd * 8 * 32))
        p('s_waitcnt lgkmcnt(0)')
        for q in range(8): p('v_xor_b32 v%d, v%d, v28' % (vWP + q, vWP + q))
    return p, vm, dma_chunk_ops, dma_wq_ops

def make_tag(p, vm):
    vm.wait('epoch')
    p('v_readfirstlane_b32 s%d, v%d' % (s_T, vT))
    p('s_mul_i32 s%d, s%d, 0x9e3779b1' % (s_T, s_T)); p('s_add_u32 s%d, s%d, 0x7f4a7c15' % (s_T, s_T))
    p('v_mov_b32 v%d, s%d' % (vT, s_T))

def emit(p, item):
    if callable(item): item()
    else: p(item)

def merge(p, main, side, every, start=0):
    side = list(side); k = 0
    for idx, m in enumerate(main):
        emit(p, m)
        if idx >= start and (idx - start) % every == every - 1 and side:
            emit(p, side.pop(0))
    for x in side: emit(p, x)

class Rec:
    def __init__(self): self.l = []
    def __call__(self, t, tag=None):
        for line in t.split('\n'):
            if line.strip(): self.l.append(line.strip())

def xf(s, blk): return ar((s * 2 + blk) * 4, 4)

def pass1(p, vm, br, dma_chunk_ops, dma_wq_ops, extra_ops):
    def reads(s):
        c, ks = s >> 2, s & 3; slot = c % 4; st = slot_set(slot); im = slot_imm(slot); buf = s % 3
        ops = []
        wf = vWF + 8 * buf
        for part in range(2):
            for rd in range(2):
                ops.append('ds_read_b64_tr_b16 v[%d:%d], v%d offset:%d' % (wf + 4 * part + 2 * rd, wf + 4 * part + 2 * rd + 1, vWA + st, im + 16384 + part * 8192 + (16 * ks + 4 * rd) * 128))
        for blk in range(2):
            ops.append('ds_read_b128 %s, v%d offset:%d' % (xf(s, blk), vXA + st * 4 + ks, im + blk * 4096))
        return ops
    def mfmas(s):
        wf = vWF + 8 * (s % 3); ops = []
        for blk in range(2):
            c = '0' if s == 0 else vr(vK[blk], 16)
            if br == 1: ops.append('v_mfma_f32_32x32x16_bf16 %s, %s, %s, %s' % (vr(vK[blk], 16), vr(wf, 4), xf(s, blk), c))
            else:       ops.append('v_mfma_f32_32x32x16_bf16 %s, %s, %s, %s' % (vr(vK[blk], 16), xf(s, blk), vr(wf, 4), c))
            c = '0' if s == 0 else vr(vV[blk], 16)
            ops.append('v_mfma_f32_32x32x16_bf16 %s, %s, %s, %s' % (vr(vV[blk], 16), xf(s, blk), vr(wf + 4, 4), c))
        return ops
    pend = []
    vm.wait('c0'); p('s_barrier')
    stamp(p, 1)
    pend += extra_ops[0]
    for o in reads(0): p(o)
    for o in reads(1): p(o)
    for s in range(32):
        nxt = s + 2
        p('s_waitcnt lgkmcnt(%d)' % (6 if s < 31 else 0))
        M = mfmas(s)
        R = reads(nxt) if nxt < 32 else []
        p(M[0])
        if nxt < 32 and nxt % 4 == 0:
            m = nxt // 4
            vm.wait('c%d' % m); p('s_barrier')
            if cfg.stamps == 1 and cfg.fine: stamp(p, 30 + m)
            pend += extra_ops[m]
        def take(n):
            for _ in range(n):
                if pend: pend.pop(0)()
        for k in range(4):
            if k > 0: p(M[k])
            for o in R[(k * 6) // 4:((k + 1) * 6) // 4]: p(o)
            if k % 2 == 1 or len(pend) > 8: take(1)
    while pend: pend.pop(0)()

def pass2(p, vm, sched):
    RA = 3
    def reads(s):
        c, ks = s >> 2, s & 3; slot = 4 * (c >> 2); st = slot_set(slot); im = slot_imm(slot); wf = vWF + 4 * (s % 4)
        return ['ds_read_b64_tr_b16 v[%d:%d], v%d offset:%d' % (wf + 2 * rd, wf + 2 * rd + 1, vWA + st, im + (c & 3) * 8192 + (16 * ks + 4 * rd) * 128) for rd in range(2)]
    for s in range(RA):
        for o in reads(s): p(o)
    for s in range(32):
        out = min(RA - 1, 31 - s)
        p('s_waitcnt lgkmcnt(%d)' % (2 * out))
        wf = vWF + 4 * (s % 4)
        if ('bar', s) in sched: p('s_barrier')
        if ('hook', s) in sched: sched[('hook', s)]()
        if cfg.fine == 2 and s % 4 == 0 and s > 0:
            stamp(p, 40 + s // 4);
        items = list(sched.get(s, []))
        h = (len(items) + 1) // 2
        for blk in range(2):
            c = '0' if s == 0 else vr(vQ[blk], 16)
            p('v_mfma_f32_32x32x16_bf16 %s, %s, %s, %s' % (vr(vQ[blk], 16), vr(wf, 4), xf(s, blk), c))
            if blk == 0 and s + RA < 32:
                for o in reads(s + RA): p(o)
            for it in (items[:h] if blk == 0 else items[h:]): emit(p, it)

def dump_regs(p, vm, base_reg, n, slot_index):
    p('s_lshl_b32 s%d, s%d, 2' % (s_t0, s_b)); p('s_add_u32 s%d, s%d, s%d' % (s_t0, s_t0, s_w))
    p('s_mul_i32 s%d, s%d, %d' % (s_t0, s_t0, n * 256)); p('s_add_u32 s%d, s%d, %d' % (s_t0, s_t0, WS_DBG + slot_index * 0x1000000))
    p('v_lshlrev_b32 v27, 4, v%d' % v_lane)
    for r in range(0, n, 4):
        vm.op('buffer_store_dwordx4 %s, v27, s[%d:%d], s%d offen' % (vr(base_reg + r, 4), sDBG, sDBG + 3, s_t0))
        p('s_add_u32 s%d, s%d, 1024' % (s_t0, s_t0))
    vm.wait_all()

def build():
    top = Prog()
    top('s_cmp_ge_u32 s2, 256')
    top('s_cbranch_scc1 L_end')
    top('s_load_dwordx16 s[64:79], s[0:1], 0')
    top('s_load_dwordx2 s[80:81], s[0:1], 64')
    top('s_load_dwordx2 s[82:83], s[0:1], 80')
    top('s_mov_b32 s%d, s2' % s_b)
    top('s_and_b32 s%d, s2, 7' % s_t0)
    top('s_lshr_b32 s%d, s2, 3' % s_t1)
    if cfg.maprow == 0:
        top('s_mov_b32 s%d, s%d' % (s_jj, s_t0))
        top('s_lshr_b32 s%d, s%d, 1' % (s_i, s_t1))
        top('s_and_b32 s%d, s%d, 1' % (s_t2, s_t1))
        top('s_lshl_b32 s%d, s%d, 2' % (s_rot, s_t2)); top('s_add_u32 s%d, s%d, s%d' % (s_rot, s_rot, s_i)); top('s_and_b32 s%d, s%d, 7' % (s_rot, s_rot))
    else:
        top('s_and_b32 s%d, s%d, 1' % (s_i, s_t0)); top('s_lshl_b32 s%d, s%d, 3' % (s_i, s_i)); top('s_and_b32 s%d, s%d, 7' % (s_t2, s_t1)); top('s_add_u32 s%d, s%d, s%d' % (s_i, s_i, s_t2))
        top('s_lshr_b32 s%d, s%d, 1' % (s_t3, s_t0)); top('s_lshl_b32 s%d, s%d, 2' % (s_t3, s_t3)); top('s_lshr_b32 s%d, s%d, 3' % (s_t2, s_t1)); top('s_add_u32 s%d, s%d, s%d' % (s_t3, s_t3, s_t2))
        top('s_lshr_b32 s%d, s%d, 1' % (s_jj, s_t3))
        top('s_lshl_b32 s%d, s%d, 1' % (s_rot, s_t3)); top('s_add_u32 s%d, s%d, s%d' % (s_rot, s_rot, s_i)); top('s_and_b32 s%d, s%d, 7' % (s_rot, s_rot))
        top('s_and_b32 s%d, s%d, 1' % (s_t2, s_t3))
    if not cfg.rot: top('s_mov_b32 s%d, 0' % s_rot)
    top('s_lshl_b32 s%d, s%d, 2' % (s_tb, s_t0)); top('s_and_b32 s%d, s%d, 3' % (s_t3, s_t1)); top('s_add_u32 s%d, s%d, s%d' % (s_tb, s_tb, s_t3))
    top('s_lshr_b32 s%d, s%d, 2' % (s_cb, s_t1))
    if cfg.shared: top('s_mov_b32 s%d, s%d' % (s_br, s_t2))
    else:
        top('s_cmp_eq_u32 s%d, 0' % s_t2)
        top('s_cbranch_scc0 L_pathB')
    paths = []
    for br in range(2):
        p, vm, dco, dwq = gen_path(br)
        body(p, vm, br, dco, dwq)
        added = p.fix_hazards()
        errs = p.check_waits()
        if errs:
            for e in errs[:20]: print('WAITERR', e, file=sys.stderr)
            raise SystemExit('wait check failed')
        print('path', 'AB'[br], 'instructions:', sum(1 for i in p.ins if i.op), 'nop states added:', added, file=sys.stderr)
        paths.append(p)
    top.fix_hazards()
    hdr = open(os.path.join(os.path.dirname(os.path.abspath(__file__)), 'header.txt')).read()
    s = hdr
    s += '; @launch grid=(256,1,1) block=(256,1,1) lds=163840\n'
    s += '.amdgcn_target "amdgcn-amd-amdhsa--gfx950"\n.text\n.globl %s\n.p2align 8\n.type %s,@function\n%s:\n' % (KNAME, KNAME, KNAME)
    s += top.text()
    if cfg.shared:
        parts = []
        for p in paths:
            k = [i for i, x in enumerate(p.ins) if x.raw == '.SPLIT'][0]
            a, b = Prog(), Prog(); a.ins = p.ins[:k]; b.ins = p.ins[k + 1:]
            parts.append((a.text(), b.text()))
        assert parts[0][0] == parts[1][0], 'shared prologue differs'
        s += parts[0][0]
        s += '    s_cmp_eq_u32 s%d, 0\n    s_cbranch_scc0 L_pathB\n' % s_br
        s += parts[0][1] + 'L_pathB:\n' + parts[1][1]
    else:
        for p in paths: s += p.text()
    s += 'L_end:\n    s_endpgm\n'
    s += '.section .rodata,"a"\n.p2align 6\n.amdhsa_kernel %s\n  .amdhsa_next_free_vgpr 512\n  .amdhsa_next_free_sgpr 102\n  .amdhsa_accum_offset 256\n  .amdhsa_group_segment_fixed_size 0\n  .amdhsa_kernarg_size 88\n  .amdhsa_user_sgpr_count 2\n  .amdhsa_user_sgpr_kernarg_segment_ptr 1\n  .amdhsa_system_sgpr_workgroup_id_x 1\n.end_amdhsa_kernel\n' % KNAME
    return s


MF = 'v_mfma_f32_32x32x16_bf16'
vDO = 10
vOA = 2
vEW = 4
vER = 8
vOG = 18
s_rc, s_r4 = 7, 3

def cvt(p, d, a, b): p('v_cvt_pk_bf16_f32 v%d, v%d, v%d' % (d, a, b))

def wo_setup(p):
    p('v_lshrrev_b32 v27, 3, v%d' % v_lane); p('v_and_b32 v28, 7, v%d' % v_lane)
    p('v_bfe_u32 v29, v%d, 4, 1' % v_lane); p('v_lshlrev_b32 v29, 2, v29'); p('v_xor_b32 v28, v28, v29'); p('v_lshlrev_b32 v28, 4, v28')
    p('s_lshl_b32 s%d, s%d, 7' % (s_t0, s_cb)); p('v_add_u32 v28, s%d, v28' % s_t0)
    p('v_lshl_add_u32 v%d, v27, 10, v28' % vDO)
    for q in range(1, 4): p('v_add_u32 v%d, %d, v%d' % (vDO + q, 7 * q * 1024, vDO))
    p('s_lshl_b32 s%d, s%d, 16' % (s_wobase, s_w)); p('s_lshl_b32 s%d, s%d, 13' % (s_m0o, s_w))
    if cfg.v7:
        p('s_and_b32 s%d, s%d, 3' % (s_r, s_tb))
        p('s_lshr_b32 s%d, s%d, 1' % (s_t0, s_r)); p('s_lshl_b32 s%d, s%d, 18' % (s_t0, s_t0)); p('s_add_u32 s%d, s%d, s%d' % (s_wobase, s_wobase, s_t0))
    elif cfg.worot:
        p('s_and_b32 s%d, s%d, 3' % (s_r, s_tb))
        p('s_lshr_b32 s%d, s%d, 1' % (s_t0, s_r)); p('s_lshl_b32 s%d, s%d, 18' % (s_t0, s_t0)); p('s_add_u32 s%d, s%d, s%d' % (s_wobase, s_wobase, s_t0))
        p('s_bitcmp1_b32 s%d, 0' % s_r)
        p('s_cselect_b32 s%d, s%d, s%d' % (s_t0, sWOB, sWOA)); p('s_cselect_b32 s%d, s%d, s%d' % (s_t1, sWOA, sWOB))
        p('s_cselect_b32 s%d, s%d, s%d' % (s_t2x, sWOB + 1, sWOA + 1)); p('s_cselect_b32 s%d, s%d, s%d' % (s_t3x, sWOA + 1, sWOB + 1))
        p('s_mov_b32 s%d, s%d' % (sWOA, s_t0)); p('s_mov_b32 s%d, s%d' % (sWOB, s_t1)); p('s_mov_b32 s%d, s%d' % (sWOA + 1, s_t2x)); p('s_mov_b32 s%d, s%d' % (sWOB + 1, s_t3x))
    else:
        p('s_mov_b32 s%d, 0' % s_r)

def dma_wo_ops(p, vm, part):
    if cfg.nowo == 1 or (cfg.nowo == 2 and part == 3):
        def f(): vm.mark('wo%d' % part)
        return [f]
    if cfg.v7: return dma_wo_ops_v7(p, vm, part)
    return dma_wo_ops_real(p, vm, part)

def dma_wo_ops_v7(p, vm, t):
    srd_ = {0: sMISC, 1: sWOA, 2: sMISC, 3: sWOB}[t]
    ops = []
    for grp in range(2):
        def m(grp=grp):
            if grp == 0:
                if t in (0, 2):
                    p('s_bitcmp1_b32 s%d, 0' % s_r)
                    a, b = (sWOB, sWOA) if t == 0 else (sWOA, sWOB)
                    p('s_cselect_b32 s%d, s%d, s%d' % (sMISC, a, b)); p('s_cselect_b32 s%d, s%d, s%d' % (sMISC + 1, a + 1, b + 1))
                    if t == 0: p('s_mov_b32 s%d, 0x%x' % (sMISC + 2, 512 * 1024))
                if t == 0: p('s_mov_b32 s%d, s%d' % (s_ow, s_wobase))
                elif t == 3: p('s_xor_b32 s%d, s%d, 262144' % (s_ow, s_wobase))
                else:
                    p('s_and_b32 s%d, s%d, 1' % (s_ow, s_r))
                    if t == 1: p('s_xor_b32 s%d, s%d, 1' % (s_ow, s_ow))
                    p('s_lshl_b32 s%d, s%d, 18' % (s_ow, s_ow)); p('s_xor_b32 s%d, s%d, s%d' % (s_ow, s_ow, s_wobase))
            else: p('s_add_u32 s%d, s%d, 32768' % (s_ow, s_ow))
            p('s_add_u32 m0, s%d, %d' % (s_m0o, (t + 1) * SLOT + grp * 4096)); p('s_nop 0')
            vm.op('buffer_load_dwordx4 v%d, s[%d:%d], s%d offen lds' % (vDO, srd_, srd_ + 3, s_ow))
        ops.append(m)
        for q in range(1, 4):
            ops.append(lambda q=q, grp=grp: vm.op('buffer_load_dwordx4 v%d, s[%d:%d], s%d offen offset:%d lds' % (vDO + q, srd_, srd_ + 3, s_ow, q * 1024), 'wo%d' % t if (q == 3 and grp == 1) else None))
    return ops

def dma_wo_ops_real(p, vm, part):
    srd_ = sWOA if part < 2 else sWOB
    ops = []
    for grp in range(2):
        def m(grp=grp):
            if part & 1: p('s_xor_b32 s%d, s%d, 262144' % (s_ow, s_wobase))
            else: p('s_mov_b32 s%d, s%d' % (s_ow, s_wobase))
            if grp: p('s_add_u32 s%d, s%d, 32768' % (s_ow, s_ow))
            p('s_add_u32 m0, s%d, %d' % (s_m0o, (part + 1) * SLOT + grp * 4096)); p('s_nop 0')
            vm.op('buffer_load_dwordx4 v%d, s[%d:%d], s%d offen lds' % (vDO, srd_, srd_ + 3, s_ow))
        ops.append(m)
        for q in range(1, 4):
            ops.append(lambda q=q, grp=grp: vm.op('buffer_load_dwordx4 v%d, s[%d:%d], s%d offen offset:%d lds' % (vDO + q, srd_, srd_ + 3, s_ow, q * 1024), 'wo%d' % part if (q == 3 and grp == 1) else None))
    return ops

def softmax16(p, P, F, tmp):
    m, S = tmp, tmp + 2
    p('v_max3_f32 v%d, v%d, v%d, v%d' % (m, P, P + 1, P + 2))
    p('v_max3_f32 v%d, v%d, v%d, v%d' % (m + 1, P + 3, P + 4, P + 5))
    p('v_max3_f32 v%d, v%d, v%d, v%d' % (m, m, P + 6, P + 7))
    p('v_max3_f32 v%d, v%d, v%d, v%d' % (m + 1, m + 1, P + 8, P + 9))
    p('v_max3_f32 v%d, v%d, v%d, v%d' % (m, m, P + 10, P + 11))
    p('v_max3_f32 v%d, v%d, v%d, v%d' % (m + 1, m + 1, P + 12, P + 13))
    p('v_max3_f32 v%d, v%d, v%d, v%d' % (m, m, P + 14, P + 15))
    p('v_max_f32 v%d, v%d, v%d' % (m, m, m + 1))
    p('v_mul_f32 v%d, s%d, v%d' % (m, s_log2e, m))
    for i in range(8):
        p('v_pk_fma_f32 v[%d:%d], v[%d:%d], s[%d:%d], v[%d:%d] op_sel_hi:[1,1,0] neg_lo:[0,0,1] neg_hi:[0,0,1]' % (P + 2 * i, P + 2 * i + 1, P + 2 * i, P + 2 * i + 1, s_log2e, s_log2e + 1, m, m + 1))
    for i in range(16): p('v_exp_f32 v%d, v%d' % (P + i, P + i))
    p('v_pk_add_f32 v[%d:%d], v[%d:%d], v[%d:%d]' % (S, S + 1, P, P + 1, P + 2, P + 3))
    p('v_pk_add_f32 v[%d:%d], v[%d:%d], v[%d:%d]' % (m, m + 1, P + 4, P + 5, P + 6, P + 7))
    p('v_pk_add_f32 v[%d:%d], v[%d:%d], v[%d:%d]' % (S, S + 1, S, S + 1, P + 8, P + 9))
    p('v_pk_add_f32 v[%d:%d], v[%d:%d], v[%d:%d]' % (m, m + 1, m, m + 1, P + 10, P + 11))
    p('v_pk_add_f32 v[%d:%d], v[%d:%d], v[%d:%d]' % (S, S + 1, S, S + 1, P + 12, P + 13))
    p('v_pk_add_f32 v[%d:%d], v[%d:%d], v[%d:%d]' % (m, m + 1, m, m + 1, P + 14, P + 15))
    p('v_pk_add_f32 v[%d:%d], v[%d:%d], v[%d:%d]' % (S, S + 1, S, S + 1, m, m + 1))
    p('v_add_f32 v%d, v%d, v%d' % (S, S, S + 1))
    p('v_rcp_f32 v%d, v%d' % (S, S))
    for i in range(8):
        p('v_pk_mul_f32 v[%d:%d], v[%d:%d], v[%d:%d] op_sel_hi:[1,0]' % (P + 2 * i, P + 2 * i + 1, P + 2 * i, P + 2 * i + 1, S, S + 1))
    for i in range(8): cvt(p, F + i, P + 2 * i, P + 2 * i + 1)

def phi_elu(p, T, n, F, tmp):
    for base in range(0, n // 2, 4):
        prs = range(base, min(base + 4, n // 2))
        for k, i in enumerate(prs):
            p('v_pk_mul_f32 v[%d:%d], v[%d:%d], s[%d:%d]' % (tmp + 2 * k, tmp + 2 * k + 1, T + 2 * i, T + 2 * i + 1, s_log2e, s_log2e + 1))
        for k, i in enumerate(prs):
            p('v_exp_f32 v%d, v%d clamp' % (tmp + 2 * k, tmp + 2 * k)); p('v_exp_f32 v%d, v%d clamp' % (tmp + 2 * k + 1, tmp + 2 * k + 1))
        for k, i in enumerate(prs):
            p('v_max_f32 v%d, 0, v%d' % (T + 2 * i, T + 2 * i)); p('v_max_f32 v%d, 0, v%d' % (T + 2 * i + 1, T + 2 * i + 1))
        for k, i in enumerate(prs):
            p('v_pk_add_f32 v[%d:%d], v[%d:%d], v[%d:%d]' % (T + 2 * i, T + 2 * i + 1, T + 2 * i, T + 2 * i + 1, tmp + 2 * k, tmp + 2 * k + 1))
        for k, i in enumerate(prs):
            p('v_pk_add_f32 v[%d:%d], v[%d:%d], s[%d:%d]' % (T + 2 * i, T + 2 * i + 1, T + 2 * i, T + 2 * i + 1, s_eps, s_eps + 1))
        for k, i in enumerate(prs): cvt(p, F + i, T + 2 * i, T + 2 * i + 1)

ACC = [96, 112]
def vprep(p, VB0, VB1):
    for blk in range(2):
        for i in range(8): cvt(p, VB0 + 8 * blk + i, vV[blk] + 2 * i, vV[blk] + 2 * i + 1)
    for blk in range(2):
        for i in range(8): p('v_cndmask_b32_e64 v%d, v%d, v%d, s[%d:%d]' % (VB1 + 8 * blk + i, vONES, VB0 + 8 * blk + i, s_mask16, s_mask16 + 1))
    for blk in range(2):
        for i in range(8): p('v_cndmask_b32_e64 v%d, v%d, v%d, s[%d:%d]' % (VB0 + 8 * blk + i, VB0 + 8 * blk + i, vONES, s_mask16, s_mask16 + 1))

def insert_at(main, ins):
    out = []; ins = sorted(ins, key=lambda x: x[0]); k = 0
    for idx, m in enumerate(main):
        while k < len(ins) and ins[k][0] <= idx: out.append(ins[k][1]); k += 1
        out.append(m)
    out += [x[1] for x in ins[k:]]
    return out

UNITS = [(0, 0), (0, 1), (1, 0), (1, 1)]
ST = 184
UNITS_K = [(0, 1), (1, 1), (0, 0), (1, 0)]
def feat_k_B(p, vm, side):
    KB, PB, G = 168, 184, 128
    VB0, VB1 = 32, 48
    TB = [64, 80]
    VB = [VB0, VB1]
    U = UNITS_K
    r = Rec()
    for un, (blk, u) in enumerate(U):
        for i in range(4): cvt(r, KB + 4 * un + i, vK[blk] + 8 * u + 2 * i, vK[blk] + 8 * u + 2 * i + 1)
    head = list(r.l)
    r = Rec(); vprep(r, VB0, VB1); vp = list(r.l)
    PM = ['%s %s, %s, %s, 0' % (MF, vr(PB + 16 * un, 16), vr(vWP + 4 * u, 4), vr(KB + 4 * un, 4)) for un, (blk, u) in enumerate(U)]
    stream = head[:6] + [PM[0]] + head[6:10] + [PM[1]] + head[10:14] + [PM[2]] + head[14:16] + vp[:4] + [PM[3]] + vp[4:]
    def TA(un): return '%s %s, %s, %s, 0' % (MF, vr(TB[un % 2], 16), vr(KB + 8 * (un % 2), 4), vr(vSEL, 4))
    def TBm(un): return '%s %s, %s, %s, %s' % (MF, vr(TB[un % 2], 16), vr(KB + 8 * (un % 2) + 4, 4), vr(vSEL + 4, 4), vr(TB[un % 2], 16))
    def CV(un):
        q = Rec()
        for i in range(8): cvt(q, G + i, TB[un % 2] + 2 * i, TB[un % 2] + 2 * i + 1)
        return q.l
    def AA(un):
        blk, u = U[un]; c = '0' if blk == 0 else vr(ACC[u], 16)
        return '%s %s, %s, %s, %s' % (MF, vr(ACC[u], 16), vr(G, 4), vr(VB[u] + 8 * blk, 4), c)
    def AB(un):
        blk, u = U[un]
        return '%s %s, %s, %s, %s' % (MF, vr(ACC[u], 16), vr(G + 4, 4), vr(VB[u] + 8 * blk + 4, 4), vr(ACC[u], 16))
    q = Rec(); exchange_addr(q); ad = q.l
    q = Rec(); exchange_scal(q, 1); sc = q.l
    for un in range(4):
        q = Rec(); softmax16(q, PB + 16 * un, KB + 8 * (un % 2), 136); sm = q.l
        ins = []
        if un >= 1:
            if cfg.mfexp:
                ins += [(17, TA(un - 1)), (21, TBm(un - 1))]
                if un >= 2: ins += [(25, AA(un - 2)), (29, AB(un - 2))]
                ins += [(35 + k, c) for k, c in enumerate(CV(un - 1))]
            else:
                ins += [(2, TA(un - 1)), (10, TBm(un - 1))]
                ins += [(34 + k, c) for k, c in enumerate(CV(un - 1))]
                ins += [(46, AA(un - 1)), (54, AB(un - 1))]
        if un == 2: ins += [(12 + k, x) for k, x in enumerate(ad)]
        if un == 3:
            w0 = 46 if cfg.mfexp else 14
            ins += [(w0 + 2 * k, 'ds_write_b128 v%d, %s offset:%d' % (vEXW, vr(ACC[1] + 4 * k, 4), k * 1024)) for k in range(4)]
            ins += [(4 + k, x) for k, x in enumerate(sc)]
        stream += insert_at(sm, ins)
    merge(p, stream, side, 14 if len(side) <= 8 else 12, start=4)
    tags = ['v_mov_b32 v%d, v%d' % (ST + 4 * k + 3, vT) for k in range(4)]
    RC = 216
    p('s_nop 1'); p(TA(3))
    for t in tags: p(t)
    p(TBm(3))
    if cfg.mfexp: p(AA(2)); p(AB(2))
    vm.wait('wq1', ' lgkmcnt(0)')
    stamp(p, 18)
    p('s_barrier')
    stamp(p, 19)
    for q in range(4): p('ds_read_b128 %s, v%d offset:%d' % (vr(RC + 4 * q, 4), vEXR, q * 1024))
    for c in CV(3): p(c)
    p('s_nop 1'); p(AA(3)); p(AB(3))
    exchange_finish(p, 1)

def feat_k_A(p, side):
    PK, VB0, VB1 = 168, 200, 216
    r = Rec()
    for blk in range(2): phi_elu(r, vK[blk], 16, PK + 8 * blk, 184)
    vprep(r, VB0, VB1)
    VB = [VB0, VB1]
    for k in range(2): r('v_mov_b32 v%d, v%d' % (ST + 4 * k + 3, vT))
    exchange_addr(r)
    for blk in range(2):
        for u in range(2):
            c = '0' if blk == 0 else vr(ACC[u], 16)
            r('%s %s, %s, %s, %s' % (MF, vr(ACC[u], 16), vr(PK + 8 * blk, 4), vr(VB[u] + 8 * blk, 4), c))
            r('%s %s, %s, %s, %s' % (MF, vr(ACC[u], 16), vr(PK + 8 * blk + 4, 4), vr(VB[u] + 8 * blk + 4, 4), vr(ACC[u], 16)))
    merge(p, r.l, side, 10 if len(side) <= 8 else 7, start=2)

FQ = 32
def feat_q_B(p, side, late):
    KB, PB = 168, 184
    r = Rec()
    for un, (blk, u) in enumerate(UNITS):
        for i in range(4): cvt(r, KB + 4 * un + i, vQ[blk] + 8 * u + 2 * i, vQ[blk] + 8 * u + 2 * i + 1)
    head = list(r.l)
    PM = ['%s %s, %s, %s, 0' % (MF, vr(PB + 16 * un, 16), vr(vWP + 4 * u, 4), vr(KB + 4 * un, 4)) for un, (blk, u) in enumerate(UNITS)]
    stream = head[:6] + [PM[0]] + head[6:10] + [PM[1]] + head[10:14] + [PM[2]] + head[14:16] + ['s_nop 3', PM[3]]
    for un in range(4):
        q = Rec(); softmax16(q, PB + 16 * un, FQ + 8 * un, 136); stream += q.l
    n = len(stream)
    stream = insert_at(stream, [(n - cfg.h2lead + k, x) for k, x in enumerate(late)])
    merge(p, stream, side, 9, start=2)

def feat_q_A(p, side, late):
    r = Rec()
    for blk in range(2):
        for u in range(2): phi_elu(r, vQ[blk] + 8 * u, 8, FQ + 4 * (2 * blk + u), 184)
    merge(p, r.l, side, 6, start=1)
    for x in late: emit(p, x)

vEXW, vEXR, vH1S = 28, 29, 30
def exchange_addr(p):
    p('v_lshlrev_b32 v27, 4, v%d' % v_lane)
    p('s_lshl_b32 s%d, s%d, 12' % (s_t0, s_w)); p('s_add_u32 s%d, s%d, %d' % (s_t0, s_t0, (2 if cfg.wosched else 3) * SLOT))
    p('v_add_u32 v%d, s%d, v27' % (vEXW, s_t0))
    p('s_xor_b32 s%d, s%d, 4096' % (s_t0, s_t0))
    p('v_xor_b32 v27, 256, v27')
    p('v_add_u32 v%d, s%d, v27' % (vEXR, s_t0))
    p('v_lshrrev_b32 v%d, 4, v%d' % (vH1S, v_lane)); p('v_lshlrev_b32 v%d, 12, v%d' % (vH1S, vH1S)); p('v_and_b32 v27, 15, v%d' % v_lane); p('v_lshl_add_u32 v%d, v27, 4, v%d' % (vH1S, vH1S))

TZ = 200
def exchange_scal(p, br):
    p('s_lshl_b32 s%d, s%d, 2' % (s_head, s_jj)); p('s_add_u32 s%d, s%d, s%d' % (s_head, s_head, s_w)); p('s_add_u32 s%d, s%d, %d' % (s_head, s_head, 32 * br))
    p('s_lshl_b32 s%d, s%d, 16' % (s_t2, s_head)); p('s_lshl_b32 s%d, s%d, 8' % (s_t1, s_i)); p('s_add_u32 s%d, s%d, s%d' % (s_t2, s_t2, s_t1)); p('s_add_u32 s%d, s%d, %d' % (s_t2, s_t2, WS_INB))

def exchange_finish(p, br):
    nq = 4 if br == 1 else 2
    nh = 2 * nq
    RC = 216
    pos = lambda r: ST + 4 * (r >> 1) + (r & 1)
    p('s_waitcnt lgkmcnt(0)')
    for r in range(4 * nq):
        d = pos(r) if r < nh else TZ + r - nh
        p('v_add_f32 v%d, v%d, v%d' % (d, ACC[0] + r, RC + r))
    nd = 8 if br == 1 else 4
    for r in range(nd): p('v_permlane16_swap_b32 v%d, v%d' % (pos(r), TZ + r))
    for m in range(nd // 2): p('v_cndmask_b32_e64 v%d, v%d, v%d, s[%d:%d]' % (ST + 4 * m + 2, TZ + 2 * m, TZ + 2 * m + 1, s_odd, s_odd + 1))

def exchange(p, vm, br):
    nq = 2
    RC = 216
    src1 = ACC[1] + 8
    for q in range(nq): p('ds_write_b128 v%d, %s offset:%d' % (vEXW, vr(src1 + 4 * q, 4), q * 1024))
    exchange_scal(p, br)
    vm.wait('wq1', ' lgkmcnt(0)')
    stamp(p, 18)
    p('s_barrier')
    stamp(p, 19)
    for q in range(nq): p('ds_read_b128 %s, v%d offset:%d' % (vr(RC + 4 * q, 4), vEXR, q * 1024))
    exchange_finish(p, br)

def hop1_store_ops(p, vm, br):
    nm = 4 if br == 1 else 2
    ops = []
    for m in range(nm):
        def f(m=m):
            vm.op('buffer_store_dwordx4 %s, v%d, s[%d:%d], s%d offen sc1' % (vr(ST + 4 * m, 4), vH1S, sWS, sWS + 3, s_t2))
            if m < nm - 1: p('s_add_u32 s%d, s%d, 16384' % (s_t2, s_t2))
        ops.append(f)
    return ops

def spin_tail(p, name):
    p('s_cbranch_vccz L_%s_ok' % name)
    p('s_sub_u32 s%d, s%d, 1' % (s_spin, s_spin))
    p('s_cmp_gt_i32 s%d, 0' % s_spin)
    p('s_cbranch_scc1 L_%s' % name)
    p.label('L_%s_ok' % name)

def tagcheck(p, regs, t0, t1):
    regs = list(regs)
    p('v_min_u32 v%d, v%d, v%d' % (t0, regs[0], regs[1])); p('v_max_u32 v%d, v%d, v%d' % (t1, regs[0], regs[1]))
    k = 2
    while k + 1 < len(regs):
        p('v_min3_u32 v%d, v%d, v%d, v%d' % (t0, t0, regs[k], regs[k + 1])); p('v_max3_u32 v%d, v%d, v%d, v%d' % (t1, t1, regs[k], regs[k + 1])); k += 2
    if k < len(regs):
        p('v_min_u32 v%d, v%d, v%d' % (t0, t0, regs[k])); p('v_max_u32 v%d, v%d, v%d' % (t1, t1, regs[k]))
    p('v_xor_b32 v%d, v%d, v%d' % (t0, vT, t0)); p('v_xor_b32 v%d, v%d, v%d' % (t1, vT, t1)); p('v_or_b32 v%d, v%d, v%d' % (t0, t0, t1))
    p('v_cmp_ne_u32 vcc, 0, v%d' % t0)

H1 = 184
s_h1a = 98
def hop1_load_ops(p, vm, br, retry=False):
    ops = []
    def addr():
        p('s_lshl_b32 s%d, s%d, 16' % (s_h1a, s_head)); p('s_lshl_b32 s%d, s%d, 12' % (s_t1, s_i)); p('s_add_u32 s%d, s%d, s%d' % (s_h1a, s_h1a, s_t1)); p('s_add_u32 s%d, s%d, %d' % (s_h1a, s_h1a, WS_INB))
        p('v_lshlrev_b32 v27, 4, v%d' % v_lane)
    if not retry: ops.append(addr)
    for n in range(4):
        ops.append(lambda n=n: vm.op('buffer_load_dwordx4 %s, v27, s[%d:%d], s%d offen offset:%d sc1' % (vr(H1 + 4 * n, 4), sWS, sWS + 3, s_h1a, n * 1024), 'h1l' if n == 3 else None))
    return ops

def hop1_reduce(p, vm, br):
    L = 'AB'[br]; LD = H1
    vm.wait('h1l')
    if br == 0:
        p('s_cmp_ge_u32 s%d, 8' % s_i); p('s_cbranch_scc1 L_h1skip')
    p('s_mov_b32 s%d, %d' % (s_spin, cfg.spin))
    tagcheck(p, [LD + 4 * n + 3 for n in range(4)], 28, 29)
    p('s_cbranch_vccz L_h1%s_ok' % L)
    p.label('L_h1%s' % L)
    for f in hop1_load_ops(p, vm, br, retry=True): f()
    vm.wait_all()
    tagcheck(p, [LD + 4 * n + 3 for n in range(4)], 28, 29)
    spin_tail(p, 'h1%s' % L)
    a, b, z, t = 216, 217, 218, 219
    p('v_add_f32 v%d, v%d, v%d' % (a, LD, LD + 4)); p('v_add_f32 v%d, v%d, v%d' % (b, LD + 1, LD + 5)); p('v_add_f32 v%d, v%d, v%d' % (z, LD + 2, LD + 6))
    for n in range(2, 4):
        p('v_add_f32 v%d, v%d, v%d' % (a, a, LD + 4 * n)); p('v_add_f32 v%d, v%d, v%d' % (b, b, LD + 4 * n + 1)); p('v_add_f32 v%d, v%d, v%d' % (z, z, LD + 4 * n + 2))
    p('v_mov_b32 v%d, v%d' % (t, z))
    p('s_lshl_b32 s%d, s%d, 11' % (s_t0, s_head)); p('s_lshl_b32 s%d, s%d, 7' % (s_t1, s_i)); p('s_add_u32 s%d, s%d, s%d' % (s_t0, s_t0, s_t1)); p('s_add_u32 s%d, s%d, %d' % (s_t0, s_t0, WS_OUTK))
    p('v_permlane32_swap_b32 v%d, v%d' % (a, b))
    p('v_permlane32_swap_b32 v%d, v%d' % (z, t))
    p('v_add_f32 v%d, v%d, v%d' % (a, a, b)); p('v_add_f32 v%d, v%d, v%d' % (z, z, t))
    p('v_lshlrev_b32 v27, 4, v%d' % v_lane)
    p('v_mov_b32 v%d, v%d' % (b, a)); p('v_mov_b32 v%d, v%d' % (t, z))
    p('v_mov_b32 v223, v%d' % vT)
    p('s_nop 0')
    p('v_permlane16_swap_b32 v%d, v%d' % (a, b))
    p('v_permlane16_swap_b32 v%d, v%d' % (z, t))
    p('v_add_f32 v%d, v%d, v%d' % (a, a, b)); p('v_add_f32 v%d, v%d, v%d' % (z, z, t))
    p('v_mov_b32 v%d, v%d' % (b, a))
    p('s_nop 0')
    p('v_mov_b32_dpp v%d, v%d quad_perm:[1,1,1,1] row_mask:0xf bank_mask:0xf' % (t, z))
    p('v_permlane32_swap_b32 v%d, v%d' % (a, b))
    p('v_mov_b32_dpp v%d, v%d quad_perm:[0,0,0,0] row_mask:0xf bank_mask:0xf' % (222, z))
    cvt(p, 220, a, b)
    cvt(p, 222, 222, t)
    p('v_mov_b32_dpp v221, v220 row_ror:8 row_mask:0xf bank_mask:0xf')
    p('s_mov_b32 exec_lo, 0xff'); p('s_mov_b32 exec_hi, 0')
    vm.op('buffer_store_dwordx4 v[220:223], v27, s[%d:%d], s%d offen sc1' % (sWS, sWS + 3, s_t0))
    p('s_mov_b64 exec, -1')
    if br == 0: p.label('L_h1skip')

KVA = 216
H2 = 64
s_h2a, s_h2b = 100, 101
s_hi8 = 98
def hop2_load_ops(p, vm, br, retry=False):
    nm = 4 if br == 1 else 2
    ops = []
    def addr():
        p('s_lshl_b32 s%d, s%d, 11' % (s_h2a, s_head)); p('s_add_u32 s%d, s%d, %d' % (s_h2a, s_h2a, WS_OUTK)); p('s_xor_b32 s%d, s%d, 2048' % (s_h2b, s_h2a))
        p('s_mov_b32 s%d, 0xff00ff00' % s_hi8); p('s_mov_b32 s%d, 0xff00ff00' % (s_hi8 + 1))
    def addr2():
        p('v_lshrrev_b32 v31, 4, v%d' % v_lane); p('v_lshlrev_b32 v31, 7, v31'); p('v_and_b32 v30, 7, v%d' % v_lane); p('v_lshl_add_u32 v31, v30, 4, v31')
    if not retry: ops += [addr, addr2]
    for u in range(2):
        for m in range(nm):
            r = H2 + 16 * u + 4 * m
            ops.append(lambda r=r, u=u, m=m: vm.op('buffer_load_dwordx4 %s, v31, s[%d:%d], s%d offen offset:%d sc1' % (vr(r, 4), sWS, sWS + 3, s_h2a if u == 0 else s_h2b, m * 512), 'h2l' if (u == 1 and m == nm - 1) else None))
    return ops

def hop2_gather(p, vm, br):
    L = 'AB'[br]; nm = 4 if br == 1 else 2
    tags = [H2 + 16 * u + 4 * m + 3 for u in range(2) for m in range(nm)]
    p('s_mov_b32 s%d, %d' % (s_spin, cfg.spin))
    vm.wait('h2l')
    tagcheck(p, tags, 28, 29)
    p('s_cbranch_vccz L_h2%s_ok' % L)
    p.label('L_h2%s' % L)
    for f in hop2_load_ops(p, vm, br, retry=True): f()
    vm.wait_all()
    tagcheck(p, tags, 28, 29)
    spin_tail(p, 'h2%s' % L)
    for u in range(2):
        for m in range(nm): p('v_cndmask_b32_e64 v%d, v%d, v%d, s[%d:%d]' % (KVA + 8 * u + m, H2 + 16 * u + 4 * m, H2 + 16 * u + 4 * m + 1, s_hi8, s_hi8 + 1))
        for m in range(nm): p('v_mov_b32 v%d, v%d' % (KVA + 8 * u + nm + m, H2 + 16 * u + 4 * m + 2))
    for u in range(2):
        for m in range(nm): p('v_permlane16_swap_b32 v%d, v%d' % (KVA + 8 * u + m, KVA + 8 * u + nm + m))

OF = 232
def o_addr(p):
    p('s_lshl_b32 s%d, s%d, 2' % (s_t0, s_i)); p('s_lshl_b32 s%d, s%d, 1' % (s_t1, s_th)); p('s_add_u32 s%d, s%d, s%d' % (s_t0, s_t0, s_t1))
    p('s_lshl_b32 s%d, s%d, 16' % (s_t0, s_t0)); p('s_lshl_b32 s%d, s%d, 10' % (s_t1, s_head)); p('s_add_u32 s%d, s%d, s%d' % (s_t0, s_t0, s_t1)); p('s_add_u32 s%d, s%d, %d' % (s_t0, s_t0, WS_O))
    p('s_xor_b32 s%d, s%d, 1024' % (s_t1, s_t0))
    p('s_add_u32 s%d, s%d, 65536' % (s_t2, s_t0)); p('s_add_u32 s%d, s%d, 65536' % (s_t3, s_t1))

def poison_ops(p, vm, br):
    def a():
        p('s_lshl_b32 s%d, s%d, 2' % (s_head, s_jj)); p('s_add_u32 s%d, s%d, s%d' % (s_head, s_head, s_w)); p('s_add_u32 s%d, s%d, %d' % (s_head, s_head, 32 * br))
        o_addr(p); p('v_lshlrev_b32 v27, 4, v%d' % v_lane)
        for k in range(4): p('v_mov_b32 v%d, -1' % (248 + k))
    ops = [a]
    for k, sr_ in enumerate((s_t0, s_t1, s_t2, s_t3)):
        ops.append(lambda k=k, sr_=sr_: vm.op('buffer_store_dwordx4 v[248:251], v27, s[%d:%d], s%d offen sc1' % (sWS, sWS + 3, sr_), 'poison' if k == 3 else None))
    def allp():
        for f in ops: f()
    return allp

def o_warm_ops(p, vm):
    def a():
        o_addr(p); p('v_lshlrev_b32 v27, 4, v%d' % v_lane)
    ops = [a]
    for k, sr_ in enumerate((s_t0, s_t1, s_t2, s_t3)):
        ops.append(lambda k=k, sr_=sr_: vm.op('buffer_load_dwordx4 v[%d:%d], v27, s[%d:%d], s%d offen %s' % (232 + 4 * k, 235 + 4 * k, sWS, sWS + 3, sr_, cfg.owarmfl)))
    return ops

def o_phase(p, vm, br):
    NB = [64, 80, 96, 112]
    for un, (blk, u) in enumerate(UNITS):
        if br == 1:
            p('%s %s, %s, %s, 0' % (MF, vr(NB[un], 16), vr(KVA + 8 * u, 4), vr(FQ + 8 * un, 4)))
            p('%s %s, %s, %s, %s' % (MF, vr(NB[un], 16), vr(KVA + 8 * u + 4, 4), vr(FQ + 8 * un + 4, 4), vr(NB[un], 16)))
        else:
            p('%s %s, %s, %s, 0' % (MF, vr(NB[un], 16), vr(KVA + 8 * u, 4), vr(FQ + 4 * un, 4)))
        if un == 0:
            if cfg.oalias:
                p('s_lshl_b32 s%d, s%d, 16' % (s_t0, s_head)); p('s_lshl_b32 s%d, s%d, 12' % (s_t1, s_i)); p('s_add_u32 s%d, s%d, s%d' % (s_t0, s_t0, s_t1)); p('s_add_u32 s%d, s%d, %d' % (s_t0, s_t0, WS_INB))
                p('s_add_u32 s%d, s%d, 1024' % (s_t1, s_t0)); p('s_add_u32 s%d, s%d, 2048' % (s_t2, s_t0)); p('s_add_u32 s%d, s%d, 3072' % (s_t3, s_t0))
            else:
                p('s_lshl_b32 s%d, s%d, 2' % (s_t0, s_i)); p('s_lshl_b32 s%d, s%d, 1' % (s_t1, s_th)); p('s_add_u32 s%d, s%d, s%d' % (s_t0, s_t0, s_t1))
                p('s_lshl_b32 s%d, s%d, 16' % (s_t0, s_t0)); p('s_lshl_b32 s%d, s%d, 10' % (s_t1, s_head)); p('s_add_u32 s%d, s%d, s%d' % (s_t0, s_t0, s_t1)); p('s_add_u32 s%d, s%d, %d' % (s_t0, s_t0, WS_O))
                p('s_xor_b32 s%d, s%d, 1024' % (s_t1, s_t0))
                p('s_add_u32 s%d, s%d, 65536' % (s_t2, s_t0)); p('s_add_u32 s%d, s%d, 65536' % (s_t3, s_t1))
            p('v_lshlrev_b32 v27, 4, v%d' % v_lane)
    soffs = {(0, 0): s_t0, (0, 1): s_t1, (1, 0): s_t2, (1, 1): s_t3}
    for un, (blk, u) in enumerate(UNITS):
        N = NB[un]; num = N; den = N + 8
        p('v_add_f32 v%d, s%d, v%d' % (den, s_eps, den))
        p('v_rcp_f32 v%d, v%d' % (den, den))
        for i in range(4):
            p('v_pk_mul_f32 v[%d:%d], v[%d:%d], v[%d:%d] op_sel_hi:[1,0]' % (num + 2 * i, num + 2 * i + 1, num + 2 * i, num + 2 * i + 1, den, den + 1))
        for i in range(4): cvt(p, OF + 4 * un + i, num + 2 * i, num + 2 * i + 1)
        vm.op('buffer_store_dwordx4 %s, v27, s[%d:%d], s%d offen sc1' % (vr(OF + 4 * un, 4), sWS, sWS + 3, soffs[(blk, u)]), 'ost')
    p('s_lshl_b32 s%d, s%d, 1' % (s_t0, s_i)); p('s_add_u32 s%d, s%d, s%d' % (s_t0, s_t0, s_th)); p('s_lshl_b32 s%d, s%d, 5' % (s_t0, s_t0))
    p('s_lshl_b32 s%d, s%d, 1' % (s_t1, s_jj)); p('s_add_u32 s%d, s%d, s%d' % (s_t0, s_t0, s_t1)); p('s_add_u32 s%d, s%d, s%d' % (s_t0, s_t0, s_hp))
    p('s_add_u32 s%d, s%d, %d' % (s_t0, s_t0, 16 * br)); p('s_lshl_b32 s%d, s%d, 7' % (s_t0, s_t0)); p('s_add_u32 s%d, s%d, %d' % (s_h2a, s_t0, WS_FLAG))

def o_flag(p, vm):
    p('v_mov_b32 v27, 0')
    vm.wait('ost')
    p('s_mov_b64 exec, 1')
    vm.op('buffer_store_dword v%d, v27, s[%d:%d], s%d offen %s' % (vT, sWS, sWS + 3, s_h2a, cfg.flagfl))
    p('s_mov_b64 exec, -1')

def gate_load_ops(p, vm):
    X, Gw = GX, GW
    def a0():
        p('s_lshl_b32 s%d, s%d, 7' % (s_t0, s_i)); p('s_lshl_b32 s%d, s%d, 4' % (s_t1, s_jj)); p('s_add_u32 s%d, s%d, s%d' % (s_t0, s_t0, s_t1))
        p('s_lshl_b32 s%d, s%d, 2' % (s_t1, s_w)); p('s_add_u32 s%d, s%d, s%d' % (s_t0, s_t0, s_t1))
        p('s_lshl_b32 s%d, s%d, 10' % (s_t2, s_t0))
    def a1():
        p('s_lshr_b32 s%d, s%d, 2' % (s_t3, s_t0)); p('s_lshl_b32 s%d, s%d, 7' % (s_t3, s_t3)); p('s_add_u32 s%d, s%d, %d' % (s_b + 1, s_t3, WS_G))
        p('v_and_b32 v27, 15, v%d' % v_lane); p('v_lshlrev_b32 v27, 4, v27')
    def a2():
        p('v_lshrrev_b32 v28, 4, v%d' % v_lane); p('v_lshl_add_u32 v28, v28, 10, v27')
    ops = [a0, a1, a2]
    for q in range(4):
        ops.append(lambda q=q: vm.op('buffer_load_dwordx4 %s, v28, s[%d:%d], s%d offen offset:%d' % (vr(X + 4 * q, 4), sX, sX + 3, s_t2, q * 256)))
    for q in range(4):
        ops.append(lambda q=q: vm.op('buffer_load_dwordx4 %s, v27, s[%d:%d], 0 offen offset:%d' % (vr(Gw + 4 * q, 4), sMISC, sMISC + 3, q * 256), 'gate' if q == 3 else None))
    return ops

def gate_finish(p, vm):
    X, Gw = GX, GW
    vm.wait('gate')
    acc = 200
    p('v_mov_b32 v%d, 0' % acc); p('v_mov_b32 v%d, 0' % (acc + 1))
    for k in range(16):
        p('v_lshlrev_b32 v202, 16, v%d' % (X + k)); p('v_lshlrev_b32 v203, 16, v%d' % (Gw + k))
        p('v_and_b32 v204, 0xffff0000, v%d' % (X + k)); p('v_and_b32 v205, 0xffff0000, v%d' % (Gw + k))
        p('v_fmac_f32 v%d, v202, v203' % acc); p('v_fmac_f32 v%d, v204, v205' % (acc + 1))
    p('v_add_f32 v%d, v%d, v%d' % (acc, acc, acc + 1))
    for sh in (8, 4, 2, 1):
        p('v_add_f32_dpp v%d, v%d, v%d row_ror:%d row_mask:0xf bank_mask:0xf' % (acc, acc, acc, sh))
    p('v_mul_f32 v%d, s%d, v%d' % (acc, s_log2e, acc))
    p('v_exp_f32_e64 v%d, -v%d' % (acc, acc))
    p('v_add_f32 v%d, 1.0, v%d' % (acc, acc))
    p('v_rcp_f32 v%d, v%d' % (acc, acc))
    p('v_mov_b32 v%d, v%d' % (acc + 1, vT))
    p('v_lshrrev_b32 v27, 4, v%d' % v_lane); p('v_lshlrev_b32 v27, 3, v27')
    p('s_mov_b32 exec_lo, 0x00010001'); p('s_mov_b32 exec_hi, 0x00010001')
    vm.op('buffer_store_dwordx2 v[%d:%d], v27, s[%d:%d], s%d offen sc1' % (acc, acc + 1, sWS, sWS + 3, s_b + 1))
    p('s_mov_b64 exec, -1')

def p3_setup(p):
    p('v_lshrrev_b32 v27, 5, v%d' % v_lane); p('v_lshlrev_b32 v27, 2, v27')
    p('v_bfe_u32 v28, v%d, 2, 2' % v_lane); p('v_add_u32 v27, v27, v28'); p('v_lshlrev_b32 v27, 7, v27')
    p('v_bfe_u32 v29, v%d, 4, 1' % v_lane); p('v_lshl_add_u32 v27, v29, 5, v27')
    p('v_and_b32 v29, 3, v%d' % v_lane); p('v_lshl_add_u32 v27, v29, 3, v27')
    if not cfg.two:
        p('s_and_b32 s%d, s%d, 1' % (s_t0, s_r)); p('s_xor_b32 s%d, s%d, s%d' % (s_t0, s_t0, s_hp))
        p('s_lshl_b32 s%d, s%d, 16' % (s_t0, s_t0)); p('s_add_u32 s%d, s%d, %d' % (s_t0, s_t0, SLOT)); p('v_add_u32 v27, s%d, v27' % s_t0)
    p('v_lshrrev_b32 v28, 1, v28')
    p('v_lshl_add_u32 v%d, v28, 6, v27' % vOA)
    p('v_xor_b32 v28, 1, v28'); p('v_lshl_add_u32 v%d, v28, 6, v27' % (vOA + 1))
    p('v_and_b32 v27, 31, v%d' % v_lane)
    p('s_lshl_b32 s%d, s%d, 14' % (s_t0, s_hp)); p('s_lshl_b32 s%d, s%d, 13' % (s_t1, s_th)); p('s_add_u32 s%d, s%d, s%d' % (s_t0, s_t0, s_t1))
    p('v_lshlrev_b32 v28, 8, v27'); p('v_add_u32 v28, s%d, v28' % s_t0)
    p('v_and_b32 v29, 7, v27'); p('v_lshrrev_b32 v27, 5, v%d' % v_lane); p('v_xor_b32 v29, v29, v27')
    for q in range(4):
        p('v_xor_b32 v27, %d, v29' % (2 * q)); p('v_lshl_add_u32 v%d, v27, 4, v28' % (vEW + q))
    p('v_lshrrev_b32 v27, 3, v%d' % v_lane); p('v_and_b32 v28, 7, v%d' % v_lane); p('v_lshlrev_b32 v28, 1, v28')
    p('s_lshl_b32 s%d, s%d, 12' % (s_t0, s_w))
    p('v_lshlrev_b32 v29, 8, v27'); p('v_add_u32 v29, s%d, v29' % s_t0)
    for x in range(2):
        p('v_or_b32 v30, %d, v28' % x); p('v_xor_b32 v30, v30, v27'); p('v_lshl_add_u32 v%d, v30, 4, v29' % (vER + x))
    p('v_and_b32 v28, 7, v%d' % v_lane); p('v_lshlrev_b32 v28, 4, v28'); p('v_lshl_add_u32 v14, v27, 10, v28')
    p('v_and_b32 v15, %d, v%d' % (7 if cfg.two else 15, v_lane)); p('v_lshlrev_b32 v15, 7, v15')
    p('v_lshlrev_b32 v16, 4, v%d' % v_lane)
    p('v_and_b32 v28, 31, v%d' % v_lane); p('v_lshrrev_b32 v29, 2, v28'); p('v_lshlrev_b32 v29, 7, v29'); p('v_and_b32 v28, 3, v28'); p('v_lshl_add_u32 v17, v28, 3, v29')

s_fl, s_oa, s_ga, s_out0, s_out1 = 47, 48, 49, 50, 51
def p3_scalars(p):
    p('s_lshl_b32 s%d, s%d, 1' % (s_t0, s_tb)); p('s_add_u32 s%d, s%d, s%d' % (s_t0, s_t0, s_hp)); p('s_lshl_b32 s%d, s%d, 11' % (s_t0, s_t0)); p('s_add_u32 s%d, s%d, %d' % (s_fl, s_t0, WS_FLAG))
    p('s_lshl_b32 s%d, s%d, 1' % (s_t0, s_tb)); p('s_add_u32 s%d, s%d, s%d' % (s_t0, s_t0, s_th)); p('s_lshl_b32 s%d, s%d, 16' % (s_t1, s_t0))
    p('s_lshl_b32 s%d, s%d, 15' % (s_t2, s_hp)); p('s_add_u32 s%d, s%d, s%d' % (s_t1, s_t1, s_t2)); p('s_add_u32 s%d, s%d, %d' % (s_oa, s_t1, WS_O))
    p('s_lshl_b32 s%d, s%d, 10' % (s_t0, s_t0)); p('s_add_u32 s%d, s%d, %d' % (s_ga, s_t0, WS_G))
    if cfg.oalias:
        p('s_and_b32 s%d, s%d, 1' % (s_t0, s_tb)); p('s_lshl_b32 s%d, s%d, 5' % (s_t1, s_hp)); p('s_add_u32 s%d, s%d, s%d' % (s_t1, s_t1, s_t0)); p('s_lshl_b32 s%d, s%d, 16' % (s_t1, s_t1))
        p('s_lshl_b32 s%d, s%d, 10' % (s_t0, s_t0)); p('s_add_u32 s%d, s%d, s%d' % (s_t1, s_t1, s_t0))
        p('s_lshr_b32 s%d, s%d, 1' % (s_t0, s_tb)); p('s_lshl_b32 s%d, s%d, 12' % (s_t0, s_t0)); p('s_add_u32 s%d, s%d, s%d' % (s_t1, s_t1, s_t0))
        p('s_lshl_b32 s%d, s%d, 11' % (s_t0, s_th)); p('s_add_u32 s%d, s%d, s%d' % (s_t1, s_t1, s_t0)); p('s_add_u32 s%d, s%d, %d' % (s_oa, s_t1, WS_INB))
    p('s_lshl_b32 s%d, s%d, 6' % (s_t0, s_tb)); p('s_lshl_b32 s%d, s%d, 4' % (s_t1, s_w)); p('s_add_u32 s%d, s%d, s%d' % (s_t0, s_t0, s_t1)); p('s_lshl_b32 s%d, s%d, 10' % (s_t0, s_t0))
    p('s_lshl_b32 s%d, s%d, 7' % (s_t1, s_cb)); p('s_add_u32 s%d, s%d, s%d' % (s_out0, s_t0, s_t1)); p('s_add_u32 s%d, s%d, 8192' % (s_out1, s_out0))
    if cfg.orot: p('s_mov_b32 s%d, s%d' % (s_rc, s_cb))
    else: p('s_mov_b32 s%d, 0' % s_rc)
    p('s_lshr_b32 s%d, s%d, 1' % (s_r4, s_r)); p('s_lshl_b32 s%d, s%d, 2' % (s_r4, s_r4))

s_oa1, s_fl1, s_rb0, s_rb1, s_kx4 = 52, 60, 61, 89, 96
def p3_scalars2(p):
    p('s_lshr_b32 s%d, s%d, 2' % (s_t0, s_cb)); p('s_xor_b32 s%d, s%d, s%d' % (s_t0, s_t0, s_hp)); p('s_and_b32 s%d, s%d, 1' % (s_t0, s_t0))
    p('s_lshl_b32 s%d, s%d, 2' % (s_kx4, s_t0))
    p('s_lshr_b32 s%d, s%d, 1' % (s_t1, s_r)); p('s_xor_b32 s%d, s%d, s%d' % (s_t0, s_t0, s_t1)); p('s_lshl_b32 s%d, s%d, 10' % (s_t0, s_t0))
    p('s_lshl_b32 s%d, s%d, 12' % (s_t1, s_tb)); p('s_add_u32 s%d, s%d, s%d' % (s_t0, s_t0, s_t1)); p('s_add_u32 s%d, s%d, %d' % (s_fl, s_t0, WS_FLAG)); p('s_add_u32 s%d, s%d, 2048' % (s_fl1, s_fl))
    if cfg.oalias:
        p('s_and_b32 s%d, s%d, 1' % (s_t0, s_tb)); p('s_lshl_b32 s%d, s%d, 16' % (s_t1, s_t0))
        p('s_lshl_b32 s%d, s%d, 10' % (s_t0, s_t0)); p('s_add_u32 s%d, s%d, s%d' % (s_t1, s_t1, s_t0))
        p('s_lshr_b32 s%d, s%d, 1' % (s_t0, s_tb)); p('s_lshl_b32 s%d, s%d, 12' % (s_t0, s_t0)); p('s_add_u32 s%d, s%d, s%d' % (s_t1, s_t1, s_t0))
        p('s_lshl_b32 s%d, s%d, 11' % (s_t0, s_th)); p('s_add_u32 s%d, s%d, s%d' % (s_t1, s_t1, s_t0)); p('s_add_u32 s%d, s%d, %d' % (s_oa, s_t1, WS_INB))
        p('s_add_u32 s%d, s%d, %d' % (s_oa1, s_oa, 32 * 65536))
    else:
        p('s_lshl_b32 s%d, s%d, 1' % (s_t0, s_tb)); p('s_add_u32 s%d, s%d, s%d' % (s_t0, s_t0, s_th)); p('s_lshl_b32 s%d, s%d, 16' % (s_t1, s_t0)); p('s_add_u32 s%d, s%d, %d' % (s_oa, s_t1, WS_O))
        p('s_add_u32 s%d, s%d, 32768' % (s_oa1, s_oa))
    p('s_and_b32 s%d, s%d, 1' % (s_t0, s_r)); p('s_lshl_b32 s%d, s%d, 16' % (s_t0, s_t0)); p('s_add_u32 s%d, s%d, %d' % (s_rb0, s_t0, SLOT))
    p('s_xor_b32 s%d, s%d, 65536' % (s_t0, s_t0)); p('s_add_u32 s%d, s%d, %d' % (s_rb1, s_t0, SLOT))

def p3two(p, vm, br):
    L = 'AB'[br]
    OA = [[64, 80], [96, 112]]
    GV = 152
    LA = cfg.ola2
    vm.op('buffer_load_dwordx2 v[%d:%d], v17, s[%d:%d], s%d offen sc1' % (GV, GV + 1, sWS, sWS + 3, s_ga), 'g')
    p('s_mov_b32 s%d, %d' % (s_spin, cfg.spin))
    p.label('L_fl%s' % L)
    vm.op('buffer_load_dword v28, v15, s[%d:%d], s%d offen sc1' % (sWS, sWS + 3, s_fl))
    vm.wait_all()
    p('v_cmp_ne_u32 vcc, v28, v%d' % vT)
    spin_tail(p, 'fl%s' % L)
    stamp(p, 15)
    def lam(dst, g):
        p('s_add_u32 s%d, s%d, %d' % (dst, s_cb, g)); p('s_and_b32 s%d, s%d, 3' % (dst, dst)); p('s_add_u32 s%d, s%d, s%d' % (dst, dst, s_kx4))
    def oload(n):
        ph, h = n >> 4, n & 15
        g, q = h >> 2, h & 3
        if q == 0:
            lam(s_t2, g)
            p('s_add_u32 s%d, s%d, s%d' % (s_t2, s_t2, s_r4)); p('s_and_b32 s%d, s%d, 7' % (s_t2, s_t2)); p('s_lshl_b32 s%d, s%d, %d' % (s_t2, s_t2, 18 if cfg.oalias else 12))
            p('s_add_u32 s%d, s%d, s%d' % (s_t1, s_oa1 if ph else s_oa, s_t2))
        if cfg.oalias:
            if q == 1: p('s_xor_b32 s%d, s%d, 1024' % (s_t2, s_t1))
            if q == 2: p('s_add_u32 s%d, s%d, 131072' % (s_t1, s_t1))
            if q == 3: p('s_add_u32 s%d, s%d, 131072' % (s_t2, s_t2))
            vm.op('buffer_load_dwordx4 %s, v16, s[%d:%d], s%d offen sc1' % (ar(4 * n, 4), sWS, sWS + 3, s_t1 if q % 2 == 0 else s_t2), 'o%d' % n)
        else:
            vm.op('buffer_load_dwordx4 %s, v16, s[%d:%d], s%d offen offset:%d sc1' % (ar(4 * n, 4), sWS, sWS + 3, s_t1, q * 1024), 'o%d' % n)
    def gaddr(n):
        ph, g = n >> 4, (n & 15) >> 2
        d = vOG + 2 * ((n >> 2) & 1)
        q = Rec();
        q('s_add_u32 s%d, s%d, %d' % (s_t0, s_cb, g)); q('s_and_b32 s%d, s%d, 3' % (s_t0, s_t0)); q('s_add_u32 s%d, s%d, s%d' % (s_t0, s_t0, s_kx4))
        q('s_lshl_b32 s%d, s%d, 13' % (s_t0, s_t0)); q('s_add_u32 s%d, s%d, s%d' % (s_t0, s_t0, s_rb1 if ph else s_rb0))
        q('v_add_u32 v%d, s%d, v%d' % (d, s_t0, vOA)); q('v_add_u32 v%d, s%d, v%d' % (d + 1, s_t0, vOA + 1))
        return q.l
    def reads(n):
        wf = vWF + 8 * (n % 3)
        pre = gaddr(n) if (n & 3) == 0 else []
        return pre + ['ds_read_b64_tr_b16 v[%d:%d], v%d offset:%d' % (wf + 4 * ct + 2 * rd, wf + 4 * ct + 2 * rd + 1, vOG + 2 * ((n >> 2) & 1) + ct, (n & 3) * 2048 + rd * 1024) for ct in range(2) for rd in range(2)]
    for n in range(LA): oload(n)
    vm.op('buffer_load_dword v29, v15, s[%d:%d], s%d offen sc1' % (sWS, sWS + 3, s_fl1), 'pb')
    for n in range(2):
        for o in reads(n): p(o)
    p('s_mov_b32 s%d, %d' % (s_spin, cfg.spin))
    p('v_cmp_ne_u32 vcc, v%d, v%d' % (GV + 1, vT))
    p('s_cbranch_vccz L_g%s_ok' % L)
    p.label('L_g%s' % L)
    p('buffer_load_dwordx2 v[%d:%d], v17, s[%d:%d], s%d offen sc1' % (GV, GV + 1, sWS, sWS + 3, s_ga))
    p('s_waitcnt vmcnt(0)')
    p('v_cmp_ne_u32 vcc, v%d, v%d' % (GV + 1, vT))
    spin_tail(p, 'g%s' % L)
    p('v_sub_f32 v%d, 1.0, v%d' % (GV + 1, GV))
    nxt = LA
    CHK = cfg.pbstep
    for n in range(32):
        ph = n >> 4
        wf = vWF + 8 * (n % 3)
        if n == CHK:
            vm.wait('pb')
            p('s_mov_b32 s%d, %d' % (s_spin, cfg.spin))
            p('v_cmp_ne_u32 vcc, v29, v%d' % vT)
            p('s_cbranch_vccz L_fb%s_ok' % L)
            p.label('L_fb%s' % L)
            p('buffer_load_dword v29, v15, s[%d:%d], s%d offen sc1' % (sWS, sWS + 3, s_fl1))
            p('s_waitcnt vmcnt(0)')
            p('v_cmp_ne_u32 vcc, v29, v%d' % vT)
            spin_tail(p, 'fb%s' % L)
            if cfg.fine == 4: stamp(p, 44)
        vm.wait('o%d' % n, ' lgkmcnt(%d)' % (4 if n < 31 else 0))
        R = reads(n + 2) if n + 2 < 32 else []
        for ct in range(2):
            c = '0' if (n & 15) == 0 else vr(OA[ph][ct], 16)
            p('%s %s, %s, %s, %s' % (MF, vr(OA[ph][ct], 16), vr(wf + 4 * ct, 4), ar(4 * n, 4), c))
            k = len(R) - 2
            for o in (R[:k] if ct == 0 else R[k:]): p(o)
            lim = 16 if n < CHK else 32
            want = min(lim, n + 1 + (LA if n < CHK else cfg.olb))
            cnt = 0
            while nxt < want and cnt < (1 if n < CHK else 2 if ct == 0 else 1):
                oload(nxt); nxt += 1; cnt += 1
                if n < CHK: break
    assert nxt == 32, nxt
    stamp(p, 16)
    for ct in range(2):
        for q in range(4):
            for i in range(2 * q, 2 * q + 2):
                a = OA[0][ct] + 2 * i; b = OA[1][ct] + 2 * i
                p('v_pk_mul_f32 v[%d:%d], v[%d:%d], v[%d:%d] op_sel_hi:[1,0]' % (a, a + 1, a, a + 1, GV, GV + 1))
            for i in range(2 * q, 2 * q + 2):
                a = OA[0][ct] + 2 * i; b = OA[1][ct] + 2 * i
                p('v_pk_fma_f32 v[%d:%d], v[%d:%d], v[%d:%d], v[%d:%d] op_sel:[0,1,0] op_sel_hi:[1,1,1]' % (a, a + 1, b, b + 1, GV, GV + 1, a, a + 1))
            p('ds_write_b128 v%d, %s offset:%d' % (vEW + q, vr(OA[0][ct] + 4 * q, 4), 128 * ct))
    p('s_waitcnt lgkmcnt(0)')
    stamp(p, 17)
    p('s_barrier')
    p3_tail(p, vm, L)

def p3_tail(p, vm, L):
    RD = 168
    for a in range(2):
        for brr in range(2):
            for x in range(2):
                p('ds_read_b128 %s, v%d offset:%d' % (vr(RD + 16 * a + 8 * brr + 4 * x, 4), vER + x, a * 2048 + brr * 16384))
    for a in range(2):
        p('s_waitcnt lgkmcnt(%d)' % (4 if a == 0 else 0))
        r = RD + 16 * a
        for i in range(4): p('v_pk_add_f32 v[%d:%d], v[%d:%d], v[%d:%d]' % (r + 2 * i, r + 2 * i + 1, r + 2 * i, r + 2 * i + 1, r + 8 + 2 * i, r + 8 + 2 * i + 1))
        for i in range(4): cvt(p, r + 8 + i, r + 2 * i, r + 2 * i + 1)
        vm.op('buffer_store_dwordx4 %s, v14, s[%d:%d], s%d offen %s' % (vr(r + 8, 4), sOUT, sOUT + 3, s_out0 if a == 0 else s_out1, cfg.outfl))
    p('s_cmp_eq_u32 s%d, 0' % s_b); p('s_cbranch_scc0 L_noep%s' % L)
    p('s_cmp_eq_u32 s%d, 0' % s_w); p('s_cbranch_scc0 L_noep%s' % L)
    p('v_mov_b32 v27, 0'); p('s_mov_b64 exec, 1')
    vm.op('buffer_store_dword v%d, v27, s[%d:%d], 0 offen sc1' % (vT, sWS, sWS + 3))
    p('s_mov_b64 exec, -1')
    p.label('L_noep%s' % L)

def p3(p, vm, br):
    L = 'AB'[br]
    OACC = [64, 80]
    GV = 96
    vm.op('buffer_load_dwordx2 v[%d:%d], v17, s[%d:%d], s%d offen sc1' % (GV, GV + 1, sWS, sWS + 3, s_ga), 'g')
    p('s_mov_b32 s%d, %d' % (s_spin, cfg.spin))
    if cfg.p3e:
        vm.op('buffer_load_dword v28, v15, s[%d:%d], s%d offen sc1' % (sWS, sWS + 3, s_fl), 'poll1')
        for f in dma_wo_ops(p, vm, 3): f()
        vm.wait('poll1')
        p('v_cmp_ne_u32 vcc, v28, v%d' % vT)
        p('s_mov_b32 s%d, 1' % s_fast)
        p('s_cbranch_vccz L_fl%s_ok' % L)
        p('s_mov_b32 s%d, 0' % s_fast)
        p('buffer_load_dword v28, v15, s[%d:%d], s%d offen sc1' % (sWS, sWS + 3, s_fl))
        p('s_waitcnt vmcnt(0)')
        p('s_barrier')
        p('v_cmp_ne_u32 vcc, v28, v%d' % vT)
        p('s_cbranch_vccz L_fl%s_ok' % L)
        p.label('L_fl%s' % L)
        p('buffer_load_dword v28, v15, s[%d:%d], s%d offen sc1' % (sWS, sWS + 3, s_fl))
        p('s_waitcnt vmcnt(0)')
        p('v_cmp_ne_u32 vcc, v28, v%d' % vT)
        spin_tail(p, 'fl%s' % L)
    else:
        p.label('L_fl%s' % L)
        vm.op('buffer_load_dword v28, v15, s[%d:%d], s%d offen %s' % (sWS, sWS + 3, s_fl, cfg.pollfl))
        vm.wait_all()
        p('v_cmp_ne_u32 vcc, v28, v%d' % vT)
        if cfg.sleep:
            p('s_cbranch_vccz L_fl%s_ok' % L)
            p('s_sleep %d' % cfg.sleep)
        spin_tail(p, 'fl%s' % L)
    if cfg.fine == 4:
        stamp(p, 44)
        p('v_writelane_b32 v255, s%d, 45' % s_spin)
    if not cfg.wosched and not cfg.earlyb4 and not cfg.wo2p2 and not cfg.p3e: p('s_barrier')
    stamp(p, 15)
    def oload(h):
        g, q = h >> 2, h & 3
        if q == 0:
            p('s_add_u32 s%d, s%d, %d' % (s_t2, s_rc, g)); p('s_and_b32 s%d, s%d, 7' % (s_t2, s_t2))
            p('s_add_u32 s%d, s%d, s%d' % (s_t2, s_t2, s_r4)); p('s_and_b32 s%d, s%d, 7' % (s_t2, s_t2)); p('s_lshl_b32 s%d, s%d, %d' % (s_t2, s_t2, 18 if cfg.oalias else 12))
            p('s_add_u32 s%d, s%d, s%d' % (s_t1, s_oa, s_t2))
        if cfg.oalias:
            if q == 1: p('s_xor_b32 s%d, s%d, 1024' % (s_t2, s_t1))
            if q == 2: p('s_add_u32 s%d, s%d, 131072' % (s_t1, s_t1))
            if q == 3: p('s_add_u32 s%d, s%d, 131072' % (s_t2, s_t2))
            vm.op('buffer_load_dwordx4 %s, v16, s[%d:%d], s%d offen sc1' % (ar(4 * h, 4), sWS, sWS + 3, s_t1 if q % 2 == 0 else s_t2), 'o%d' % h)
        else:
            vm.op('buffer_load_dwordx4 %s, v16, s[%d:%d], s%d offen offset:%d sc1' % (ar(4 * h, 4), sWS, sWS + 3, s_t1, q * 1024), 'o%d' % h)
    LA = cfg.ola
    for h in range(LA): oload(h)
    if cfg.p3e:
        p('s_cmp_eq_u32 s%d, 1' % s_fast); p('s_cbranch_scc0 L_nb%s' % L)
        p('s_waitcnt vmcnt(%d)' % LA)
        p('s_barrier')
        p.label('L_nb%s' % L)
    def gaddr(g):
        d = vOG + 2 * (g & 1)
        return ['s_add_u32 s%d, s%d, %d' % (s_t0, s_rc, g), 's_and_b32 s%d, s%d, 7' % (s_t0, s_t0), 's_lshl_b32 s%d, s%d, 13' % (s_t0, s_t0),
                'v_add_u32 v%d, s%d, v%d' % (d, s_t0, vOA), 'v_add_u32 v%d, s%d, v%d' % (d + 1, s_t0, vOA + 1)]
    def reads(h):
        wf = vWF + 8 * (h % 3); g = h >> 2
        pre = gaddr(g) if (h & 3) == 0 else []
        return pre + ['ds_read_b64_tr_b16 v[%d:%d], v%d offset:%d' % (wf + 4 * ct + 2 * rd, wf + 4 * ct + 2 * rd + 1, vOG + 2 * (g & 1) + ct, (h & 3) * 2048 + rd * 1024) for ct in range(2) for rd in range(2)]
    for h in range(2):
        for o in reads(h): p(o)
    if cfg.fine == 3: stamp(p, 41)
    p('s_mov_b32 s%d, %d' % (s_spin, cfg.spin))
    p('v_cmp_ne_u32 vcc, v%d, v%d' % (GV + 1, vT))
    p('s_cbranch_vccz L_g%s_ok' % L)
    p.label('L_g%s' % L)
    vm2 = VM(p)
    vm2.op('buffer_load_dwordx2 v[%d:%d], v17, s[%d:%d], s%d offen sc1' % (GV, GV + 1, sWS, sWS + 3, s_ga))
    vm2.wait_all()
    p('v_cmp_ne_u32 vcc, v%d, v%d' % (GV + 1, vT))
    spin_tail(p, 'g%s' % L)
    p('v_sub_f32 v%d, 1.0, v%d' % (GV + 1, GV))
    p('s_cmp_eq_u32 s%d, 0' % s_hp)
    p('s_cselect_b64 vcc, 0, -1')
    p('v_cndmask_b32 v%d, v%d, v%d, vcc' % (GV, GV, GV + 1))
    for h in range(32):
        wf = vWF + 8 * (h % 3)
        vm.wait('o%d' % h, ' lgkmcnt(%d)' % (4 if h < 31 else 0))
        if cfg.fine == 3 and h in (0, 8, 16, 24): stamp(p, 42 + h // 8)
        R = reads(h + 2) if h + 2 < 32 else []
        for ct in range(2):
            c = '0' if h == 0 else vr(OACC[ct], 16)
            p('%s %s, %s, %s, %s' % (MF, vr(OACC[ct], 16), vr(wf + 4 * ct, 4), ar(4 * h, 4), c))
            k = len(R) - 2
            for o in (R[:k] if ct == 0 else R[k:]): p(o)
            if ct == 0 and h + LA < 32: oload(h + LA)
    stamp(p, 16)
    for ct in range(2):
        for q in range(4):
            for i in range(2 * q, 2 * q + 2):
                p('v_pk_mul_f32 v[%d:%d], v[%d:%d], v[%d:%d] op_sel_hi:[1,0]' % (OACC[ct] + 2 * i, OACC[ct] + 2 * i + 1, OACC[ct] + 2 * i, OACC[ct] + 2 * i + 1, GV, GV + 1))
            p('ds_write_b128 v%d, %s offset:%d' % (vEW + q, vr(OACC[ct] + 4 * q, 4), 128 * ct))
    p('s_waitcnt lgkmcnt(0)')
    stamp(p, 17)
    p('s_barrier')
    RD = 168
    for a in range(2):
        for brr in range(2):
            for x in range(2):
                p('ds_read_b128 %s, v%d offset:%d' % (vr(RD + 16 * a + 8 * brr + 4 * x, 4), vER + x, a * 2048 + brr * 16384))
    for a in range(2):
        p('s_waitcnt lgkmcnt(%d)' % (4 if a == 0 else 0))
        r = RD + 16 * a
        for i in range(4): p('v_pk_add_f32 v[%d:%d], v[%d:%d], v[%d:%d]' % (r + 2 * i, r + 2 * i + 1, r + 2 * i, r + 2 * i + 1, r + 8 + 2 * i, r + 8 + 2 * i + 1))
        for i in range(4): cvt(p, r + 8 + i, r + 2 * i, r + 2 * i + 1)
        vm.op('buffer_store_dwordx4 %s, v14, s[%d:%d], s%d offen %s' % (vr(r + 8, 4), sOUT, sOUT + 3, s_out0 if a == 0 else s_out1, cfg.outfl))
    p('s_cmp_eq_u32 s%d, 0' % s_b); p('s_cbranch_scc0 L_noep%s' % L)
    p('s_cmp_eq_u32 s%d, 0' % s_w); p('s_cbranch_scc0 L_noep%s' % L)
    p('v_mov_b32 v27, 0'); p('s_mov_b64 exec, 1')
    vm.op('buffer_store_dword v%d, v27, s[%d:%d], 0 offen sc1' % (vT, sWS, sWS + 3))
    p('s_mov_b64 exec, -1')
    p.label('L_noep%s' % L)

V7 = dict(vGA=17, vOUT=18, vFL=19, vOL=20, vOG=21)
S7 = dict(fl=64, fl1=65, oa=66, oa1=67, ga=68, out0=69, out1=70, r4=71, kx4=72, rb0=73, rb1=74, flag=75, a=76, b=77, c=78)
def p3_setup7_ops(p, br):
    V, S = V7, S7
    t0, t1, t2, t3 = 248, 249, 250, 251
    L = []
    def add(*lines): L.append(lambda lines=lines: [p(x) for x in lines])
    ln = v_lane
    add('v_lshrrev_b32 v%d, 5, v%d' % (t0, ln), 'v_lshlrev_b32 v%d, 2, v%d' % (t0, t0), 'v_bfe_u32 v%d, v%d, 2, 2' % (t1, ln))
    add('v_add_u32 v%d, v%d, v%d' % (t0, t0, t1), 'v_lshlrev_b32 v%d, 7, v%d' % (t0, t0), 'v_bfe_u32 v%d, v%d, 4, 1' % (t2, ln))
    add('v_lshl_add_u32 v%d, v%d, 5, v%d' % (t0, t2, t0), 'v_and_b32 v%d, 3, v%d' % (t2, ln), 'v_lshl_add_u32 v%d, v%d, 3, v%d' % (t0, t2, t0))
    add('v_lshrrev_b32 v%d, 1, v%d' % (t1, t1), 'v_lshl_add_u32 v%d, v%d, 6, v%d' % (vOA, t1, t0), 'v_xor_b32 v%d, 1, v%d' % (t1, t1))
    add('v_lshl_add_u32 v%d, v%d, 6, v%d' % (vOA + 1, t1, t0), 'v_and_b32 v%d, 31, v%d' % (t0, ln),
        's_lshl_b32 s%d, s%d, 14' % (S['a'], s_hp), 's_lshl_b32 s%d, s%d, 13' % (S['b'], s_th), 's_add_u32 s%d, s%d, s%d' % (S['a'], S['a'], S['b']))
    add('v_lshlrev_b32 v%d, 8, v%d' % (t1, t0), 'v_add_u32 v%d, s%d, v%d' % (t1, S['a'], t1), 'v_and_b32 v%d, 7, v%d' % (t2, t0))
    add('v_lshrrev_b32 v%d, 5, v%d' % (t0, ln), 'v_xor_b32 v%d, v%d, v%d' % (t2, t2, t0))
    for q in range(4): add('v_xor_b32 v%d, %d, v%d' % (t0, 2 * q, t2), 'v_lshl_add_u32 v%d, v%d, 4, v%d' % (vEW + q, t0, t1))
    add('v_lshrrev_b32 v%d, 3, v%d' % (t0, ln), 'v_and_b32 v%d, 7, v%d' % (t1, ln), 'v_lshlrev_b32 v%d, 1, v%d' % (t1, t1), 's_lshl_b32 s%d, s%d, 12' % (S['a'], s_w))
    add('v_lshlrev_b32 v%d, 8, v%d' % (t2, t0), 'v_add_u32 v%d, s%d, v%d' % (t2, S['a'], t2))
    for x in range(2): add('v_or_b32 v%d, %d, v%d' % (t3, x, t1), 'v_xor_b32 v%d, v%d, v%d' % (t3, t3, t0), 'v_lshl_add_u32 v%d, v%d, 4, v%d' % (vER + x, t3, t2))
    add('v_and_b32 v%d, 7, v%d' % (t1, ln), 'v_lshlrev_b32 v%d, 4, v%d' % (t1, t1), 'v_lshl_add_u32 v%d, v%d, 10, v%d' % (V['vOUT'], t0, t1))
    add('v_and_b32 v%d, 7, v%d' % (V['vFL'], ln), 'v_lshlrev_b32 v%d, 7, v%d' % (V['vFL'], V['vFL']), 'v_lshlrev_b32 v%d, 4, v%d' % (V['vOL'], ln))
    add('v_and_b32 v%d, 31, v%d' % (t1, ln), 'v_lshrrev_b32 v%d, 2, v%d' % (t2, t1), 'v_lshlrev_b32 v%d, 7, v%d' % (t2, t2))
    add('v_and_b32 v%d, 3, v%d' % (t1, t1), 'v_lshl_add_u32 v%d, v%d, 3, v%d' % (V['vGA'], t1, t2))
    a, b, c = S['a'], S['b'], S['c']
    add('s_lshl_b32 s%d, s%d, 1' % (a, s_tb), 's_add_u32 s%d, s%d, s%d' % (a, a, s_th), 's_lshl_b32 s%d, s%d, 16' % (b, a), 's_add_u32 s%d, s%d, %d' % (S['oa'], b, WS_O), 's_add_u32 s%d, s%d, 32768' % (S['oa1'], S['oa']),
        's_lshl_b32 s%d, s%d, 10' % (a, a), 's_add_u32 s%d, s%d, %d' % (S['ga'], a, WS_G))
    add('s_lshl_b32 s%d, s%d, 6' % (a, s_tb), 's_lshl_b32 s%d, s%d, 4' % (b, s_w), 's_add_u32 s%d, s%d, s%d' % (a, a, b), 's_lshl_b32 s%d, s%d, 10' % (a, a),
        's_lshl_b32 s%d, s%d, 7' % (b, s_cb), 's_add_u32 s%d, s%d, s%d' % (S['out0'], a, b), 's_add_u32 s%d, s%d, 8192' % (S['out1'], S['out0']))
    add('s_lshr_b32 s%d, s%d, 2' % (a, s_cb), 's_xor_b32 s%d, s%d, s%d' % (a, a, s_hp), 's_and_b32 s%d, s%d, 1' % (a, a), 's_lshl_b32 s%d, s%d, 2' % (S['kx4'], a),
        's_lshr_b32 s%d, s%d, 1' % (b, s_r), 's_lshl_b32 s%d, s%d, 2' % (S['r4'], b), 's_xor_b32 s%d, s%d, s%d' % (c, a, b))
    add('s_lshl_b32 s%d, s%d, 10' % (c, c), 's_lshl_b32 s%d, s%d, 12' % (b, s_tb), 's_add_u32 s%d, s%d, s%d' % (c, c, b), 's_add_u32 s%d, s%d, %d' % (S['fl'], c, WS_FLAG), 's_add_u32 s%d, s%d, 2048' % (S['fl1'], S['fl']))
    add('s_and_b32 s%d, s%d, 1' % (b, s_r), 's_add_u32 s%d, s%d, s%d' % (c, a, b), 's_add_u32 s%d, s%d, 1' % (c, c), 's_lshl_b32 s%d, s%d, 15' % (S['rb0'], c),
        's_lshl_b32 s%d, s%d, 1' % (b, b), 's_sub_u32 s%d, 3, s%d' % (b, b), 's_cmp_eq_u32 s%d, 1' % a, 's_cselect_b32 s%d, 4, s%d' % (b, b), 's_lshl_b32 s%d, s%d, 15' % (S['rb1'], b))
    add('s_lshl_b32 s%d, s%d, 1' % (a, s_i), 's_add_u32 s%d, s%d, s%d' % (a, a, s_th), 's_lshl_b32 s%d, s%d, 5' % (a, a), 's_lshl_b32 s%d, s%d, 1' % (b, s_jj), 's_add_u32 s%d, s%d, s%d' % (a, a, b),
        's_add_u32 s%d, s%d, s%d' % (a, a, s_hp), 's_add_u32 s%d, s%d, %d' % (a, a, 16 * br), 's_lshl_b32 s%d, s%d, 7' % (a, a), 's_add_u32 s%d, s%d, %d' % (S['flag'], a, WS_FLAG))
    return L

GV7 = 152
def early_poll_ops(p, vm):
    V, S = V7, S7
    return [lambda: vm.op('buffer_load_dwordx2 v[%d:%d], v%d, s[%d:%d], s%d offen sc1' % (GV7, GV7 + 1, V['vGA'], sWS, sWS + 3, S['ga']), 'g'),
            lambda: vm.op('buffer_load_dword v154, v%d, s[%d:%d], s%d offen sc1' % (V['vFL'], sWS, sWS + 3, S['fl']), 'pa')]

def tail7(p, vm, br):
    L = 'AB'[br]; V, S = V7, S7
    OA = [[64, 80], [96, 112]]
    GV = GV7
    LA = cfg.ola2
    vOGx = V['vOG']
    def flag_store():
        p('v_mov_b32 v27, 0'); p('s_mov_b64 exec, 1')
        vm.op('buffer_store_dword v%d, v27, s[%d:%d], s%d offen sc1' % (vT, sWS, sWS + 3, S['flag']))
        p('s_mov_b64 exec, -1')
    p('s_barrier')
    def spin(reg, sfl, name):
        p('s_mov_b32 s%d, %d' % (s_spin, cfg.spin))
        p('v_cmp_ne_u32 vcc, v%d, v%d' % (reg, vT))
        p('s_cbranch_vccz L_%s_ok' % name)
        p.label('L_%s' % name)
        p('buffer_load_dword v%d, v%d, s[%d:%d], s%d offen sc1' % (reg, V['vFL'], sWS, sWS + 3, sfl))
        p('s_waitcnt vmcnt(0)')
        p('v_cmp_ne_u32 vcc, v%d, v%d' % (reg, vT))
        spin_tail(p, name)
    if br == 0 or cfg.v7b:
        if cfg.v7b == 2:
            for f in early_poll_ops(p, vm): f()
            vm.wait('ost'); flag_store()
            stamp(p, 9)
            vm.wait('pa')
        else:
            vm.wait('ost'); flag_store()
            stamp(p, 9)
            for f in early_poll_ops(p, vm): f()
            vm.wait('pa')
    else:
        vm.wait('pa')
    spin(154, S['fl'], 'fa%s' % L)
    stamp(p, 15)
    def oload(n):
        ph, h = n >> 4, n & 15
        g, q = h >> 2, h & 3
        if q == 0:
            p('s_add_u32 s%d, s%d, %d' % (s_t2, s_cb, g)); p('s_and_b32 s%d, s%d, 3' % (s_t2, s_t2)); p('s_add_u32 s%d, s%d, s%d' % (s_t2, s_t2, S['kx4']))
            p('s_add_u32 s%d, s%d, s%d' % (s_t2, s_t2, S['r4'])); p('s_and_b32 s%d, s%d, 7' % (s_t2, s_t2)); p('s_lshl_b32 s%d, s%d, 12' % (s_t2, s_t2))
            p('s_add_u32 s%d, s%d, s%d' % (s_t1, S['oa1'] if ph else S['oa'], s_t2))
        vm.op('buffer_load_dwordx4 %s, v%d, s[%d:%d], s%d offen offset:%d sc1' % (ar(4 * n, 4), V['vOL'], sWS, sWS + 3, s_t1, q * 1024), 'o%d' % n)
    def gaddr(n):
        ph, g = n >> 4, (n & 15) >> 2
        d = vOGx + 2 * ((n >> 2) & 1)
        return ['s_add_u32 s%d, s%d, %d' % (s_t0, s_cb, g), 's_and_b32 s%d, s%d, 3' % (s_t0, s_t0), 's_lshl_b32 s%d, s%d, 13' % (s_t0, s_t0),
                's_add_u32 s%d, s%d, s%d' % (s_t0, s_t0, S['rb1'] if ph else S['rb0']),
                'v_add_u32 v%d, s%d, v%d' % (d, s_t0, vOA), 'v_add_u32 v%d, s%d, v%d' % (d + 1, s_t0, vOA + 1)]
    def reads(n):
        wf = vWF + 8 * (n % 3)
        pre = gaddr(n) if (n & 3) == 0 else []
        return pre + ['ds_read_b64_tr_b16 v[%d:%d], v%d offset:%d' % (wf + 4 * ct + 2 * rd, wf + 4 * ct + 2 * rd + 1, vOGx + 2 * ((n >> 2) & 1) + ct, (n & 3) * 2048 + rd * 1024) for ct in range(2) for rd in range(2)]
    for n in range(LA): oload(n)
    for n in range(2):
        for o in reads(n): p(o)
    nxt = LA
    CHK = cfg.pbstep
    wo3 = dma_wo_ops(p, vm, 3)
    for n in range(32):
        ph = n >> 4
        wf = vWF + 8 * (n % 3)
        if n == CHK:
            vm.wait('pb')
            spin(155, S['fl1'], 'fb%s' % L)
            if cfg.fine == 4: stamp(p, 44)
        if n == 14:
            vm.wait('wo3', ' lgkmcnt(4)')
            p('s_barrier')
        vm.wait('o%d' % n, ' lgkmcnt(%d)' % (4 if n < 31 else 0))
        if n == 0:
            if br == 1 and not cfg.v7b:
                flag_store()
                stamp(p, 9)
            vm.op('buffer_load_dword v155, v%d, s[%d:%d], s%d offen sc1' % (V['vFL'], sWS, sWS + 3, S['fl1']), 'pb')
        R = reads(n + 2) if n + 2 < 32 else []
        for ct in range(2):
            c = '0' if (n & 15) == 0 else vr(OA[ph][ct], 16)
            p('%s %s, %s, %s, %s' % (MF, vr(OA[ph][ct], 16), vr(wf + 4 * ct, 4), ar(4 * n, 4), c))
            k = len(R) - 2
            for o in (R[:k] if ct == 0 else R[k:]): p(o)
            if ct == 1 and wo3 and n >= cfg.wo3step: wo3.pop(0)()
            lim = 16 if n < CHK else 32
            want = min(lim, n + 1 + (LA if n < CHK else cfg.olb))
            cnt = 0
            while nxt < want and cnt < (1 if n < CHK else 2 if ct == 0 else 1):
                oload(nxt); nxt += 1; cnt += 1
                if n < CHK: break
    assert nxt == 32 and not wo3, (nxt, len(wo3))
    stamp(p, 16)
    p('s_mov_b32 s%d, %d' % (s_spin, cfg.spin))
    p('v_cmp_ne_u32 vcc, v%d, v%d' % (GV + 1, vT))
    p('s_cbranch_vccz L_g%s_ok' % L)
    p.label('L_g%s' % L)
    p('buffer_load_dwordx2 v[%d:%d], v%d, s[%d:%d], s%d offen sc1' % (GV, GV + 1, V['vGA'], sWS, sWS + 3, S['ga']))
    p('s_waitcnt vmcnt(0)')
    p('v_cmp_ne_u32 vcc, v%d, v%d' % (GV + 1, vT))
    spin_tail(p, 'g%s' % L)
    p('v_sub_f32 v%d, 1.0, v%d' % (GV + 1, GV))
    for ct in range(2):
        for q in range(4):
            for i in range(2 * q, 2 * q + 2):
                a = OA[0][ct] + 2 * i
                p('v_pk_mul_f32 v[%d:%d], v[%d:%d], v[%d:%d] op_sel_hi:[1,0]' % (a, a + 1, a, a + 1, GV, GV + 1))
            for i in range(2 * q, 2 * q + 2):
                a = OA[0][ct] + 2 * i; b = OA[1][ct] + 2 * i
                p('v_pk_fma_f32 v[%d:%d], v[%d:%d], v[%d:%d], v[%d:%d] op_sel:[0,1,0] op_sel_hi:[1,1,1]' % (a, a + 1, b, b + 1, GV, GV + 1, a, a + 1))
            p('ds_write_b128 v%d, %s offset:%d' % (vEW + q, vr(OA[0][ct] + 4 * q, 4), 128 * ct))
    p('s_waitcnt lgkmcnt(0)')
    stamp(p, 17)
    p('s_barrier')
    RD = 168
    for a in range(2):
        for brr in range(2):
            for x in range(2):
                p('ds_read_b128 %s, v%d offset:%d' % (vr(RD + 16 * a + 8 * brr + 4 * x, 4), vER + x, a * 2048 + brr * 16384))
    for a in range(2):
        p('s_waitcnt lgkmcnt(%d)' % (4 if a == 0 else 0))
        r = RD + 16 * a
        for i in range(4): p('v_pk_add_f32 v[%d:%d], v[%d:%d], v[%d:%d]' % (r + 2 * i, r + 2 * i + 1, r + 2 * i, r + 2 * i + 1, r + 8 + 2 * i, r + 8 + 2 * i + 1))
        for i in range(4): cvt(p, r + 8 + i, r + 2 * i, r + 2 * i + 1)
        vm.op('buffer_store_dwordx4 %s, v%d, s[%d:%d], s%d offen %s' % (vr(r + 8, 4), V['vOUT'], sOUT, sOUT + 3, S['out0'] if a == 0 else S['out1'], cfg.outfl))
    p('s_cmp_eq_u32 s%d, 0' % s_b); p('s_cbranch_scc0 L_noep%s' % L)
    p('s_cmp_eq_u32 s%d, 0' % s_w); p('s_cbranch_scc0 L_noep%s' % L)
    p('v_mov_b32 v27, 0'); p('s_mov_b64 exec, 1')
    vm.op('buffer_store_dword v%d, v27, s[%d:%d], 0 offen sc1' % (vT, sWS, sWS + 3))
    p('s_mov_b64 exec, -1')
    p.label('L_noep%s' % L)

def rstamp(p, idx):
    if not cfg.stamps: return
    p('s_memrealtime s[%d:%d]' % (s_stamp, s_stamp + 1))
    p('s_waitcnt lgkmcnt(0)')
    p('v_writelane_b32 v255, s%d, %d' % (s_stamp, idx))

def write_stamps(p, vm):
    if not cfg.stamps: return
    rstamp(p, 12)
    if cfg.stamps == 2:
        L = 'x%d' % len(p.ins)
        p('s_load_dwordx2 s[4:5], s[0:1], 72'); p('s_waitcnt lgkmcnt(0)')
        p('s_mov_b32 s%d, s4' % sDBG); p('s_and_b32 s%d, s5, 0xffff' % (sDBG + 1)); p('s_mov_b32 s%d, 256' % (sDBG + 2)); p('s_mov_b32 s%d, 0x00020000' % (sDBG + 3))
        p('s_cmp_eq_u32 s%d, 0' % s_w); p('s_cbranch_scc0 L_ds2' + L)
        p('v_lshlrev_b32 v27, 2, v%d' % v_lane)
        p('s_cmp_eq_u32 s%d, 8' % s_b); p('s_cbranch_scc0 L_ds1' + L)
        p('s_mov_b64 exec, 0x1fff')
        vm.op('buffer_store_dword v255, v27, s[%d:%d], 0 offen' % (sDBG, sDBG + 3))
        p('s_mov_b64 exec, -1')
        p.label('L_ds1' + L)
        p('s_cmp_eq_u32 s%d, 255' % s_b); p('s_cbranch_scc0 L_ds2' + L)
        p('s_mov_b64 exec, 0x1800')
        vm.op('buffer_store_dword v255, v27, s[%d:%d], 0 offen offset:8' % (sDBG, sDBG + 3))
        p('s_mov_b64 exec, -1')
        p.label('L_ds2' + L)
        return
    p('s_lshl_b32 s%d, s%d, 2' % (s_t0, s_b)); p('s_add_u32 s%d, s%d, s%d' % (s_t0, s_t0, s_w)); p('s_lshl_b32 s%d, s%d, 8' % (s_t0, s_t0)); p('s_add_u32 s%d, s%d, %d' % (s_t0, s_t0, WS_STAMP))
    p('v_lshlrev_b32 v27, 2, v%d' % v_lane)
    vm.op('buffer_store_dword v255, v27, s[%d:%d], s%d offen' % (sDBG, sDBG + 3, s_t0))

def body(p, vm, br, dco, dwq):
    extra = {m: [] for m in range(8)}
    for m in range(6): extra[m] = dco(m + 2)
    if br == 0: extra[4] = extra[4] + gate_load_ops(p, vm)
    extra[6] = dwq(0)
    extra[7] = dwq(1)
    if cfg.poison == 1: poison_ops(p, vm, br)()
    if cfg.poison == 2: extra[7] = extra[7] + [poison_ops(p, vm, br)]
    if cfg.poison == 4: extra[3] = extra[3] + [poison_ops(p, vm, br)]
    pass1(p, vm, br, dco, dwq, extra)
    p('s_barrier')
    if cfg.poison == 3: poison_ops(p, vm, br)()
    stamp(p, 2)
    if cfg.debug == 1: dump_regs(p, vm, vK[0], 64, 0)
    make_tag(p, vm)
    if cfg.lwarm:
        p('s_lshl_b32 s%d, s%d, 1' % (s_t0, s_i)); p('s_add_u32 s%d, s%d, s%d' % (s_t0, s_t0, s_th)); p('s_lshl_b32 s%d, s%d, 5' % (s_t0, s_t0))
        p('s_lshl_b32 s%d, s%d, 1' % (s_t1, s_jj)); p('s_add_u32 s%d, s%d, s%d' % (s_t0, s_t0, s_t1)); p('s_add_u32 s%d, s%d, s%d' % (s_t0, s_t0, s_hp))
        p('s_add_u32 s%d, s%d, %d' % (s_t0, s_t0, 16 * br)); p('s_lshl_b32 s%d, s%d, 7' % (s_t0, s_t0)); p('s_add_u32 s%d, s%d, %d' % (s_t0, s_t0, WS_FLAG))
        p('s_lshl_b32 s%d, s%d, 2' % (s_t1, s_jj)); p('s_add_u32 s%d, s%d, s%d' % (s_t1, s_t1, s_w)); p('s_add_u32 s%d, s%d, %d' % (s_t1, s_t1, 32 * br))
        p('s_lshl_b32 s%d, s%d, 11' % (s_t1, s_t1)); p('s_lshl_b32 s%d, s%d, 7' % (s_t2, s_i)); p('s_add_u32 s%d, s%d, s%d' % (s_t1, s_t1, s_t2)); p('s_add_u32 s%d, s%d, %d' % (s_t1, s_t1, WS_OUTK + 12))
        p('v_not_b32 v28, v%d' % vT); p('v_mov_b32 v27, 0')
        p('s_mov_b64 exec, 1')
        vm.op('buffer_store_dword v28, v27, s[%d:%d], s%d offen sc1' % (sWS, sWS + 3, s_t0))
        vm.op('buffer_store_dword v28, v27, s[%d:%d], s%d offen sc1' % (sWS, sWS + 3, s_t1))
        p('s_mov_b64 exec, -1')
    side = dma_wo_ops(p, vm, 0)
    if cfg.wosched: side = side + dma_wo_ops(p, vm, 2)
    if br == 1:
        feat_k_B(p, vm, side)
        stamp(p, 3)
    else:
        gate_finish(p, vm)
        feat_k_A(p, side)
        stamp(p, 3)
        exchange(p, vm, br)
    if cfg.debug == 2: dump_regs(p, vm, ST, 32, 0)
    stamp(p, 4)
    sched = {}
    sched[('bar', 1)] = True
    st = hop1_store_ops(p, vm, br)
    for k, f in enumerate(st): sched.setdefault(k, []).append(f)
    for k, f in enumerate(dma_wo_ops(p, vm, 1)): sched.setdefault(cfg.wo1step + k, []).append(f)
    if cfg.wo2p2:
        for k, f in enumerate(dma_wo_ops(p, vm, 2)): sched.setdefault(cfg.wo1step + 8 + k, []).append(f)
    hl = hop1_load_ops(p, vm, br)
    for k, f in enumerate(hl): sched.setdefault(min(31, cfg.h1step + k), []).append(f)
    if cfg.owarm:
        ow = o_warm_ops(p, vm)
        def allw():
            for f in ow: f()
        sched.setdefault(cfg.owarm, []).append(allw)
    if cfg.v7:
        for k, f in enumerate(p3_setup7_ops(p, br)): sched.setdefault(4 + k, []).append(f) if 4 + k < 32 else sched.setdefault(31, []).append(f)
    if cfg.h1red:
        def hook():
            hop1_reduce(p, vm, br)
            stamp(p, 6)
        sched[('hook', cfg.h1red)] = hook
    pass2(p, vm, sched)
    stamp(p, 5)
    if cfg.debug == 1:
        p('s_nop 15'); dump_regs(p, vm, vQ[0], 32, 1)
    if not cfg.h1red:
        hop1_reduce(p, vm, br)
        stamp(p, 6)
    late = hop2_load_ops(p, vm, br)
    if cfg.v7 and br == 1 and not cfg.v7b: late = late + early_poll_ops(p, vm)
    if cfg.wo2p2 or cfg.wosched:
        p('s_barrier')
        side = dma_wo_ops(p, vm, 3)
    else:
        side = dma_wo_ops(p, vm, 2)
    if br == 1: feat_q_B(p, side, late)
    else: feat_q_A(p, side, late)
    stamp(p, 7)
    hop2_gather(p, vm, br)
    stamp(p, 8)
    if cfg.debug == 2: dump_regs(p, vm, KVA, 16, 1)
    o_phase(p, vm, br)
    if cfg.fine == 4: stamp(p, 41)
    if cfg.v7:
        tail7(p, vm, br)
        stamp(p, 10)
        write_stamps(p, vm)
        p('s_endpgm')
        return
    if cfg.wosched or cfg.wo2p2:
        vm.wait('wo3')
        p('s_barrier')
    elif not cfg.wo2p2:
        p('s_barrier')
    p3_setup(p)
    p3_scalars(p)
    o_flag(p, vm)
    if cfg.fine == 4: stamp(p, 43)
    if not cfg.wo2p2 and not cfg.wosched and not cfg.p3e:
        for f in dma_wo_ops(p, vm, 3): f()
        if cfg.earlyb4:
            vm.wait('wo3')
            p('s_barrier')
    stamp(p, 9)
    if cfg.two:
        p3_scalars2(p)
        p3two(p, vm, br)
    else: p3(p, vm, br)
    stamp(p, 10)
    write_stamps(p, vm)
    p('s_endpgm')

if __name__ == '__main__':
    import argparse
    ap = argparse.ArgumentParser()
    ap.add_argument('-o', default='k.s'); ap.add_argument('--debug', type=int, default=0); ap.add_argument('--rot', type=int, default=1)
    ap.add_argument('--maprow', type=int, default=1); ap.add_argument('--fine', type=int, default=0); ap.add_argument('--padA', type=int, default=0); ap.add_argument('--padB', type=int, default=0); ap.add_argument('--shared', type=int, default=0); ap.add_argument('--sleep', type=int, default=0); ap.add_argument('--pollfl', default='sc1'); ap.add_argument('--flagfl', default='sc1'); ap.add_argument('--v7b', type=int, default=1); ap.add_argument('--v7', type=int, default=0); ap.add_argument('--wo3step', type=int, default=1); ap.add_argument('--olb', type=int, default=14); ap.add_argument('--two', type=int, default=0); ap.add_argument('--ola2', type=int, default=10); ap.add_argument('--pbstep', type=int, default=8); ap.add_argument('--oalias', type=int, default=0); ap.add_argument('--lwarm', type=int, default=0); ap.add_argument('--poison', type=int, default=0); ap.add_argument('--p3e', type=int, default=0); ap.add_argument('--h1red', type=int, default=0); ap.add_argument('--mfexp', type=int, default=1); ap.add_argument('--outfl', default=''); ap.add_argument('--wosched', type=int, default=0); ap.add_argument('--earlyb4', type=int, default=1); ap.add_argument('--wsoff', type=lambda x: int(x,0), default=0); ap.add_argument('--owarm', type=int, default=0); ap.add_argument('--owarmfl', default=''); ap.add_argument('--wo2p2', type=int, default=0); ap.add_argument('--nowo', type=int, default=0); ap.add_argument('--codepf', type=int, default=1); ap.add_argument('--ola', type=int, default=12); ap.add_argument('--wo1step', type=int, default=4); ap.add_argument('--korder', type=int, default=1); ap.add_argument('--pro3', type=int, default=0); ap.add_argument('--worot', type=int, default=1); ap.add_argument('--orot', type=int, default=1); ap.add_argument('--pretouch', type=int, default=1); ap.add_argument('--h1step', type=int, default=19); ap.add_argument('--h2lead', type=int, default=130); ap.add_argument('--stamps', type=int, default=0)
    a = ap.parse_args()
    cfg.debug = a.debug; cfg.rot = a.rot; cfg.maprow = a.maprow; cfg.h1step = a.h1step; cfg.fine = a.fine; cfg.padA = a.padA; cfg.padB = a.padB; cfg.shared = a.shared; cfg.sleep = a.sleep; cfg.pollfl = a.pollfl; cfg.flagfl = a.flagfl; cfg.v7b = a.v7b; cfg.v7 = a.v7; cfg.wo3step = a.wo3step; cfg.olb = a.olb; cfg.two = a.two; cfg.ola2 = a.ola2; cfg.pbstep = a.pbstep; cfg.oalias = a.oalias; cfg.lwarm = a.lwarm; cfg.poison = a.poison; cfg.p3e = a.p3e; cfg.h1red = a.h1red; cfg.mfexp = a.mfexp; cfg.outfl = a.outfl; cfg.wosched = a.wosched; cfg.earlyb4 = a.earlyb4; cfg.wsoff = a.wsoff; cfg.owarm = a.owarm; cfg.owarmfl = a.owarmfl; cfg.wo2p2 = a.wo2p2; cfg.nowo = a.nowo; cfg.codepf = a.codepf; cfg.ola = a.ola; cfg.wo1step = a.wo1step; cfg.korder = a.korder; cfg.pro3 = a.pro3; cfg.worot = a.worot; cfg.orot = a.orot; cfg.pretouch = a.pretouch; cfg.h2lead = a.h2lead; cfg.stamps = a.stamps
    open(a.o, 'w').write(build())
```

```python
import sys; sys.path.insert(0,'work')
from asmdsl import *
import gen
K=gen.KNAME
def build(path,tests):
    L=["; @launch grid=(1,1,1) block=(256,1,1) lds=65536",'.amdgcn_target "amdgcn-amd-amdhsa--gfx950"','.text','.globl %s'%K,'.p2align 8','.type %s,@function'%K,K+':']
    T=[]
    T.append('s_cmp_ge_u32 s2, 1\ns_cbranch_scc1 L_end\ns_load_dwordx2 s[6:7], s[0:1], 64\ns_waitcnt lgkmcnt(0)\ns_mov_b32 s12, s6\ns_mov_b32 s13, s7\ns_mov_b32 s14, 0x200000\ns_mov_b32 s15, 0x00020000')
    T.append('s_mov_b32 s84, 0x3fb8aa3b\ns_mov_b32 s85, 0x3fb8aa3b')
    for r in range(1,256): T.append('v_mov_b32 v%d, 1.0'%r)
    T.append('v_mov_b32 v250, 0\nv_mov_b32 v3, 0')
    for i,(name,body,pad,reps) in enumerate(tests):
        for t in range(2):
            T.append('s_mov_b32 s20, %d'%reps)
            T.append('s_memtime s[16:17]\ns_waitcnt lgkmcnt(0)')
            T.append('s_branch L_%d_%d\n.p2align 6'%(i,t))
            for _ in range(pad): T.append('s_nop 0')
            T.append('L_%d_%d:'%(i,t))
            T.append(body)
            T.append('s_sub_u32 s20, s20, 1\ns_cmp_gt_u32 s20, 0\ns_cbranch_scc1 L_%d_%d'%(i,t))
            T.append('s_waitcnt lgkmcnt(0)\ns_memtime s[18:19]\ns_waitcnt lgkmcnt(0)\ns_sub_u32 s18, s18, s16')
        T.append('v_writelane_b32 v250, s18, %d'%i)
    T.append('v_lshlrev_b32 v2, 2, v0\nbuffer_store_dword v250, v2, s[12:15], 0 offen\ns_waitcnt vmcnt(0)')
    L.append('\n'.join(T)); L.append('L_end:\ns_endpgm')
    L.append('.section .rodata,"a"\n.p2align 6\n.amdhsa_kernel %s\n.amdhsa_next_free_vgpr 512\n.amdhsa_next_free_sgpr 102\n.amdhsa_accum_offset 256\n.amdhsa_group_segment_fixed_size 0\n.amdhsa_kernarg_size 88\n.amdhsa_user_sgpr_count 2\n.amdhsa_user_sgpr_kernarg_segment_ptr 1\n.amdhsa_system_sgpr_workgroup_id_x 1\n.end_amdhsa_kernel'%K)
    open(path,'w').write('\n'.join(L)+'\n')
pk='\n'.join('v_pk_fma_f32 v[%d:%d], v[%d:%d], s[84:85], v[136:137]'%(184+2*(i%16),185+2*(i%16),184+2*(i%16),185+2*(i%16)) for i in range(128))
cv='\n'.join('v_cvt_pk_bf16_f32 v%d, v%d, v%d'%(32+i%16,184+2*(i%16),185+2*(i%16)) for i in range(128))
mf='\n'.join('v_mfma_f32_32x32x16_bf16 v[64:79], v[4:7], v[8:11], v[64:79]\nds_read_b64_tr_b16 v[128:129], v3 offset:0\nds_read_b64_tr_b16 v[130:131], v3 offset:512\nds_read_b128 v[140:143], v3 offset:1024' for i in range(32))+'\ns_waitcnt lgkmcnt(0)'
mix='\n'.join('v_exp_f32 v%d, v%d\nv_pk_fma_f32 v[%d:%d], v[%d:%d], s[84:85], v[136:137]\nv_cvt_pk_bf16_f32 v%d, v200, v201'%(100+i%8,100+i%8,184+2*(i%8),185+2*(i%8),184+2*(i%8),185+2*(i%8),32+i%8) for i in range(48))
tests=[]
for name,body in (('128 pk_fma',pk),('128 cvt_pk',cv),('32x(mfma+3ds)',mf),('48x(exp,pk,cvt)',mix)):
    for pad in (0,1): tests.append((name+' pad%d'%pad,body,pad,50))
build('mb_align.s',tests)
open('mb_align_names.txt','w').write('\n'.join('%s|%d'%(t[0],t[3]) for t in tests))
```
